```python
import torch

def _softmax(x, axis=-1):
    return torch.softmax(x, dim=axis)
def _gelu(x):
    return torch.nn.functional.gelu(x, approximate="tanh")
def _silu(x):
    return torch.nn.functional.silu(x)
def _sigmoid(x):
    return torch.sigmoid(x)
def _layernorm(x, axis=-1, eps=1e-5):
    m = x.mean(dim=axis, keepdim=True)
    v = x.var(dim=axis, keepdim=True, unbiased=False)
    return (x - m) / torch.sqrt(v + eps)
def _scatter_add(tgt, idx, src, axis=0):
    return tgt.clone().index_add_(axis, idx, src)
def _segment_sum(src, seg, n):
    out = torch.zeros((n,) + src.shape[1:], dtype=src.dtype)
    return out.index_add_(0, seg, src)
def _pad(x, pw):
    flat = tuple(v for pair in reversed(pw) for v in pair)
    return torch.nn.functional.pad(x, flat)

kernel_name = 'parallel_sum__sliding_local_dilated__glu_gated_geglu__prompt'

def setup_inputs():

    _w = (lambda a: (lambda t: t.to(torch.bfloat16) if t.is_floating_point() else t)(torch.as_tensor(a)))
    def _A_setup():
        B, S, D = 1, 2048, 640
        return {
            "x": _w((lambda *s: torch.randn(*s, dtype=torch.bfloat16) * 0.05)(B, S, D)),
            "wqkv": _w((lambda *s: torch.randn(*s, dtype=torch.bfloat16) * 0.05)(D, 3 * D)),
            "wo": _w((lambda *s: torch.randn(*s, dtype=torch.bfloat16) * 0.05)(D, D)),
        }
    _A_in = _A_setup()

    def _B_setup():
        B, S, Dm, Df = 1, 2048, 640, 1536
        return {
            "x": _w((lambda *s: torch.randn(*s, dtype=torch.bfloat16) * 0.05)(B, S, Dm)),
            "w_gate": _w((lambda *s: torch.randn(*s, dtype=torch.bfloat16) * 0.8)(Dm, Df) * (Dm ** -0.5)),
            "w_up": _w((lambda *s: torch.randn(*s, dtype=torch.bfloat16) * 0.8)(Dm, Df) * (Dm ** -0.5)),
            "w_down": _w((lambda *s: torch.randn(*s, dtype=torch.bfloat16) * 0.8)(Df, Dm) * (Df ** -0.5)),
        }
    _B_in = _B_setup()

    return {
        "A_x": _A_in["x"],
        "A_wqkv": _A_in["wqkv"],
        "A_wo": _A_in["wo"],
        "B_x": _B_in["x"],
        "B_w_gate": _B_in["w_gate"],
        "B_w_up": _B_in["w_up"],
        "B_w_down": _B_in["w_down"],
    }

def reference(A_x, A_wqkv, A_wo, B_x, B_w_gate, B_w_up, B_w_down):
    def _A_ref(x, wqkv, wo):
        B, S, D = x.shape
        H = 32; Dh = D // H
        W, dil = 8, 2
        qkv = (lambda x, *d: x.permute(*d))((x @ wqkv).reshape(B, S, 3, H, Dh), 2, 0, 3, 1, 4)
        q, k, v = qkv[0], qkv[1], qkv[2]
        scale = Dh ** -0.5
        pos = torch.arange(S)
        off = torch.arange(W) * dil
        idx = pos[:, None] - off[None, :]
        mask = idx >= 0
        idx_c = torch.where(mask, idx, 0).reshape(-1)
        kg = k[:, :, idx_c, :].reshape(B, H, S, W, Dh)
        vg = v[:, :, idx_c, :].reshape(B, H, S, W, Dh)
        logits = torch.einsum("bhsd,bhswd->bhsw", q, kg) * scale
        logits = torch.where(mask[None, None, :, :], logits, -1e9)
        attn = _softmax(logits, axis=-1)
        o = torch.einsum("bhsw,bhswd->bhsd", attn, vg)
        return (lambda x, *d: x.permute(*d))(o, 0, 2, 1, 3).reshape(B, S, D) @ wo

    def _B_ref(x, w_gate, w_up, w_down):
        g = torch.einsum("bsd,df->bsf", x, w_gate)
        u = torch.einsum("bsd,df->bsf", x, w_up)
        h = _gelu(g) * u
        return torch.einsum("bsf,fd->bsd", h, w_down)

    x = A_x
    xn = _layernorm(x, axis=-1)
    return x + _A_ref(xn, A_wqkv, A_wo) + _B_ref(xn, B_w_gate, B_w_up, B_w_down)
```

```python
import re

def regs_of(tok):
    tok = tok.strip()
    tok = tok.lstrip('-')
    if tok.startswith('abs(') or tok.startswith('|'):
        tok = tok.replace('abs(', '').replace(')', '').replace('|', '')
    m = re.fullmatch(r'([vsa])(\d+)', tok)
    if m: return [(m.group(1), int(m.group(2)))]
    m = re.fullmatch(r'([vsa])\[(\d+):(\d+)\]', tok)
    if m: return [(m.group(1), i) for i in range(int(m.group(2)), int(m.group(3)) + 1)]
    if tok == 'vcc': return [('x', 'vcc')]
    if tok in ('vcc_lo', 'vcc_hi'): return [('x', 'vcc')]
    if tok == 'exec': return [('x', 'exec')]
    if tok == 'm0': return [('x', 'm0')]
    return []

TRANS = ('v_exp_f32', 'v_log_f32', 'v_rcp_f32', 'v_rsq_f32', 'v_sqrt_f32', 'v_sin_f32', 'v_cos_f32')

class Ins:
    def __init__(s, text):
        s.text = text
        t = text.split(';')[0].strip()
        s.op = t.split()[0]
        rest = t[len(s.op):].strip()
        ops = []; cur = ''; depth = 0
        for ch in rest:
            if ch == '[': depth += 1
            if ch == ']': depth -= 1
            if ch == ',' and depth == 0:
                ops.append(cur.strip()); cur = ''
            else: cur += ch
        if cur.strip(): ops.append(cur.strip())
        if ops:
            last = ops[-1].split()
            s.mods = ' '.join(last[1:]); ops[-1] = last[0]
        else: s.mods = ''
        s.ops = ops
        op = s.op
        R = lambda l: [r for o in l for r in regs_of(o)]
        s.w = []; s.r = []; s.cls = 'other'
        s.srcC = []; s.srcAB = []; s.sdata = []
        s.nst = 1
        if op == 's_nop':
            s.nst = int(ops[0], 0) + 1; s.cls = 'salu'
        elif op.startswith('v_mfma'):
            s.cls = 'mfma'; s.w = R(ops[:1]); s.srcAB = R(ops[1:3]); s.srcC = R(ops[3:4]); s.r = s.srcAB + s.srcC
            s.passes = 8 if '32x32' in op else 4
        elif op.startswith('v_'):
            s.cls = 'valu'
            s.w = R(ops[:1]); s.r = R(ops[1:])
            if '_co_' in op: s.w = R(ops[:2]); s.r = R(ops[2:])
            if op.startswith(('v_fmac', 'v_dot2c', 'v_pk_fmac')): s.r += R(ops[:1])
            if 'permlane' in op and 'swap' in op: s.w = R(ops[:2]); s.r = R(ops[:2])
            if op.startswith('v_cmpx'): s.w += [('x', 'exec')]
            if 'dpp' in op or 'row_' in s.mods or 'quad_perm' in s.mods or 'wave_' in s.mods:
                s.dpp = True
                s.r += R(ops[:1])
            else: s.dpp = False
        elif op.startswith('ds_'):
            s.cls = 'ds'
            if op.startswith(('ds_read', 'ds_bpermute', 'ds_permute', 'ds_swizzle')):
                s.w = R(ops[:1]); s.r = R(ops[1:])
            else: s.r = R(ops)
        elif op.startswith(('buffer_', 'global_')):
            s.cls = 'vmem'
            lds = re.search(r'\blds\b', s.mods) is not None or 'load_lds' in op
            s.lds = lds
            if 'load' in op and not lds:
                s.w = R(ops[:1]); s.r = R(ops[1:])
            else:
                s.r = R(ops)
                if 'store' in op and ('x4' in op or 'x3' in op):
                    s.sdata = R(ops[:1]) if op.startswith('buffer') else R(ops[1:2])
                if 'atomic' in op and 'sc0' in s.mods: s.w = R(ops[:1])
            if lds: s.r += [('x', 'm0')]
        elif op.startswith('s_'):
            s.cls = 'salu'
            if op.startswith(('s_cmp', 's_cbranch', 's_branch', 's_waitcnt', 's_barrier', 's_endpgm', 's_setprio', 's_sleep')):
                s.r = R(ops)
            else:
                s.w = R(ops[:1]); s.r = R(ops[1:])
                if 'saveexec' in op: s.w += [('x', 'exec')]

def need(p, c):
    n = 0
    pw = set(p.w); cr = set(c.r); cw = set(c.w)
    isv = lambda S: {r for r in S if r[0] in 'va'}
    iss = lambda S: {r for r in S if r[0] == 's' or r == ('x', 'vcc')}
    if p.cls == 'valu':
        if c.cls == 'mfma' and isv(pw) & cr: n = max(n, 2)
        if c.cls == 'mfma' and ('x', 'exec') in pw: n = max(n, 4)
        if c.cls == 'vmem' and iss(pw) & cr: n = max(n, 5)
        if c.cls == 'valu':
            if iss(pw) & cr:
                n = max(n, 4 if c.op.startswith(('v_readlane', 'v_writelane')) else 2)
            if c.dpp and isv(pw) & cr: n = max(n, 2)
            if c.dpp and ('x', 'exec') in pw: n = max(n, 5)
            if c.op.startswith(('v_readlane', 'v_readfirstlane')) and isv(pw) & cr: n = max(n, 1)
            if c.op.startswith(('v_readlane', 'v_readfirstlane', 'v_writelane')) and ('x', 'exec') in pw: n = max(n, 4)
            if 'permlane' in c.op and isv(pw) & cr: n = max(n, 2)
            if 'permlane' in c.op and ('x', 'exec') in pw: n = max(n, 4)
            if p.op.startswith(TRANS) and not c.op.startswith(TRANS) and isv(pw) & (cr | cw): n = max(n, 1)
            if 'op_sel' in p.mods and not p.op.startswith('v_pk') and isv(pw) & (cr | cw): n = max(n, 1)
        if c.cls == 'salu' and iss(pw) & cr: n = max(n, 1)
    if p.cls == 'mfma':
        big = {4: 8, 8: 12}[p.passes]
        if c.cls == 'mfma':
            if pw & set(c.srcAB): n = max(n, big)
            if pw & set(c.srcC):
                if not (p.w == c.srcC and p.passes == c.passes): n = max(n, {4: 6, 8: 10}[p.passes])
            elif pw & cw: n = max(n, big)
        elif c.cls in ('valu', 'ds', 'vmem'):
            if pw & (cr | cw): n = max(n, big)
            if c.cls == 'valu' and set(p.srcC) & cw: n = max(n, {4: 3, 8: 7}[p.passes])
    if p.cls == 'salu':
        if ('x', 'm0') in pw and c.cls == 'vmem' and c.lds: n = max(n, 1)
    if p.cls == 'vmem' and p.sdata:
        if set(p.sdata) & cw: n = max(n, 2 if c.cls == 'valu' else 1)
    return n

class Asm:
    def __init__(s):
        s.lines = []
        s.hist = []
        s.nops = 0
    def raw(s, text):
        s.lines.append(text)
    def label(s, name, pad=0):
        s.lines.append(name + ':')
    def comment(s, t):
        s.lines.append('    ; ' + t)
    def __call__(s, text):
        for t in text.split('\n'):
            t = t.strip()
            if not t or t.startswith(';'):
                continue
            if t.endswith(':'):
                s.label(t[:-1]); continue
            s.emit(t)
    def emit(s, text):
        c = Ins(text)
        dist = 0; req = 0
        for p in reversed(s.hist):
            n = need(p, c)
            if n > dist: req = max(req, n - dist)
            dist += p.nst
            if dist > 24: break
        while req > 0:
            k = min(req, 16)
            nop = Ins('s_nop %d' % (k - 1))
            s.lines.append('    s_nop %d' % (k - 1)); s.hist.append(nop); s.nops += 1
            req -= k
        s.lines.append('    ' + text)
        s.hist.append(c)
        if len(s.hist) > 64: s.hist = s.hist[-40:]
    def fence(s, n=12):
        s.emit('s_nop %d' % (n - 1))
    def text(s):
        return '\n'.join(s.lines) + '\n'

def vr(a, n=1):
    return 'v%d' % a if n == 1 else 'v[%d:%d]' % (a, a + n - 1)
def sr(a, n=1):
    return 's%d' % a if n == 1 else 's[%d:%d]' % (a, a + n - 1)
def f32(x):
    import struct
    return '0x%08x' % struct.unpack('<I', struct.pack('<f', x))[0]
```

```python
import sys, math
from asmlib import *

NAME = "parallel_sum__sliding_local_dilated__glu_gated_geglu__prompt"
WS_A2, A2_RB, A2_SZ = 0, 278528, 32 * 278528
WS_W2, W2_CB, W2_SZ = 0x900000, 348160, 8 * 348160
WS_QKV, QKV_HG, QKV_SZ = 0xC00000, 983040, 8 * 983040
XSZ = 2048 * 1280
OOB = 0x7f000000
LOG2E = 1.4426950408889634
C1 = -2.0 * LOG2E * math.sqrt(2.0 / math.pi)
C2 = C1 * 0.044715

def srd(a, d, lo, hi, size, add=None):
    if add is None:
        a(f's_mov_b32 s{d}, s{lo}')
        a(f's_mov_b32 s{d+1}, s{hi}')
    else:
        a(f's_add_u32 s{d}, s{lo}, {add}')
        a(f's_addc_u32 s{d+1}, s{hi}, 0')
    a(f's_mov_b32 s{d+2}, {size}')
    a(f's_mov_b32 s{d+3}, 0x20000')

def load_args(a):
    a('s_load_dwordx4 s[4:7], s[0:1], 0')
    a('s_load_dwordx2 s[8:9], s[0:1], 16')
    a('s_load_dwordx4 s[12:15], s[0:1], 32')
    a('s_load_dwordx4 s[16:19], s[0:1], 48')
    a('s_load_dwordx4 s[20:23], s[0:1], 64')

class LQ:
    def __init__(s, a): s.a = a; s.q = []
    def issue(s, tag, text): s.a(text); s.q.append(tag)
    def wait(s, tag):
        if tag not in s.q: return
        idx = max(i for i, t in enumerate(s.q) if t == tag)
        n = len(s.q) - 1 - idx
        assert n <= 15
        s.a(f's_waitcnt lgkmcnt({n})')
        s.q = s.q[idx + 1:]

LW, LX, LST = 0, 98304, 147456
def k1(a):
    K = 'k1'
    a.raw('.p2align 8'); a.label('k1_kernel')
    a('s_cmp_ge_u32 s2, 256'); a('s_cbranch_scc1 k1_exit')
    load_args(a)
    a('v_lshrrev_b32 v1, 6, v0')
    a('v_and_b32 v243, 63, v0')
    a('v_readfirstlane_b32 s40, v1')
    a('s_and_b32 s45, s2, 7'); a('s_lshr_b32 s46, s2, 3')
    a('s_mul_i32 s47, s45, 31'); a('s_add_u32 s47, s47, s46')
    a('s_waitcnt lgkmcnt(0)')
    a('s_cmp_eq_u32 s46, 31'); a('s_cbranch_scc1 k1_trans')
    a('s_mov_b32 s45, 8')
    a('s_cmp_ge_u32 s47, 247'); a('s_cbranch_scc1 k1_trans')
    a('s_cmp_lt_u32 s47, 130')
    a('s_cbranch_scc0 k1_dec1')
    a('s_mul_i32 s44, s47, 205'); a('s_lshr_b32 s44, s44, 11')
    a('s_mul_i32 s46, s44, 10'); a('s_sub_u32 s41, s47, s46')
    a('s_branch k1_dec2')
    a.label('k1_dec1')
    a('s_sub_u32 s47, s47, 130')
    a('s_mul_i32 s44, s47, 57'); a('s_lshr_b32 s44, s44, 9')
    a('s_mul_i32 s46, s44, 9'); a('s_sub_u32 s41, s47, s46'); a('s_add_u32 s41, s41, 10')
    a.label('k1_dec2')
    a('s_mul_i32 s41, s41, 108')
    srd(a, 24, 4, 5, XSZ)
    a('s_cmp_ge_u32 s44, 8'); a('s_cbranch_scc1 k1_isq')
    a('s_mov_b32 s43, 0'); a('s_mov_b32 s42, 3072')
    a('s_mul_i32 s46, s44, 384'); a(f's_sub_u32 s47, {640*3072}, s46')
    srd(a, 28, 12, 13, 's47', 's46'); srd(a, 32, 14, 15, 's47', 's46')
    srd(a, 36, 22, 23, A2_SZ, WS_A2 if WS_A2 else None)
    a(f's_mov_b32 s48, {A2_RB}'); a('s_mov_b32 s49, 1024'); a(f's_mov_b32 s50, {f32(C1)}')
    a('s_branch k1_roles')
    a.label('k1_isq')
    a('s_mov_b32 s43, 1'); a('s_mov_b32 s42, 3840')
    a('s_sub_u32 s44, s44, 8')
    a('s_mul_i32 s46, s44, 768'); a(f's_sub_u32 s47, {640*3840}, s46')
    srd(a, 28, 6, 7, 's47', 's46')
    a('s_add_u32 s46, s46, 384'); a('s_sub_u32 s47, s47, 384')
    srd(a, 32, 6, 7, 's47', 's46')
    srd(a, 36, 22, 23, QKV_SZ, WS_QKV)
    a('s_mov_b32 s48, 30720'); a('s_mov_b32 s49, 7680'); a('s_mov_b32 s50, 1.0')
    a.label('k1_roles')
    a('s_cmp_lt_u32 s40, 4'); a('s_cbranch_scc1 k1_cons')
    k1_producer(a)
    a.label('k1_cons')
    k1_consumer(a)
    a.label('k1_trans')
    k1_trans(a)
    a.label('k1_exit')
    a('s_endpgm')

def k1_producer(a):
    L = 'v243'
    a('s_sub_u32 s40, s40, 4')
    a('s_and_b32 s51, s40, 1')
    a(f'v_lshrrev_b32 v2, 3, {L}')
    a(f'v_and_b32 v3, 7, {L}')
    a(f'v_bfe_u32 v4, {L}, 4, 1'); a('v_lshl_or_b32 v4, v4, 2, s51')
    a('v_xor_b32 v4, v4, v3'); a('v_lshlrev_b32 v4, 4, v4')
    a('s_lshl_b32 s52, s40, 3'); a('v_add_u32 v5, s52, v2')
    a('v_mad_u32_u24 v10, v5, s42, v4')
    a('s_lshl_b32 s53, s51, 2'); a('v_lshrrev_b32 v4, 1, v2'); a('v_or_b32 v4, s53, v4')
    a('v_xor_b32 v4, v4, v3'); a('v_lshlrev_b32 v4, 4, v4')
    a('s_add_u32 s52, s52, s41'); a('v_add_u32 v5, s52, v2')
    a('s_movk_i32 s53, 1280')
    a('v_mad_u32_u24 v12, v5, s53, v4')
    a('v_add_u32 v13, 40960, v12'); a('v_add_u32 v14, 81920, v12')
    a('s_cmp_ge_u32 s40, 2'); a(f's_cselect_b32 s53, {OOB}, 0'); a('s_add_u32 s53, s53, 122880')
    a('v_add_u32 v15, s53, v12')
    a('s_lshl_b32 s54, s40, 10')
    a('s_lshl_b32 s55, s42, 5')
    a('s_mov_b32 s56, 0')
    a('s_mov_b32 s57, s54')
    a('s_mov_b32 s58, 0')
    a(f's_add_u32 s59, s54, {LX}')
    def issueW():
        for half in range(2):
            for c in range(3):
                a(f's_add_u32 m0, s57, {(half*3+c)*4096 - c*128}')
                a(f'buffer_load_dwordx4 v10, s[{28+4*half}:{31+4*half}], s56 offen offset:{c*128} lds')
        a('s_add_u32 s56, s56, s55')
        a('s_add_u32 s57, s57, 24576')
        a(f's_cmp_ge_u32 s57, {4*24576}'); a(f's_cselect_b32 s60, {4*24576}, 0'); a('s_sub_u32 s57, s57, s60')
    def issueX():
        for m in range(4):
            a(f's_add_u32 m0, s59, {m*4096}')
            a(f'buffer_load_dwordx4 v{12+m}, s[24:27], s58 offen lds')
        a('s_add_u32 s58, s58, 128')
        a('s_add_u32 s59, s59, 16384')
        a(f's_cmp_ge_u32 s59, {LX+3*16384}'); a(f's_cselect_b32 s60, {3*16384}, 0'); a('s_sub_u32 s59, s59, s60')
    issueX(); issueW(); issueW(); issueX(); issueW(); issueW()
    a(f'v_lshlrev_b32 v16, 4, {L}'); a('v_add_u32 v16, s54, v16'); a(f'v_add_u32 v16, {LX}, v16')
    for i in range(8): a(f'v_mov_b32 v{20+i}, 0')
    a('s_mov_b32 s61, 0')
    a('s_mov_b32 s62, 0')
    a('s_waitcnt vmcnt(22)'); a('s_barrier')
    a('s_waitcnt vmcnt(16)'); a('s_barrier')
    a.label('k1_ploop')
    a('v_add_u32 v17, s62, v16')
    for m in range(4): a(f'ds_read_b128 v[{32+4*m}:{35+4*m}], v17 offset:{m*4096}')
    a('s_cmp_gt_u32 s61, 7'); a('s_cbranch_scc1 k1_p1')
    issueW(); issueX()
    a.label('k1_p1')
    a('s_add_u32 s62, s62, 16384'); a(f's_cmp_ge_u32 s62, {3*16384}'); a('s_cselect_b32 s62, 0, s62')
    def stats(ms):
        for m in ms:
            a(f's_waitcnt lgkmcnt({3-m})')
            for d in range(4):
                r = 32 + 4 * m + d
                a(f'v_lshlrev_b32 v48, 16, v{r}'); a(f'v_and_b32 v49, 0xffff0000, v{r}')
                a(f'v_add_f32 v{20+m}, v{20+m}, v48'); a(f'v_fmac_f32 v{24+m}, v48, v48')
                a(f'v_add_f32 v{20+m}, v{20+m}, v49'); a(f'v_fmac_f32 v{24+m}, v49, v49')
    stats([0, 1])
    a('s_cmp_gt_u32 s61, 7'); a('s_cbranch_scc1 k1_p2')
    a('s_waitcnt vmcnt(16)'); a('s_barrier')
    issueW()
    a('s_branch k1_p3')
    a.label('k1_p2')
    a('s_waitcnt vmcnt(0)'); a('s_barrier')
    a.label('k1_p3')
    stats([2, 3])
    a('s_cmp_eq_u32 s61, 9'); a('s_cbranch_scc1 k1_pend')
    a('s_waitcnt vmcnt(16)'); a('s_barrier')
    a('s_add_u32 s61, s61, 1')
    a('s_branch k1_ploop')
    a.label('k1_pend')
    for ctl in ('quad_perm:[1,0,3,2]', 'quad_perm:[2,3,0,1]', 'row_half_mirror'):
        for i in range(8):
            a(f'v_add_f32_dpp v{20+i}, v{20+i}, v{20+i} {ctl} row_mask:0xf bank_mask:0xf')
    a(f's_mov_b32 s60, {f32(1.0/640)}'); a(f's_mov_b32 s63, {f32(C2)}')
    a('s_lshl_b32 s52, s40, 7'); a('v_lshlrev_b32 v4, 4, v2'); a('v_add_u32 v4, s52, v4'); a(f'v_add_u32 v4, {LST}, v4')
    for m in range(4):
        b = 32 + 4 * m
        a(f'v_mul_f32 v{b}, s60, v{20+m}')
        a(f'v_mul_f32 v{b+3}, s60, v{24+m}')
        a(f'v_fma_f32 v{b+3}, -v{b}, v{b}, v{b+3}')
        a(f'v_max_f32 v{b+3}, 0, v{b+3}')
        a(f'v_add_f32 v{b+3}, {f32(1e-5)}, v{b+3}')
        a(f'v_rsq_f32 v{b+1}, v{b+3}')
        a(f'v_sub_f32 v{b}, 0, v{b}')
        a(f'v_mul_f32 v{b+2}, v{b+1}, v{b+1}'); a(f'v_mul_f32 v{b+2}, v{b+2}, v{b+1}'); a(f'v_mul_f32 v{b+2}, s63, v{b+2}')
        a(f'v_mul_f32 v{b+1}, s50, v{b+1}')
        a(f'ds_write_b128 v4, v[{b}:{b+3}] offset:{m*512}')
    a('s_waitcnt lgkmcnt(0)'); a('s_barrier')
    a('s_endpgm')

def ACC(j, t): return (j * 7 + t) * 4
WF = lambda s, j: 168 + s * 24 + j * 4
XB = lambda b: 216 + 4 * b
WA = lambda hi, j: 232 + 3 * hi + j
def k1_consumer(a):
    L = 'v243'
    a(f'v_lshrrev_b32 v1, 4, {L}'); a(f'v_and_b32 v2, 15, {L}'); a(f'v_bfe_u32 v3, {L}, 2, 2'); a(f'v_and_b32 v4, 3, {L}')
    a('v_lshrrev_b32 v5, 1, v3'); a('v_lshlrev_b32 v5, 2, v5'); a('v_and_b32 v6, 1, v1'); a('v_or_b32 v5, v5, v6')
    a('v_xor_b32 v5, v5, v4'); a('v_lshlrev_b32 v5, 4, v5')
    a('v_and_b32 v6, 1, v4'); a('v_lshl_or_b32 v5, v6, 3, v5')
    a('v_lshl_or_b32 v5, v3, 7, v5'); a('v_lshl_or_b32 v5, v1, 10, v5')
    a('s_lshr_b32 s51, s40, 1'); a('s_mul_i32 s51, s51, 3'); a('s_add_u32 s52, s51, 1')
    a('s_and_b32 s53, s40, 1'); a('s_lshl_b32 s54, s53, 1'); a('s_add_u32 s51, s51, s54')
    a('s_and_b32 s54, s51, 1'); a('s_lshl_b32 s54, s54, 6'); a('s_lshr_b32 s55, s51, 1'); a('s_lshl_b32 s55, s55, 12')
    a('v_xor_b32 v6, s54, v5'); a(f'v_add_u32 v{WA(0,0)}, s55, v6'); a(f'v_xor_b32 v{WA(0,1)}, 8, v{WA(0,0)}')
    a('s_and_b32 s54, s52, 1'); a('s_lshl_b32 s54, s54, 6'); a('s_lshl_b32 s56, s53, 3'); a('s_or_b32 s54, s54, s56')
    a('s_lshr_b32 s55, s52, 1'); a('s_lshl_b32 s55, s55, 12')
    a('v_xor_b32 v6, s54, v5'); a(f'v_add_u32 v{WA(0,2)}, s55, v6')
    for j in range(3): a(f'v_add_u32 v{WA(1,j)}, 49152, v{WA(0,j)}')
    a('v_lshrrev_b32 v5, 1, v2'); a('v_xor_b32 v5, v5, v1'); a('v_lshlrev_b32 v5, 4, v5'); a('v_lshl_or_b32 v5, v2, 7, v5')
    a(f'v_add_u32 v240, {LX}, v5'); a('v_xor_b32 v241, 64, v240')
    a('v_mov_b32 v238, v240'); a('v_mov_b32 v239, v241')
    a('v_mov_b32 v242, 0x3f803f80')
    a('v_cmp_eq_u32 s[64:65], 15, v2')
    for t in range(7):
        a(f's_add_u32 s54, s41, {16*t}'); a('v_add_u32 v5, s54, v2')
        a('v_lshrrev_b32 v6, 6, v5'); a('v_mul_lo_u32 v6, v6, s48')
        a('v_bfe_u32 v7, v5, 4, 2'); a('v_mad_u32_u24 v6, v7, s49, v6')
        a('v_and_b32 v7, 15, v5'); a(f'v_lshl_add_u32 v{244+t}, v7, 4, v6')
    a('v_cmp_gt_u32 vcc, 12, v2'); a('v_cmp_gt_u32 s[66:67], 2048, v5') if False else None
    a('s_movk_i32 s54, 2048'); a('v_cmp_gt_u32 s[66:67], s54, v5'); a('s_and_b64 vcc, vcc, s[66:67]')
    a(f'v_mov_b32 v6, {OOB}'); a('v_cndmask_b32 v250, v6, v250, vcc')
    a('s_cmp_eq_u32 s43, 1'); a('s_cbranch_scc1 k1_cq')
    a('s_mul_i32 s54, s44, 6'); a('s_add_u32 s55, s54, s51'); a('s_lshl_b32 s55, s55, 12')
    a('v_lshlrev_b32 v5, 8, v1'); a('v_add_u32 v251, s55, v5')
    a('s_add_u32 s55, s54, s52'); a('s_lshl_b32 s55, s55, 12'); a('s_add_u32 s55, s55, s56')
    a('v_add_u32 v252, s55, v5')
    a('v_mov_b32 v253, 0'); a('v_mov_b32 v254, 0')
    a('s_branch k1_cq2')
    a.label('k1_cq')
    a(f's_mov_b32 s57, {QKV_HG}'); a('s_movk_i32 s58, 2560')
    for x in range(4):
        half, sh = x >> 1, x & 1
        a('s_mul_i32 s54, s44, 48'); a(f's_lshl_b32 s55, s{52 if sh else 51}, 2'); a('s_add_u32 s54, s54, s55'); a(f's_add_u32 s54, s54, {24*half}')
        a('v_add_u32 v5, s54, v1')
        a('v_mul_u32_u24 v6, 205, v5'); a('v_lshrrev_b32 v6, 14, v6')
        a('v_mul_u32_u24 v7, 80, v6'); a('v_sub_u32 v5, v5, v7')
        a('v_mul_u32_u24 v7, 205, v5'); a('v_lshrrev_b32 v7, 11, v7')
        a('v_mul_u32_u24 v8, 10, v7'); a('v_sub_u32 v5, v5, v8')
        a('v_mul_lo_u32 v7, v7, s57'); a('v_mad_u32_u24 v7, v6, s58, v7'); a(f'v_lshl_add_u32 v{251+x}, v5, 8, v7')
        if sh: a(f'v_add_u32 v{251+x}, s56, v{251+x}')
    a.label('k1_cq2')
    for r in range(168): a(f'v_mov_b32 v{r}, 0')
    a('s_mov_b32 s60, 0')
    a('s_mov_b32 s61, 0')
    q = LQ(a)
    def wread(q, slot, setn, idx):
        j, hf = idx >> 1, idx & 1
        off = (slot & 1) * 24576 + (j // 3) * 12288 + hf * 512
        d = WF(setn, j) + 2 * hf
        q.issue('W', f'ds_read_b64_tr_b16 v[{d}:{d+1}], v{WA(slot >> 1, j % 3)} offset:{off}')
    def xread(q, step, t):
        b = XB((7 * step + t) % 4)
        q.issue(('X', step % 4, t), f'ds_read_b128 v[{b}:{b+3}], v{238 + (step & 1)} offset:{t*2048}')
    a('s_barrier')
    for idx in range(12): wread(q, 0, 0, idx)
    for t in range(3): xread(q, 0, t)
    a.label('k1_cloop')
    for k in range(4):
        cur, nxt = k & 1, (k + 1) & 1
        widx = 0
        for t in range(7):
            q.wait(('X', k, t))
            fill = []
            tt = t + 3
            fill.append(lambda tt=tt: xread(q, k if tt <= 6 else k + 1, tt if tt <= 6 else tt - 7))
            if t == 0: fill.append(lambda: a('s_barrier'))
            if t <= 3:
                for _ in range(3):
                    fill.append(lambda w=widx: wread(q, (k + 1) % 4, nxt, w)); widx += 1
            if t == 4:
                if k & 1 == 0:
                    fill.append(lambda: (a('s_add_u32 s60, s60, 16384'), a(f's_cmp_ge_u32 s60, {3*16384}'), a('s_cselect_b32 s60, 0, s60')))
                    fill.append(lambda: a('v_add_u32 v238, s60, v240'))
                else:
                    fill.append(lambda: a('v_add_u32 v239, s60, v241'))
            if t == 5:
                b6 = XB((7 * k + 6) % 4)
                fill.append(lambda: q.wait(('X', k, 6)))
                fill.append(lambda: (a(f'v_cndmask_b32 v{b6}, v{b6}, v242, s[64:65]'), a(f'v_cndmask_b32 v{b6+1}, v{b6+1}, v242, s[64:65]')))
                fill.append(lambda: (a(f'v_cndmask_b32 v{b6+2}, v{b6+2}, v242, s[64:65]'), a(f'v_cndmask_b32 v{b6+3}, v{b6+3}, v242, s[64:65]')))
            if t == 6 and k == 3:
                fill.append(lambda: (a('s_add_u32 s61, s61, 1'), a('s_cmp_lt_u32 s61, 5')))
            xb = XB((7 * k + t) % 4)
            for j in range(6):
                c = ACC(j, t)
                a(f'v_mfma_f32_16x16x32_bf16 v[{c}:{c+3}], v[{WF(cur,j)}:{WF(cur,j)+3}], v[{xb}:{xb+3}], v[{c}:{c+3}]')
                if fill: fill.pop(0)()
            assert not fill
    a('s_cbranch_scc1 k1_cloop')
    a('s_waitcnt lgkmcnt(0)')
    a('s_barrier')
    a(f'v_and_b32 v232, 15, {L}'); a('v_lshlrev_b32 v232, 4, v232'); a(f'v_add_u32 v232, {LST}, v232')
    ST = lambda t: 168 + 4 * t
    CS = lambda j: 196 + 4 * j
    for t in range(7): a(f'ds_read_b128 v[{ST(t)}:{ST(t)+3}], v232 offset:{t*256}')
    a.fence(8)
    for j in range(6):
        for r in range(4):
            a(f'v_mov_b32_dpp v{CS(j)+r}, v{ACC(j,6)+r} row_newbcast:15 row_mask:0xf bank_mask:0xf')
    a('s_cmp_eq_u32 s43, 1'); a('s_cbranch_scc1 k1_epq')
    P = lambda r: f'v[{r}:{r+1}]'
    for t in range(7):
        a(f's_waitcnt lgkmcnt({6-t})')
        s01, s23 = P(ST(t)), P(ST(t) + 2)
        prs = [(j, hp) for j in range(3) for hp in range(2)]
        T = lambda n: 220 + 2 * n
        G = lambda j, hp: ACC(j, t) + 2 * hp
        U = lambda j, hp: ACC(j + 3, t) + 2 * hp
        for j, hp in prs: a(f'v_pk_fma_f32 {P(G(j,hp))}, {P(CS(j)+2*hp)}, {s01}, {P(G(j,hp))} op_sel:[0,0,0] op_sel_hi:[1,0,1]')
        for n, (j, hp) in enumerate(prs): a(f'v_pk_mul_f32 {P(T(n))}, {P(G(j,hp))}, {P(G(j,hp))}')
        for n, (j, hp) in enumerate(prs): a(f'v_pk_fma_f32 {P(T(n))}, {P(T(n))}, {s23}, {s01} op_sel:[0,0,1] op_sel_hi:[1,0,1]')
        for n, (j, hp) in enumerate(prs): a(f'v_pk_mul_f32 {P(T(n))}, {P(T(n))}, {P(G(j,hp))}')
        for n, (j, hp) in enumerate(prs):
            a(f'v_exp_f32 v{T(n)}, v{T(n)}'); a(f'v_exp_f32 v{T(n)+1}, v{T(n)+1}')
            a(f'v_pk_fma_f32 {P(U(j,hp))}, {P(CS(j+3)+2*hp)}, {s01}, {P(U(j,hp))} op_sel:[0,0,0] op_sel_hi:[1,0,1]')
        for n, (j, hp) in enumerate(prs): a(f'v_pk_fma_f32 {P(T(n))}, {P(T(n))}, {s23}, {s23} op_sel:[0,1,1] op_sel_hi:[1,1,1]')
        for n, (j, hp) in enumerate(prs):
            a(f'v_rcp_f32 v{T(n)}, v{T(n)}'); a(f'v_rcp_f32 v{T(n)+1}, v{T(n)+1}')
            a(f'v_pk_mul_f32 {P(U(j,hp))}, {P(U(j,hp))}, {P(G(j,hp))}')
        for n, (j, hp) in enumerate(prs): a(f'v_pk_mul_f32 {P(U(j,hp))}, {P(U(j,hp))}, {P(T(n))}')
        o4, o2 = ACC(0, t), ACC(1, t)
        for n, (j, hp) in enumerate(prs):
            d = o4 + n if n < 4 else o2 + n - 4
            a(f'v_cvt_pk_bf16_f32 v{d}, v{U(j,hp)}, v{U(j,hp)+1}')
        a(f'v_add_u32 v{ACC(2,t)}, v{244+t}, v251'); a(f'v_add_u32 v{ACC(2,t)+1}, v{244+t}, v252')
        a(f'buffer_store_dwordx4 v[{o4}:{o4+3}], v{ACC(2,t)}, s[36:39], 0 offen')
        a(f'buffer_store_dwordx2 v[{o2}:{o2+1}], v{ACC(2,t)+1}, s[36:39], 0 offen')
    a('s_endpgm')
    a.label('k1_epq')
    for t in range(7):
        a(f's_waitcnt lgkmcnt({6-t})')
        s01 = P(ST(t))
        prs = [(j, hp) for j in range(6) for hp in range(2)]
        G = lambda j, hp: ACC(j, t) + 2 * hp
        for j, hp in prs: a(f'v_pk_fma_f32 {P(G(j,hp))}, {P(CS(j)+2*hp)}, {s01}, {P(G(j,hp))} op_sel:[0,0,0] op_sel_hi:[1,0,1]')
        for j, hp in prs: a(f'v_pk_mul_f32 {P(G(j,hp))}, {P(G(j,hp))}, {s01} op_sel:[0,1] op_sel_hi:[1,1]')
        for half in range(2):
            o4, o2 = ACC(3 * half, t), ACC(3 * half + 2, t)
            for n in range(6):
                j, hp = 3 * half + (n >> 1), n & 1
                d = o4 + n if n < 4 else o2 + n - 4
                a(f'v_cvt_pk_bf16_f32 v{d}, v{G(j,hp)}, v{G(j,hp)+1}')
            ad = ACC(3 * half + 1, t)
            a(f'v_add_u32 v{ad}, v{244+t}, v{251+2*half}'); a(f'v_add_u32 v{ad+1}, v{244+t}, v{252+2*half}')
            a(f'buffer_store_dwordx4 v[{o4}:{o4+3}], v{ad}, s[36:39], 0 offen')
            a(f'buffer_store_dwordx2 v[{o2}:{o2+1}], v{ad+1}, s[36:39], 0 offen')
    a('s_endpgm')

def k1_trans(a):
    L = 'v243'
    a('s_lshl_b32 s41, s45, 3'); a('s_add_u32 s41, s41, s40')
    a('s_cmp_ge_u32 s41, 68'); a('s_cbranch_scc1 k1_exit')
    srd(a, 36, 22, 23, W2_SZ, WS_W2)
    a('s_cmp_ge_u32 s41, 48'); a('s_cbranch_scc1 k1_t1')
    srd(a, 24, 16, 17, 1536 * 1280)
    a('s_lshl_b32 s42, s41, 5'); a('s_mov_b32 s43, 8'); a('s_mov_b32 s44, 4'); a('s_mov_b32 s46, -4'); a('s_mov_b32 s47, 4')
    a('s_branch k1_t2')
    a.label('k1_t1')
    srd(a, 24, 8, 9, 640 * 1280)
    a('s_sub_u32 s48, s41, 48'); a('s_mul_i32 s49, s48, 205'); a('s_lshr_b32 s49, s49, 10')
    a('s_mul_i32 s50, s49, 5'); a('s_sub_u32 s48, s48, s50')
    a('s_mul_i32 s42, s49, 160'); a('s_mul_i32 s50, s48, 40')
    a('s_cmp_eq_u32 s48, 4')
    a('s_cselect_b32 s50, 16, s50'); a('s_cselect_b32 s43, 20, 4'); a('s_cselect_b32 s44, 80, 20')
    a('s_add_u32 s42, s42, s50'); a('s_mov_b32 s46, s44'); a('s_mov_b32 s47, 0')
    a.label('k1_t2')
    a(f'v_lshrrev_b32 v1, 5, {L}')
    a(f'v_bfe_u32 v2, {L}, 3, 2')
    a(f'v_and_b32 v3, 7, {L}'); a('v_lshlrev_b32 v3, 4, v3')
    a('s_movk_i32 s51, 1280')
    for g in range(4):
        a(f's_mul_i32 s48, s43, {g}'); a('s_add_u32 s48, s48, s42')
        if g & 1: a('s_add_u32 s48, s48, s47')
        a(f'v_mul_lo_u32 v4, v1, s{46 if g & 1 else 44}'); a('v_add3_u32 v4, v4, s48, v2')
        a(f'v_mad_u32_u24 v{10+g}, v4, s51, v3')
    a('s_mul_i32 s52, s40, 20480')
    def dma(rd):
        a(f's_movk_i32 s53, {rd*640}')
        for cc in range(5):
            for g in range(4):
                a(f's_add_u32 m0, s52, {cc*4096 + g*1024 - cc*128}')
                a(f'buffer_load_dwordx4 v{10+g}, s[24:27], s53 offen offset:{cc*128} lds')
    dma(0)
    a(f'v_lshrrev_b32 v1, 4, {L}'); a(f'v_bfe_u32 v2, {L}, 2, 2'); a(f'v_and_b32 v3, 3, {L}')
    a('v_lshlrev_b32 v4, 10, v1'); a('v_lshl_or_b32 v4, v2, 7, v4'); a('v_add_u32 v4, s52, v4')
    for cbl in range(4):
        for y in range(3):
            a(f'v_lshlrev_b32 v5, {4 if y < 2 else 3}, v3'); a(f'v_add_u32 v5, {160*cbl + 64*y}, v5')
            a('v_lshrrev_b32 v6, 7, v5'); a('v_and_b32 v5, 127, v5'); a('v_lshl_add_u32 v5, v6, 12, v5')
            a(f'v_add_u32 v{20+3*cbl+y}, v5, v4')
    a(f'v_lshlrev_b32 v8, 4, {L}'); a('v_add_u32 v9, 4096, v8')
    a('s_mul_i32 s54, s41, 5120')
    for rd in range(2):
        a('s_waitcnt vmcnt(0)' if rd == 0 else 's_waitcnt vmcnt(20)')
        base = 40 + rd * 80
        for cbl in range(4):
            for t in range(5):
                d = base + (cbl * 5 + t) * 4
                ad = 20 + 3 * cbl + (t >> 1); off = 8 * (t & 1) if t < 4 else 0
                a(f'ds_read_b64_tr_b16 v[{d}:{d+1}], v{ad} offset:{off}')
                a(f'ds_read_b64_tr_b16 v[{d+2}:{d+3}], v{ad} offset:{off+512}')
            a('s_waitcnt lgkmcnt(0)')
        if rd == 0: dma(1)
        for cbl in range(4):
            a(f's_add_u32 s55, s54, {(4*rd+cbl)*W2_CB}')
            for t in range(5):
                d = base + (cbl * 5 + t) * 4
                if t < 4: a(f'buffer_store_dwordx4 v[{d}:{d+3}], v8, s[36:39], s55 offen offset:{t*1024}')
                else: a(f'buffer_store_dwordx4 v[{d}:{d+3}], v9, s[36:39], s55 offen')
    a('s_endpgm')

def attn_body(a, P, wave, rb, hg, ldsbase, sc=''):
    L = 'v243'
    a(f's_lshl_b32 s60, {rb}, 2'); a(f's_add_u32 s60, s60, {wave}')
    a('s_max_u32 s61, s60, 1'); a('s_sub_u32 s61, s61, 1')
    a(f's_mul_i32 s62, {hg}, {QKV_HG}')
    a('s_mul_i32 s63, s60, 7680'); a('s_add_u32 s63, s63, s62')
    a('s_mul_i32 s64, s61, 7680'); a('s_add_u32 s64, s64, s62')
    a(f'v_lshrrev_b32 v1, 4, {L}'); a(f'v_and_b32 v2, 15, {L}')
    a(f'v_lshlrev_b32 v3, 4, {L}')
    a(f's_mul_i32 s65, {wave}, 6144'); a(f's_add_u32 s65, s65, {ldsbase}')
    a('s_add_u32 s66, s64, 5120'); a('s_add_u32 s67, s63, 5120')
    a('s_mov_b32 m0, s65')
    for n in range(3): a(f'buffer_load_dwordx4 v3, s[24:27], s66 offen offset:{n*1024} lds')
    a('s_add_u32 m0, s65, 3072')
    for n in range(3): a(f'buffer_load_dwordx4 v3, s[24:27], s67 offen offset:{n*1024} lds')
    a('v_cmp_eq_u32 s[70:71], 3, v1'); a('v_cmp_eq_u32 s[72:73], 2, v1')
    a(f'v_mov_b32 v6, {OOB}')
    a('v_cndmask_b32 v4, v3, v6, s[70:71]')
    a('v_add_u32 v5, 768, v4'); a('v_cndmask_b32 v5, v5, v4, s[72:73]')
    Q = lambda h: 16 + 4 * h; KC = lambda h: 32 + 4 * h; KP = lambda h: 48 + 4 * h
    for h in range(4):
        v = 'v5' if h & 1 else 'v4'; o = 1280 * (h >> 1)
        a(f'buffer_load_dwordx4 v[{Q(h)}:{Q(h)+3}], {v}, s[24:27], s63 offen offset:{o}')
        a(f'buffer_load_dwordx4 v[{KC(h)}:{KC(h)+3}], {v}, s[24:27], s63 offen offset:{o+2560}')
        a(f'buffer_load_dwordx4 v[{KP(h)}:{KP(h)+3}], {v}, s[24:27], s64 offen offset:{o+2560}')
    a(f'v_bfe_u32 v7, {L}, 2, 4'); a('v_lshlrev_b32 v7, 4, v7'); a('v_add_u32 v7, s65, v7')
    a(f'v_and_b32 v13, 3, {L}')
    for h in range(5):
        if h < 4: a(f'v_add_u32 v14, {5*h}, v13')
        else: a('v_mul_u32_u24 v14, 5, v13'); a('v_add_u32 v14, 4, v14')
        a('v_lshrrev_b32 v15, 1, v14'); a('v_xor_b32 v14, v14, v15'); a('v_and_b32 v14, 1, v14')
        a('v_lshlrev_b32 v14, 3, v14'); a('v_lshl_add_u32 v14, v15, 8, v14'); a(f'v_add_u32 v{8+h}, v14, v7')
    a('v_and_b32 v13, 1, v2'); a('v_cmp_eq_u32 s[74:75], 1, v13')
    a('v_lshl_add_u32 v14, v1, 2, v13'); a('v_cmp_le_u32 s[76:77], v14, v2')
    a('v_add_u32 v14, 2, v14'); a('v_cmp_le_u32 s[78:79], v14, v2')
    a('v_mov_b32 v13, 0xffff'); a('v_mov_b32 v14, 0xffff0000'); a('v_cndmask_b32 v13, v13, v14, s[74:75]')
    a('v_cndmask_b32 v64, v13, 0, s[76:77]'); a('v_cndmask_b32 v65, v13, 0, s[78:79]')
    a('v_cndmask_b32 v66, 0, v13, s[76:77]'); a('v_cndmask_b32 v67, 0, v13, s[78:79]')
    a('s_waitcnt vmcnt(0)')
    VF = lambda h: 72 + 4 * h
    for h in range(5):
        a(f'ds_read_b64_tr_b16 v[{VF(h)}:{VF(h)+1}], v{8+h}')
        a(f'ds_read_b64_tr_b16 v[{VF(h)+2}:{VF(h)+3}], v{8+h} offset:3072')
    a('s_mov_b64 exec, s[72:73]')
    for h, z in enumerate((2, 0, 0, 2)):
        a(f'v_mov_b32 v{Q(h)+z}, 0'); a(f'v_mov_b32 v{Q(h)+z+1}, 0')
    a('s_mov_b64 exec, -1')
    SC = lambda h: 96 + 8 * h; SP = lambda h: 100 + 8 * h
    for h in range(4):
        a(f'v_mfma_f32_16x16x32_bf16 v[{SC(h)}:{SC(h)+3}], v[{KC(h)}:{KC(h)+3}], v[{Q(h)}:{Q(h)+3}], 0')
        a(f'v_mfma_f32_16x16x32_bf16 v[{SP(h)}:{SP(h)+3}], v[{KP(h)}:{KP(h)+3}], v[{Q(h)}:{Q(h)+3}], 0')
    a('s_cmp_lg_u32 s60, 0'); a(f's_cbranch_scc1 {P}_nofix')
    a.fence(8)
    for h in range(4):
        for r in range(4): a(f'v_mov_b32 v{SP(h)+r}, {f32(-1e30)}')
    a.label(f'{P}_nofix')
    a.fence(8)
    LA = lambda h: 16 + 2 * h; LB = lambda h: 17 + 2 * h; M = lambda h: 24 + h
    for h in range(4):
        a(f'v_cndmask_b32 v{SC(h)}, v{SC(h)}, v{SC(h)+1}, s[74:75]'); a(f'v_cndmask_b32 v{SC(h)+2}, v{SC(h)+2}, v{SC(h)+3}, s[74:75]')
        a(f'v_cndmask_b32 v{SP(h)}, v{SP(h)}, v{SP(h)+1}, s[74:75]'); a(f'v_cndmask_b32 v{SP(h)+2}, v{SP(h)+2}, v{SP(h)+3}, s[74:75]')
    for h in range(4):
        a(f'v_cndmask_b32 v{LA(h)}, v{SP(h)}, v{SC(h)}, s[76:77]'); a(f'v_cndmask_b32 v{LB(h)}, v{SP(h)+2}, v{SC(h)+2}, s[78:79]')
    for h in range(4): a(f'v_max_f32 v{M(h)}, v{LA(h)}, v{LB(h)}')
    def reduce4(op, post=None):
        A, B, C, D = 24, 25, 26, 27
        a(f'v_permlane16_swap_b32 v{A}, v{B}'); a(f'v_permlane16_swap_b32 v{C}, v{D}')
        a(f'{op} v{A}, v{A}, v{B}'); a(f'{op} v{C}, v{C}, v{D}')
        a(f'v_permlane32_swap_b32 v{A}, v{C}')
        a(f'{op} v{A}, v{A}, v{C}')
        if post: post(A)
        a(f'v_mov_b32 v{C}, v{A}')
        a(f'v_permlane32_swap_b32 v{A}, v{C}')
        a(f'v_mov_b32 v{B}, v{A}'); a(f'v_mov_b32 v{D}, v{C}')
        a(f'v_permlane16_swap_b32 v{A}, v{B}'); a(f'v_permlane16_swap_b32 v{C}, v{D}')
    cs = 20 ** -0.5 * LOG2E
    a(f's_mov_b32 s68, {f32(cs)}')
    reduce4('v_max_f32', lambda r: a(f'v_mul_f32 v{r}, s68, v{r}'))
    for h in range(4):
        a(f'v_fma_f32 v{LA(h)}, v{LA(h)}, s68, -v{M(h)}'); a(f'v_fma_f32 v{LB(h)}, v{LB(h)}, s68, -v{M(h)}')
    for h in range(4):
        a(f'v_exp_f32 v{LA(h)}, v{LA(h)}'); a(f'v_exp_f32 v{LB(h)}, v{LB(h)}')
    for h in range(4): a(f'v_add_f32 v{M(h)}, v{LA(h)}, v{LB(h)}')
    reduce4('v_add_f32', lambda r: a(f'v_rcp_f32 v{r}, v{r}'))
    for h in range(4):
        a(f'v_mul_f32 v{LA(h)}, v{LA(h)}, v{M(h)}'); a(f'v_mul_f32 v{LB(h)}, v{LB(h)}, v{M(h)}')
    for h in range(4):
        a(f'v_cvt_pk_bf16_f32 v{LA(h)}, v{LA(h)}, v{LA(h)}'); a(f'v_cvt_pk_bf16_f32 v{LB(h)}, v{LB(h)}, v{LB(h)}')
    PF = lambda h: 32 + 4 * h
    for h in range(4):
        a(f'v_and_b32 v{PF(h)}, v{LA(h)}, v64'); a(f'v_and_b32 v{PF(h)+1}, v{LB(h)}, v65')
        a(f'v_and_b32 v{PF(h)+2}, v{LA(h)}, v66'); a(f'v_and_b32 v{PF(h)+3}, v{LB(h)}, v67')
    a('s_waitcnt lgkmcnt(0)')
    for h in range(4):
        a(f'v_mfma_f32_16x16x32_bf16 v[{SC(h)}:{SC(h)+3}], v[{VF(h)}:{VF(h)+3}], v[{PF(h)}:{PF(h)+3}], 0')
        a(f'v_mfma_f32_16x16x32_bf16 v[{SP(h)}:{SP(h)+3}], v[{VF(4)}:{VF(4)+3}], v[{PF(h)}:{PF(h)+3}], 0')
    a(f's_lshr_b32 s62, {hg}, 1'); a('s_mul_i32 s62, s62, 5'); a('s_add_u32 s62, s62, 48'); a('s_lshl_b32 s62, s62, 12')
    a(f's_mul_i32 s63, {rb}, {A2_RB}'); a('s_add_u32 s62, s62, s63'); a(f's_lshl_b32 s63, {wave}, 10'); a('s_add_u32 s62, s62, s63')
    a(f's_and_b32 s63, {hg}, 1')
    a('s_lshl_b32 s64, s63, 13'); a('s_add_u32 s64, s64, s62'); a('s_add_u32 s66, s64, 4096')
    a('s_lshl_b32 s63, s63, 3'); a('s_add_u32 s62, s62, s63'); a('s_add_u32 s62, s62, 16384')
    for h in range(4):
        a(f'v_cvt_pk_bf16_f32 v{48+2*h}, v{SC(h)}, v{SC(h)+1}'); a(f'v_cvt_pk_bf16_f32 v{49+2*h}, v{SC(h)+2}, v{SC(h)+3}')
    a(f'buffer_store_dwordx4 v[48:51], v3, s[28:31], s64 offen {sc}')
    a(f'buffer_store_dwordx4 v[52:55], v3, s[28:31], s66 offen {sc}')
    for h in range(4):
        a(f's_mov_b32 exec_lo, {(0xffff << (16*h)) & 0xffffffff if h < 2 else 0}')
        a(f's_mov_b32 exec_hi, {(0xffff << (16*(h-2))) if h >= 2 else 0}')
        a(f'v_cvt_pk_bf16_f32 v56, v{SP(h)}, v{SP(h)+1}'); a(f'v_cvt_pk_bf16_f32 v57, v{SP(h)+2}, v{SP(h)+3}')
    a('s_mov_b64 exec, -1')
    a(f'buffer_store_dwordx2 v[56:57], v3, s[28:31], s62 offen {sc}')

def decode2(a):
    a('s_and_b32 s45, s2, 7'); a('s_lshr_b32 s46, s2, 3')
    a('s_lshr_b32 s41, s45, 1'); a('s_lshl_b32 s41, s41, 3'); a('s_lshr_b32 s47, s46, 2'); a('s_add_u32 s41, s41, s47')
    a('s_and_b32 s42, s45, 1'); a('s_lshl_b32 s42, s42, 2'); a('s_and_b32 s47, s46, 3'); a('s_add_u32 s42, s42, s47')

def ka(a):
    a.raw('.p2align 8'); a.label('ka_kernel')
    a('s_cmp_ge_u32 s2, 256'); a('s_cbranch_scc1 ka_exit')
    load_args(a)
    a('v_lshrrev_b32 v1, 6, v0'); a('v_and_b32 v243, 63, v0'); a('v_readfirstlane_b32 s40, v1')
    decode2(a)
    a('s_waitcnt lgkmcnt(0)')
    srd(a, 24, 22, 23, QKV_SZ, WS_QKV); srd(a, 28, 22, 23, A2_SZ)
    attn_body(a, 'ka', 's40', 's41', 's42', 0)
    a.label('ka_exit'); a('s_endpgm')

def k2(a):
    a.raw('.p2align 8'); a.label('k2_kernel')
    a('s_cmp_ge_u32 s2, 256'); a('s_cbranch_scc1 k2_exit')
    load_args(a)
    L = 'v243'
    a('v_lshrrev_b32 v1, 6, v0'); a('v_and_b32 v243, 63, v0'); a('v_readfirstlane_b32 s40, v1')
    decode2(a)
    a(f'v_lshlrev_b32 v232, 4, {L}'); a('v_add_u32 v233, 4096, v232')
    for t in range(4):
        a(f's_add_u32 s47, s40, {t}'); a('s_and_b32 s47, s47, 3'); a('s_lshl_b32 s47, s47, 10'); a(f'v_add_u32 v{234+t}, s47, v232')
    a('s_waitcnt lgkmcnt(0)')
    srd(a, 24, 22, 23, A2_SZ); srd(a, 28, 22, 23, W2_SZ, WS_W2); srd(a, 32, 4, 5, XSZ); srd(a, 36, 18, 19, XSZ)
    a(f's_mul_i32 s48, s41, {A2_RB}'); a(f's_mul_i32 s49, s42, {W2_CB}')
    a(f's_mul_i32 s50, s40, {12*4096}'); a('s_add_u32 s50, s50, s48')
    a(f's_mul_i32 s51, s40, {5*4096}'); a('s_add_u32 s51, s51, s48'); a(f's_add_u32 s51, s51, {48*4096}')
    a(f's_mul_i32 s52, s40, {12*5120}'); a('s_add_u32 s52, s52, s49')
    a(f's_mul_i32 s53, s40, {5*5120}'); a('s_add_u32 s53, s53, s49'); a(f's_add_u32 s53, s53, {48*5120}')
    NB = 4
    BUF = lambda b: 80 + 36 * b
    def issue(st):
        b = BUF(st % NB)
        if st < 12: a(f's_add_u32 s54, s50, {st*4096}'); a(f's_add_u32 s55, s52, {st*5120}')
        else: a(f's_add_u32 s54, s51, {(st-12)*4096}'); a(f's_add_u32 s55, s53, {(st-12)*5120}')
        for t in range(5):
            d = b + 16 + 4 * t
            if t < 4: a(f'buffer_load_dwordx4 v[{d}:{d+3}], v232, s[28:31], s55 offen offset:{t*1024}')
            else: a(f'buffer_load_dwordx4 v[{d}:{d+3}], v233, s[28:31], s55 offen')
        for t in range(4):
            d = b + 4 * t
            a(f'buffer_load_dwordx4 v[{d}:{d+3}], v{234+t}, s[24:27], s54 offen')
    a(f'v_and_b32 v2, 15, {L}'); a(f'v_lshrrev_b32 v1, 4, {L}')
    a('s_lshl_b32 s47, s41, 6'); a('s_lshl_b32 s56, s40, 4'); a('s_add_u32 s47, s47, s56'); a('v_add_u32 v2, s47, v2')
    a('s_movk_i32 s47, 1280'); a('s_mul_i32 s56, s42, 160'); a('v_mul_lo_u32 v2, v2, s47'); a('v_add_u32 v2, s56, v2')
    a('v_lshl_add_u32 v238, v1, 4, v2'); a('v_lshl_add_u32 v239, v1, 3, v2')
    for st in range(NB): issue(st)
    a('buffer_load_dwordx4 v[224:227], v238, s[32:35], 0 offen')
    a('buffer_load_dwordx4 v[228:231], v238, s[32:35], 0 offen offset:64')
    a('buffer_load_dwordx2 v[244:245], v239, s[32:35], 0 offen offset:128')
    extra = 3
    AC = lambda tr, tc: (tr * 5 + tc) * 4
    for st in range(17):
        b = BUF(st % NB)
        later = min(17 - 1 - st, NB - 1) * 9
        if st < NB: later += extra
        a(f's_waitcnt vmcnt({later})')
        for tr in range(4):
            for tc in range(5):
                c = AC(tr, tc)
                src = '0' if st == 0 else f'v[{c}:{c+3}]'
                a(f'v_mfma_f32_16x16x32_bf16 v[{c}:{c+3}], v[{b+16+4*tc}:{b+19+4*tc}], v[{b+4*tr}:{b+4*tr+3}], {src}')
        if st + NB < 17: issue(st + NB)
    for tp in range(1, 4):
        a(f's_add_u32 s47, s40, {tp}'); a('s_and_b32 s47, s47, 3'); a('s_mul_i32 s47, s47, 15360'); a(f'v_add_u32 v{233+tp}, s47, v232')
    for tp in range(1, 4):
        for tc in range(5):
            c = AC(tp, tc)
            a(f'ds_write_b128 v{233+tp}, v[{c}:{c+3}] offset:{(tp-1)*5120 + tc*1024}')
    a('s_mul_i32 s47, s40, 15360'); a('v_add_u32 v233, s47, v232')
    a('s_waitcnt lgkmcnt(0)'); a('s_barrier')
    for n in range(15): a(f'ds_read_b128 v[{80+4*n}:{83+4*n}], v233 offset:{n*1024}')
    xs = [224, 225, 226, 227, 228, 229, 230, 231, 244, 245]
    for n, r in enumerate(xs):
        a(f'v_lshlrev_b32 v{150+2*n}, 16, v{r}'); a(f'v_and_b32 v{151+2*n}, 0xffff0000, v{r}')
    P = lambda r: f'v[{r}:{r+1}]'
    for n in range(10): a(f'v_pk_add_f32 {P(2*n)}, {P(2*n)}, {P(150+2*n)}')
    for sl in range(3):
        a(f's_waitcnt lgkmcnt({10-5*sl})')
        for n in range(10): a(f'v_pk_add_f32 {P(2*n)}, {P(2*n)}, {P(80+20*sl+2*n)}')
    for n in range(10): a(f'v_cvt_pk_bf16_f32 v{40+n}, v{2*n}, v{2*n+1}')
    a('buffer_store_dwordx4 v[40:43], v238, s[36:39], 0 offen')
    a('buffer_store_dwordx4 v[44:47], v238, s[36:39], 0 offen offset:64')
    a('buffer_store_dwordx2 v[48:49], v239, s[36:39], 0 offen offset:128')
    a.label('k2_exit'); a('s_endpgm')

def desc(name, vgpr=256, sgpr=96):
    return f'''.amdhsa_kernel {name}
  .amdhsa_next_free_vgpr {vgpr}
  .amdhsa_next_free_sgpr {sgpr}
  .amdhsa_accum_offset {vgpr}
  .amdhsa_group_segment_fixed_size 0
  .amdhsa_kernarg_size 80
  .amdhsa_user_sgpr_count 2
  .amdhsa_user_sgpr_kernarg_segment_ptr 1
  .amdhsa_system_sgpr_workgroup_id_x 1
.end_amdhsa_kernel
'''

def main():
    a = Asm()
    a.raw('; @launch kernel=k1_kernel grid=(256,1,1) block=(512,1,1) lds=163840')
    a.raw('; @launch kernel=ka_kernel grid=(256,1,1) block=(256,1,1) lds=24576')
    a.raw('; @launch kernel=k2_kernel grid=(256,1,1) block=(256,1,1) lds=61440')
    a.raw('.amdgcn_target "amdgcn-amd-amdhsa--gfx950"')
    a.raw('.text')
    for n in ('k1_kernel', 'ka_kernel', 'k2_kernel'):
        a.raw(f'.globl {n}'); a.raw(f'.type {n},@function')
    k1(a); ka(a); k2(a)
    a.raw('.section .rodata,"a"')
    for n in ('k1_kernel', 'ka_kernel', 'k2_kernel'):
        a.raw('.p2align 6'); a.raw(desc(n))
    open(sys.argv[1], 'w').write(a.text())
    print('nops inserted', a.nops)
main()
```

```python
import sys, math
from asmlib import *

NAME = "parallel_sum__sliding_local_dilated__glu_gated_geglu__prompt"
WS_A2, A2_RB, A2_SZ = 0, 278528, 32 * 278528
WS_W2, W2_CB, W2_SZ = 0x900000, 348160, 8 * 348160
WS_QKV, QKV_HG, QKV_SZ = 0xC00000, 983040, 8 * 983040
XSZ = 2048 * 1280
OOB = 0x7f000000
LOG2E = 1.4426950408889634
C1 = -2.0 * LOG2E * math.sqrt(2.0 / math.pi)
C2 = C1 * 0.044715

def srd(a, d, lo, hi, size, add=None):
    if add is None:
        a(f's_mov_b32 s{d}, s{lo}')
        a(f's_mov_b32 s{d+1}, s{hi}')
    else:
        a(f's_add_u32 s{d}, s{lo}, {add}')
        a(f's_addc_u32 s{d+1}, s{hi}, 0')
    a(f's_mov_b32 s{d+2}, {size}')
    a(f's_mov_b32 s{d+3}, 0x20000')

def load_args(a):
    a('s_load_dwordx4 s[4:7], s[0:1], 0')
    a('s_load_dwordx2 s[8:9], s[0:1], 16')
    a('s_load_dwordx4 s[12:15], s[0:1], 32')
    a('s_load_dwordx4 s[16:19], s[0:1], 48')
    a('s_load_dwordx4 s[20:23], s[0:1], 64')

import os
PROF = int(os.environ.get("PROF", "0"))
WS_PROF = 0x2000000
ROT = int(os.environ.get("ROT", "1"))
SC = os.environ.get("SC", "")
NOLOAD = int(os.environ.get("NOLOAD", "0"))
NOSTATS = int(os.environ.get("NOSTATS", "0"))
NOMFMA = int(os.environ.get("NOMFMA", "0"))
NOLDS = int(os.environ.get("NOLDS", "0"))
CLK = int(os.environ.get("CLK", "0"))
CPRIO = int(os.environ.get("CPRIO", "0"))
PPRIO = int(os.environ.get("PPRIO", "0"))
NOSWZ = int(os.environ.get("NOSWZ", "0"))
NOBAR = int(os.environ.get("NOBAR", "0"))
VMX = int(os.environ.get("VMX", "0"))
EARLY = int(os.environ.get("EARLY", "1"))
def stamp(a, n):
    if PROF:
        a(f'{"s_memtime" if CLK else "s_memrealtime"} s[{80+2*n}:{81+2*n}]'); a('s_waitcnt lgkmcnt(0)')
def stamp_flush(a, kid, nst, wave='s40', waveadd=0):
    if not PROF: return
    a('s_waitcnt vmcnt(0)')
    a(f'{"s_memtime" if CLK else "s_memrealtime"} s[{80+2*nst}:{81+2*nst}]')
    a('s_load_dwordx2 s[96:97], s[0:1], 72')
    a('s_waitcnt lgkmcnt(0)')
    a(f's_add_u32 s96, s96, {WS_PROF + kid*0x40000}'); a('s_addc_u32 s97, s97, 0')
    a(f's_lshl_b32 s98, s2, 3'); a(f's_add_u32 s98, s98, {wave}'); a(f's_add_u32 s98, s98, {waveadd}'); a('s_lshl_b32 s98, s98, 6')
    a('v_mov_b32 v0, s98')
    for n in range(nst + 1):
        a(f'v_mov_b32 v2, s{80+2*n}'); a(f'v_mov_b32 v3, s{81+2*n}')
        a(f'global_store_dwordx2 v0, v[2:3], s[96:97] offset:{8*n}')
    a('s_waitcnt vmcnt(0)')

class LQ:
    def __init__(s, a): s.a = a; s.q = []
    def issue(s, tag, text):
        if NOLDS: return
        s.a(text); s.q.append(tag)
    def wait(s, tag):
        if tag not in s.q: return
        idx = max(i for i, t in enumerate(s.q) if t == tag)
        n = len(s.q) - 1 - idx
        assert n <= 15
        s.a(f's_waitcnt lgkmcnt({n})')
        s.q = s.q[idx + 1:]

LW, LX, LST = 0, 98304, 147456
def k1(a):
    K = 'k1'
    a.raw('.p2align 8'); a.label('k1_kernel')
    a('s_cmp_ge_u32 s2, 256'); a('s_cbranch_scc1 k1_exit')
    load_args(a); stamp(a, 0)
    a('v_lshrrev_b32 v1, 6, v0')
    a('v_and_b32 v243, 63, v0')
    a('v_readfirstlane_b32 s40, v1')
    a('s_and_b32 s45, s2, 7'); a('s_lshr_b32 s46, s2, 3')
    a('s_mul_i32 s47, s45, 31'); a('s_add_u32 s47, s47, s46')
    a('s_waitcnt lgkmcnt(0)')
    a('s_cmp_eq_u32 s46, 31'); a('s_cbranch_scc1 k1_trans')
    a('s_mov_b32 s45, 8')
    a('s_cmp_ge_u32 s47, 247'); a('s_cbranch_scc1 k1_trans')
    a('s_cmp_lt_u32 s47, 130')
    a('s_cbranch_scc0 k1_dec1')
    a('s_mul_i32 s44, s47, 205'); a('s_lshr_b32 s44, s44, 11')
    a('s_mul_i32 s46, s44, 10'); a('s_sub_u32 s41, s47, s46')
    a('s_branch k1_dec2')
    a.label('k1_dec1')
    a('s_sub_u32 s47, s47, 130')
    a('s_mul_i32 s44, s47, 57'); a('s_lshr_b32 s44, s44, 9')
    a('s_mul_i32 s46, s44, 9'); a('s_sub_u32 s41, s47, s46'); a('s_add_u32 s41, s41, 10')
    a.label('k1_dec2')
    a('s_mul_i32 s68, s44, 3'); a('s_add_u32 s68, s68, s41')
    a('s_mul_i32 s46, s68, 205'); a('s_lshr_b32 s46, s46, 11'); a('s_mul_i32 s46, s46, 10'); a('s_sub_u32 s68, s68, s46')
    if not ROT: a('s_mov_b32 s68, 0')
    a('s_mul_i32 s41, s41, 108')
    srd(a, 24, 4, 5, XSZ)
    a('s_cmp_ge_u32 s44, 8'); a('s_cbranch_scc1 k1_isq')
    a('s_mov_b32 s43, 0'); a('s_mov_b32 s42, 3072')
    a('s_mul_i32 s46, s44, 384'); a(f's_sub_u32 s47, {640*3072}, s46')
    srd(a, 28, 12, 13, 's47', 's46'); srd(a, 32, 14, 15, 's47', 's46')
    srd(a, 36, 22, 23, A2_SZ, WS_A2 if WS_A2 else None)
    a(f's_mov_b32 s48, {A2_RB}'); a('s_mov_b32 s49, 1024'); a(f's_mov_b32 s50, {f32(C1)}')
    a('s_branch k1_roles')
    a.label('k1_isq')
    a('s_mov_b32 s43, 1'); a('s_mov_b32 s42, 3840')
    a('s_sub_u32 s44, s44, 8')
    a('s_mul_i32 s46, s44, 768'); a(f's_sub_u32 s47, {640*3840}, s46')
    srd(a, 28, 6, 7, 's47', 's46')
    a('s_add_u32 s46, s46, 384'); a('s_sub_u32 s47, s47, 384')
    srd(a, 32, 6, 7, 's47', 's46')
    srd(a, 36, 22, 23, QKV_SZ, WS_QKV)
    a('s_mov_b32 s48, 30720'); a('s_mov_b32 s49, 7680'); a('s_mov_b32 s50, 1.0')
    a.label('k1_roles')
    a('s_cmp_lt_u32 s40, 4'); a('s_cbranch_scc1 k1_cons')
    k1_producer(a)
    a.label('k1_cons')
    k1_consumer(a)
    a.label('k1_trans')
    k1_trans(a)
    a.label('k1_exit')
    a('s_endpgm')

def k1_producer(a):
    L = 'v243'
    if PPRIO: a(f's_setprio {PPRIO}')
    a('s_sub_u32 s40, s40, 4')
    a('s_and_b32 s51, s40, 1')
    a(f'v_lshrrev_b32 v2, 3, {L}')
    a(f'v_and_b32 v3, 7, {L}')
    a(f'v_bfe_u32 v4, {L}, 4, 1'); a('v_lshl_or_b32 v4, v4, 2, s51')
    a('v_xor_b32 v4, v4, v3' if not NOSWZ else 'v_mov_b32 v4, v3'); a('v_lshlrev_b32 v4, 4, v4')
    a('s_lshl_b32 s52, s40, 3'); a('v_add_u32 v5, s52, v2')
    a('v_mad_u32_u24 v10, v5, s42, v4')
    a('s_lshl_b32 s53, s51, 2'); a('v_lshrrev_b32 v4, 1, v2'); a('v_or_b32 v4, s53, v4')
    a('v_xor_b32 v4, v4, v3' if not NOSWZ else 'v_mov_b32 v4, v3'); a('v_lshlrev_b32 v4, 4, v4')
    a('s_add_u32 s52, s52, s41'); a('v_add_u32 v5, s52, v2')
    a('s_movk_i32 s53, 1280')
    a('v_mad_u32_u24 v12, v5, s53, v4')
    a('v_add_u32 v13, 40960, v12'); a('v_add_u32 v14, 81920, v12')
    a('v_add_u32 v15, 122880, v12')
    a('s_lshl_b32 s54, s40, 10')
    a('s_lshl_b32 s55, s42, 5')
    a('s_mul_i32 s56, s55, s68'); a('s_lshl_b32 s56, s56, 1')
    a('s_mul_i32 s69, s55, 20')
    a('s_mov_b32 s57, s54')
    a('s_lshl_b32 s58, s68, 7')
    a(f's_add_u32 s59, s54, {LX}')
    def Wl(n):
        half, c = n // 3, n % 3
        a(f's_add_u32 m0, s57, {(half*3+c)*4096 - c*128}')
        a(f'buffer_load_dwordx4 v10, s[{28+4*half}:{31+4*half}], s56 offen offset:{c*128} lds')
    def Wadv():
        a('s_add_u32 s56, s56, s55'); a('s_cmp_ge_u32 s56, s69'); a('s_cselect_b32 s56, 0, s56')
        a('s_add_u32 s57, s57, 24576')
        a(f's_cmp_ge_u32 s57, {4*24576}'); a(f's_cselect_b32 s60, {4*24576}, 0'); a('s_sub_u32 s57, s57, s60')
    cnt = [0]
    def Xl(m):
        if m == 3:
            cnt[0] += 1
            a('s_cmp_ge_u32 s40, 2'); a(f's_cbranch_scc1 k1_sk{cnt[0]}')
        a(f's_add_u32 m0, s59, {m*4096}')
        a(f'buffer_load_dwordx4 v{12+m}, s[24:27], s58 offen lds')
        if m == 3: a.label(f'k1_sk{cnt[0]}')
    def Xadv():
        a('s_add_u32 s58, s58, 128'); a('s_cmp_ge_u32 s58, 1280'); a('s_cselect_b32 s58, 0, s58')
        a('s_add_u32 s59, s59, 16384')
        a(f's_cmp_ge_u32 s59, {LX+3*16384}'); a(f's_cselect_b32 s60, {3*16384}, 0'); a('s_sub_u32 s59, s59, s60')
    def issueW():
        for n in range(6): Wl(n)
        Wadv()
    def issueX():
        for m in range(4): Xl(m)
        Xadv()
    issueX(); issueW(); issueW()
    a(f'v_lshlrev_b32 v16, 4, {L}'); a('v_add_u32 v16, s54, v16'); a(f'v_add_u32 v16, {LX}, v16')
    for i in range(8): a(f'v_mov_b32 v{20+i}, 0')
    a('s_mov_b32 s61, 0')
    a('s_mov_b32 s62, 0')
    stamp(a, 1)
    a('s_waitcnt vmcnt(6)'); stamp(a, 2); a('s_barrier')
    issueW(); issueX()
    a('s_waitcnt vmcnt(9)'); a('s_barrier')
    issueW()
    def sd(m, d):
        if NOSTATS: return
        r = 32 + 4 * m + d
        if d == 0: a(f's_waitcnt lgkmcnt({3-m})')
        a(f'v_lshlrev_b32 v48, 16, v{r}'); a(f'v_and_b32 v49, 0xffff0000, v{r}')
        a(f'v_add_f32 v{20+m}, v{20+m}, v48'); a(f'v_fmac_f32 v{24+m}, v48, v48')
        a(f'v_add_f32 v{20+m}, v{20+m}, v49'); a(f'v_fmac_f32 v{24+m}, v49, v49')
    def sread():
        a('v_add_u32 v17, s62, v16')
        for m in range(4): a(f'ds_read_b128 v[{32+4*m}:{35+4*m}], v17 offset:{m*4096}')
        a('s_add_u32 s62, s62, 16384'); a(f's_cmp_ge_u32 s62, {3*16384}'); a('s_cselect_b32 s62, 0, s62')
    if PROF:
        a(('s_memrealtime' if os.environ.get('RT') else 's_memtime') + ' s[70:71]'); a('s_waitcnt lgkmcnt(0)'); a('v_mov_b32 v60, s70')
    a.label('k1_ploop')
    sread()
    ld = [lambda n=n: Wl(n) for n in range(6)] + [lambda: Xl(0), lambda: Xl(1)]
    for n in range(8):
        if not NOLOAD: ld[n]()
        sd(n >> 2, n & 3)
    Wadv()
    a(f's_waitcnt vmcnt({14+VMX})'); a('s_barrier' if not NOBAR else 's_nop 0')
    ld = [lambda: Xl(2), lambda: Xl(3)] + [lambda n=n: Wl(n) for n in range(6)]
    for n in range(8):
        if not NOLOAD: ld[n]()
        sd(2 + (n >> 2), n & 3)
    Wadv(); Xadv()
    a('s_add_u32 s61, s61, 1')
    a('s_cmp_lt_u32 s61, 8')
    a(f's_waitcnt vmcnt({15+VMX})'); a('s_barrier' if not NOBAR else 's_nop 0')
    if PROF:
        a(('s_memrealtime' if os.environ.get('RT') else 's_memtime') + ' s[70:71]'); a('s_waitcnt lgkmcnt(0)')
        for r in range(71, 60, -1): a(f'v_mov_b32 v{r}, v{r-1}')
        a('v_mov_b32 v60, s70')
    a('s_cbranch_scc1 k1_ploop')
    a.label('k1_ptail')
    sread()
    for n in range(8): sd(n >> 2, n & 3)
    a('s_waitcnt vmcnt(0)'); a('s_barrier')
    for n in range(8): sd(2 + (n >> 2), n & 3)
    a('s_cmp_eq_u32 s61, 9'); a('s_cbranch_scc1 k1_pend')
    a('s_barrier')
    a('s_add_u32 s61, s61, 1')
    a('s_branch k1_ptail')
    a.label('k1_pend'); stamp(a, 3)
    for ctl in ('quad_perm:[1,0,3,2]', 'quad_perm:[2,3,0,1]', 'row_half_mirror'):
        for i in range(8):
            a(f'v_add_f32_dpp v{20+i}, v{20+i}, v{20+i} {ctl} row_mask:0xf bank_mask:0xf')
    a(f's_mov_b32 s60, {f32(1.0/640)}'); a(f's_mov_b32 s63, {f32(C2)}')
    a('s_lshl_b32 s52, s40, 7'); a('v_lshlrev_b32 v4, 4, v2'); a('v_add_u32 v4, s52, v4'); a(f'v_add_u32 v4, {LST}, v4')
    for m in range(4):
        b = 32 + 4 * m
        a(f'v_mul_f32 v{b}, s60, v{20+m}')
        a(f'v_mul_f32 v{b+3}, s60, v{24+m}')
        a(f'v_fma_f32 v{b+3}, -v{b}, v{b}, v{b+3}')
        a(f'v_max_f32 v{b+3}, 0, v{b+3}')
        a(f'v_add_f32 v{b+3}, {f32(1e-5)}, v{b+3}')
        a(f'v_rsq_f32 v{b+1}, v{b+3}')
        a(f'v_sub_f32 v{b}, 0, v{b}')
        a(f'v_mul_f32 v{b+2}, v{b+1}, v{b+1}'); a(f'v_mul_f32 v{b+2}, v{b+2}, v{b+1}'); a(f'v_mul_f32 v{b+2}, s63, v{b+2}')
        a(f'v_mul_f32 v{b+1}, s50, v{b+1}')
        a(f'ds_write_b128 v4, v[{b}:{b+3}] offset:{m*512}')
    a('s_waitcnt lgkmcnt(0)'); a('s_barrier')
    stamp_flush(a, 0, 4, waveadd=4)
    if PROF:
        a('s_add_u32 s96, s96, 0x20000'); a('s_addc_u32 s97, s97, 0')
        for r in range(9): a(f'global_store_dword v0, v{68-r}, s[96:97] offset:{4*r}')
    a('s_endpgm')

def ACC(j, t): return (j * 7 + t) * 4
WF = lambda s, j: 168 + s * 24 + j * 4
XB = lambda b: 216 + 4 * b
WA = lambda hi, j: 232 + 3 * hi + j
def k1_consumer(a):
    L = 'v243'
    if CPRIO: a(f's_setprio {CPRIO}')
    a(f'v_lshrrev_b32 v1, 4, {L}'); a(f'v_and_b32 v2, 15, {L}'); a(f'v_bfe_u32 v3, {L}, 2, 2'); a(f'v_and_b32 v4, 3, {L}')
    a('v_lshrrev_b32 v5, 1, v3'); a('v_lshlrev_b32 v5, 2, v5'); a('v_and_b32 v6, 1, v1'); a('v_or_b32 v5, v5, v6')
    a('v_xor_b32 v5, v5, v4'); a('v_lshlrev_b32 v5, 4, v5')
    a('v_and_b32 v6, 1, v4'); a('v_lshl_or_b32 v5, v6, 3, v5')
    a('v_lshl_or_b32 v5, v3, 7, v5'); a('v_lshl_or_b32 v5, v1, 10, v5')
    a('s_lshr_b32 s51, s40, 1'); a('s_mul_i32 s51, s51, 3'); a('s_add_u32 s52, s51, 1')
    a('s_and_b32 s53, s40, 1'); a('s_lshl_b32 s54, s53, 1'); a('s_add_u32 s51, s51, s54')
    a('s_and_b32 s54, s51, 1'); a('s_lshl_b32 s54, s54, 6'); a('s_lshr_b32 s55, s51, 1'); a('s_lshl_b32 s55, s55, 12')
    a('v_xor_b32 v6, s54, v5'); a(f'v_add_u32 v{WA(0,0)}, s55, v6'); a(f'v_xor_b32 v{WA(0,1)}, 8, v{WA(0,0)}')
    a('s_and_b32 s54, s52, 1'); a('s_lshl_b32 s54, s54, 6'); a('s_lshl_b32 s56, s53, 3'); a('s_or_b32 s54, s54, s56')
    a('s_lshr_b32 s55, s52, 1'); a('s_lshl_b32 s55, s55, 12')
    a('v_xor_b32 v6, s54, v5'); a(f'v_add_u32 v{WA(0,2)}, s55, v6')
    for j in range(3): a(f'v_add_u32 v{WA(1,j)}, 49152, v{WA(0,j)}')
    a('v_lshrrev_b32 v5, 1, v2'); a('v_xor_b32 v5, v5, v1'); a('v_lshlrev_b32 v5, 4, v5'); a('v_lshl_or_b32 v5, v2, 7, v5')
    a(f'v_add_u32 v240, {LX}, v5'); a('v_xor_b32 v241, 64, v240')
    a('v_mov_b32 v238, v240'); a('v_mov_b32 v239, v241')
    a('v_mov_b32 v242, 0x3f803f80')
    a('v_cmp_eq_u32 s[64:65], 15, v2')
    for t in range(7):
        a(f's_add_u32 s54, s41, {16*t}'); a('v_add_u32 v5, s54, v2')
        a('v_lshrrev_b32 v6, 6, v5'); a('v_mul_lo_u32 v6, v6, s48')
        a('v_bfe_u32 v7, v5, 4, 2'); a('v_mad_u32_u24 v6, v7, s49, v6')
        a('v_and_b32 v7, 15, v5'); a(f'v_lshl_add_u32 v{244+t}, v7, 4, v6')
    a('v_cmp_gt_u32 vcc, 12, v2'); a('v_cmp_gt_u32 s[66:67], 2048, v5') if False else None
    a('s_movk_i32 s54, 2048'); a('v_cmp_gt_u32 s[66:67], s54, v5'); a('s_and_b64 vcc, vcc, s[66:67]')
    a(f'v_mov_b32 v6, {OOB}'); a('v_cndmask_b32 v250, v6, v250, vcc')
    a('s_cmp_eq_u32 s43, 1'); a('s_cbranch_scc1 k1_cq')
    a('s_mul_i32 s54, s44, 6'); a('s_add_u32 s55, s54, s51'); a('s_lshl_b32 s55, s55, 12')
    a('v_lshlrev_b32 v5, 8, v1'); a('v_add_u32 v251, s55, v5')
    a('s_add_u32 s55, s54, s52'); a('s_lshl_b32 s55, s55, 12'); a('s_add_u32 s55, s55, s56')
    a('v_add_u32 v252, s55, v5')
    a('v_mov_b32 v253, 0'); a('v_mov_b32 v254, 0')
    a('s_branch k1_cq2')
    a.label('k1_cq')
    a(f's_mov_b32 s57, {QKV_HG}'); a('s_movk_i32 s58, 2560')
    for x in range(4):
        half, sh = x >> 1, x & 1
        a('s_mul_i32 s54, s44, 48'); a(f's_lshl_b32 s55, s{52 if sh else 51}, 2'); a('s_add_u32 s54, s54, s55'); a(f's_add_u32 s54, s54, {24*half}')
        a('v_add_u32 v5, s54, v1')
        a('v_mul_u32_u24 v6, 205, v5'); a('v_lshrrev_b32 v6, 14, v6')
        a('v_mul_u32_u24 v7, 80, v6'); a('v_sub_u32 v5, v5, v7')
        a('v_mul_u32_u24 v7, 205, v5'); a('v_lshrrev_b32 v7, 11, v7')
        a('v_mul_u32_u24 v8, 10, v7'); a('v_sub_u32 v5, v5, v8')
        a('v_mul_lo_u32 v7, v7, s57'); a('v_mad_u32_u24 v7, v6, s58, v7'); a(f'v_lshl_add_u32 v{251+x}, v5, 8, v7')
        if sh: a(f'v_add_u32 v{251+x}, s56, v{251+x}')
    a.label('k1_cq2')
    for r in range(168): a(f'v_mov_b32 v{r}, 0')
    a('s_mov_b32 s60, 0')
    a('s_mov_b32 s61, 0')
    q = LQ(a)
    def wread(q, slot, setn, idx):
        j, hf = idx >> 1, idx & 1
        off = (slot & 1) * 24576 + (j // 3) * 12288 + hf * 512
        d = WF(setn, j) + 2 * hf
        q.issue('W', f'ds_read_b64_tr_b16 v[{d}:{d+1}], v{WA(slot >> 1, j % 3)} offset:{off}')
    def xread(q, step, t):
        b = XB((7 * step + t) % 4)
        q.issue(('X', step % 4, t), f'ds_read_b128 v[{b}:{b+3}], v{238 + (step & 1)} offset:{t*2048}')
    stamp(a, 1)
    a('s_barrier')
    stamp(a, 2)
    for idx in range(12): wread(q, 0, 0, idx)
    for t in range(3): xread(q, 0, t)
    a.label('k1_cloop')
    for k in range(4):
        cur, nxt = k & 1, (k + 1) & 1
        widx = 0
        for t in range(7):
            q.wait(('X', k, t))
            fill = []
            tt = t + 3
            fill.append(lambda tt=tt: xread(q, k if tt <= 6 else k + 1, tt if tt <= 6 else tt - 7))
            if t == 0: fill.append(lambda: a('s_barrier'))
            if t <= 3:
                for _ in range(3):
                    fill.append(lambda w=widx: wread(q, (k + 1) % 4, nxt, w)); widx += 1
            if t == 4:
                if k & 1 == 0:
                    fill.append(lambda: (a('s_add_u32 s60, s60, 16384'), a(f's_cmp_ge_u32 s60, {3*16384}'), a('s_cselect_b32 s60, 0, s60')))
                    fill.append(lambda: a('v_add_u32 v238, s60, v240'))
                else:
                    fill.append(lambda: a('v_add_u32 v239, s60, v241'))
            if t == 5:
                b6 = XB((7 * k + 6) % 4)
                fill.append(lambda: q.wait(('X', k, 6)))
                fill.append(lambda: (a(f'v_cndmask_b32 v{b6}, v{b6}, v242, s[64:65]'), a(f'v_cndmask_b32 v{b6+1}, v{b6+1}, v242, s[64:65]')))
                fill.append(lambda: (a(f'v_cndmask_b32 v{b6+2}, v{b6+2}, v242, s[64:65]'), a(f'v_cndmask_b32 v{b6+3}, v{b6+3}, v242, s[64:65]')))
            if t == 6 and k == 3:
                fill.append(lambda: (a('s_add_u32 s61, s61, 1'), a(f's_cmp_lt_u32 s61, {1 if NOBAR else 5}')))
            xb = XB((7 * k + t) % 4)
            for j in range(6):
                c = ACC(j, t)
                if not NOMFMA: a(f'v_mfma_f32_16x16x32_bf16 v[{c}:{c+3}], v[{WF(cur,j)}:{WF(cur,j)+3}], v[{xb}:{xb+3}], v[{c}:{c+3}]')
                if fill: fill.pop(0)()
            assert not fill
    a('s_cbranch_scc1 k1_cloop')
    a('s_waitcnt lgkmcnt(0)')
    stamp(a, 3)
    a('s_barrier')
    a(f'v_and_b32 v232, 15, {L}'); a('v_lshlrev_b32 v232, 4, v232'); a(f'v_add_u32 v232, {LST}, v232')
    ST = lambda t: 168 + 4 * t
    CS = lambda j: 196 + 4 * j
    for t in range(7): a(f'ds_read_b128 v[{ST(t)}:{ST(t)+3}], v232 offset:{t*256}')
    a.fence(8)
    for j in range(6):
        for r in range(4):
            a(f'v_mov_b32_dpp v{CS(j)+r}, v{ACC(j,6)+r} row_newbcast:15 row_mask:0xf bank_mask:0xf')
    a('s_cmp_eq_u32 s43, 1'); a('s_cbranch_scc1 k1_epq')
    P = lambda r: f'v[{r}:{r+1}]'
    for t in range(7):
        a(f's_waitcnt lgkmcnt({6-t})')
        s01, s23 = P(ST(t)), P(ST(t) + 2)
        prs = [(j, hp) for j in range(3) for hp in range(2)]
        T = lambda n: 220 + 2 * n
        G = lambda j, hp: ACC(j, t) + 2 * hp
        U = lambda j, hp: ACC(j + 3, t) + 2 * hp
        for j, hp in prs: a(f'v_pk_fma_f32 {P(G(j,hp))}, {P(CS(j)+2*hp)}, {s01}, {P(G(j,hp))} op_sel:[0,0,0] op_sel_hi:[1,0,1]')
        for n, (j, hp) in enumerate(prs): a(f'v_pk_mul_f32 {P(T(n))}, {P(G(j,hp))}, {P(G(j,hp))}')
        for n, (j, hp) in enumerate(prs): a(f'v_pk_fma_f32 {P(T(n))}, {P(T(n))}, {s23}, {s01} op_sel:[0,0,1] op_sel_hi:[1,0,1]')
        for n, (j, hp) in enumerate(prs): a(f'v_pk_mul_f32 {P(T(n))}, {P(T(n))}, {P(G(j,hp))}')
        for n, (j, hp) in enumerate(prs):
            a(f'v_exp_f32 v{T(n)}, v{T(n)}'); a(f'v_exp_f32 v{T(n)+1}, v{T(n)+1}')
            a(f'v_pk_fma_f32 {P(U(j,hp))}, {P(CS(j+3)+2*hp)}, {s01}, {P(U(j,hp))} op_sel:[0,0,0] op_sel_hi:[1,0,1]')
        for n, (j, hp) in enumerate(prs): a(f'v_pk_fma_f32 {P(T(n))}, {P(T(n))}, {s23}, {s23} op_sel:[0,1,1] op_sel_hi:[1,1,1]')
        for n, (j, hp) in enumerate(prs):
            a(f'v_rcp_f32 v{T(n)}, v{T(n)}'); a(f'v_rcp_f32 v{T(n)+1}, v{T(n)+1}')
            a(f'v_pk_mul_f32 {P(U(j,hp))}, {P(U(j,hp))}, {P(G(j,hp))}')
        for n, (j, hp) in enumerate(prs): a(f'v_pk_mul_f32 {P(U(j,hp))}, {P(U(j,hp))}, {P(T(n))}')
        o4, o2 = ACC(0, t), ACC(1, t)
        for n, (j, hp) in enumerate(prs):
            d = o4 + n if n < 4 else o2 + n - 4
            a(f'v_cvt_pk_bf16_f32 v{d}, v{U(j,hp)}, v{U(j,hp)+1}')
        a(f'v_add_u32 v{ACC(2,t)}, v{244+t}, v251'); a(f'v_add_u32 v{ACC(2,t)+1}, v{244+t}, v252')
        a(f'buffer_store_dwordx4 v[{o4}:{o4+3}], v{ACC(2,t)}, s[36:39], 0 offen {SC}')
        a(f'buffer_store_dwordx2 v[{o2}:{o2+1}], v{ACC(2,t)+1}, s[36:39], 0 offen {SC}')
    stamp(a, 4); stamp_flush(a, 0, 5)
    a('s_endpgm')
    a.label('k1_epq')
    for t in range(7):
        a(f's_waitcnt lgkmcnt({6-t})')
        s01 = P(ST(t))
        prs = [(j, hp) for j in range(6) for hp in range(2)]
        G = lambda j, hp: ACC(j, t) + 2 * hp
        for j, hp in prs: a(f'v_pk_fma_f32 {P(G(j,hp))}, {P(CS(j)+2*hp)}, {s01}, {P(G(j,hp))} op_sel:[0,0,0] op_sel_hi:[1,0,1]')
        for j, hp in prs: a(f'v_pk_mul_f32 {P(G(j,hp))}, {P(G(j,hp))}, {s01} op_sel:[0,1] op_sel_hi:[1,1]')
        for half in range(2):
            o4, o2 = ACC(3 * half, t), ACC(3 * half + 2, t)
            for n in range(6):
                j, hp = 3 * half + (n >> 1), n & 1
                d = o4 + n if n < 4 else o2 + n - 4
                a(f'v_cvt_pk_bf16_f32 v{d}, v{G(j,hp)}, v{G(j,hp)+1}')
            ad = ACC(3 * half + 1, t)
            a(f'v_add_u32 v{ad}, v{244+t}, v{251+2*half}'); a(f'v_add_u32 v{ad+1}, v{244+t}, v{252+2*half}')
            a(f'buffer_store_dwordx4 v[{o4}:{o4+3}], v{ad}, s[36:39], 0 offen {SC}')
            a(f'buffer_store_dwordx2 v[{o2}:{o2+1}], v{ad+1}, s[36:39], 0 offen {SC}')
    stamp(a, 4); stamp_flush(a, 0, 5)
    a('s_endpgm')

def k1_trans(a):
    L = 'v243'
    a('s_lshl_b32 s41, s45, 3'); a('s_add_u32 s41, s41, s40')
    a('s_cmp_ge_u32 s41, 68'); a('s_cbranch_scc1 k1_exit')
    srd(a, 36, 22, 23, W2_SZ, WS_W2)
    a('s_cmp_ge_u32 s41, 48'); a('s_cbranch_scc1 k1_t1')
    srd(a, 24, 16, 17, 1536 * 1280)
    a('s_lshl_b32 s42, s41, 5'); a('s_mov_b32 s43, 8'); a('s_mov_b32 s44, 4'); a('s_mov_b32 s46, -4'); a('s_mov_b32 s47, 4')
    a('s_branch k1_t2')
    a.label('k1_t1')
    srd(a, 24, 8, 9, 640 * 1280)
    a('s_sub_u32 s48, s41, 48'); a('s_mul_i32 s49, s48, 205'); a('s_lshr_b32 s49, s49, 10')
    a('s_mul_i32 s50, s49, 5'); a('s_sub_u32 s48, s48, s50')
    a('s_mul_i32 s42, s49, 160'); a('s_mul_i32 s50, s48, 40')
    a('s_cmp_eq_u32 s48, 4')
    a('s_cselect_b32 s50, 16, s50'); a('s_cselect_b32 s43, 20, 4'); a('s_cselect_b32 s44, 80, 20')
    a('s_add_u32 s42, s42, s50'); a('s_mov_b32 s46, s44'); a('s_mov_b32 s47, 0')
    a.label('k1_t2')
    a(f'v_lshrrev_b32 v1, 5, {L}')
    a(f'v_bfe_u32 v2, {L}, 3, 2')
    a(f'v_and_b32 v3, 7, {L}'); a('v_lshlrev_b32 v3, 4, v3')
    a('s_movk_i32 s51, 1280')
    for g in range(4):
        a(f's_mul_i32 s48, s43, {g}'); a('s_add_u32 s48, s48, s42')
        if g & 1: a('s_add_u32 s48, s48, s47')
        a(f'v_mul_lo_u32 v4, v1, s{46 if g & 1 else 44}'); a('v_add3_u32 v4, v4, s48, v2')
        a(f'v_mad_u32_u24 v{10+g}, v4, s51, v3')
    a('s_mul_i32 s52, s40, 20480')
    def dma(rd):
        a(f's_movk_i32 s53, {rd*640}')
        for cc in range(5):
            for g in range(4):
                a(f's_add_u32 m0, s52, {cc*4096 + g*1024 - cc*128}')
                a(f'buffer_load_dwordx4 v{10+g}, s[24:27], s53 offen offset:{cc*128} lds')
    dma(0)
    a(f'v_lshrrev_b32 v1, 4, {L}'); a(f'v_bfe_u32 v2, {L}, 2, 2'); a(f'v_and_b32 v3, 3, {L}')
    a('v_lshlrev_b32 v4, 10, v1'); a('v_lshl_or_b32 v4, v2, 7, v4'); a('v_add_u32 v4, s52, v4')
    for cbl in range(4):
        for y in range(3):
            a(f'v_lshlrev_b32 v5, {4 if y < 2 else 3}, v3'); a(f'v_add_u32 v5, {160*cbl + 64*y}, v5')
            a('v_lshrrev_b32 v6, 7, v5'); a('v_and_b32 v5, 127, v5'); a('v_lshl_add_u32 v5, v6, 12, v5')
            a(f'v_add_u32 v{20+3*cbl+y}, v5, v4')
    a(f'v_lshlrev_b32 v8, 4, {L}'); a('v_add_u32 v9, 4096, v8')
    a('s_mul_i32 s54, s41, 5120')
    for rd in range(2):
        a('s_waitcnt vmcnt(0)' if rd == 0 else 's_waitcnt vmcnt(20)')
        stamp(a, 1 + rd)
        base = 40 + rd * 80
        for cbl in range(4):
            for t in range(5):
                d = base + (cbl * 5 + t) * 4
                ad = 20 + 3 * cbl + (t >> 1); off = 8 * (t & 1) if t < 4 else 0
                a(f'ds_read_b64_tr_b16 v[{d}:{d+1}], v{ad} offset:{off}')
                a(f'ds_read_b64_tr_b16 v[{d+2}:{d+3}], v{ad} offset:{off+512}')
            a('s_waitcnt lgkmcnt(0)')
        if rd == 0: dma(1)
        for cbl in range(4):
            a(f's_add_u32 s55, s54, {(4*rd+cbl)*W2_CB}')
            for t in range(5):
                d = base + (cbl * 5 + t) * 4
                if t < 4: a(f'buffer_store_dwordx4 v[{d}:{d+3}], v8, s[36:39], s55 offen offset:{t*1024} {SC}')
                else: a(f'buffer_store_dwordx4 v[{d}:{d+3}], v9, s[36:39], s55 offen {SC}')
    stamp_flush(a, 0, 3)
    a('s_endpgm')

def attn_body(a, P, wave, rb, hg, ldsbase, sc=''):
    L = 'v243'
    a(f's_lshl_b32 s60, {rb}, 2'); a(f's_add_u32 s60, s60, {wave}')
    a('s_max_u32 s61, s60, 1'); a('s_sub_u32 s61, s61, 1')
    a(f's_mul_i32 s62, {hg}, {QKV_HG}')
    a('s_mul_i32 s63, s60, 7680'); a('s_add_u32 s63, s63, s62')
    a('s_mul_i32 s64, s61, 7680'); a('s_add_u32 s64, s64, s62')
    a(f'v_lshrrev_b32 v1, 4, {L}'); a(f'v_and_b32 v2, 15, {L}')
    a(f'v_lshlrev_b32 v3, 4, {L}')
    a(f's_mul_i32 s65, {wave}, 6144'); a(f's_add_u32 s65, s65, {ldsbase}')
    a('s_add_u32 s66, s64, 5120'); a('s_add_u32 s67, s63, 5120')
    a('s_mov_b32 m0, s65')
    for n in range(3): a(f'buffer_load_dwordx4 v3, s[24:27], s66 offen offset:{n*1024} lds')
    a('s_add_u32 m0, s65, 3072')
    for n in range(3): a(f'buffer_load_dwordx4 v3, s[24:27], s67 offen offset:{n*1024} lds')
    a('v_cmp_eq_u32 s[70:71], 3, v1'); a('v_cmp_eq_u32 s[72:73], 2, v1')
    a(f'v_mov_b32 v6, {OOB}')
    a('v_cndmask_b32 v4, v3, v6, s[70:71]')
    a('v_add_u32 v5, 768, v4'); a('v_cndmask_b32 v5, v5, v4, s[72:73]')
    Q = lambda h: 16 + 4 * h; KC = lambda h: 32 + 4 * h; KP = lambda h: 48 + 4 * h
    for h in range(4):
        v = 'v5' if h & 1 else 'v4'; o = 1280 * (h >> 1)
        a(f'buffer_load_dwordx4 v[{Q(h)}:{Q(h)+3}], {v}, s[24:27], s63 offen offset:{o}')
        a(f'buffer_load_dwordx4 v[{KC(h)}:{KC(h)+3}], {v}, s[24:27], s63 offen offset:{o+2560}')
        a(f'buffer_load_dwordx4 v[{KP(h)}:{KP(h)+3}], {v}, s[24:27], s64 offen offset:{o+2560}')
    a(f'v_bfe_u32 v7, {L}, 2, 4'); a('v_lshlrev_b32 v7, 4, v7'); a('v_add_u32 v7, s65, v7')
    a(f'v_and_b32 v13, 3, {L}')
    for h in range(5):
        if h < 4: a(f'v_add_u32 v14, {5*h}, v13')
        else: a('v_mul_u32_u24 v14, 5, v13'); a('v_add_u32 v14, 4, v14')
        a('v_lshrrev_b32 v15, 1, v14'); a('v_xor_b32 v14, v14, v15'); a('v_and_b32 v14, 1, v14')
        a('v_lshlrev_b32 v14, 3, v14'); a('v_lshl_add_u32 v14, v15, 8, v14'); a(f'v_add_u32 v{8+h}, v14, v7')
    a('v_and_b32 v13, 1, v2'); a('v_cmp_eq_u32 s[74:75], 1, v13')
    a('v_lshl_add_u32 v14, v1, 2, v13'); a('v_cmp_le_u32 s[76:77], v14, v2')
    a('v_add_u32 v14, 2, v14'); a('v_cmp_le_u32 s[78:79], v14, v2')
    a('v_mov_b32 v13, 0xffff'); a('v_mov_b32 v14, 0xffff0000'); a('v_cndmask_b32 v13, v13, v14, s[74:75]')
    a('v_cndmask_b32 v64, v13, 0, s[76:77]'); a('v_cndmask_b32 v65, v13, 0, s[78:79]')
    a('v_cndmask_b32 v66, 0, v13, s[76:77]'); a('v_cndmask_b32 v67, 0, v13, s[78:79]')
    a('s_waitcnt vmcnt(0)'); stamp(a, 1)
    VF = lambda h: 72 + 4 * h
    for h in range(5):
        a(f'ds_read_b64_tr_b16 v[{VF(h)}:{VF(h)+1}], v{8+h}')
        a(f'ds_read_b64_tr_b16 v[{VF(h)+2}:{VF(h)+3}], v{8+h} offset:3072')
    a('s_mov_b64 exec, s[72:73]')
    for h, z in enumerate((2, 0, 0, 2)):
        a(f'v_mov_b32 v{Q(h)+z}, 0'); a(f'v_mov_b32 v{Q(h)+z+1}, 0')
    a('s_mov_b64 exec, -1')
    SC = lambda h: 96 + 8 * h; SP = lambda h: 100 + 8 * h
    for h in range(4):
        a(f'v_mfma_f32_16x16x32_bf16 v[{SC(h)}:{SC(h)+3}], v[{KC(h)}:{KC(h)+3}], v[{Q(h)}:{Q(h)+3}], 0')
        a(f'v_mfma_f32_16x16x32_bf16 v[{SP(h)}:{SP(h)+3}], v[{KP(h)}:{KP(h)+3}], v[{Q(h)}:{Q(h)+3}], 0')
    a('s_cmp_lg_u32 s60, 0'); a(f's_cbranch_scc1 {P}_nofix')
    a.fence(8)
    for h in range(4):
        for r in range(4): a(f'v_mov_b32 v{SP(h)+r}, {f32(-1e30)}')
    a.label(f'{P}_nofix')
    a.fence(8)
    LA = lambda h: 16 + 2 * h; LB = lambda h: 17 + 2 * h; M = lambda h: 24 + h
    for h in range(4):
        a(f'v_cndmask_b32 v{SC(h)}, v{SC(h)}, v{SC(h)+1}, s[74:75]'); a(f'v_cndmask_b32 v{SC(h)+2}, v{SC(h)+2}, v{SC(h)+3}, s[74:75]')
        a(f'v_cndmask_b32 v{SP(h)}, v{SP(h)}, v{SP(h)+1}, s[74:75]'); a(f'v_cndmask_b32 v{SP(h)+2}, v{SP(h)+2}, v{SP(h)+3}, s[74:75]')
    for h in range(4):
        a(f'v_cndmask_b32 v{LA(h)}, v{SP(h)}, v{SC(h)}, s[76:77]'); a(f'v_cndmask_b32 v{LB(h)}, v{SP(h)+2}, v{SC(h)+2}, s[78:79]')
    for h in range(4): a(f'v_max_f32 v{M(h)}, v{LA(h)}, v{LB(h)}')
    def reduce4(op, post=None):
        A, B, C, D = 24, 25, 26, 27
        a(f'v_permlane16_swap_b32 v{A}, v{B}'); a(f'v_permlane16_swap_b32 v{C}, v{D}')
        a(f'{op} v{A}, v{A}, v{B}'); a(f'{op} v{C}, v{C}, v{D}')
        a(f'v_permlane32_swap_b32 v{A}, v{C}')
        a(f'{op} v{A}, v{A}, v{C}')
        if post: post(A)
        a(f'v_mov_b32 v{C}, v{A}')
        a(f'v_permlane32_swap_b32 v{A}, v{C}')
        a(f'v_mov_b32 v{B}, v{A}'); a(f'v_mov_b32 v{D}, v{C}')
        a(f'v_permlane16_swap_b32 v{A}, v{B}'); a(f'v_permlane16_swap_b32 v{C}, v{D}')
    cs = 20 ** -0.5 * LOG2E
    a(f's_mov_b32 s68, {f32(cs)}')
    reduce4('v_max_f32', lambda r: a(f'v_mul_f32 v{r}, s68, v{r}'))
    for h in range(4):
        a(f'v_fma_f32 v{LA(h)}, v{LA(h)}, s68, -v{M(h)}'); a(f'v_fma_f32 v{LB(h)}, v{LB(h)}, s68, -v{M(h)}')
    for h in range(4):
        a(f'v_exp_f32 v{LA(h)}, v{LA(h)}'); a(f'v_exp_f32 v{LB(h)}, v{LB(h)}')
    for h in range(4): a(f'v_add_f32 v{M(h)}, v{LA(h)}, v{LB(h)}')
    reduce4('v_add_f32', lambda r: a(f'v_rcp_f32 v{r}, v{r}'))
    for h in range(4):
        a(f'v_mul_f32 v{LA(h)}, v{LA(h)}, v{M(h)}'); a(f'v_mul_f32 v{LB(h)}, v{LB(h)}, v{M(h)}')
    for h in range(4):
        a(f'v_cvt_pk_bf16_f32 v{LA(h)}, v{LA(h)}, v{LA(h)}'); a(f'v_cvt_pk_bf16_f32 v{LB(h)}, v{LB(h)}, v{LB(h)}')
    PF = lambda h: 32 + 4 * h
    for h in range(4):
        a(f'v_and_b32 v{PF(h)}, v{LA(h)}, v64'); a(f'v_and_b32 v{PF(h)+1}, v{LB(h)}, v65')
        a(f'v_and_b32 v{PF(h)+2}, v{LA(h)}, v66'); a(f'v_and_b32 v{PF(h)+3}, v{LB(h)}, v67')
    a('s_waitcnt lgkmcnt(0)')
    for h in range(4):
        a(f'v_mfma_f32_16x16x32_bf16 v[{SC(h)}:{SC(h)+3}], v[{VF(h)}:{VF(h)+3}], v[{PF(h)}:{PF(h)+3}], 0')
        a(f'v_mfma_f32_16x16x32_bf16 v[{SP(h)}:{SP(h)+3}], v[{VF(4)}:{VF(4)+3}], v[{PF(h)}:{PF(h)+3}], 0')
    a(f's_lshr_b32 s62, {hg}, 1'); a('s_mul_i32 s62, s62, 5'); a('s_add_u32 s62, s62, 48'); a('s_lshl_b32 s62, s62, 12')
    a(f's_mul_i32 s63, {rb}, {A2_RB}'); a('s_add_u32 s62, s62, s63'); a(f's_lshl_b32 s63, {wave}, 10'); a('s_add_u32 s62, s62, s63')
    a(f's_and_b32 s63, {hg}, 1')
    a('s_lshl_b32 s64, s63, 13'); a('s_add_u32 s64, s64, s62'); a('s_add_u32 s66, s64, 4096')
    a('s_lshl_b32 s63, s63, 3'); a('s_add_u32 s62, s62, s63'); a('s_add_u32 s62, s62, 16384')
    for h in range(4):
        a(f'v_cvt_pk_bf16_f32 v{48+2*h}, v{SC(h)}, v{SC(h)+1}'); a(f'v_cvt_pk_bf16_f32 v{49+2*h}, v{SC(h)+2}, v{SC(h)+3}')
    a(f'buffer_store_dwordx4 v[48:51], v3, s[28:31], s64 offen {sc}')
    a(f'buffer_store_dwordx4 v[52:55], v3, s[28:31], s66 offen {sc}')
    for h in range(4):
        a(f's_mov_b32 exec_lo, {(0xffff << (16*h)) & 0xffffffff if h < 2 else 0}')
        a(f's_mov_b32 exec_hi, {(0xffff << (16*(h-2))) if h >= 2 else 0}')
        a(f'v_cvt_pk_bf16_f32 v56, v{SP(h)}, v{SP(h)+1}'); a(f'v_cvt_pk_bf16_f32 v57, v{SP(h)+2}, v{SP(h)+3}')
    a('s_mov_b64 exec, -1')
    a(f'buffer_store_dwordx2 v[56:57], v3, s[28:31], s62 offen {sc}')

def decode2(a):
    a('s_and_b32 s45, s2, 7'); a('s_lshr_b32 s46, s2, 3')
    a('s_lshr_b32 s41, s45, 1'); a('s_lshl_b32 s41, s41, 3'); a('s_lshr_b32 s47, s46, 2'); a('s_add_u32 s41, s41, s47')
    a('s_and_b32 s42, s45, 1'); a('s_lshl_b32 s42, s42, 2'); a('s_and_b32 s47, s46, 3'); a('s_add_u32 s42, s42, s47')

def ka(a):
    a.raw('.p2align 8'); a.label('ka_kernel')
    a('s_cmp_ge_u32 s2, 256'); a('s_cbranch_scc1 ka_exit')
    load_args(a); stamp(a, 0)
    a('v_lshrrev_b32 v1, 6, v0'); a('v_and_b32 v243, 63, v0'); a('v_readfirstlane_b32 s40, v1')
    decode2(a)
    a('s_waitcnt lgkmcnt(0)')
    srd(a, 24, 22, 23, QKV_SZ, WS_QKV); srd(a, 28, 22, 23, A2_SZ)
    attn_body(a, 'ka', 's40', 's41', 's42', 0)
    stamp_flush(a, 1, 2)
    a.label('ka_exit'); a('s_endpgm')

def k2(a):
    a.raw('.p2align 8'); a.label('k2_kernel')
    a('s_cmp_ge_u32 s2, 256'); a('s_cbranch_scc1 k2_exit')
    load_args(a); stamp(a, 0)
    L = 'v243'
    a('v_lshrrev_b32 v1, 6, v0'); a('v_and_b32 v243, 63, v0'); a('v_readfirstlane_b32 s40, v1')
    decode2(a)
    a(f'v_lshlrev_b32 v232, 4, {L}'); a('v_add_u32 v233, 4096, v232')
    for t in range(4):
        a(f's_add_u32 s47, s40, {t}'); a('s_and_b32 s47, s47, 3'); a('s_lshl_b32 s47, s47, 10'); a(f'v_add_u32 v{234+t}, s47, v232')
    a('s_waitcnt lgkmcnt(0)')
    srd(a, 24, 22, 23, A2_SZ); srd(a, 28, 22, 23, W2_SZ, WS_W2); srd(a, 32, 4, 5, XSZ); srd(a, 36, 18, 19, XSZ)
    a(f's_mul_i32 s48, s41, {A2_RB}'); a(f's_mul_i32 s49, s42, {W2_CB}')
    a(f's_mul_i32 s50, s40, {12*4096}'); a('s_add_u32 s50, s50, s48')
    a(f's_mul_i32 s51, s40, {5*4096}'); a('s_add_u32 s51, s51, s48'); a(f's_add_u32 s51, s51, {48*4096}')
    a(f's_mul_i32 s52, s40, {12*5120}'); a('s_add_u32 s52, s52, s49')
    a(f's_mul_i32 s53, s40, {5*5120}'); a('s_add_u32 s53, s53, s49'); a(f's_add_u32 s53, s53, {48*5120}')
    NB = 4
    BUF = lambda b: 80 + 36 * b
    def issue(st):
        b = BUF(st % NB)
        if st < 12: a(f's_add_u32 s54, s50, {st*4096}'); a(f's_add_u32 s55, s52, {st*5120}')
        else: a(f's_add_u32 s54, s51, {(st-12)*4096}'); a(f's_add_u32 s55, s53, {(st-12)*5120}')
        for t in range(5):
            d = b + 16 + 4 * t
            if t < 4: a(f'buffer_load_dwordx4 v[{d}:{d+3}], v232, s[28:31], s55 offen offset:{t*1024}')
            else: a(f'buffer_load_dwordx4 v[{d}:{d+3}], v233, s[28:31], s55 offen')
        for t in range(4):
            d = b + 4 * t
            a(f'buffer_load_dwordx4 v[{d}:{d+3}], v{234+t}, s[24:27], s54 offen')
    a(f'v_and_b32 v2, 15, {L}'); a(f'v_lshrrev_b32 v1, 4, {L}')
    a('s_lshl_b32 s47, s41, 6'); a('s_lshl_b32 s56, s40, 4'); a('s_add_u32 s47, s47, s56'); a('v_add_u32 v2, s47, v2')
    a('s_movk_i32 s47, 1280'); a('s_mul_i32 s56, s42, 160'); a('v_mul_lo_u32 v2, v2, s47'); a('v_add_u32 v2, s56, v2')
    a('v_lshl_add_u32 v238, v1, 4, v2'); a('v_lshl_add_u32 v239, v1, 3, v2')
    for st in range(NB): issue(st)
    a('buffer_load_dwordx4 v[224:227], v238, s[32:35], 0 offen')
    a('buffer_load_dwordx4 v[228:231], v238, s[32:35], 0 offen offset:64')
    a('buffer_load_dwordx2 v[244:245], v239, s[32:35], 0 offen offset:128')
    extra = 3
    AC = lambda tr, tc: (tr * 5 + tc) * 4
    for st in range(17):
        b = BUF(st % NB)
        later = min(17 - 1 - st, NB - 1) * 9
        if st < NB: later += extra
        a(f's_waitcnt vmcnt({later})')
        if st == 0: stamp(a, 1)
        if st == 8: stamp(a, 2)
        if st == 16: stamp(a, 3)
        for tr in range(4):
            for tc in range(5):
                c = AC(tr, tc)
                src = '0' if st == 0 else f'v[{c}:{c+3}]'
                a(f'v_mfma_f32_16x16x32_bf16 v[{c}:{c+3}], v[{b+16+4*tc}:{b+19+4*tc}], v[{b+4*tr}:{b+4*tr+3}], {src}')
        if st + NB < 17: issue(st + NB)
    for tp in range(1, 4):
        a(f's_add_u32 s47, s40, {tp}'); a('s_and_b32 s47, s47, 3'); a('s_mul_i32 s47, s47, 15360'); a(f'v_add_u32 v{233+tp}, s47, v232')
    for tp in range(1, 4):
        for tc in range(5):
            c = AC(tp, tc)
            a(f'ds_write_b128 v{233+tp}, v[{c}:{c+3}] offset:{(tp-1)*5120 + tc*1024}')
    a('s_mul_i32 s47, s40, 15360'); a('v_add_u32 v233, s47, v232')
    a('s_waitcnt lgkmcnt(0)'); a('s_barrier'); stamp(a, 4)
    for n in range(15): a(f'ds_read_b128 v[{80+4*n}:{83+4*n}], v233 offset:{n*1024}')
    xs = [224, 225, 226, 227, 228, 229, 230, 231, 244, 245]
    for n, r in enumerate(xs):
        a(f'v_lshlrev_b32 v{150+2*n}, 16, v{r}'); a(f'v_and_b32 v{151+2*n}, 0xffff0000, v{r}')
    P = lambda r: f'v[{r}:{r+1}]'
    for n in range(10): a(f'v_pk_add_f32 {P(2*n)}, {P(2*n)}, {P(150+2*n)}')
    for sl in range(3):
        a(f's_waitcnt lgkmcnt({10-5*sl})')
        for n in range(10): a(f'v_pk_add_f32 {P(2*n)}, {P(2*n)}, {P(80+20*sl+2*n)}')
    for n in range(10): a(f'v_cvt_pk_bf16_f32 v{40+n}, v{2*n}, v{2*n+1}')
    a('buffer_store_dwordx4 v[40:43], v238, s[36:39], 0 offen')
    a('buffer_store_dwordx4 v[44:47], v238, s[36:39], 0 offen offset:64')
    a('buffer_store_dwordx2 v[48:49], v239, s[36:39], 0 offen offset:128')
    stamp_flush(a, 2, 5)
    a.label('k2_exit'); a('s_endpgm')

def desc(name, vgpr=256, sgpr=100):
    return f'''.amdhsa_kernel {name}
  .amdhsa_next_free_vgpr {vgpr}
  .amdhsa_next_free_sgpr {sgpr}
  .amdhsa_accum_offset {vgpr}
  .amdhsa_group_segment_fixed_size 0
  .amdhsa_kernarg_size 80
  .amdhsa_user_sgpr_count 2
  .amdhsa_user_sgpr_kernarg_segment_ptr 1
  .amdhsa_system_sgpr_workgroup_id_x 1
.end_amdhsa_kernel
'''

def main():
    a = Asm()
    a.raw('; @launch kernel=k1_kernel grid=(256,1,1) block=(512,1,1) lds=163840')
    a.raw('; @launch kernel=ka_kernel grid=(256,1,1) block=(256,1,1) lds=24576')
    a.raw('; @launch kernel=k2_kernel grid=(256,1,1) block=(256,1,1) lds=61440')
    a.raw('.amdgcn_target "amdgcn-amd-amdhsa--gfx950"')
    a.raw('.text')
    for n in ('k1_kernel', 'ka_kernel', 'k2_kernel'):
        a.raw(f'.globl {n}'); a.raw(f'.type {n},@function')
    k1(a); ka(a); k2(a)
    a.raw('.section .rodata,"a"')
    for n in ('k1_kernel', 'ka_kernel', 'k2_kernel'):
        a.raw('.p2align 6'); a.raw(desc(n))
    open(sys.argv[1], 'w').write(a.text())
    print('nops inserted', a.nops)
main()
```

```python
import sys, math, os
from asmlib import *

NAME = "parallel_sum__sliding_local_dilated__glu_gated_geglu__prompt"
KN = NAME + "_kernel"
WS_A2, A2_RB, A2_SZ = 0, 278528, 32 * 278528
WS_W2, W2_CB, W2_SZ = 0x900000, 348160, 8 * 348160
WS_QKV, QKV_HG, QKV_SZ = 0xC00000, 983040, 8 * 983040
WS_STAT, WS_CNT = 0x1400000, 0x1410000
C_STAT, C_W2, C_RB, C_O = 0, 1, 9, 28
XSZ = 2048 * 1280
OOB = 0x7f000000
LOG2E = 1.4426950408889634
C1 = -2.0 * LOG2E * math.sqrt(2.0 / math.pi)
C2 = C1 * 0.044715
E = lambda k, d: int(os.environ.get(k, d))
PROF = E("PROF", 0); CLK = E("CLK", 0); ROT = E("ROT", 2); CODEPF = E("CODEPF", 1)
SPIN = 30000
WS_PROF = 0x2000000
XS = 14336
LW, LX = 0, 98304
LT2 = LX + 3 * XS
LST = LT2 + 3 * 5120
LRP = LST + 2048
LCN = LRP + 512
LWP, LAV = 0, 122880

def srd(a, d, lo, hi, size, add=None):
    if add is None:
        a(f's_mov_b32 s{d}, s{lo}'); a(f's_mov_b32 s{d+1}, s{hi}')
    else:
        a(f's_add_u32 s{d}, s{lo}, {add}'); a(f's_addc_u32 s{d+1}, s{hi}, 0')
    a(f's_mov_b32 s{d+2}, {size}'); a(f's_mov_b32 s{d+3}, 0x20000')

def stamp(a, n):
    if PROF:
        a(f'{"s_memtime" if CLK else "s_memrealtime"} s[{80+2*n}:{81+2*n}]'); a('s_waitcnt lgkmcnt(0)')
def stamp_flush(a, waveadd=0):
    if not PROF: return
    a('s_waitcnt vmcnt(0)'); stamp(a, 7)
    a(f's_add_u32 s96, s22, {WS_PROF}'); a('s_addc_u32 s97, s23, 0')
    a(f's_lshl_b32 s98, s2, 3'); a(f's_add_u32 s98, s98, s40'); a(f's_add_u32 s98, s98, {waveadd}'); a('s_lshl_b32 s98, s98, 6')
    a('v_mov_b32 v0, s98')
    for n in range(8):
        a(f'v_mov_b32 v2, s{80+2*n}'); a(f'v_mov_b32 v3, s{81+2*n}')
        a(f'global_store_dwordx2 v0, v[2:3], s[96:97] offset:{8*n}')

class Q:
    def __init__(s, a, cnt, mx): s.a = a; s.q = []; s.cnt = cnt; s.mx = mx
    def issue(s, tag, text): s.a(text); s.q.append(tag); assert len(s.q) <= s.mx, len(s.q)
    def wait(s, tag):
        if tag not in s.q: return
        idx = max(i for i, t in enumerate(s.q) if t == tag)
        n = len(s.q) - 1 - idx
        s.a(f's_waitcnt {s.cnt}({n})'); s.q = s.q[idx + 1:]
    def clear(s): s.q = []

_pl = [0]
def poll(a, va, vp, shift, width, target, base='s[10:11]', preissued=False, st='s70'):
    _pl[0] += 1; n = _pl[0]
    a(f's_mov_b32 {st}, 0')
    if preissued: a(f's_branch pl{n}_chk')
    a.label(f'pl{n}_top')
    a(f'global_load_dword {vp}, {va}, {base} sc1')
    a.label(f'pl{n}_chk')
    a('s_waitcnt vmcnt(0)')
    a(f'v_bfe_u32 {vp}, {vp}, {shift}, {width}')
    a(f'v_cmp_ne_u32 vcc, {target}, {vp}')
    a('s_nop 1')
    a(f's_cbranch_vccz pl{n}_ok')
    a('s_sleep 1')
    a(f's_add_u32 {st}, {st}, 1'); a(f's_cmp_lt_u32 {st}, {SPIN}'); a(f's_cbranch_scc1 pl{n}_top')
    a('s_endpgm')
    a.label(f'pl{n}_ok')

def div108(a, dst, src):
    a(f's_mul_i32 {dst}, {src}, 607'); a(f's_lshr_b32 {dst}, {dst}, 16')
assert all((x * 607) >> 16 == x // 108 for x in range(2112))

def last_wave_signal(a, lbl, ldsoff, sidx, sval, v0, v1):
    a(f'v_mov_b32 {v0}, {ldsoff}'); a(f'v_mov_b32 {v1}, 1')
    a('s_mov_b64 exec, 1')
    a(f'ds_add_rtn_u32 {v1}, {v0}, {v1}')
    a('s_waitcnt lgkmcnt(0)')
    a(f'v_readfirstlane_b32 s71, {v1}')
    a('s_cmp_lg_u32 s71, 3'); a(f's_cbranch_scc1 {lbl}')
    a(f's_lshl_b32 s71, {sidx}, 8')
    a(f'v_mov_b32 {v0}, s71'); a(f'v_mov_b32 {v1}, {sval}')
    a(f'global_atomic_add {v0}, {v1}, s[10:11]')
    a.label(lbl)
    a('s_mov_b64 exec, -1')

def kernel(a):
    a.raw('.p2align 8'); a.label(KN)
    a('s_cmp_ge_u32 s2, 256'); a('s_cbranch_scc1 k_exit')
    a('s_load_dwordx4 s[4:7], s[0:1], 0'); a('s_load_dwordx4 s[12:15], s[0:1], 32'); a('s_load_dwordx4 s[20:23], s[0:1], 64')
    a('s_load_dwordx2 s[8:9], s[0:1], 16'); a('s_load_dwordx4 s[16:19], s[0:1], 48')
    a('v_lshrrev_b32 v1, 6, v0'); a('v_and_b32 v243, 63, v0')
    a('v_readfirstlane_b32 s40, v1')
    if CODEPF:
        a('s_getpc_b64 s[46:47]')
        a.label('k_pc')
        a('s_cmp_ge_u32 s40, 4'); a('s_cbranch_scc1 k_nopf')
        a('v_lshlrev_b32 v2, 7, v0'); a('v_min_u32 v2, k_end-k_pc-4, v2'); a('v_and_b32 v2, -4, v2')
        a('global_load_dword v255, v2, s[46:47]')
        a.label('k_nopf')
    stamp(a, 0)
    a('s_and_b32 s45, s2, 7'); a('s_lshr_b32 s46, s2, 3')
    a('s_cmp_ge_u32 s45, 4'); a('s_cbranch_scc1 k_dec1')
    a('s_cmp_ge_u32 s46, 30'); a('s_cbranch_scc1 k_spare')
    a('s_mul_i32 s47, s46, 205'); a('s_lshr_b32 s47, s47, 11'); a('s_mul_i32 s44, s47, 10'); a('s_sub_u32 s46, s46, s44')
    a('s_branch k_dec2')
    a.label('k_dec1')
    a('s_sub_u32 s45, s45, 4')
    a('s_cmp_eq_u32 s2, 255'); a('s_cbranch_scc1 k_init')
    a('s_cmp_lt_u32 s46, 27'); a('s_cbranch_scc1 k_dec3')
    a('s_mul_i32 s45, s45, 5'); a('s_add_u32 s45, s45, s46'); a('s_sub_u32 s45, s45, 27'); a('s_mov_b32 s44, 12'); a('s_mov_b32 s47, 3')
    a('s_branch k_dec4')
    a.label('k_dec3')
    a('s_mul_i32 s47, s46, 57'); a('s_lshr_b32 s47, s47, 9'); a('s_mul_i32 s44, s47, 9'); a('s_sub_u32 s46, s46, s44'); a('s_add_u32 s46, s46, 10')
    a.label('k_dec2')
    a('s_lshl_b32 s44, s45, 1'); a('s_add_u32 s44, s44, s47'); a('s_add_u32 s45, s45, 8')
    a('s_cmp_eq_u32 s47, 2'); a('s_cselect_b32 s44, s45, s44'); a('s_mov_b32 s45, s46')
    a.label('k_dec4')
    a('s_mul_i32 s3, s44, 19'); a('s_add_u32 s3, s3, s45')
    a('s_mul_i32 s41, s45, 108')
    a('s_cmp_ge_u32 s44, 8'); a('s_cselect_b32 s43, 1, 0')
    a('s_cmp_lt_u32 s40, 4'); a('s_cbranch_scc1 k_cons')
    producer(a)
    gemm2(a)
    a.label('k_cons'); consumer(a)
    a.label('k_attn'); attention(a)
    a.label('k_spare'); spare(a)
    a.label('k_exit'); a('s_endpgm')
    a.label('k_end')

def cntbase(a):
    a(f's_add_u32 s10, s22, {WS_CNT}'); a('s_addc_u32 s11, s23, 0')

def producer(a):
    L = 'v243'
    a('s_sub_u32 s40, s40, 4'); a('s_and_b32 s51, s40, 1')
    a('s_lshl_b32 s68, s47, 1'); a('s_add_u32 s68, s68, s45')
    a('s_mul_i32 s46, s68, 205'); a('s_lshr_b32 s46, s46, 10'); a('s_mul_i32 s46, s46, 5'); a('s_sub_u32 s68, s68, s46'); a('s_lshl_b32 s68, s68, 1')
    a(f'v_lshrrev_b32 v2, 3, {L}'); a(f'v_and_b32 v3, 7, {L}')
    a('s_lshl_b32 s52, s40, 3')
    a('s_lshl_b32 s53, s51, 2'); a('v_lshrrev_b32 v4, 1, v2'); a('v_or_b32 v4, s53, v4')
    a('v_xor_b32 v4, v4, v3'); a('v_lshlrev_b32 v4, 4, v4')
    a('v_add_u32 v6, s52, v2')
    a('v_add_u32 v5, s41, v6'); a('s_movk_i32 s53, 1280')
    a('v_mad_u32_u24 v12, v5, s53, v4')
    a('v_add_u32 v13, 40960, v12'); a('v_add_u32 v14, 81920, v12'); a('v_add_u32 v15, 122880, v12')
    a('v_cmp_gt_u32 vcc, 12, v6'); a(f'v_mov_b32 v5, {OOB}'); a('v_cndmask_b32 v15, v5, v15, vcc')
    a('s_lshl_b32 s54, s40, 10'); a('s_lshl_b32 s58, s68, 7'); a(f's_add_u32 s59, s54, {LX}')
    a('s_cmp_eq_u32 s43, 1'); a('s_movk_i32 s42, 3072'); a('s_cselect_b32 s42, 3840, s42')
    a(f'v_bfe_u32 v4, {L}, 4, 1'); a('v_lshl_or_b32 v4, v4, 2, s51'); a('v_xor_b32 v4, v4, v3'); a('v_lshlrev_b32 v4, 4, v4')
    a('v_mad_u32_u24 v10, v6, s42, v4')
    a('s_lshl_b32 s55, s42, 5'); a('s_mul_i32 s56, s55, s68'); a('s_lshl_b32 s56, s56, 1'); a('s_mul_i32 s69, s55, 20')
    a('s_mov_b32 s57, s54')
    a('s_waitcnt lgkmcnt(0)')
    srd(a, 24, 4, 5, XSZ)
    def Wl(n):
        half, c = n // 3, n % 3
        a(f's_add_u32 m0, s57, {(half*3+c)*4096 - c*128}')
        a(f'buffer_load_dwordx4 v10, s[{28+4*half}:{31+4*half}], s56 offen offset:{c*128} lds')
    def Wadv():
        a('s_add_u32 s56, s56, s55'); a('s_cmp_ge_u32 s56, s69'); a('s_cselect_b32 s56, 0, s56')
        a('s_add_u32 s57, s57, 24576')
        a(f's_cmp_ge_u32 s57, {4*24576}'); a(f's_cselect_b32 s60, {4*24576}, 0'); a('s_sub_u32 s57, s57, s60')
    cnt = [0]
    def Xl(m):
        if m == 3:
            cnt[0] += 1
            a('s_cmp_ge_u32 s40, 2'); a(f's_cbranch_scc1 p_sk{cnt[0]}')
        a(f's_add_u32 m0, s59, {m*4096}')
        a(f'buffer_load_dwordx4 v{12+m}, s[24:27], s58 offen lds')
        if m == 3: a.label(f'p_sk{cnt[0]}')
    def Xadv():
        a('s_add_u32 s58, s58, 128'); a('s_cmp_ge_u32 s58, 1280'); a('s_cselect_b32 s58, 0, s58')
        a(f's_add_u32 s59, s59, {XS}')
        a(f's_cmp_ge_u32 s59, {LX+3*XS}'); a(f's_cselect_b32 s60, {3*XS}, 0'); a('s_sub_u32 s59, s59, s60')
    def issueW():
        for n in range(6): Wl(n)
        Wadv()
    def issueX():
        for m in range(4): Xl(m)
        Xadv()
    issueX()
    a('s_cmp_eq_u32 s43, 1'); a('s_cbranch_scc1 p_isq')
    a('s_mul_i32 s46, s44, 384'); a(f's_sub_u32 s47, {640*3072}, s46')
    srd(a, 28, 12, 13, 's47', 's46'); srd(a, 32, 14, 15, 's47', 's46')
    a(f's_mov_b32 s48, {A2_RB}'); a('s_movk_i32 s49, 1024'); a(f's_mov_b32 s50, {f32(C1)}')
    a('s_branch p_go')
    a.label('p_isq')
    a('s_sub_u32 s46, s44, 8'); a('s_mul_i32 s46, s46, 768'); a(f's_sub_u32 s47, {640*3840}, s46')
    srd(a, 28, 6, 7, 's47', 's46')
    a('s_add_u32 s46, s46, 384'); a('s_sub_u32 s47, s47, 384')
    srd(a, 32, 6, 7, 's47', 's46')
    a('s_movk_i32 s48, 30720'); a('s_movk_i32 s49, 7680'); a('s_mov_b32 s50, 1.0')
    a.label('p_go')
    issueW(); issueW()
    stamp(a, 1)
    cntbase(a)
    a('s_mul_i32 s64, s40, 247'); a('s_add_u32 s64, s64, s3')
    a('s_lshr_b32 s62, s64, 3'); a('s_and_b32 s63, s64, 7')
    a('s_cmp_ge_u32 s62, 48'); a('s_cbranch_scc1 p_t1')
    srd(a, 76, 16, 17, 1536 * 1280)
    a('s_lshl_b32 s72, s62, 5'); a('s_mov_b32 s73, 8'); a('s_mov_b32 s74, 4'); a('s_mov_b32 s75, 1')
    a('s_branch p_t2')
    a.label('p_t1')
    srd(a, 76, 8, 9, 640 * 1280)
    a('s_sub_u32 s46, s62, 48'); a('s_mul_i32 s47, s46, 205'); a('s_lshr_b32 s47, s47, 10')
    a('s_mul_i32 s72, s47, 5'); a('s_sub_u32 s46, s46, s72')
    a('s_mul_i32 s72, s47, 160'); a('s_mul_i32 s47, s46, 40')
    a('s_cmp_eq_u32 s46, 4'); a('s_cselect_b32 s47, 16, s47'); a('s_cselect_b32 s73, 40, 4')
    a('s_add_u32 s72, s72, s47'); a('s_mov_b32 s74, 20'); a('s_mov_b32 s75, 0')
    a.label('p_t2')
    a('s_mul_i32 s46, s63, 160')
    for n in range(5):
        a(f'v_add_u32 v4, {64*n}, {L}'); a('v_mul_u32_u24 v5, 205, v4'); a('v_lshrrev_b32 v5, 11, v5')
        a('v_mul_u32_u24 v7, 10, v5'); a('v_sub_u32 v4, v4, v7'); a('v_lshl_add_u32 v4, v4, 4, s46')
        a('v_lshrrev_b32 v7, 3, v5'); a('v_and_b32 v8, s75, v7'); a('v_bfe_u32 v9, v5, 2, 1'); a('v_xor_b32 v8, v8, v9')
        a('v_and_b32 v5, 3, v5'); a('v_mad_u32_u24 v5, v7, s73, v5'); a('v_mad_u32_u24 v5, v8, s74, v5'); a('v_add_u32 v5, s72, v5')
        a(f'v_mad_u32_u24 v{20+n}, v5, s53, v4')
    a(f's_mul_i32 s65, s40, 5120'); a(f's_add_u32 s65, s65, {LT2}')
    a(f'v_lshrrev_b32 v4, 4, {L}'); a(f'v_bfe_u32 v5, {L}, 2, 2'); a('v_lshl_add_u32 v4, v4, 3, v5'); a('v_mul_u32_u24 v4, 160, v4')
    a('v_add_u32 v4, s65, v4'); a(f'v_and_b32 v5, 3, {L}'); a('v_lshl_add_u32 v26, v5, 4, v4'); a('v_lshl_add_u32 v27, v5, 3, v4')
    a(f'v_lshlrev_b32 v28, 4, {L}'); a('v_add_u32 v29, 4096, v28')
    srd(a, 36, 22, 23, W2_SZ, WS_W2)
    a(f's_mul_i32 s66, s63, {W2_CB}'); a('s_mul_i32 s46, s62, 5120'); a('s_add_u32 s66, s66, s46')
    a('v_mov_b32 v30, 0')
    a('s_mov_b32 s61, 0')
    a(f'v_mul_u32_u24 v16, 247, {L}'); a('v_add_u32 v16, s3, v16'); a('s_movk_i32 s46, 544'); a('v_cmp_gt_u32 s[62:63], s46, v16')
    a('v_and_b32 v16, 7, v16'); a(f'v_add_u32 v16, {C_W2}, v16'); a('v_lshlrev_b32 v16, 8, v16'); a('v_mov_b32 v17, 1')
    a('s_cmp_eq_u32 s40, 0'); a('s_cselect_b32 s67, 4, 99')
    a('s_and_b32 s46, s2, 1'); a('s_lshl_b32 s46, s46, 2'); a('s_bfe_u32 s47, s2, 0x20003'); a('s_add_u32 s46, s46, s47')
    a(f's_add_u32 s46, s46, {C_W2}'); a('s_lshl_b32 s46, s46, 8')
    a('v_mov_b32 v18, s46'); a('v_writelane_b32 v18, 0, 0'); a('v_mov_b32 v19, 68'); a('v_writelane_b32 v19, 8, 0')
    a('s_waitcnt vmcnt(6)'); stamp(a, 2); a('s_barrier')
    issueW(); issueX()
    a('s_waitcnt vmcnt(9)'); a('s_barrier')
    issueW()
    a.label('p_loop')
    a('s_cmp_eq_u32 s61, 4'); a('s_cbranch_scc1 p_hf')
    a.label('p_hfret')
    for n in range(6): Wl(n)
    Xl(0); Xl(1); Wadv()
    a('s_cmp_eq_u32 s61, 1'); a('s_cbranch_scc1 p_hA')
    a('s_cmp_eq_u32 s61, 2'); a('s_cbranch_scc1 p_hB')
    a('s_cmp_eq_u32 s61, 7'); a('s_cbranch_scc1 p_hC')
    a.label('p_hret')
    a('s_waitcnt vmcnt(14)'); a('s_barrier')
    Xl(2); Xl(3)
    for n in range(6): Wl(n)
    Wadv(); Xadv()
    a('s_cmp_eq_u32 s61, s67'); a('s_cbranch_scc1 p_hD')
    a.label('p_hDret')
    a('s_add_u32 s61, s61, 1'); a('s_cmp_lt_u32 s61, 8')
    a('s_waitcnt vmcnt(15)'); a('s_barrier')
    a('s_cbranch_scc1 p_loop')
    a('s_branch p_tail')
    a.label('p_hA')
    a('global_load_dword v31, v30, s[20:21] sc1')
    a('s_cmp_ge_u32 s64, 544'); a('s_cbranch_scc1 p_hret')
    for n in range(5):
        a(f's_add_u32 m0, s65, {n*1024}'); a(f'buffer_load_dwordx4 v{20+n}, s[76:79], 0 offen lds')
    a('s_branch p_hret')
    a.label('p_hB')
    a('s_cmp_ge_u32 s64, 544'); a('s_cbranch_scc1 p_hret')
    a('s_waitcnt vmcnt(15)')
    for t in range(5):
        d = 32 + 4 * t; ad = 26 if t < 4 else 27; off = 64 * (t >> 1) + 8 * (t & 1) if t < 4 else 128
        a(f'ds_read_b64_tr_b16 v[{d}:{d+1}], v{ad} offset:{off}'); a(f'ds_read_b64_tr_b16 v[{d+2}:{d+3}], v{ad} offset:{off+640}')
    a('s_waitcnt lgkmcnt(0)')
    for t in range(5):
        d = 32 + 4 * t
        if t < 4: a(f'buffer_store_dwordx4 v[{d}:{d+3}], v28, s[36:39], s66 offen offset:{t*1024} sc1')
        else: a(f'buffer_store_dwordx4 v[{d}:{d+3}], v29, s[36:39], s66 offen sc1')
    a('s_branch p_hret')
    a.label('p_hf')
    poll(a, 'v30', 'v31', 0, 8, 1, base='s[20:21]', preissued=True)
    a('s_branch p_hfret')
    a.label('p_hD')
    a('s_mov_b64 exec, s[62:63]')
    a('global_atomic_add v16, v17, s[10:11]')
    a('s_mov_b64 exec, -1')
    a('s_branch p_hDret')
    a.label('p_hC')
    a('global_load_dword v31, v18, s[10:11] sc1')
    a('s_branch p_hret')
    a.label('p_tail')
    srd(a, 76, 22, 23, 32768, WS_STAT)
    a(f'v_and_b32 v4, 31, {L}'); a('s_lshl_b32 s46, s40, 5'); a('v_add_u32 v4, s46, v4')
    a('v_add_u32 v5, s41, v4'); a('v_lshlrev_b32 v6, 4, v5')
    poll(a, 'v18', 'v31', 0, 8, 'v19', preissued=True)
    a('buffer_load_dwordx4 v[32:35], v6, s[76:79], 0 offen sc1')
    a('s_barrier')
    a('v_lshrrev_b32 v6, 6, v5'); a('v_mul_lo_u32 v6, v6, s48'); a('v_bfe_u32 v7, v5, 4, 2'); a('v_mad_u32_u24 v6, v7, s49, v6')
    a('v_and_b32 v7, 15, v5'); a('v_lshl_add_u32 v6, v7, 4, v6')
    a('s_movk_i32 s46, 108'); a('v_cmp_gt_u32 vcc, s46, v4'); a('s_movk_i32 s46, 2048'); a('v_cmp_gt_u32 s[66:67], s46, v5')
    a('s_and_b64 vcc, vcc, s[66:67]'); a(f'v_mov_b32 v7, {OOB}'); a('v_cndmask_b32 v6, v7, v6, vcc')
    a('v_lshlrev_b32 v7, 2, v4'); a(f'v_add_u32 v7, {LRP}, v7'); a('ds_write_b32 v7, v6')
    a('v_lshlrev_b32 v7, 4, v4'); a(f'v_add_u32 v7, {LST}, v7')
    a('s_mov_b32 s62, s50'); a('s_mov_b32 s69, 0')
    a.label('k_gemm2')

def decode2(a):
    a('s_and_b32 s45, s2, 7'); a('s_lshr_b32 s46, s2, 3')
    a('s_lshr_b32 s41, s45, 1'); a('s_lshl_b32 s41, s41, 3'); a('s_lshr_b32 s47, s46, 2'); a('s_add_u32 s41, s41, s47')
    a('s_and_b32 s42, s45, 1'); a('s_lshl_b32 s42, s42, 2'); a('s_and_b32 s47, s46, 3'); a('s_add_u32 s42, s42, s47')

def gemm2(a):
    L = 'v243'
    decode2(a)
    a(f'v_lshlrev_b32 v248, 4, {L}'); a('v_add_u32 v249, 4096, v248')
    srd(a, 28, 22, 23, W2_SZ, WS_W2)
    a(f's_mul_i32 s49, s42, {W2_CB}')
    a(f's_mul_i32 s52, s40, {12*5120}'); a('s_add_u32 s52, s52, s49')
    a(f's_mul_i32 s53, s40, {5*5120}'); a('s_add_u32 s53, s53, s49'); a(f's_add_u32 s53, s53, {48*5120}')
    a('s_and_b32 s56, s42, 3'); a('s_mul_i32 s56, s56, 3')
    a('s_mul_i32 s57, s40, 5120')
    q = Q(a, 'vmcnt', 63)
    def soff(s, dst, hb, ob, stride):
        if s < 12:
            a(f's_add_u32 {dst}, s56, {s}'); a(f's_cmp_ge_u32 {dst}, 12'); a('s_cselect_b32 s60, 12, 0'); a(f's_sub_u32 {dst}, {dst}, s60')
            a(f's_mul_i32 {dst}, {dst}, {stride}'); a(f's_add_u32 {dst}, {dst}, {hb}')
        else: a(f's_add_u32 {dst}, {ob}, {(s-12)*stride}')
    WS_ = lambda s: (s % 6) if s < 11 else (5 if s & 1 else 4)
    WR = lambda s: 80 + 20 * WS_(s)
    AR = lambda s: 200 + 16 * (s % 3) if s < 12 else 80 + 16 * (s - 12)
    PIECE = lambda p: p * 24576 if p < 4 else LX + XS + (p - 4) * 20480
    def ldW(s):
        soff(s, 's55', 's52', 's53', 5120)
        for t in range(5):
            d = WR(s) + 4 * t
            if t < 4: q.issue(('W', s), f'buffer_load_dwordx4 v[{d}:{d+3}], v248, s[28:31], s55 offen offset:{t*1024} sc1')
            else: q.issue(('W', s), f'buffer_load_dwordx4 v[{d}:{d+3}], v249, s[28:31], s55 offen sc1')
    def dmaW(s):
        soff(s, 's55', 's52', 's53', 5120)
        a(f's_add_u32 m0, s57, {PIECE(s-11)}')
        for t in range(4): q.issue(('W', s), f'buffer_load_dwordx4 v248, s[28:31], s55 offen offset:{t*1024} sc1 lds')
        a(f's_add_u32 m0, s57, {PIECE(s-11)+4096}')
        q.issue(('W', s), f'buffer_load_dwordx4 v249, s[28:31], s55 offen sc1 lds')
    def ldA(s):
        soff(s, 's54', 's50', 's51', 4096)
        for t in range(4):
            d = AR(s) + 4 * t
            q.issue(('A', s), f'buffer_load_dwordx4 v[{d}:{d+3}], v{250+t}, s[24:27], s54 offen sc1')
    for s in range(3): ldW(s)
    a('s_cmp_eq_u32 s69, 1'); a('s_cbranch_scc1 g_n18')
    a('s_barrier')
    a(f's_mov_b32 s63, {f32(C2)}')
    a('s_waitcnt vmcnt(15)')
    a('v_mov_b32 v35, v34')
    a('v_mul_f32 v34, v33, v33'); a('v_mul_f32 v34, v34, v33'); a('v_mul_f32 v34, s63, v34'); a('v_mul_f32 v33, s62, v33')
    a('ds_write_b128 v7, v[32:35]')
    a.label('g_n18')
    for s in range(3, 6): ldW(s)
    a('s_cmp_eq_u32 s69, 1'); a('s_cbranch_scc1 g_n19')
    a('s_barrier')
    a.label('g_n19')
    for s in range(11, 14): dmaW(s)
    a('s_cmp_eq_u32 s69, 1'); a('s_cbranch_scc1 g_n20')
    a('s_waitcnt lgkmcnt(0)'); a('s_barrier')
    a.label('g_n20')
    stamp(a, 3)
    for s in range(14, 17): dmaW(s)
    for t in range(4):
        a(f's_add_u32 s47, s40, {t}'); a('s_and_b32 s47, s47, 3'); a('s_lshl_b32 s47, s47, 10'); a(f'v_add_u32 v{250+t}, s47, v248')
    srd(a, 24, 22, 23, A2_SZ); srd(a, 32, 4, 5, XSZ); srd(a, 36, 18, 19, XSZ)
    a(f's_mul_i32 s48, s41, {A2_RB}')
    a(f's_mul_i32 s50, s40, {12*4096}'); a('s_add_u32 s50, s50, s48')
    a(f's_mul_i32 s51, s40, {5*4096}'); a('s_add_u32 s51, s51, s48'); a(f's_add_u32 s51, s51, {48*4096}')
    a(f'v_and_b32 v2, 15, {L}'); a(f'v_lshrrev_b32 v3, 4, {L}')
    a('s_lshl_b32 s47, s41, 6'); a('s_lshl_b32 s58, s40, 4'); a('s_add_u32 s58, s47, s58'); a('v_add_u32 v2, s58, v2')
    a('s_movk_i32 s58, 1280'); a('s_mul_i32 s59, s42, 160'); a('v_mul_lo_u32 v2, v2, s58'); a('v_add_u32 v2, s59, v2')
    a('v_lshl_add_u32 v254, v3, 4, v2'); a('v_lshl_add_u32 v255, v3, 3, v2')
    div108(a, 's58', 's47'); a('s_add_u32 s47, s47, 63'); div108(a, 's59', 's47')
    a('v_mov_b32 v4, s59'); a('v_writelane_b32 v4, s58, 0'); a(f'v_add_u32 v4, {C_RB}, v4'); a('v_lshlrev_b32 v4, 8, v4')
    if PROF: a('s_waitcnt vmcnt(0)'); stamp(a, 1)
    poll(a, 'v4', 'v1', 8, 8, 8); q.clear()
    stamp(a, 4)
    for s in range(3): ldA(s)
    AC = lambda tr, tc: (tr * 5 + tc) * 4
    def rdW(s):
        for t in range(5):
            d = WR(s) + 4 * t
            p = s - 11
            if p < 3: a(f'ds_read_b128 v[{d}:{d+3}], v249 offset:{PIECE(p) + t*1024}')
            else: a(f'ds_read_b128 v[{d}:{d+3}], v216 offset:{PIECE(p) - 73728 + t*1024}')
    for s in range(17):
        q.wait(('W', s)); q.wait(('A', s))
        if s >= 11: a('s_waitcnt lgkmcnt(0)')
        if 11 <= s + 1 <= 16 and s >= 11: rdW(s + 1)
        for tr in range(4):
            for tc in range(5):
                c = AC(tr, tc)
                src = '0' if s == 0 else f'v[{c}:{c+3}]'
                a(f'v_mfma_f32_16x16x32_bf16 v[{c}:{c+3}], v[{WR(s)+4*tc}:{WR(s)+4*tc+3}], v[{AR(s)+4*tr}:{AR(s)+4*tr+3}], {src}')
        if s <= 8: ldA(s + 3)
        if s <= 4: ldW(s + 6)
        if s == 5:
            a('v_add_u32 v249, s57, v248')
            rdW(11)
        if s == 10:
            a('v_add_u32 v216, 73728, v249')
            a(f's_add_u32 s46, s41, {C_O}'); a('s_lshl_b32 s46, s46, 8'); a('v_mov_b32 v80, s46')
            q.issue('P', 'global_load_dword v81, v80, s[10:11] sc1')
        if s == 11:
            if PROF: a('s_waitcnt lgkmcnt(0)'); stamp(a, 2)
            poll(a, 'v80', 'v81', 0, 8, 8, preissued=True); q.clear()
            stamp(a, 5)
            for s2 in range(12, 17): ldA(s2)
        if s == 9:
            q.issue('X', 'buffer_load_dwordx4 v[200:203], v254, s[32:35], 0 offen')
            q.issue('X', 'buffer_load_dwordx4 v[204:207], v254, s[32:35], 0 offen offset:64')
            q.issue('X', 'buffer_load_dwordx2 v[208:209], v255, s[32:35], 0 offen offset:128')
    for tp in range(1, 4):
        for tc in range(5):
            c = AC(tp, tc)
            a(f'ds_write_b128 v249, v[{c}:{c+3}] offset:{(tp-1)*24576 + tc*1024}')
    for tp in range(1, 4):
        a(f's_sub_u32 s47, s40, {tp}'); a('s_and_b32 s47, s47, 3'); a('s_mul_i32 s47, s47, 5120'); a(f'v_add_u32 v{249+tp}, s47, v248')
    q.wait('X')
    for n in range(10):
        a(f'v_lshlrev_b32 v{150+2*n}, 16, v{200+n}'); a(f'v_and_b32 v{151+2*n}, 0xffff0000, v{200+n}')
    P = lambda r: f'v[{r}:{r+1}]'
    for n in range(10): a(f'v_pk_add_f32 {P(2*n)}, {P(2*n)}, {P(150+2*n)}')
    a('s_waitcnt lgkmcnt(0)'); a('s_barrier'); stamp(a, 6)
    for tp in range(1, 4):
        for tc in range(5):
            d = 80 + 20 * (tp - 1) + 4 * tc
            a(f'ds_read_b128 v[{d}:{d+3}], v{249+tp} offset:{(tp-1)*24576 + tc*1024}')
    for sl in range(3):
        a(f's_waitcnt lgkmcnt({10-5*sl})')
        for n in range(10): a(f'v_pk_add_f32 {P(2*n)}, {P(2*n)}, {P(80+20*sl+2*n)}')
    for n in range(10): a(f'v_cvt_pk_bf16_f32 v{40+n}, v{2*n}, v{2*n+1}')
    a('buffer_store_dwordx4 v[40:43], v254, s[36:39], 0 offen')
    a('buffer_store_dwordx4 v[44:47], v254, s[36:39], 0 offen offset:64')
    a('buffer_store_dwordx2 v[48:49], v255, s[36:39], 0 offen offset:128')
    stamp_flush(a, 4)
    a('s_endpgm')

def ACC(j, t): return (j * 7 + t) * 4
WF = lambda s, j: 168 + s * 24 + j * 4
XB = lambda b: 216 + 4 * b
WA = lambda hi, j: 232 + 3 * hi + j
def consumer(a):
    L = 'v243'
    T0 = 168
    g, i, r, c, t5, t6, t7, t8 = [f'v{T0+8+n}' for n in range(8)]
    for n in range(4): a(f'v_mov_b32 v{T0+n}, 0')
    a(f'v_lshrrev_b32 {g}, 4, {L}'); a(f'v_and_b32 {i}, 15, {L}'); a(f'v_bfe_u32 {r}, {L}, 2, 2'); a(f'v_and_b32 {c}, 3, {L}')
    for n in range(10): a(f'v_mfma_f32_32x32x16_bf16 v[{16*n}:{16*n+15}], v[{T0}:{T0+3}], v[{T0}:{T0+3}], 0')
    for n in range(2): a(f'v_mfma_f32_16x16x32_bf16 v[{160+4*n}:{163+4*n}], v[{T0}:{T0+3}], v[{T0}:{T0+3}], 0')
    a(f'v_lshrrev_b32 {t5}, 1, {r}'); a(f'v_lshlrev_b32 {t5}, 2, {t5}'); a(f'v_and_b32 {t6}, 1, {g}'); a(f'v_or_b32 {t5}, {t5}, {t6}')
    a(f'v_lshlrev_b32 {t5}, 4, {t5}'); a(f'v_lshl_or_b32 {t5}, {r}, 7, {t5}'); a(f'v_lshl_or_b32 {t5}, {g}, 10, {t5}')
    a('s_lshr_b32 s51, s40, 1'); a('s_mul_i32 s51, s51, 3'); a('s_add_u32 s52, s51, 1')
    a('s_and_b32 s53, s40, 1'); a('s_lshl_b32 s54, s53, 1'); a('s_add_u32 s51, s51, s54')
    a(f'v_and_b32 {t6}, 1, {c}'); a(f'v_lshlrev_b32 {t7}, 4, {c}'); a(f'v_lshl_or_b32 {t7}, {t6}, 3, {t7}'); a(f'v_xor_b32 {t7}, {t7}, {t5}')
    a('s_and_b32 s54, s51, 1'); a('s_lshl_b32 s54, s54, 6'); a('s_lshr_b32 s55, s51, 1'); a('s_lshl_b32 s55, s55, 12')
    a(f'v_xor_b32 {t7}, s54, {t7}'); a(f'v_add_u32 v{WA(0,0)}, s55, {t7}'); a(f'v_xor_b32 v{WA(0,1)}, 8, v{WA(0,0)}')
    a(f'v_lshrrev_b32 {t7}, 1, {c}'); a(f'v_xor_b32 {t6}, {t6}, {t7}'); a(f'v_lshlrev_b32 {t7}, 4, {t7}'); a(f'v_lshl_or_b32 {t7}, {t6}, 3, {t7}')
    a(f'v_xor_b32 {t7}, {t7}, {t5}')
    a('s_and_b32 s54, s52, 1'); a('s_lshl_b32 s54, s54, 6'); a('s_lshl_b32 s56, s53, 5'); a('s_or_b32 s54, s54, s56')
    a('s_lshr_b32 s55, s52, 1'); a('s_lshl_b32 s55, s55, 12')
    a(f'v_xor_b32 {t7}, s54, {t7}'); a(f'v_add_u32 v{WA(0,2)}, s55, {t7}')
    for j in range(3): a(f'v_add_u32 v{WA(1,j)}, 49152, v{WA(0,j)}')
    a(f'v_lshrrev_b32 {t5}, 1, {i}'); a(f'v_xor_b32 {t5}, {t5}, {g}'); a(f'v_lshlrev_b32 {t5}, 4, {t5}'); a(f'v_lshl_or_b32 {t5}, {i}, 7, {t5}')
    a(f'v_add_u32 v240, {LX}, {t5}'); a('v_xor_b32 v241, 64, v240')
    a('v_mov_b32 v238, v240'); a('v_mov_b32 v239, v241')
    a('v_mov_b32 v242, 0x3f803f80'); a(f'v_cmp_eq_u32 s[64:65], 15, {i}')
    a(f'v_mov_b32 {t5}, {LCN}'); a(f'ds_write_b64 {t5}, v[{T0}:{T0+1}]')
    a(f'v_lshrrev_b32 {t8}, 1, {g}'); a('s_lshl_b32 s56, s53, 1'); a(f'v_add_u32 {t8}, s56, {t8}')
    a('s_waitcnt lgkmcnt(0)')
    cntbase(a)
    a('s_cmp_eq_u32 s43, 1'); a('s_cbranch_scc1 c_q')
    srd(a, 36, 22, 23, A2_SZ)
    a('s_mul_i32 s54, s44, 6'); a('s_add_u32 s55, s54, s51'); a('s_lshl_b32 s55, s55, 12')
    a(f'v_lshl_add_u32 v251, {g}, 8, s55')
    a('s_add_u32 s55, s54, s52'); a('s_lshl_b32 s55, s55, 12')
    a(f'v_lshl_add_u32 v252, {t8}, 8, s55')
    a('v_mov_b32 v253, 0'); a('v_mov_b32 v254, 0')
    a('s_branch c_q2')
    a.label('c_q')
    srd(a, 36, 22, 23, QKV_SZ, WS_QKV)
    a(f's_mov_b32 s57, {QKV_HG}'); a('s_movk_i32 s58, 2560'); a('s_mul_i32 s59, s44, 48'); a(f's_sub_u32 s59, s59, {8*48}')
    for x in range(4):
        half, sh = x >> 1, x & 1
        a(f's_lshl_b32 s55, s{52 if sh else 51}, 2'); a('s_add_u32 s54, s59, s55'); a(f's_add_u32 s54, s54, {24*half}')
        a(f'v_add_u32 {t5}, s54, {t8 if sh else g}')
        a(f'v_mul_u32_u24 {t6}, 205, {t5}'); a(f'v_lshrrev_b32 {t6}, 14, {t6}')
        a(f'v_mul_u32_u24 {t7}, 80, {t6}'); a(f'v_sub_u32 {t5}, {t5}, {t7}')
        a(f'v_mul_u32_u24 {t7}, 205, {t5}'); a(f'v_lshrrev_b32 {t7}, 11, {t7}')
        a(f'v_mul_u32_u24 {r}, 10, {t7}'); a(f'v_sub_u32 {t5}, {t5}, {r}')
        a(f'v_mul_lo_u32 {t7}, {t7}, s57'); a(f'v_mad_u32_u24 {t7}, {t6}, s58, {t7}'); a(f'v_lshl_add_u32 v{251+x}, {t5}, 8, {t7}')
    a.label('c_q2')
    a(f'v_lshlrev_b32 v248, 4, {i}'); a(f'v_add_u32 v248, {LST}, v248')
    a(f'v_lshlrev_b32 v249, 2, {i}'); a(f'v_add_u32 v249, {LRP}, v249')
    a(f'v_and_b32 {t5}, 1, {g}'); a(f'v_lshl_add_u32 v250, {t5}, 6, v249')
    a('s_mov_b32 s60, 0'); a('s_mov_b32 s61, 0')
    q = Q(a, 'lgkmcnt', 15)
    def wread(slot, setn, idx):
        j, hf = idx >> 1, idx & 1
        off = (slot & 1) * 24576 + (j // 3) * 12288 + hf * 512
        d = WF(setn, j) + 2 * hf
        q.issue('W', f'ds_read_b64_tr_b16 v[{d}:{d+1}], v{WA(slot >> 1, j % 3)} offset:{off}')
    def xread(step, t):
        b = XB((7 * step + t) % 4)
        q.issue(('X', step % 4, t), f'ds_read_b128 v[{b}:{b+3}], v{238 + (step & 1)} offset:{t*2048}')
    stamp(a, 1)
    a('s_barrier')
    stamp(a, 2)
    for idx in range(12): wread(0, 0, idx)
    for t in range(3): xread(0, t)
    a.label('c_loop')
    for k in range(4):
        cur, nxt = k & 1, (k + 1) & 1
        widx = 0
        for t in range(7):
            q.wait(('X', k, t))
            fill = []
            tt = t + 3
            fill.append(lambda tt=tt: xread(k if tt <= 6 else k + 1, tt if tt <= 6 else tt - 7))
            if t == 0: fill.append(lambda: a('s_barrier'))
            if t <= 3:
                for _ in range(3):
                    fill.append(lambda w=widx: wread((k + 1) % 4, nxt, w)); widx += 1
            if t == 4:
                if k & 1 == 0:
                    fill.append(lambda: (a(f's_add_u32 s60, s60, {XS}'), a(f's_cmp_ge_u32 s60, {3*XS}')))
                    fill.append(lambda: a('s_cselect_b32 s60, 0, s60'))
                    fill.append(lambda: a('v_add_u32 v238, s60, v240'))
                else:
                    fill.append(lambda: a('v_add_u32 v239, s60, v241'))
            if t == 5:
                b6 = XB((7 * k + 6) % 4)
                fill.append(lambda: q.wait(('X', k, 6)))
                fill.append(lambda: (a(f'v_cndmask_b32 v{b6}, v{b6}, v242, s[64:65]'), a(f'v_cndmask_b32 v{b6+1}, v{b6+1}, v242, s[64:65]')))
                fill.append(lambda: (a(f'v_cndmask_b32 v{b6+2}, v{b6+2}, v242, s[64:65]'), a(f'v_cndmask_b32 v{b6+3}, v{b6+3}, v242, s[64:65]')))
            if t == 6 and k == 3:
                fill.append(lambda: (a('s_add_u32 s61, s61, 1'), a('s_cmp_lt_u32 s61, 5')))
            xb = XB((7 * k + t) % 4)
            for j in range(6):
                cc = ACC(j, t)
                a(f'v_mfma_f32_16x16x32_bf16 v[{cc}:{cc+3}], v[{WF(cur,j)}:{WF(cur,j)+3}], v[{xb}:{xb+3}], v[{cc}:{cc+3}]')
                if fill: fill.pop(0)()
            assert not fill
    a('s_cbranch_scc1 c_loop')
    a('s_waitcnt lgkmcnt(0)')
    stamp(a, 3)
    a('s_barrier')
    ST = lambda t: 168 + 4 * t
    CS = lambda j: 196 + 4 * j
    RP = lambda t: 232 + t
    RS = lambda p: 244 + p
    for p in range(4): a(f'ds_read2_b32 v[{RP(2*p)}:{RP(2*p)+1}], v249 offset0:{32*p} offset1:{32*p+16}')
    for p in range(2): a(f'ds_read2_b32 v[{RS(2*p)}:{RS(2*p)+1}], v250 offset0:{64*p} offset1:{64*p+32}')
    for t in range(7): a(f'ds_read_b128 v[{ST(t)}:{ST(t)+3}], v248 offset:{t*256}')
    a.fence(8)
    for j in range(6):
        for rr in range(4):
            a(f'v_mov_b32_dpp v{CS(j)+rr}, v{ACC(j,6)+rr} row_newbcast:15 row_mask:0xf bank_mask:0xf')
    a('s_cmp_eq_u32 s43, 1'); a('s_cbranch_scc1 c_epq')
    P = lambda r: f'v[{r}:{r+1}]'
    def shared_store(t, E, ad, colreg):
        if t & 1 or t == 6:
            a(f'v_add_u32 v{ad}, v{RS(t >> 1)}, v{colreg}')
            a(f'v_permlane16_swap_b32 v{E}, v{E+2}'); a(f'v_permlane16_swap_b32 v{E+1}, v{E+3}')
            a(f'buffer_store_dwordx4 v[{E}:{E+3}], v{ad}, s[36:39], 0 offen sc1')
    for t in range(7):
        a(f's_waitcnt lgkmcnt({6-t})')
        s01, s23 = P(ST(t)), P(ST(t) + 2)
        prs = [(j, hp) for j in range(3) for hp in range(2)]
        T = lambda n: 220 + 2 * n
        G = lambda j, hp: ACC(j, t) + 2 * hp
        U = lambda j, hp: ACC(j + 3, t) + 2 * hp
        for j, hp in prs: a(f'v_pk_fma_f32 {P(G(j,hp))}, {P(CS(j)+2*hp)}, {s01}, {P(G(j,hp))} op_sel:[0,0,0] op_sel_hi:[1,0,1]')
        for n, (j, hp) in enumerate(prs): a(f'v_pk_mul_f32 {P(T(n))}, {P(G(j,hp))}, {P(G(j,hp))}')
        for n, (j, hp) in enumerate(prs): a(f'v_pk_fma_f32 {P(T(n))}, {P(T(n))}, {s23}, {s01} op_sel:[0,0,1] op_sel_hi:[1,0,1]')
        for n, (j, hp) in enumerate(prs): a(f'v_pk_mul_f32 {P(T(n))}, {P(T(n))}, {P(G(j,hp))}')
        for n, (j, hp) in enumerate(prs):
            a(f'v_exp_f32 v{T(n)}, v{T(n)}'); a(f'v_exp_f32 v{T(n)+1}, v{T(n)+1}')
            a(f'v_pk_fma_f32 {P(U(j,hp))}, {P(CS(j+3)+2*hp)}, {s01}, {P(U(j,hp))} op_sel:[0,0,0] op_sel_hi:[1,0,1]')
        for n, (j, hp) in enumerate(prs): a(f'v_pk_fma_f32 {P(T(n))}, {P(T(n))}, {s23}, {s23} op_sel:[0,1,1] op_sel_hi:[1,1,1]')
        for n, (j, hp) in enumerate(prs):
            a(f'v_rcp_f32 v{T(n)}, v{T(n)}'); a(f'v_rcp_f32 v{T(n)+1}, v{T(n)+1}')
            a(f'v_pk_mul_f32 {P(U(j,hp))}, {P(U(j,hp))}, {P(G(j,hp))}')
        for n, (j, hp) in enumerate(prs): a(f'v_pk_mul_f32 {P(U(j,hp))}, {P(U(j,hp))}, {P(T(n))}')
        o4, Ep = ACC(0, t), ACC(1, t & ~1)
        for n, (j, hp) in enumerate(prs):
            d = o4 + n if n < 4 else Ep + 2 * (t & 1) + n - 4
            a(f'v_cvt_pk_bf16_f32 v{d}, v{U(j,hp)}, v{U(j,hp)+1}')
        a(f'v_add_u32 v{ACC(2,t)}, v{RP(t)}, v251')
        a(f'buffer_store_dwordx4 v[{o4}:{o4+3}], v{ACC(2,t)}, s[36:39], 0 offen sc1')
        shared_store(t, Ep, ACC(2, t) + 1, 252)
    a('s_movk_i32 s62, 256')
    a('s_branch c_pub')
    a.label('c_epq')
    for t in range(7):
        a(f's_waitcnt lgkmcnt({6-t})')
        s01 = P(ST(t))
        prs = [(j, hp) for j in range(6) for hp in range(2)]
        G = lambda j, hp: ACC(j, t) + 2 * hp
        for j, hp in prs: a(f'v_pk_fma_f32 {P(G(j,hp))}, {P(CS(j)+2*hp)}, {s01}, {P(G(j,hp))} op_sel:[0,0,0] op_sel_hi:[1,0,1]')
        for j, hp in prs: a(f'v_pk_mul_f32 {P(G(j,hp))}, {P(G(j,hp))}, {s01} op_sel:[0,1] op_sel_hi:[1,1]')
        for half in range(2):
            o4, Ep = ACC(3 * half, t), ACC(3 * half + 1, t & ~1)
            for n in range(6):
                j, hp = 3 * half + (n >> 1), n & 1
                d = o4 + n if n < 4 else Ep + 2 * (t & 1) + n - 4
                a(f'v_cvt_pk_bf16_f32 v{d}, v{G(j,hp)}, v{G(j,hp)+1}')
            ad = ACC(3 * half + 2, t)
            a(f'v_add_u32 v{ad}, v{RP(t)}, v{251+2*half}')
            a(f'buffer_store_dwordx4 v[{o4}:{o4+3}], v{ad}, s[36:39], 0 offen sc1')
            shared_store(t, Ep, ad + 1, 252 + 2 * half)
    a('s_mov_b32 s62, 1')
    a.label('c_pub')
    stamp(a, 4)
    a(f's_add_u32 s63, s45, {C_RB}')
    a('s_waitcnt vmcnt(0)')
    stamp(a, 5)
    last_wave_signal(a, 'c_sig', LCN, 's63', 's62', 'v0', 'v1')

def attention(a):
    L = 'v243'; wave = 's40'; rb = 's41'; hg = 's42'; sc = 'sc1'
    decode2(a)
    srd(a, 24, 22, 23, QKV_SZ, WS_QKV); srd(a, 28, 22, 23, A2_SZ)
    a(f's_lshl_b32 s60, {rb}, 2'); a(f's_add_u32 s60, s60, {wave}')
    a('s_max_u32 s61, s60, 1'); a('s_sub_u32 s61, s61, 1')
    a('s_lshl_b32 s62, s61, 4'); div108(a, 's62', 's62'); a('s_lshl_b32 s63, s60, 4'); a('s_add_u32 s63, s63, 15'); div108(a, 's63', 's63')
    a('v_mov_b32 v68, s63'); a('v_writelane_b32 v68, s62, 0'); a(f'v_add_u32 v68, {C_RB}, v68'); a('v_lshlrev_b32 v68, 8, v68')
    a('global_load_dword v69, v68, s[10:11] sc1')
    a(f's_mul_i32 s62, {hg}, {QKV_HG}')
    a('s_mul_i32 s63, s60, 7680'); a('s_add_u32 s63, s63, s62')
    a('s_mul_i32 s64, s61, 7680'); a('s_add_u32 s64, s64, s62')
    a(f'v_lshrrev_b32 v1, 4, {L}'); a(f'v_and_b32 v2, 15, {L}'); a(f'v_lshlrev_b32 v3, 4, {L}')
    a(f's_mul_i32 s65, {wave}, 24576'); a('s_add_u32 s65, s65, 20480')
    a(f's_mul_i32 s69, {wave}, 3072'); a(f's_add_u32 s69, s69, {LX}'); a('s_sub_u32 s54, s69, s65')
    a('s_add_u32 s66, s64, 5120'); a('s_add_u32 s67, s63, 5120')
    a('v_cmp_eq_u32 s[48:49], 3, v1'); a('v_cmp_eq_u32 s[72:73], 2, v1')
    a(f'v_mov_b32 v6, {OOB}')
    a('v_cndmask_b32 v4, v3, v6, s[48:49]')
    a('v_add_u32 v5, 768, v4'); a('v_cndmask_b32 v5, v5, v4, s[72:73]')
    a('v_cmp_gt_u32 vcc, 2, v1'); a('v_cndmask_b32 v70, v6, v3, vcc')
    a(f'v_bfe_u32 v7, {L}, 2, 4'); a('v_lshlrev_b32 v7, 4, v7'); a('v_add_u32 v7, s65, v7')
    a(f'v_and_b32 v13, 3, {L}')
    for h in range(5):
        if h < 4: a(f'v_add_u32 v14, {5*h}, v13')
        else: a('v_mul_u32_u24 v14, 5, v13'); a('v_add_u32 v14, 4, v14')
        a('v_lshrrev_b32 v15, 1, v14'); a('v_xor_b32 v14, v14, v15'); a('v_and_b32 v14, 1, v14')
        a('v_lshlrev_b32 v14, 3, v14'); a('v_lshl_add_u32 v14, v15, 8, v14'); a(f'v_add_u32 v{8+h}, v14, v7'); a(f'v_add_u32 v{128+h}, s54, v{8+h}')
    a('v_and_b32 v13, 1, v2'); a('v_cmp_eq_u32 s[74:75], 1, v13')
    a('v_lshl_add_u32 v14, v1, 2, v13'); a('v_cmp_le_u32 s[76:77], v14, v2')
    a('v_add_u32 v14, 2, v14'); a('v_cmp_le_u32 s[78:79], v14, v2')
    a('v_mov_b32 v13, 0xffff'); a('v_mov_b32 v14, 0xffff0000'); a('v_cndmask_b32 v13, v13, v14, s[74:75]')
    a('v_cndmask_b32 v64, v13, 0, s[76:77]'); a('v_cndmask_b32 v65, v13, 0, s[78:79]')
    a('v_cndmask_b32 v66, 0, v13, s[76:77]'); a('v_cndmask_b32 v67, 0, v13, s[78:79]')
    a(f's_lshr_b32 s52, {hg}, 1'); a('s_mul_i32 s52, s52, 5'); a('s_add_u32 s52, s52, 48'); a('s_lshl_b32 s52, s52, 12')
    a(f's_mul_i32 s53, {rb}, {A2_RB}'); a('s_add_u32 s52, s52, s53'); a(f's_lshl_b32 s53, {wave}, 10'); a('s_add_u32 s52, s52, s53')
    a(f's_and_b32 s53, {hg}, 1')
    a('s_lshl_b32 s50, s53, 13'); a('s_add_u32 s50, s50, s52'); a('s_add_u32 s51, s50, 4096')
    a('s_lshl_b32 s53, s53, 9'); a('s_add_u32 s52, s52, s53'); a('s_add_u32 s52, s52, 16384')
    a('v_lshrrev_b32 v14, 1, v1'); a('v_lshlrev_b32 v14, 8, v14'); a('v_lshl_add_u32 v71, v2, 4, v14')
    a('v_and_b32 v14, 1, v1'); a('v_cmp_eq_u32 vcc, 0, v14'); a('v_cndmask_b32 v71, v6, v71, vcc')
    poll(a, 'v68', 'v69', 0, 8, 5, preissued=True)
    stamp(a, 6)
    Qf = lambda h: 16 + 4 * h; KC = lambda h: 32 + 4 * h; KP = lambda h: 48 + 4 * h
    for h in range(4):
        v = 'v5' if h & 1 else 'v4'; o = 1280 * (h >> 1)
        a(f'buffer_load_dwordx4 v[{Qf(h)}:{Qf(h)+3}], {v}, s[24:27], s63 offen offset:{o} {sc}')
        a(f'buffer_load_dwordx4 v[{KC(h)}:{KC(h)+3}], {v}, s[24:27], s63 offen offset:{o+2560} {sc}')
        a(f'buffer_load_dwordx4 v[{KP(h)}:{KP(h)+3}], {v}, s[24:27], s64 offen offset:{o+2560} {sc}')
    a('s_mov_b32 m0, s65')
    for n in range(3): a(f'buffer_load_dwordx4 {"v3" if n < 2 else "v70"}, s[24:27], s66 offen offset:{n*1024} {sc} lds')
    a('s_mov_b32 m0, s69')
    for n in range(3): a(f'buffer_load_dwordx4 {"v3" if n < 2 else "v70"}, s[24:27], s67 offen offset:{n*1024} {sc} lds')
    a('s_waitcnt vmcnt(6)')
    a('s_mov_b64 exec, s[72:73]')
    for h, z in enumerate((2, 0, 0, 2)):
        a(f'v_mov_b32 v{Qf(h)+z}, 0'); a(f'v_mov_b32 v{Qf(h)+z+1}, 0')
    a('s_mov_b64 exec, -1')
    SC = lambda h: 96 + 8 * h; SP = lambda h: 100 + 8 * h
    for h in range(4):
        a(f'v_mfma_f32_16x16x32_bf16 v[{SC(h)}:{SC(h)+3}], v[{KC(h)}:{KC(h)+3}], v[{Qf(h)}:{Qf(h)+3}], 0')
        a(f'v_mfma_f32_16x16x32_bf16 v[{SP(h)}:{SP(h)+3}], v[{KP(h)}:{KP(h)+3}], v[{Qf(h)}:{Qf(h)+3}], 0')
    a('s_waitcnt vmcnt(0)')
    VF = lambda h: 72 + 4 * h
    for h in range(5):
        a(f'ds_read_b64_tr_b16 v[{VF(h)}:{VF(h)+1}], v{8+h}')
        a(f'ds_read_b64_tr_b16 v[{VF(h)+2}:{VF(h)+3}], v{128+h}')
    a('s_cmp_lg_u32 s60, 0'); a('s_cbranch_scc1 a_nofix')
    for h in range(4):
        for r in range(4): a(f'v_mov_b32 v{SP(h)+r}, {f32(-1e30)}')
    a.label('a_nofix')
    LA = lambda h: 16 + 2 * h; LB = lambda h: 17 + 2 * h; M = lambda h: 24 + h
    for h in range(4):
        a(f'v_cndmask_b32 v{SC(h)}, v{SC(h)}, v{SC(h)+1}, s[74:75]'); a(f'v_cndmask_b32 v{SC(h)+2}, v{SC(h)+2}, v{SC(h)+3}, s[74:75]')
        a(f'v_cndmask_b32 v{SP(h)}, v{SP(h)}, v{SP(h)+1}, s[74:75]'); a(f'v_cndmask_b32 v{SP(h)+2}, v{SP(h)+2}, v{SP(h)+3}, s[74:75]')
    for h in range(4):
        a(f'v_cndmask_b32 v{LA(h)}, v{SP(h)}, v{SC(h)}, s[76:77]'); a(f'v_cndmask_b32 v{LB(h)}, v{SP(h)+2}, v{SC(h)+2}, s[78:79]')
    for h in range(4): a(f'v_max_f32 v{M(h)}, v{LA(h)}, v{LB(h)}')
    def reduce4(op, post=None):
        A, B, C, D = 24, 25, 26, 27
        a(f'v_permlane16_swap_b32 v{A}, v{B}'); a(f'v_permlane16_swap_b32 v{C}, v{D}')
        a(f'{op} v{A}, v{A}, v{B}'); a(f'{op} v{C}, v{C}, v{D}')
        a(f'v_permlane32_swap_b32 v{A}, v{C}')
        a(f'{op} v{A}, v{A}, v{C}')
        if post: post(A)
        a(f'v_mov_b32 v{C}, v{A}')
        a(f'v_permlane32_swap_b32 v{A}, v{C}')
        a(f'v_mov_b32 v{B}, v{A}'); a(f'v_mov_b32 v{D}, v{C}')
        a(f'v_permlane16_swap_b32 v{A}, v{B}'); a(f'v_permlane16_swap_b32 v{C}, v{D}')
    cs = 20 ** -0.5 * LOG2E
    a(f's_mov_b32 s68, {f32(cs)}')
    reduce4('v_max_f32', lambda r: a(f'v_mul_f32 v{r}, s68, v{r}'))
    for h in range(4):
        a(f'v_fma_f32 v{LA(h)}, v{LA(h)}, s68, -v{M(h)}'); a(f'v_fma_f32 v{LB(h)}, v{LB(h)}, s68, -v{M(h)}')
    for h in range(4):
        a(f'v_exp_f32 v{LA(h)}, v{LA(h)}'); a(f'v_exp_f32 v{LB(h)}, v{LB(h)}')
    for h in range(4): a(f'v_add_f32 v{M(h)}, v{LA(h)}, v{LB(h)}')
    reduce4('v_add_f32', lambda r: a(f'v_rcp_f32 v{r}, v{r}'))
    for h in range(4):
        a(f'v_mul_f32 v{LA(h)}, v{LA(h)}, v{M(h)}'); a(f'v_mul_f32 v{LB(h)}, v{LB(h)}, v{M(h)}')
    for h in range(4):
        a(f'v_cvt_pk_bf16_f32 v{LA(h)}, v{LA(h)}, v{LA(h)}'); a(f'v_cvt_pk_bf16_f32 v{LB(h)}, v{LB(h)}, v{LB(h)}')
    PF = lambda h: 32 + 4 * h
    for h in range(4):
        a(f'v_and_b32 v{PF(h)}, v{LA(h)}, v64'); a(f'v_and_b32 v{PF(h)+1}, v{LB(h)}, v65')
        a(f'v_and_b32 v{PF(h)+2}, v{LA(h)}, v66'); a(f'v_and_b32 v{PF(h)+3}, v{LB(h)}, v67')
    a('s_waitcnt lgkmcnt(0)')
    for h in range(4):
        a(f'v_mfma_f32_16x16x32_bf16 v[{SC(h)}:{SC(h)+3}], v[{VF(h)}:{VF(h)+3}], v[{PF(h)}:{PF(h)+3}], 0')
    for h in range(4):
        a(f'v_mfma_f32_16x16x32_bf16 v[{SP(h)}:{SP(h)+3}], v[{VF(4)}:{VF(4)+3}], v[{PF(h)}:{PF(h)+3}], 0')
    for h in range(4):
        a(f'v_cvt_pk_bf16_f32 v{48+2*h}, v{SC(h)}, v{SC(h)+1}'); a(f'v_cvt_pk_bf16_f32 v{49+2*h}, v{SC(h)+2}, v{SC(h)+3}')
    a(f'buffer_store_dwordx4 v[48:51], v3, s[28:31], s50 offen {sc}')
    a(f'buffer_store_dwordx4 v[52:55], v3, s[28:31], s51 offen {sc}')
    for h in range(4):
        a(f's_mov_b32 exec_lo, {(0xffff << (16*h)) & 0xffffffff if h < 2 else 0}')
        a(f's_mov_b32 exec_hi, {(0xffff << (16*(h-2))) if h >= 2 else 0}')
        a(f'v_cvt_pk_bf16_f32 v56, v{SP(h)}, v{SP(h)+1}'); a(f'v_cvt_pk_bf16_f32 v57, v{SP(h)+2}, v{SP(h)+3}')
    a('s_mov_b64 exec, -1')
    a('v_mov_b32 v58, v56'); a('v_mov_b32 v59, v57')
    a('v_permlane16_swap_b32 v56, v58'); a('v_permlane16_swap_b32 v57, v59')
    a(f'buffer_store_dwordx4 v[56:59], v71, s[28:31], s52 offen {sc}')
    a(f's_add_u32 s63, {rb}, {C_O}')
    a('s_waitcnt vmcnt(0)')
    last_wave_signal(a, 'a_sig', LCN + 4, 's63', '1', 'v0', 'v1')
    stamp_flush(a, 0)
    a('s_endpgm')

def spare(a):
    L = 'v243'
    a('s_lshl_b32 s45, s45, 1'); a('s_add_u32 s45, s45, s46'); a('s_sub_u32 s45, s45, 30')
    a('s_lshl_b32 s41, s45, 3'); a('s_add_u32 s41, s41, s40'); a('s_lshl_b32 s41, s41, 5')
    a(f'v_lshrrev_b32 v1, 4, {L}'); a(f'v_and_b32 v2, 15, {L}'); a('v_add_u32 v1, s41, v1')
    a('s_movk_i32 s42, 1280'); a('v_lshlrev_b32 v3, 4, v2'); a('v_mad_u32_u24 v3, v1, s42, v3')
    a('s_waitcnt lgkmcnt(0)')
    srd(a, 24, 4, 5, XSZ); srd(a, 28, 22, 23, 32768, WS_STAT); cntbase(a)
    for s in range(8):
        a(f's_movk_i32 s43, {s*5120}' if s * 5120 < 32768 else f's_mov_b32 s43, {s*5120}')
        for j in range(5):
            d = 40 + 20 * s + 4 * j
            a(f'buffer_load_dwordx4 v[{d}:{d+3}], v3, s[24:27], s43 offen offset:{j*256}')
    for n in range(16): a(f'v_mov_b32 v{8+n}, 0')
    a('v_mov_b32 v4, 0x3f803f80')
    a(f'v_mov_b32 v5, {LCN}'); a('ds_write_b64 v5, v[8:9]')
    for s in range(8):
        a(f's_waitcnt vmcnt({35-5*s})')
        for n in range(20):
            d = 40 + 20 * s + n
            a(f'v_dot2c_f32_bf16 v{8+s}, v{d}, v4'); a(f'v_dot2c_f32_bf16 v{16+s}, v{d}, v{d}')
    a.fence(4)
    for ro in (8, 4, 2, 1):
        for n in range(16): a(f'v_add_f32_dpp v{8+n}, v{8+n}, v{8+n} row_ror:{ro} row_mask:0xf bank_mask:0xf')
    a(f's_mov_b32 s43, {f32(1.0/640)}')
    a('v_lshlrev_b32 v5, 4, v1'); a('v_cmp_eq_u32 vcc, 0, v2'); a(f'v_mov_b32 v6, {OOB}'); a('v_cndmask_b32 v5, v6, v5, vcc')
    for s in range(8):
        b = 40 + 4 * s
        a(f'v_mul_f32 v{b}, s43, v{8+s}'); a(f'v_mul_f32 v{b+2}, s43, v{16+s}')
        a(f'v_fma_f32 v{b+2}, -v{b}, v{b}, v{b+2}'); a(f'v_max_f32 v{b+2}, 0, v{b+2}'); a(f'v_add_f32 v{b+2}, {f32(1e-5)}, v{b+2}')
        a(f'v_rsq_f32 v{b+1}, v{b+2}'); a(f'v_sub_f32 v{b}, 0, v{b}'); a(f'v_mov_b32 v{b+3}, 0')
        a(f'buffer_store_dwordx4 v[{b}:{b+3}], v5, s[28:31], 0 offen offset:{s*64} sc1')
    a('v_mov_b32 v30, 0')
    poll(a, 'v30', 'v31', 0, 8, 1, base='s[20:21]')
    a('s_waitcnt lgkmcnt(0)'); a('s_barrier')
    a('s_cmp_lg_u32 s40, 0'); a('s_cbranch_scc1 s_p2')
    a('v_mov_b32 v31, 1'); a('s_mov_b64 exec, 1')
    a('global_atomic_add v30, v31, s[10:11]')
    a('s_mov_b64 exec, -1')
    a.label('s_p2')
    stamp(a, 1)
    a('s_cmp_lt_u32 s40, 4'); a('s_cbranch_scc1 k_attn')
    a('s_sub_u32 s40, s40, 4'); a('s_mov_b32 s69, 1')
    decode2(a)
    a(f's_add_u32 s46, s42, {C_W2}'); a('s_lshl_b32 s46, s46, 8'); a('v_mov_b32 v18, s46')
    poll(a, 'v18', 'v31', 0, 8, 68)
    a('s_branch k_gemm2')
    a.label('k_init')
    a('s_waitcnt lgkmcnt(0)')
    cntbase(a)
    a('v_mov_b32 v8, 0'); a('v_mov_b32 v9, 0'); a(f'v_mov_b32 v5, {LCN}'); a('ds_write_b64 v5, v[8:9]')
    a('s_cmp_lg_u32 s40, 0'); a('s_cbranch_scc1 s_i2')
    a(f'v_lshlrev_b32 v1, 8, {L}')
    a('global_store_dword v1, v8, s[10:11] sc1')
    a('s_waitcnt vmcnt(0)')
    a('v_mov_b32 v9, 1'); a('s_mov_b64 exec, 1')
    a('global_store_dword v8, v9, s[20:21] sc1')
    a('s_mov_b64 exec, -1')
    a.label('s_i2')
    a('s_waitcnt vmcnt(0) lgkmcnt(0)'); a('s_barrier')
    a('s_branch s_p2')

def main():
    a = Asm()
    ref = open('cdna_kernels/' + NAME + '.s.ref').read().split('\n')
    for l in ref:
        if l.startswith('; @launch'): break
        a.raw(l)
    if E("LIST", 0): a.raw(f'; @launch kernel={KN} grid=(256,1,1) block=(512,1,1) lds=163840')
    else: a.raw('; @launch grid=(256,1,1) block=(512,1,1) lds=163840')
    a.raw('.amdgcn_target "amdgcn-amd-amdhsa--gfx950"')
    a.raw('.text'); a.raw(f'.globl {KN}'); a.raw(f'.type {KN},@function')
    kernel(a)
    a.raw('.section .rodata,"a"'); a.raw('.p2align 6')
    a.raw(f'''.amdhsa_kernel {KN}
  .amdhsa_next_free_vgpr 256
  .amdhsa_next_free_sgpr 100
  .amdhsa_accum_offset 256
  .amdhsa_group_segment_fixed_size 0
  .amdhsa_kernarg_size 80
  .amdhsa_user_sgpr_count 2
  .amdhsa_user_sgpr_kernarg_segment_ptr 1
  .amdhsa_system_sgpr_workgroup_id_x 1
.end_amdhsa_kernel''')
    open(sys.argv[1], 'w').write(a.text())
    print('nops inserted', a.nops)
main()
```

```python
import sys, math, os
from asmlib import *

NAME = "parallel_sum__sliding_local_dilated__glu_gated_geglu__prompt"
KN = NAME + "_kernel"
WS_A2, A2_RB, A2_SZ = 0, 278528, 32 * 278528
WS_W2, W2_CB, W2_SZ = 0x900000, 348160, 8 * 348160
WS_QKV, QKV_HG, QKV_SZ = 0xC00000, 983040, 8 * 983040
WS_STAT, WS_CNT = 0x1400000, 0x1410000
C_STAT, C_W2, C_WG = 0, 1, 16
XSZ = 2048 * 1280
OOB = 0x7f000000
LOG2E = 1.4426950408889634
C1 = -2.0 * LOG2E * math.sqrt(2.0 / math.pi)
C2 = C1 * 0.044715
E = lambda k, d: int(os.environ.get(k, d))
PROF = E("PROF", 0); CLK = E("CLK", 0); ROT = E("ROT", 2); CODEPF = E("CODEPF", 1)
SPIN = 30000
SLEEP = E("SLEEP", 3)
WARMW = E("WARMW", 0); CH = E("CH", 2)
ASC = os.environ.get("ASC", "sc1"); STSC = os.environ.get("STSC", "sc1"); SPROF = E("SPROF", 0); WSC = os.environ.get("WSC", "sc1")
WS_PROF = 0x2000000
XS = 14336
LW, LX = 0, 98304
LT2 = LX + 3 * XS
LST = LT2 + 3 * 5120
LRP = LST + 2048
LCN = LRP + 512
LWP, LAV = 0, 122880

def srd(a, d, lo, hi, size, add=None):
    if add is None:
        a(f's_mov_b32 s{d}, s{lo}'); a(f's_mov_b32 s{d+1}, s{hi}')
    else:
        a(f's_add_u32 s{d}, s{lo}, {add}'); a(f's_addc_u32 s{d+1}, s{hi}, 0')
    a(f's_mov_b32 s{d+2}, {size}'); a(f's_mov_b32 s{d+3}, 0x20000')

def stamp(a, n):
    if PROF:
        a(f'{"s_memtime" if CLK else "s_memrealtime"} s[{80+2*n}:{81+2*n}]'); a('s_waitcnt lgkmcnt(0)')
def stamp_flush(a, waveadd=0):
    if not PROF: return
    a('s_waitcnt vmcnt(0)'); stamp(a, 7)
    a(f's_add_u32 s96, s22, {WS_PROF}'); a('s_addc_u32 s97, s23, 0')
    a(f's_lshl_b32 s98, s2, 3'); a(f's_add_u32 s98, s98, s40'); a(f's_add_u32 s98, s98, {waveadd}'); a('s_lshl_b32 s98, s98, 6')
    a('v_mov_b32 v0, s98')
    for n in range(8):
        a(f'v_mov_b32 v2, s{80+2*n}'); a(f'v_mov_b32 v3, s{81+2*n}')
        a(f'global_store_dwordx2 v0, v[2:3], s[96:97] offset:{8*n}')

class Q:
    def __init__(s, a, cnt, mx): s.a = a; s.q = []; s.cnt = cnt; s.mx = mx
    def issue(s, tag, text): s.a(text); s.q.append(tag); assert len(s.q) <= s.mx, len(s.q)
    def wait(s, tag):
        if tag not in s.q: return
        idx = max(i for i, t in enumerate(s.q) if t == tag)
        n = len(s.q) - 1 - idx
        s.a(f's_waitcnt {s.cnt}({n})'); s.q = s.q[idx + 1:]
    def clear(s): s.q = []

_pl = [0]
def poll(a, va, vp, shift, width, target, base='s[10:11]', preissued=False, st='s70', mask=None):
    _pl[0] += 1; n = _pl[0]
    a(f's_mov_b32 {st}, 0')
    if preissued: a(f's_branch pl{n}_chk')
    a.label(f'pl{n}_top')
    a(f'global_load_dword {vp}, {va}, {base} sc1')
    a.label(f'pl{n}_chk')
    a('s_waitcnt vmcnt(0)')
    if mask: a(f'v_and_b32 {vp}, {mask}, {vp}'); target = mask
    else: a(f'v_bfe_u32 {vp}, {vp}, {shift}, {width}')
    a(f'v_cmp_ne_u32 vcc, {target}, {vp}')
    a('s_nop 1')
    a(f's_cbranch_vccz pl{n}_ok')
    a(f's_sleep {SLEEP}')
    a(f's_add_u32 {st}, {st}, 1'); a(f's_cmp_lt_u32 {st}, {SPIN}'); a(f's_cbranch_scc1 pl{n}_top')
    a('s_endpgm')
    a.label(f'pl{n}_ok')

def div108(a, dst, src):
    a(f's_mul_i32 {dst}, {src}, 607'); a(f's_lshr_b32 {dst}, {dst}, 16')
assert all((x * 607) >> 16 == x // 108 for x in range(2112))

def last_wave_signal(a, lbl, ldsoff, vaddr, vval, smask, v0, v1, off=0):
    a(f'v_mov_b32 {v0}, {ldsoff}'); a(f'v_mov_b32 {v1}, 1')
    a('s_mov_b64 exec, 1')
    a(f'ds_add_rtn_u32 {v1}, {v0}, {v1}')
    a('s_waitcnt lgkmcnt(0)')
    a(f'v_readfirstlane_b32 s71, {v1}')
    a('s_cmp_lg_u32 s71, 3'); a(f's_cbranch_scc1 {lbl}')
    a(f's_mov_b64 exec, {smask}')
    a(f'global_atomic_add {vaddr}, {vval}, s[10:11] offset:{off}')
    a.label(lbl)
    a('s_mov_b64 exec, -1')

def jlo(a, dst, rb):
    a(f's_lshl_b32 {dst}, {rb}, 6'); a(f's_max_u32 {dst}, {dst}, 16'); a(f's_sub_u32 {dst}, {dst}, 16'); div108(a, dst, dst)

def kernel(a):
    a.raw('.p2align 8'); a.label(KN)
    a('s_cmp_ge_u32 s2, 256'); a('s_cbranch_scc1 k_exit')
    a('s_load_dwordx4 s[4:7], s[0:1], 0'); a('s_load_dwordx4 s[12:15], s[0:1], 32'); a('s_load_dwordx4 s[20:23], s[0:1], 64')
    a('s_load_dwordx2 s[8:9], s[0:1], 16'); a('s_load_dwordx4 s[16:19], s[0:1], 48')
    a('v_lshrrev_b32 v1, 6, v0'); a('v_and_b32 v243, 63, v0')
    a('v_readfirstlane_b32 s40, v1')
    if CODEPF:
        a('s_getpc_b64 s[46:47]')
        a.label('k_pc')
        a('s_cmp_ge_u32 s40, 4'); a('s_cbranch_scc1 k_nopf')
        a('v_lshlrev_b32 v2, 7, v0'); a('v_min_u32 v2, k_end-k_pc-4, v2'); a('v_and_b32 v2, -4, v2')
        a('global_load_dword v255, v2, s[46:47]')
        a.label('k_nopf')
    stamp(a, 0)
    a('s_and_b32 s45, s2, 7'); a('s_lshr_b32 s46, s2, 3')
    a('s_cmp_ge_u32 s45, 4'); a('s_cbranch_scc1 k_dec1')
    a('s_cmp_ge_u32 s46, 30'); a('s_cbranch_scc1 k_spare')
    a('s_mul_i32 s47, s46, 205'); a('s_lshr_b32 s47, s47, 11'); a('s_mul_i32 s44, s47, 10'); a('s_sub_u32 s46, s46, s44')
    a('s_branch k_dec2')
    a.label('k_dec1')
    a('s_sub_u32 s45, s45, 4')
    a('s_cmp_eq_u32 s2, 255'); a('s_cbranch_scc1 k_init')
    a('s_cmp_lt_u32 s46, 27'); a('s_cbranch_scc1 k_dec3')
    a('s_mul_i32 s45, s45, 5'); a('s_add_u32 s45, s45, s46'); a('s_sub_u32 s45, s45, 27'); a('s_mov_b32 s44, 12'); a('s_mov_b32 s47, 3')
    a('s_branch k_dec4')
    a.label('k_dec3')
    a('s_mul_i32 s47, s46, 57'); a('s_lshr_b32 s47, s47, 9'); a('s_mul_i32 s44, s47, 9'); a('s_sub_u32 s46, s46, s44'); a('s_add_u32 s46, s46, 10')
    a.label('k_dec2')
    a('s_lshl_b32 s44, s45, 1'); a('s_add_u32 s44, s44, s47'); a('s_add_u32 s45, s45, 8')
    a('s_cmp_eq_u32 s47, 2'); a('s_cselect_b32 s44, s45, s44'); a('s_mov_b32 s45, s46')
    a.label('k_dec4')
    a('s_mul_i32 s3, s44, 19'); a('s_add_u32 s3, s3, s45')
    a('s_mul_i32 s41, s45, 108')
    a('s_cmp_ge_u32 s44, 8'); a('s_cselect_b32 s43, 1, 0')
    a('s_cmp_lt_u32 s40, 4'); a('s_cbranch_scc1 k_cons')
    producer(a)
    gemm2(a)
    a.label('k_cons'); consumer(a)
    a.label('k_attn'); attention(a)
    a.label('k_spare'); spare(a)
    a.label('k_exit'); a('s_endpgm')
    a.label('k_end')

def cntbase(a):
    a(f's_add_u32 s10, s22, {WS_CNT}'); a('s_addc_u32 s11, s23, 0')

def producer(a):
    L = 'v243'
    a('s_sub_u32 s40, s40, 4'); a('s_and_b32 s51, s40, 1')
    a('s_lshl_b32 s68, s47, 1'); a('s_add_u32 s68, s68, s45')
    a('s_mul_i32 s46, s68, 205'); a('s_lshr_b32 s46, s46, 10'); a('s_mul_i32 s46, s46, 5'); a('s_sub_u32 s68, s68, s46'); a('s_lshl_b32 s68, s68, 1')
    a(f'v_lshrrev_b32 v2, 3, {L}'); a(f'v_and_b32 v3, 7, {L}')
    a('s_lshl_b32 s52, s40, 3')
    a('s_lshl_b32 s53, s51, 2'); a('v_lshrrev_b32 v4, 1, v2'); a('v_or_b32 v4, s53, v4')
    a('v_xor_b32 v4, v4, v3'); a('v_lshlrev_b32 v4, 4, v4')
    a('v_add_u32 v6, s52, v2')
    a('v_add_u32 v5, s41, v6'); a('s_movk_i32 s53, 1280')
    a('v_mad_u32_u24 v12, v5, s53, v4')
    a('v_add_u32 v13, 40960, v12'); a('v_add_u32 v14, 81920, v12'); a('v_add_u32 v15, 122880, v12')
    a('v_cmp_gt_u32 vcc, 12, v6'); a(f'v_mov_b32 v5, {OOB}'); a('v_cndmask_b32 v15, v5, v15, vcc')
    a('s_lshl_b32 s54, s40, 10'); a('s_lshl_b32 s58, s68, 7'); a(f's_add_u32 s59, s54, {LX}')
    a('s_cmp_eq_u32 s43, 1'); a('s_movk_i32 s42, 3072'); a('s_cselect_b32 s42, 3840, s42')
    a(f'v_bfe_u32 v4, {L}, 4, 1'); a('v_lshl_or_b32 v4, v4, 2, s51'); a('v_xor_b32 v4, v4, v3'); a('v_lshlrev_b32 v4, 4, v4')
    a('v_mad_u32_u24 v10, v6, s42, v4')
    a('s_lshl_b32 s55, s42, 5'); a('s_mul_i32 s56, s55, s68'); a('s_lshl_b32 s56, s56, 1'); a('s_mul_i32 s69, s55, 20')
    a('s_mov_b32 s57, s54')
    a('s_waitcnt lgkmcnt(0)')
    srd(a, 24, 4, 5, XSZ)
    def Wl(n):
        half, c = n // 3, n % 3
        a(f's_add_u32 m0, s57, {(half*3+c)*4096 - c*128}')
        a(f'buffer_load_dwordx4 v10, s[{28+4*half}:{31+4*half}], s56 offen offset:{c*128} lds')
    def Wadv():
        a('s_add_u32 s56, s56, s55'); a('s_cmp_ge_u32 s56, s69'); a('s_cselect_b32 s56, 0, s56')
        a('s_add_u32 s57, s57, 24576')
        a(f's_cmp_ge_u32 s57, {4*24576}'); a(f's_cselect_b32 s60, {4*24576}, 0'); a('s_sub_u32 s57, s57, s60')
    cnt = [0]
    def Xl(m):
        if m == 3:
            cnt[0] += 1
            a('s_cmp_ge_u32 s40, 2'); a(f's_cbranch_scc1 p_sk{cnt[0]}')
        a(f's_add_u32 m0, s59, {m*4096}')
        a(f'buffer_load_dwordx4 v{12+m}, s[24:27], s58 offen lds')
        if m == 3: a.label(f'p_sk{cnt[0]}')
    def Xadv():
        a('s_add_u32 s58, s58, 128'); a('s_cmp_ge_u32 s58, 1280'); a('s_cselect_b32 s58, 0, s58')
        a(f's_add_u32 s59, s59, {XS}')
        a(f's_cmp_ge_u32 s59, {LX+3*XS}'); a(f's_cselect_b32 s60, {3*XS}, 0'); a('s_sub_u32 s59, s59, s60')
    def issueW():
        for n in range(6): Wl(n)
        Wadv()
    def issueX():
        for m in range(4): Xl(m)
        Xadv()
    issueX()
    a('s_cmp_eq_u32 s43, 1'); a('s_cbranch_scc1 p_isq')
    a('s_mul_i32 s46, s44, 384'); a(f's_sub_u32 s47, {640*3072}, s46')
    srd(a, 28, 12, 13, 's47', 's46'); srd(a, 32, 14, 15, 's47', 's46')
    a(f's_mov_b32 s48, {A2_RB}'); a('s_movk_i32 s49, 1024'); a(f's_mov_b32 s50, {f32(C1)}')
    a('s_branch p_go')
    a.label('p_isq')
    a('s_sub_u32 s46, s44, 8'); a('s_mul_i32 s46, s46, 768'); a(f's_sub_u32 s47, {640*3840}, s46')
    srd(a, 28, 6, 7, 's47', 's46')
    a('s_add_u32 s46, s46, 384'); a('s_sub_u32 s47, s47, 384')
    srd(a, 32, 6, 7, 's47', 's46')
    a('s_movk_i32 s48, 30720'); a('s_movk_i32 s49, 7680'); a('s_mov_b32 s50, 1.0')
    a.label('p_go')
    issueW(); issueW()
    stamp(a, 1)
    cntbase(a)
    a('s_mul_i32 s64, s40, 247'); a('s_add_u32 s64, s64, s3')
    a('s_lshr_b32 s62, s64, 3'); a('s_and_b32 s63, s64, 7')
    a('s_cmp_ge_u32 s62, 48'); a('s_cbranch_scc1 p_t1')
    srd(a, 76, 16, 17, 1536 * 1280)
    a('s_lshl_b32 s72, s62, 5'); a('s_mov_b32 s73, 8'); a('s_mov_b32 s74, 4'); a('s_mov_b32 s75, 1')
    a('s_branch p_t2')
    a.label('p_t1')
    srd(a, 76, 8, 9, 640 * 1280)
    a('s_sub_u32 s46, s62, 48'); a('s_mul_i32 s47, s46, 205'); a('s_lshr_b32 s47, s47, 10')
    a('s_mul_i32 s72, s47, 5'); a('s_sub_u32 s46, s46, s72')
    a('s_mul_i32 s72, s47, 160'); a('s_mul_i32 s47, s46, 40')
    a('s_cmp_eq_u32 s46, 4'); a('s_cselect_b32 s47, 16, s47'); a('s_cselect_b32 s73, 40, 4')
    a('s_add_u32 s72, s72, s47'); a('s_mov_b32 s74, 20'); a('s_mov_b32 s75, 0')
    a.label('p_t2')
    a('s_mul_i32 s46, s63, 160')
    for n in range(5):
        a(f'v_add_u32 v4, {64*n}, {L}'); a('v_mul_u32_u24 v5, 205, v4'); a('v_lshrrev_b32 v5, 11, v5')
        a('v_mul_u32_u24 v7, 10, v5'); a('v_sub_u32 v4, v4, v7'); a('v_lshl_add_u32 v4, v4, 4, s46')
        a('v_lshrrev_b32 v7, 3, v5'); a('v_and_b32 v8, s75, v7'); a('v_bfe_u32 v9, v5, 2, 1'); a('v_xor_b32 v8, v8, v9')
        a('v_and_b32 v5, 3, v5'); a('v_mad_u32_u24 v5, v7, s73, v5'); a('v_mad_u32_u24 v5, v8, s74, v5'); a('v_add_u32 v5, s72, v5')
        a(f'v_mad_u32_u24 v{20+n}, v5, s53, v4')
    a(f's_mul_i32 s65, s40, 5120'); a(f's_add_u32 s65, s65, {LT2}')
    a(f'v_lshrrev_b32 v4, 4, {L}'); a(f'v_bfe_u32 v5, {L}, 2, 2'); a('v_lshl_add_u32 v4, v4, 3, v5'); a('v_mul_u32_u24 v4, 160, v4')
    a('v_add_u32 v4, s65, v4'); a(f'v_and_b32 v5, 3, {L}'); a('v_lshl_add_u32 v26, v5, 4, v4'); a('v_lshl_add_u32 v27, v5, 3, v4')
    a(f'v_lshlrev_b32 v28, 4, {L}'); a('v_add_u32 v29, 4096, v28')
    srd(a, 36, 22, 23, W2_SZ, WS_W2)
    a(f's_mul_i32 s66, s63, {W2_CB}'); a('s_mul_i32 s46, s62, 5120'); a('s_add_u32 s66, s66, s46')
    a('v_mov_b32 v30, 0')
    a('s_mov_b32 s61, 0')
    a(f'v_mul_u32_u24 v16, 247, {L}'); a('v_add_u32 v16, s3, v16'); a('s_movk_i32 s46, 544'); a('v_cmp_gt_u32 s[62:63], s46, v16')
    a('v_and_b32 v16, 7, v16'); a(f'v_add_u32 v16, {C_W2}, v16'); a('v_lshlrev_b32 v16, 8, v16'); a('v_mov_b32 v17, 1')
    a('s_cmp_eq_u32 s40, 0'); a('s_cselect_b32 s67, 4, 99')
    a('s_and_b32 s46, s2, 1'); a('s_lshl_b32 s46, s46, 2'); a('s_bfe_u32 s47, s2, 0x20003'); a('s_add_u32 s46, s46, s47')
    a(f's_add_u32 s46, s46, {C_W2}'); a('s_lshl_b32 s46, s46, 8')
    a('v_mov_b32 v18, s46'); a('v_writelane_b32 v18, 0, 0'); a('v_mov_b32 v19, 68'); a('v_writelane_b32 v19, 8, 0')
    a('s_waitcnt vmcnt(6)'); stamp(a, 2); a('s_barrier')
    issueW(); issueX()
    a('s_waitcnt vmcnt(9)'); a('s_barrier')
    issueW()
    if PROF:
        a('s_memtime s[72:73]'); a('s_waitcnt lgkmcnt(0)'); a('v_mov_b32 v60, s72')
    a.label('p_loop')
    a('s_cmp_eq_u32 s61, 4'); a('s_cbranch_scc1 p_hf')
    a.label('p_hfret')
    for n in range(6): Wl(n)
    Xl(0); Xl(1); Wadv()
    a('s_cmp_eq_u32 s61, 1'); a('s_cbranch_scc1 p_hA')
    a('s_cmp_eq_u32 s61, 2'); a('s_cbranch_scc1 p_hB')
    a('s_cmp_eq_u32 s61, 7'); a('s_cbranch_scc1 p_hC')
    a.label('p_hret')
    a('s_waitcnt vmcnt(14)'); a('s_barrier')
    Xl(2); Xl(3)
    for n in range(6): Wl(n)
    Wadv(); Xadv()
    a('s_cmp_eq_u32 s61, s67'); a('s_cbranch_scc1 p_hD')
    a.label('p_hDret')
    a('s_add_u32 s61, s61, 1'); a('s_cmp_lt_u32 s61, 8')
    a('s_waitcnt vmcnt(15)'); a('s_barrier')
    if PROF:
        a('s_memtime s[72:73]'); a('s_waitcnt lgkmcnt(0)')
        for r in range(69, 60, -1): a(f'v_mov_b32 v{r}, v{r-1}')
        a('v_mov_b32 v60, s72')
    a('s_cbranch_scc1 p_loop')
    if PROF:
        a(f's_add_u32 s96, s22, {WS_PROF + 0x20000}'); a('s_addc_u32 s97, s23, 0')
        a('s_lshl_b32 s98, s2, 3'); a('s_add_u32 s98, s98, s40'); a('s_lshl_b32 s98, s98, 6'); a('v_mov_b32 v59, s98')
        for r in range(9): a(f'global_store_dword v59, v{68-r}, s[96:97] offset:{4*r}')
    a('s_branch p_tail')
    a.label('p_hA')
    a('global_load_dword v31, v30, s[20:21] sc1')
    a('s_cmp_ge_u32 s64, 544'); a('s_cbranch_scc1 p_hret')
    for n in range(5):
        a(f's_add_u32 m0, s65, {n*1024}'); a(f'buffer_load_dwordx4 v{20+n}, s[76:79], 0 offen lds')
    a('s_branch p_hret')
    a.label('p_hB')
    a('s_cmp_ge_u32 s64, 544'); a('s_cbranch_scc1 p_hret')
    a('s_waitcnt vmcnt(15)')
    for t in range(5):
        d = 32 + 4 * t; ad = 26 if t < 4 else 27; off = 64 * (t >> 1) + 8 * (t & 1) if t < 4 else 128
        a(f'ds_read_b64_tr_b16 v[{d}:{d+1}], v{ad} offset:{off}'); a(f'ds_read_b64_tr_b16 v[{d+2}:{d+3}], v{ad} offset:{off+640}')
    a('s_waitcnt lgkmcnt(0)')
    for t in range(5):
        d = 32 + 4 * t
        if t < 4: a(f'buffer_store_dwordx4 v[{d}:{d+3}], v28, s[36:39], s66 offen offset:{t*1024} sc1')
        else: a(f'buffer_store_dwordx4 v[{d}:{d+3}], v29, s[36:39], s66 offen sc1')
    a('s_branch p_hret')
    a.label('p_hf')
    poll(a, 'v30', 'v31', 0, 8, 1, base='s[20:21]', preissued=True)
    a('s_branch p_hfret')
    a.label('p_hD')
    a('s_mov_b64 exec, s[62:63]')
    a('global_atomic_add v16, v17, s[10:11]')
    a('s_mov_b64 exec, -1')
    a('s_branch p_hDret')
    a.label('p_hC')
    a('global_load_dword v31, v18, s[10:11] sc1')
    a('s_branch p_hret')
    a.label('p_tail')
    srd(a, 76, 22, 23, 32768, WS_STAT)
    a(f'v_and_b32 v4, 31, {L}'); a('s_lshl_b32 s46, s40, 5'); a('v_add_u32 v4, s46, v4')
    a('v_add_u32 v5, s41, v4'); a('v_lshlrev_b32 v6, 4, v5')
    poll(a, 'v18', 'v31', 0, 8, 'v19', preissued=True)
    a('buffer_load_dwordx4 v[32:35], v6, s[76:79], 0 offen sc1')
    a('s_barrier')
    a('v_lshrrev_b32 v6, 6, v5'); a('v_mul_lo_u32 v6, v6, s48'); a('v_bfe_u32 v7, v5, 4, 2'); a('v_mad_u32_u24 v6, v7, s49, v6')
    a('v_and_b32 v7, 15, v5'); a('v_lshl_add_u32 v6, v7, 4, v6')
    a('s_movk_i32 s46, 108'); a('v_cmp_gt_u32 vcc, s46, v4'); a('s_movk_i32 s46, 2048'); a('v_cmp_gt_u32 s[66:67], s46, v5')
    a('s_and_b64 vcc, vcc, s[66:67]'); a(f'v_mov_b32 v7, {OOB}'); a('v_cndmask_b32 v6, v7, v6, vcc')
    a('v_lshlrev_b32 v7, 2, v4'); a(f'v_add_u32 v7, {LRP}, v7'); a('ds_write_b32 v7, v6')
    a('v_lshlrev_b32 v7, 4, v4'); a(f'v_add_u32 v7, {LST}, v7')
    a('s_mov_b32 s62, s50'); a('s_mov_b32 s69, 0')
    a.label('k_gemm2')

def decode2(a):
    a('s_and_b32 s45, s2, 7'); a('s_lshr_b32 s46, s2, 3')
    a('s_lshr_b32 s41, s45, 1'); a('s_lshl_b32 s41, s41, 3'); a('s_lshr_b32 s47, s46, 2'); a('s_add_u32 s41, s41, s47')
    a('s_and_b32 s42, s45, 1'); a('s_lshl_b32 s42, s42, 2'); a('s_and_b32 s47, s46, 3'); a('s_add_u32 s42, s42, s47')

def gemm2(a):
    L = 'v243'
    decode2(a)
    a(f'v_lshlrev_b32 v248, 4, {L}'); a('v_add_u32 v249, 4096, v248')
    srd(a, 28, 22, 23, W2_SZ, WS_W2)
    a(f's_mul_i32 s49, s42, {W2_CB}')
    a(f's_mul_i32 s52, s40, {12*5120}'); a('s_add_u32 s52, s52, s49')
    a(f's_mul_i32 s53, s40, {5*5120}'); a('s_add_u32 s53, s53, s49'); a(f's_add_u32 s53, s53, {48*5120}')
    a('s_and_b32 s56, s42, 3'); a('s_mul_i32 s56, s56, 3')
    a('s_and_b32 s47, s41, 7'); a('s_mul_i32 s46, s47, 3'); a('s_lshr_b32 s46, s46, 1'); a('s_add_u32 s56, s56, s46')
    a('s_cmp_ge_u32 s56, 12'); a('s_cselect_b32 s46, 12, 0'); a('s_sub_u32 s56, s56, s46')
    a('s_and_b32 s46, s42, 3'); a('s_add_u32 s64, s46, s47'); a('s_mul_i32 s46, s64, 205'); a('s_lshr_b32 s46, s46, 10'); a('s_mul_i32 s46, s46, 5'); a('s_sub_u32 s64, s64, s46')
    a('s_mul_i32 s57, s40, 5120')
    q = Q(a, 'vmcnt', 63)
    def soff(s, dst, hb, ob, stride):
        if s < 12:
            a(f's_add_u32 {dst}, s56, {s}'); a(f's_cmp_ge_u32 {dst}, 12'); a('s_cselect_b32 s60, 12, 0'); a(f's_sub_u32 {dst}, {dst}, s60')
            a(f's_mul_i32 {dst}, {dst}, {stride}'); a(f's_add_u32 {dst}, {dst}, {hb}')
        else:
            a(f's_add_u32 {dst}, s64, {s-12}'); a(f's_cmp_ge_u32 {dst}, 5'); a('s_cselect_b32 s60, 5, 0'); a(f's_sub_u32 {dst}, {dst}, s60')
            a(f's_mul_i32 {dst}, {dst}, {stride}'); a(f's_add_u32 {dst}, {dst}, {ob}')
    WS_ = lambda s: (s % 6) if s < 11 else (5 if s & 1 else 4)
    WR = lambda s: 80 + 20 * WS_(s)
    AR = lambda s: 200 + 16 * (s % 3) if s < 12 else 80 + 16 * (s - 12)
    PIECE = lambda p: p * 24576 if p < 4 else LX + XS + (p - 4) * 20480
    def ldW(s):
        soff(s, 's55', 's52', 's53', 5120)
        for t in range(5):
            d = WR(s) + 4 * t
            if t < 4: q.issue(('W', s), f'buffer_load_dwordx4 v[{d}:{d+3}], v248, s[28:31], s55 offen offset:{t*1024} {WSC}')
            else: q.issue(('W', s), f'buffer_load_dwordx4 v[{d}:{d+3}], v249, s[28:31], s55 offen {WSC}')
    def dmaW(s):
        soff(s, 's55', 's52', 's53', 5120)
        a(f's_add_u32 m0, s57, {PIECE(s-11)}')
        for t in range(4): q.issue(('W', s), f'buffer_load_dwordx4 v248, s[28:31], s55 offen offset:{t*1024} {WSC} lds')
        a(f's_add_u32 m0, s57, {PIECE(s-11)+4096}')
        q.issue(('W', s), f'buffer_load_dwordx4 v249, s[28:31], s55 offen {WSC} lds')
    def ldA(s):
        soff(s, 's54', 's50', 's51', 4096)
        for t in range(4):
            d = AR(s) + 4 * t
            q.issue(('A', s), f'buffer_load_dwordx4 v[{d}:{d+3}], v{250+t}, s[24:27], s54 offen {ASC}')
    todo = [lambda s=s: ldW(s) for s in range(6)] + [lambda s=s: dmaW(s) for s in range(11, 17)]
    def chunk(n):
        for _ in range(n): todo.pop(0)()
    chunk(CH)
    a('s_cmp_eq_u32 s69, 1'); a('s_cbranch_scc1 g_n18')
    a('s_barrier')
    a(f's_mov_b32 s63, {f32(C2)}')
    a(f's_waitcnt vmcnt({5*CH})')
    a('v_mov_b32 v35, v34')
    a('v_mul_f32 v34, v33, v33'); a('v_mul_f32 v34, v34, v33'); a('v_mul_f32 v34, s63, v34'); a('v_mul_f32 v33, s62, v33')
    a('ds_write_b128 v7, v[32:35]')
    a.label('g_n18')
    chunk(CH)
    a('s_cmp_eq_u32 s69, 1'); a('s_cbranch_scc1 g_n19')
    a('s_barrier')
    a.label('g_n19')
    chunk(CH)
    a('s_cmp_eq_u32 s69, 1'); a('s_cbranch_scc1 g_n20')
    a('s_waitcnt lgkmcnt(0)'); a('s_barrier')
    a.label('g_n20')
    stamp(a, 3)
    chunk(len(todo))
    if WARMW:
        a('s_waitcnt vmcnt(40)')
        a(f'v_min_u32 v5, 39, {L}'); a('v_lshlrev_b32 v5, 7, v5')
        for s in range(6, 11):
            soff(s, 's55', 's52', 's53', 5120)
            a(f'buffer_load_dword v{4+s}, v5, s[28:31], s55 offen {WSC}')
    for t in range(4):
        a(f's_add_u32 s47, s40, {t}'); a('s_and_b32 s47, s47, 3'); a('s_lshl_b32 s47, s47, 10'); a(f'v_add_u32 v{250+t}, s47, v248')
    srd(a, 24, 22, 23, A2_SZ); srd(a, 32, 4, 5, XSZ); srd(a, 36, 18, 19, XSZ)
    a(f's_mul_i32 s48, s41, {A2_RB}')
    a(f's_mul_i32 s50, s40, {12*4096}'); a('s_add_u32 s50, s50, s48')
    a(f's_mul_i32 s51, s40, {5*4096}'); a('s_add_u32 s51, s51, s48'); a(f's_add_u32 s51, s51, {48*4096}')
    a(f'v_and_b32 v2, 15, {L}'); a(f'v_lshrrev_b32 v3, 4, {L}')
    a('s_lshl_b32 s47, s41, 6'); a('s_lshl_b32 s58, s40, 4'); a('s_add_u32 s58, s47, s58'); a('v_add_u32 v2, s58, v2')
    a('s_movk_i32 s58, 1280'); a('s_mul_i32 s59, s42, 160'); a('v_mul_lo_u32 v2, v2, s58'); a('v_add_u32 v2, s59, v2')
    a('v_lshl_add_u32 v254, v3, 4, v2'); a('v_lshl_add_u32 v255, v3, 3, v2')
    div108(a, 's58', 's47'); a('s_add_u32 s47, s47, 63'); div108(a, 's59', 's47'); jlo(a, 's47', 's41')
    a('s_sub_u32 s58, s58, s47'); a('s_lshl_b32 s58, s58, 4'); a('s_sub_u32 s59, s59, s47'); a('s_lshl_b32 s59, s59, 4')
    a('s_lshl_b32 s61, s40, 1'); a('s_lshl_b32 s61, 3, s61')
    a('s_lshl_b32 s58, s61, s58'); a('s_lshl_b32 s59, s61, s59'); a('s_or_b32 s58, s58, s59')
    a('s_lshl_b32 s65, s41, 3'); a('s_add_u32 s65, s65, s42'); a(f's_add_u32 s65, s65, {C_WG}'); a('s_lshl_b32 s65, s65, 8')
    a('v_mov_b32 v4, s65')
    if PROF: a('s_waitcnt vmcnt(0)'); stamp(a, 1)
    poll(a, 'v4', 'v1', 0, 0, 0, mask='s58'); q.clear()
    stamp(a, 4)
    for s in range(3): ldA(s)
    AC = lambda tr, tc: (tr * 5 + tc) * 4
    def rdW(s):
        for t in range(5):
            d = WR(s) + 4 * t
            p = s - 11
            if p < 3: a(f'ds_read_b128 v[{d}:{d+3}], v249 offset:{PIECE(p) + t*1024}')
            else: a(f'ds_read_b128 v[{d}:{d+3}], v216 offset:{PIECE(p) - 73728 + t*1024}')
    for s in range(17):
        q.wait(('W', s)); q.wait(('A', s))
        if SPROF and s in (0, 3, 6, 9): stamp(a, {0: 0, 3: 1, 6: 3, 9: 6}[s])
        if s >= 11: a('s_waitcnt lgkmcnt(0)')
        if 11 <= s + 1 <= 16 and s >= 11: rdW(s + 1)
        for tr in range(4):
            for tc in range(5):
                c = AC(tr, tc)
                src = '0' if s == 0 else f'v[{c}:{c+3}]'
                a(f'v_mfma_f32_16x16x32_bf16 v[{c}:{c+3}], v[{WR(s)+4*tc}:{WR(s)+4*tc+3}], v[{AR(s)+4*tr}:{AR(s)+4*tr+3}], {src}')
        if s <= 8: ldA(s + 3)
        if s <= 4: ldW(s + 6)
        if s == 5:
            a('v_add_u32 v249, s57, v248')
            rdW(11)
        if s == 10:
            a('v_add_u32 v216, 73728, v249')
            a('s_add_u32 s46, s65, 128'); a('v_mov_b32 v80, s46')
            q.issue('P', 'global_load_dword v81, v80, s[10:11] sc1')
        if s == 11:
            if PROF: a('s_waitcnt lgkmcnt(0)'); stamp(a, 2)
            poll(a, 'v80', 'v81', 0, 0, 0, preissued=True, mask='s61'); q.clear()
            stamp(a, 5)
            for s2 in range(12, 17): ldA(s2)
        if s == 9:
            q.issue('X', 'buffer_load_dwordx4 v[200:203], v254, s[32:35], 0 offen')
            q.issue('X', 'buffer_load_dwordx4 v[204:207], v254, s[32:35], 0 offen offset:64')
            q.issue('X', 'buffer_load_dwordx2 v[208:209], v255, s[32:35], 0 offen offset:128')
    for tp in range(1, 4):
        for tc in range(5):
            c = AC(tp, tc)
            a(f'ds_write_b128 v249, v[{c}:{c+3}] offset:{(tp-1)*24576 + tc*1024}')
    for tp in range(1, 4):
        a(f's_sub_u32 s47, s40, {tp}'); a('s_and_b32 s47, s47, 3'); a('s_mul_i32 s47, s47, 5120'); a(f'v_add_u32 v{249+tp}, s47, v248')
    q.wait('X')
    for n in range(10):
        a(f'v_lshlrev_b32 v{150+2*n}, 16, v{200+n}'); a(f'v_and_b32 v{151+2*n}, 0xffff0000, v{200+n}')
    P = lambda r: f'v[{r}:{r+1}]'
    for n in range(10): a(f'v_pk_add_f32 {P(2*n)}, {P(2*n)}, {P(150+2*n)}')
    a('s_waitcnt lgkmcnt(0)'); a('s_barrier')
    if not SPROF: stamp(a, 6)
    for tp in range(1, 4):
        for tc in range(5):
            d = 80 + 20 * (tp - 1) + 4 * tc
            a(f'ds_read_b128 v[{d}:{d+3}], v{249+tp} offset:{(tp-1)*24576 + tc*1024}')
    for sl in range(3):
        a(f's_waitcnt lgkmcnt({10-5*sl})')
        for n in range(10): a(f'v_pk_add_f32 {P(2*n)}, {P(2*n)}, {P(80+20*sl+2*n)}')
    for n in range(10): a(f'v_cvt_pk_bf16_f32 v{40+n}, v{2*n}, v{2*n+1}')
    a('buffer_store_dwordx4 v[40:43], v254, s[36:39], 0 offen')
    a('buffer_store_dwordx4 v[44:47], v254, s[36:39], 0 offen offset:64')
    a('buffer_store_dwordx2 v[48:49], v255, s[36:39], 0 offen offset:128')
    stamp_flush(a, 4)
    a('s_endpgm')

def ACC(j, t): return (j * 7 + t) * 4
WF = lambda s, j: 168 + s * 24 + j * 4
XB = lambda b: 216 + 4 * b
WA = lambda hi, j: 232 + 3 * hi + j
def consumer(a):
    L = 'v243'
    T0 = 168
    g, i, r, c, t5, t6, t7, t8 = [f'v{T0+8+n}' for n in range(8)]
    for n in range(4): a(f'v_mov_b32 v{T0+n}, 0')
    a(f'v_lshrrev_b32 {g}, 4, {L}'); a(f'v_and_b32 {i}, 15, {L}'); a(f'v_bfe_u32 {r}, {L}, 2, 2'); a(f'v_and_b32 {c}, 3, {L}')
    for n in range(10): a(f'v_mfma_f32_32x32x16_bf16 v[{16*n}:{16*n+15}], v[{T0}:{T0+3}], v[{T0}:{T0+3}], 0')
    for n in range(2): a(f'v_mfma_f32_16x16x32_bf16 v[{160+4*n}:{163+4*n}], v[{T0}:{T0+3}], v[{T0}:{T0+3}], 0')
    a(f'v_lshrrev_b32 {t5}, 1, {r}'); a(f'v_lshlrev_b32 {t5}, 2, {t5}'); a(f'v_and_b32 {t6}, 1, {g}'); a(f'v_or_b32 {t5}, {t5}, {t6}')
    a(f'v_lshlrev_b32 {t5}, 4, {t5}'); a(f'v_lshl_or_b32 {t5}, {r}, 7, {t5}'); a(f'v_lshl_or_b32 {t5}, {g}, 10, {t5}')
    a('s_lshr_b32 s51, s40, 1'); a('s_mul_i32 s51, s51, 3'); a('s_add_u32 s52, s51, 1')
    a('s_and_b32 s53, s40, 1'); a('s_lshl_b32 s54, s53, 1'); a('s_add_u32 s51, s51, s54')
    a(f'v_and_b32 {t6}, 1, {c}'); a(f'v_lshlrev_b32 {t7}, 4, {c}'); a(f'v_lshl_or_b32 {t7}, {t6}, 3, {t7}'); a(f'v_xor_b32 {t7}, {t7}, {t5}')
    a('s_and_b32 s54, s51, 1'); a('s_lshl_b32 s54, s54, 6'); a('s_lshr_b32 s55, s51, 1'); a('s_lshl_b32 s55, s55, 12')
    a(f'v_xor_b32 {t7}, s54, {t7}'); a(f'v_add_u32 v{WA(0,0)}, s55, {t7}'); a(f'v_xor_b32 v{WA(0,1)}, 8, v{WA(0,0)}')
    a(f'v_lshrrev_b32 {t7}, 1, {c}'); a(f'v_xor_b32 {t6}, {t6}, {t7}'); a(f'v_lshlrev_b32 {t7}, 4, {t7}'); a(f'v_lshl_or_b32 {t7}, {t6}, 3, {t7}')
    a(f'v_xor_b32 {t7}, {t7}, {t5}')
    a('s_and_b32 s54, s52, 1'); a('s_lshl_b32 s54, s54, 6'); a('s_lshl_b32 s56, s53, 5'); a('s_or_b32 s54, s54, s56')
    a('s_lshr_b32 s55, s52, 1'); a('s_lshl_b32 s55, s55, 12')
    a(f'v_xor_b32 {t7}, s54, {t7}'); a(f'v_add_u32 v{WA(0,2)}, s55, {t7}')
    for j in range(3): a(f'v_add_u32 v{WA(1,j)}, 49152, v{WA(0,j)}')
    a(f'v_lshrrev_b32 {t5}, 1, {i}'); a(f'v_xor_b32 {t5}, {t5}, {g}'); a(f'v_lshlrev_b32 {t5}, 4, {t5}'); a(f'v_lshl_or_b32 {t5}, {i}, 7, {t5}')
    a(f'v_add_u32 v240, {LX}, {t5}'); a('v_xor_b32 v241, 64, v240')
    a('v_mov_b32 v238, v240'); a('v_mov_b32 v239, v241')
    a('v_mov_b32 v242, 0x3f803f80'); a(f'v_cmp_eq_u32 s[64:65], 15, {i}')
    a(f'v_mov_b32 {t5}, {LCN}'); a(f'ds_write_b64 {t5}, v[{T0}:{T0+1}]')
    a(f'v_lshrrev_b32 {t8}, 1, {g}'); a('s_lshl_b32 s56, s53, 1'); a(f'v_add_u32 {t8}, s56, {t8}')
    a('s_waitcnt lgkmcnt(0)')
    cntbase(a)
    a('s_cmp_eq_u32 s43, 1'); a('s_cbranch_scc1 c_q')
    srd(a, 36, 22, 23, A2_SZ)
    a('s_mul_i32 s54, s44, 6'); a('s_add_u32 s55, s54, s51'); a('s_lshl_b32 s55, s55, 12')
    a(f'v_lshl_add_u32 v251, {g}, 8, s55')
    a('s_add_u32 s55, s54, s52'); a('s_lshl_b32 s55, s55, 12')
    a(f'v_lshl_add_u32 v252, {t8}, 8, s55')
    a('v_mov_b32 v253, 0'); a('v_mov_b32 v254, 0')
    a('s_branch c_q2')
    a.label('c_q')
    srd(a, 36, 22, 23, QKV_SZ, WS_QKV)
    a(f's_mov_b32 s57, {QKV_HG}'); a('s_movk_i32 s58, 2560'); a('s_mul_i32 s59, s44, 48'); a(f's_sub_u32 s59, s59, {8*48}')
    for x in range(4):
        half, sh = x >> 1, x & 1
        a(f's_lshl_b32 s55, s{52 if sh else 51}, 2'); a('s_add_u32 s54, s59, s55'); a(f's_add_u32 s54, s54, {24*half}')
        a(f'v_add_u32 {t5}, s54, {t8 if sh else g}')
        a(f'v_mul_u32_u24 {t6}, 205, {t5}'); a(f'v_lshrrev_b32 {t6}, 14, {t6}')
        a(f'v_mul_u32_u24 {t7}, 80, {t6}'); a(f'v_sub_u32 {t5}, {t5}, {t7}')
        a(f'v_mul_u32_u24 {t7}, 205, {t5}'); a(f'v_lshrrev_b32 {t7}, 11, {t7}')
        a(f'v_mul_u32_u24 {r}, 10, {t7}'); a(f'v_sub_u32 {t5}, {t5}, {r}')
        a(f'v_mul_lo_u32 {t7}, {t7}, s57'); a(f'v_mad_u32_u24 {t7}, {t6}, s58, {t7}'); a(f'v_lshl_add_u32 v{251+x}, {t5}, 8, {t7}')
    a.label('c_q2')
    a(f'v_lshlrev_b32 v248, 4, {i}'); a(f'v_add_u32 v248, {LST}, v248')
    a(f'v_lshlrev_b32 v249, 2, {i}'); a(f'v_add_u32 v249, {LRP}, v249')
    a(f'v_and_b32 {t5}, 1, {g}'); a(f'v_lshl_add_u32 v250, {t5}, 6, v249')
    a('s_mov_b32 s60, 0'); a('s_mov_b32 s61, 0')
    q = Q(a, 'lgkmcnt', 15)
    def wread(slot, setn, idx):
        j, hf = idx >> 1, idx & 1
        off = (slot & 1) * 24576 + (j // 3) * 12288 + hf * 512
        d = WF(setn, j) + 2 * hf
        q.issue('W', f'ds_read_b64_tr_b16 v[{d}:{d+1}], v{WA(slot >> 1, j % 3)} offset:{off}')
    def xread(step, t):
        b = XB((7 * step + t) % 4)
        q.issue(('X', step % 4, t), f'ds_read_b128 v[{b}:{b+3}], v{238 + (step & 1)} offset:{t*2048}')
    stamp(a, 1)
    a('s_barrier')
    stamp(a, 2)
    for idx in range(12): wread(0, 0, idx)
    for t in range(3): xread(0, t)
    a.label('c_loop')
    for k in range(4):
        cur, nxt = k & 1, (k + 1) & 1
        widx = 0
        for t in range(7):
            q.wait(('X', k, t))
            fill = []
            tt = t + 3
            fill.append(lambda tt=tt: xread(k if tt <= 6 else k + 1, tt if tt <= 6 else tt - 7))
            if t == 0: fill.append(lambda: a('s_barrier'))
            if t <= 3:
                for _ in range(3):
                    fill.append(lambda w=widx: wread((k + 1) % 4, nxt, w)); widx += 1
            if t == 4:
                if k & 1 == 0:
                    fill.append(lambda: (a(f's_add_u32 s60, s60, {XS}'), a(f's_cmp_ge_u32 s60, {3*XS}')))
                    fill.append(lambda: a('s_cselect_b32 s60, 0, s60'))
                    fill.append(lambda: a('v_add_u32 v238, s60, v240'))
                else:
                    fill.append(lambda: a('v_add_u32 v239, s60, v241'))
            if t == 5:
                b6 = XB((7 * k + 6) % 4)
                fill.append(lambda: q.wait(('X', k, 6)))
                fill.append(lambda: (a(f'v_cndmask_b32 v{b6}, v{b6}, v242, s[64:65]'), a(f'v_cndmask_b32 v{b6+1}, v{b6+1}, v242, s[64:65]')))
                fill.append(lambda: (a(f'v_cndmask_b32 v{b6+2}, v{b6+2}, v242, s[64:65]'), a(f'v_cndmask_b32 v{b6+3}, v{b6+3}, v242, s[64:65]')))
            if t == 6 and k == 3:
                fill.append(lambda: (a('s_add_u32 s61, s61, 1'), a('s_cmp_lt_u32 s61, 5')))
            xb = XB((7 * k + t) % 4)
            for j in range(6):
                cc = ACC(j, t)
                a(f'v_mfma_f32_16x16x32_bf16 v[{cc}:{cc+3}], v[{WF(cur,j)}:{WF(cur,j)+3}], v[{xb}:{xb+3}], v[{cc}:{cc+3}]')
                if fill: fill.pop(0)()
            assert not fill
    a('s_cbranch_scc1 c_loop')
    a('s_waitcnt lgkmcnt(0)')
    stamp(a, 3)
    a('s_barrier')
    ST = lambda t: 168 + 4 * t
    CS = lambda j: 196 + 4 * j
    RP = lambda t: 232 + t
    RS = lambda p: 244 + p
    for p in range(4): a(f'ds_read2_b32 v[{RP(2*p)}:{RP(2*p)+1}], v249 offset0:{32*p} offset1:{32*p+16}')
    for p in range(2): a(f'ds_read2_b32 v[{RS(2*p)}:{RS(2*p)+1}], v250 offset0:{64*p} offset1:{64*p+32}')
    for t in range(7): a(f'ds_read_b128 v[{ST(t)}:{ST(t)+3}], v248 offset:{t*256}')
    a.fence(8)
    for j in range(6):
        for rr in range(4):
            a(f'v_mov_b32_dpp v{CS(j)+rr}, v{ACC(j,6)+rr} row_newbcast:15 row_mask:0xf bank_mask:0xf')
    a('s_cmp_eq_u32 s43, 1'); a('s_cbranch_scc1 c_epq')
    P = lambda r: f'v[{r}:{r+1}]'
    def shared_store(t, E, ad, colreg):
        if t & 1 or t == 6:
            a(f'v_add_u32 v{ad}, v{RS(t >> 1)}, v{colreg}')
            a(f'v_permlane16_swap_b32 v{E}, v{E+2}'); a(f'v_permlane16_swap_b32 v{E+1}, v{E+3}')
            a(f'buffer_store_dwordx4 v[{E}:{E+3}], v{ad}, s[36:39], 0 offen {STSC}')
    for t in range(7):
        a(f's_waitcnt lgkmcnt({6-t})')
        s01, s23 = P(ST(t)), P(ST(t) + 2)
        prs = [(j, hp) for j in range(3) for hp in range(2)]
        T = lambda n: 220 + 2 * n
        G = lambda j, hp: ACC(j, t) + 2 * hp
        U = lambda j, hp: ACC(j + 3, t) + 2 * hp
        for j, hp in prs: a(f'v_pk_fma_f32 {P(G(j,hp))}, {P(CS(j)+2*hp)}, {s01}, {P(G(j,hp))} op_sel:[0,0,0] op_sel_hi:[1,0,1]')
        for n, (j, hp) in enumerate(prs): a(f'v_pk_mul_f32 {P(T(n))}, {P(G(j,hp))}, {P(G(j,hp))}')
        for n, (j, hp) in enumerate(prs): a(f'v_pk_fma_f32 {P(T(n))}, {P(T(n))}, {s23}, {s01} op_sel:[0,0,1] op_sel_hi:[1,0,1]')
        for n, (j, hp) in enumerate(prs): a(f'v_pk_mul_f32 {P(T(n))}, {P(T(n))}, {P(G(j,hp))}')
        for n, (j, hp) in enumerate(prs):
            a(f'v_exp_f32 v{T(n)}, v{T(n)}'); a(f'v_exp_f32 v{T(n)+1}, v{T(n)+1}')
            a(f'v_pk_fma_f32 {P(U(j,hp))}, {P(CS(j+3)+2*hp)}, {s01}, {P(U(j,hp))} op_sel:[0,0,0] op_sel_hi:[1,0,1]')
        for n, (j, hp) in enumerate(prs): a(f'v_pk_fma_f32 {P(T(n))}, {P(T(n))}, {s23}, {s23} op_sel:[0,1,1] op_sel_hi:[1,1,1]')
        for n, (j, hp) in enumerate(prs):
            a(f'v_rcp_f32 v{T(n)}, v{T(n)}'); a(f'v_rcp_f32 v{T(n)+1}, v{T(n)+1}')
            a(f'v_pk_mul_f32 {P(U(j,hp))}, {P(U(j,hp))}, {P(G(j,hp))}')
        for n, (j, hp) in enumerate(prs): a(f'v_pk_mul_f32 {P(U(j,hp))}, {P(U(j,hp))}, {P(T(n))}')
        o4, Ep = ACC(0, t), ACC(1, t & ~1)
        for n, (j, hp) in enumerate(prs):
            d = o4 + n if n < 4 else Ep + 2 * (t & 1) + n - 4
            a(f'v_cvt_pk_bf16_f32 v{d}, v{U(j,hp)}, v{U(j,hp)+1}')
        a(f'v_add_u32 v{ACC(2,t)}, v{RP(t)}, v251')
        a(f'buffer_store_dwordx4 v[{o4}:{o4+3}], v{ACC(2,t)}, s[36:39], 0 offen {STSC}')
        shared_store(t, Ep, ACC(2, t) + 1, 252)
    a('s_branch c_pub')
    a.label('c_epq')
    for t in range(7):
        a(f's_waitcnt lgkmcnt({6-t})')
        s01 = P(ST(t))
        prs = [(j, hp) for j in range(6) for hp in range(2)]
        G = lambda j, hp: ACC(j, t) + 2 * hp
        for j, hp in prs: a(f'v_pk_fma_f32 {P(G(j,hp))}, {P(CS(j)+2*hp)}, {s01}, {P(G(j,hp))} op_sel:[0,0,0] op_sel_hi:[1,0,1]')
        for j, hp in prs: a(f'v_pk_mul_f32 {P(G(j,hp))}, {P(G(j,hp))}, {s01} op_sel:[0,1] op_sel_hi:[1,1]')
        for half in range(2):
            o4, Ep = ACC(3 * half, t), ACC(3 * half + 1, t & ~1)
            for n in range(6):
                j, hp = 3 * half + (n >> 1), n & 1
                d = o4 + n if n < 4 else Ep + 2 * (t & 1) + n - 4
                a(f'v_cvt_pk_bf16_f32 v{d}, v{G(j,hp)}, v{G(j,hp)+1}')
            ad = ACC(3 * half + 2, t)
            a(f'v_add_u32 v{ad}, v{RP(t)}, v{251+2*half}')
            a(f'buffer_store_dwordx4 v[{o4}:{o4+3}], v{ad}, s[36:39], 0 offen {STSC}')
            shared_store(t, Ep, ad + 1, 252 + 2 * half)
    a.label('c_pub')
    stamp(a, 4)
    a('s_lshr_b32 s62, s41, 6'); a(f'v_lshrrev_b32 v220, 3, {L}'); a('v_add_u32 v220, s62, v220')
    a('v_lshlrev_b32 v221, 6, v220'); a('s_add_u32 s63, s41, 123'); a('s_min_u32 s63, s63, 2047'); a('v_cmp_ge_u32 s[66:67], s63, v221')
    a('v_max_u32 v221, 16, v221'); a('v_subrev_u32 v221, 16, v221'); a('v_mul_u32_u24 v221, 607, v221'); a('v_lshrrev_b32 v221, 16, v221')
    a('v_sub_u32 v221, s45, v221'); a('v_lshlrev_b32 v221, 4, v221'); a('v_add_u32 v221, s44, v221'); a('v_lshlrev_b32 v221, v221, 1') if False else None
    a('v_mov_b32 v222, 1'); a('v_lshlrev_b32 v221, v221, v222')
    a('s_lshl_b32 s62, s62, 3'); a(f's_add_u32 s62, s62, {C_WG}'); a(f'v_add_u32 v220, s62, {L}'); a('v_lshlrev_b32 v220, 8, v220')
    a('s_waitcnt vmcnt(0)')
    stamp(a, 5)
    last_wave_signal(a, 'c_sig', LCN, 'v220', 'v221', 's[66:67]', 'v0', 'v1')

def attention(a):
    L = 'v243'; wave = 's40'; rb = 's41'; hg = 's42'; sc = 'sc1'
    decode2(a)
    srd(a, 24, 22, 23, QKV_SZ, WS_QKV); srd(a, 28, 22, 23, A2_SZ)
    a(f's_lshl_b32 s60, {rb}, 2'); a(f's_add_u32 s60, s60, {wave}')
    a('s_max_u32 s61, s60, 1'); a('s_sub_u32 s61, s61, 1')
    a(f's_lshl_b32 s62, {rb}, 3'); a(f's_add_u32 s55, s62, {C_WG}'); a(f's_add_u32 s62, s55, {hg}'); a('s_lshl_b32 s62, s62, 8')
    a('v_mov_b32 v68, s62')
    a('global_load_dword v69, v68, s[10:11] sc1')
    jlo(a, 's59', rb)
    a('s_lshl_b32 s62, s61, 4'); div108(a, 's62', 's62'); a('s_lshl_b32 s63, s60, 4'); a('s_add_u32 s63, s63, 15'); div108(a, 's63', 's63')
    a('s_sub_u32 s43, s62, s59'); a('s_lshl_b32 s43, s43, 4'); a('s_sub_u32 s44, s63, s59'); a('s_lshl_b32 s44, s44, 4')
    a(f'v_add_u32 v133, s55, {L}'); a('v_lshlrev_b32 v133, 8, v133'); a(f's_lshl_b32 s55, 1, {hg}'); a('v_mov_b32 v134, s55')
    a(f's_mul_i32 s62, {hg}, {QKV_HG}')
    a('s_mul_i32 s63, s60, 7680'); a('s_add_u32 s63, s63, s62')
    a('s_mul_i32 s64, s61, 7680'); a('s_add_u32 s64, s64, s62')
    a(f'v_lshrrev_b32 v1, 4, {L}'); a(f'v_and_b32 v2, 15, {L}'); a(f'v_lshlrev_b32 v3, 4, {L}')
    a(f's_mul_i32 s65, {wave}, 24576'); a('s_add_u32 s65, s65, 20480')
    a(f's_mul_i32 s69, {wave}, 3072'); a(f's_add_u32 s69, s69, {LX}'); a('s_sub_u32 s54, s69, s65')
    a('s_add_u32 s66, s64, 5120'); a('s_add_u32 s67, s63, 5120')
    a('v_cmp_eq_u32 s[48:49], 3, v1'); a('v_cmp_eq_u32 s[72:73], 2, v1')
    a(f'v_mov_b32 v6, {OOB}')
    a('v_cndmask_b32 v4, v3, v6, s[48:49]')
    a('v_add_u32 v5, 768, v4'); a('v_cndmask_b32 v5, v5, v4, s[72:73]')
    a('v_cmp_gt_u32 vcc, 2, v1'); a('v_cndmask_b32 v70, v6, v3, vcc')
    a(f'v_bfe_u32 v7, {L}, 2, 4'); a('v_lshlrev_b32 v7, 4, v7'); a('v_add_u32 v7, s65, v7')
    a(f'v_and_b32 v13, 3, {L}')
    for h in range(5):
        if h < 4: a(f'v_add_u32 v14, {5*h}, v13')
        else: a('v_mul_u32_u24 v14, 5, v13'); a('v_add_u32 v14, 4, v14')
        a('v_lshrrev_b32 v15, 1, v14'); a('v_xor_b32 v14, v14, v15'); a('v_and_b32 v14, 1, v14')
        a('v_lshlrev_b32 v14, 3, v14'); a('v_lshl_add_u32 v14, v15, 8, v14'); a(f'v_add_u32 v{8+h}, v14, v7'); a(f'v_add_u32 v{128+h}, s54, v{8+h}')
    a('v_and_b32 v13, 1, v2'); a('v_cmp_eq_u32 s[74:75], 1, v13')
    a('v_lshl_add_u32 v14, v1, 2, v13'); a('v_cmp_le_u32 s[76:77], v14, v2')
    a('v_add_u32 v14, 2, v14'); a('v_cmp_le_u32 s[78:79], v14, v2')
    a('v_mov_b32 v13, 0xffff'); a('v_mov_b32 v14, 0xffff0000'); a('v_cndmask_b32 v13, v13, v14, s[74:75]')
    a('v_cndmask_b32 v64, v13, 0, s[76:77]'); a('v_cndmask_b32 v65, v13, 0, s[78:79]')
    a('v_cndmask_b32 v66, 0, v13, s[76:77]'); a('v_cndmask_b32 v67, 0, v13, s[78:79]')
    a(f's_lshr_b32 s52, {hg}, 1'); a('s_mul_i32 s52, s52, 5'); a('s_add_u32 s52, s52, 48'); a('s_lshl_b32 s52, s52, 12')
    a(f's_mul_i32 s53, {rb}, {A2_RB}'); a('s_add_u32 s52, s52, s53'); a(f's_lshl_b32 s53, {wave}, 10'); a('s_add_u32 s52, s52, s53')
    a(f's_and_b32 s53, {hg}, 1')
    a('s_lshl_b32 s50, s53, 13'); a('s_add_u32 s50, s50, s52'); a('s_add_u32 s51, s50, 4096')
    a('s_lshl_b32 s53, s53, 9'); a('s_add_u32 s52, s52, s53'); a('s_add_u32 s52, s52, 16384')
    a('v_lshrrev_b32 v14, 1, v1'); a('v_lshlrev_b32 v14, 8, v14'); a('v_lshl_add_u32 v71, v2, 4, v14')
    a('v_and_b32 v14, 1, v1'); a('v_cmp_eq_u32 vcc, 0, v14'); a('v_cndmask_b32 v71, v6, v71, vcc')
    tab = 0
    for h in range(8):
        m = 0
        for part in range(3):
            for c in (640 * part + 80 * h, 640 * part + 80 * h + 79): m |= 1 << (c // 384)
        tab |= m << (8 * h)
    a(f's_mov_b32 s56, {tab & 0xffffffff}'); a(f's_mov_b32 s57, {tab >> 32}'); a(f's_lshl_b32 s58, {hg}, 3'); a('s_lshr_b64 s[56:57], s[56:57], s58')
    a('s_and_b32 s56, s56, 31'); a('s_lshl_b32 s56, s56, 8')
    a('s_lshl_b32 s57, s56, s44'); a('s_lshl_b32 s56, s56, s43'); a('s_or_b32 s56, s56, s57')
    poll(a, 'v68', 'v69', 0, 0, 0, preissued=True, mask='s56')
    stamp(a, 6)
    Qf = lambda h: 16 + 4 * h; KC = lambda h: 32 + 4 * h; KP = lambda h: 48 + 4 * h
    for h in range(4):
        v = 'v5' if h & 1 else 'v4'; o = 1280 * (h >> 1)
        a(f'buffer_load_dwordx4 v[{Qf(h)}:{Qf(h)+3}], {v}, s[24:27], s63 offen offset:{o} {sc}')
        a(f'buffer_load_dwordx4 v[{KC(h)}:{KC(h)+3}], {v}, s[24:27], s63 offen offset:{o+2560} {sc}')
        a(f'buffer_load_dwordx4 v[{KP(h)}:{KP(h)+3}], {v}, s[24:27], s64 offen offset:{o+2560} {sc}')
    a('s_mov_b32 m0, s65')
    for n in range(3): a(f'buffer_load_dwordx4 {"v3" if n < 2 else "v70"}, s[24:27], s66 offen offset:{n*1024} {sc} lds')
    a('s_mov_b32 m0, s69')
    for n in range(3): a(f'buffer_load_dwordx4 {"v3" if n < 2 else "v70"}, s[24:27], s67 offen offset:{n*1024} {sc} lds')
    a('s_waitcnt vmcnt(6)')
    a('s_mov_b64 exec, s[72:73]')
    for h, z in enumerate((2, 0, 0, 2)):
        a(f'v_mov_b32 v{Qf(h)+z}, 0'); a(f'v_mov_b32 v{Qf(h)+z+1}, 0')
    a('s_mov_b64 exec, -1')
    SC = lambda h: 96 + 8 * h; SP = lambda h: 100 + 8 * h
    for h in range(4):
        a(f'v_mfma_f32_16x16x32_bf16 v[{SC(h)}:{SC(h)+3}], v[{KC(h)}:{KC(h)+3}], v[{Qf(h)}:{Qf(h)+3}], 0')
        a(f'v_mfma_f32_16x16x32_bf16 v[{SP(h)}:{SP(h)+3}], v[{KP(h)}:{KP(h)+3}], v[{Qf(h)}:{Qf(h)+3}], 0')
    a('s_waitcnt vmcnt(0)')
    VF = lambda h: 72 + 4 * h
    for h in range(5):
        a(f'ds_read_b64_tr_b16 v[{VF(h)}:{VF(h)+1}], v{8+h}')
        a(f'ds_read_b64_tr_b16 v[{VF(h)+2}:{VF(h)+3}], v{128+h}')
    a('s_cmp_lg_u32 s60, 0'); a('s_cbranch_scc1 a_nofix')
    for h in range(4):
        for r in range(4): a(f'v_mov_b32 v{SP(h)+r}, {f32(-1e30)}')
    a.label('a_nofix')
    LA = lambda h: 16 + 2 * h; LB = lambda h: 17 + 2 * h; M = lambda h: 24 + h
    for h in range(4):
        a(f'v_cndmask_b32 v{SC(h)}, v{SC(h)}, v{SC(h)+1}, s[74:75]'); a(f'v_cndmask_b32 v{SC(h)+2}, v{SC(h)+2}, v{SC(h)+3}, s[74:75]')
        a(f'v_cndmask_b32 v{SP(h)}, v{SP(h)}, v{SP(h)+1}, s[74:75]'); a(f'v_cndmask_b32 v{SP(h)+2}, v{SP(h)+2}, v{SP(h)+3}, s[74:75]')
    for h in range(4):
        a(f'v_cndmask_b32 v{LA(h)}, v{SP(h)}, v{SC(h)}, s[76:77]'); a(f'v_cndmask_b32 v{LB(h)}, v{SP(h)+2}, v{SC(h)+2}, s[78:79]')
    for h in range(4): a(f'v_max_f32 v{M(h)}, v{LA(h)}, v{LB(h)}')
    def reduce4(op, post=None):
        A, B, C, D = 24, 25, 26, 27
        a(f'v_permlane16_swap_b32 v{A}, v{B}'); a(f'v_permlane16_swap_b32 v{C}, v{D}')
        a(f'{op} v{A}, v{A}, v{B}'); a(f'{op} v{C}, v{C}, v{D}')
        a(f'v_permlane32_swap_b32 v{A}, v{C}')
        a(f'{op} v{A}, v{A}, v{C}')
        if post: post(A)
        a(f'v_mov_b32 v{C}, v{A}')
        a(f'v_permlane32_swap_b32 v{A}, v{C}')
        a(f'v_mov_b32 v{B}, v{A}'); a(f'v_mov_b32 v{D}, v{C}')
        a(f'v_permlane16_swap_b32 v{A}, v{B}'); a(f'v_permlane16_swap_b32 v{C}, v{D}')
    cs = 20 ** -0.5 * LOG2E
    a(f's_mov_b32 s68, {f32(cs)}')
    reduce4('v_max_f32', lambda r: a(f'v_mul_f32 v{r}, s68, v{r}'))
    for h in range(4):
        a(f'v_fma_f32 v{LA(h)}, v{LA(h)}, s68, -v{M(h)}'); a(f'v_fma_f32 v{LB(h)}, v{LB(h)}, s68, -v{M(h)}')
    for h in range(4):
        a(f'v_exp_f32 v{LA(h)}, v{LA(h)}'); a(f'v_exp_f32 v{LB(h)}, v{LB(h)}')
    for h in range(4): a(f'v_add_f32 v{M(h)}, v{LA(h)}, v{LB(h)}')
    reduce4('v_add_f32', lambda r: a(f'v_rcp_f32 v{r}, v{r}'))
    for h in range(4):
        a(f'v_mul_f32 v{LA(h)}, v{LA(h)}, v{M(h)}'); a(f'v_mul_f32 v{LB(h)}, v{LB(h)}, v{M(h)}')
    for h in range(4):
        a(f'v_cvt_pk_bf16_f32 v{LA(h)}, v{LA(h)}, v{LA(h)}'); a(f'v_cvt_pk_bf16_f32 v{LB(h)}, v{LB(h)}, v{LB(h)}')
    PF = lambda h: 32 + 4 * h
    for h in range(4):
        a(f'v_and_b32 v{PF(h)}, v{LA(h)}, v64'); a(f'v_and_b32 v{PF(h)+1}, v{LB(h)}, v65')
        a(f'v_and_b32 v{PF(h)+2}, v{LA(h)}, v66'); a(f'v_and_b32 v{PF(h)+3}, v{LB(h)}, v67')
    a('s_waitcnt lgkmcnt(0)')
    for h in range(4):
        a(f'v_mfma_f32_16x16x32_bf16 v[{SC(h)}:{SC(h)+3}], v[{VF(h)}:{VF(h)+3}], v[{PF(h)}:{PF(h)+3}], 0')
    for h in range(4):
        a(f'v_mfma_f32_16x16x32_bf16 v[{SP(h)}:{SP(h)+3}], v[{VF(4)}:{VF(4)+3}], v[{PF(h)}:{PF(h)+3}], 0')
    for h in range(4):
        a(f'v_cvt_pk_bf16_f32 v{48+2*h}, v{SC(h)}, v{SC(h)+1}'); a(f'v_cvt_pk_bf16_f32 v{49+2*h}, v{SC(h)+2}, v{SC(h)+3}')
    a(f'buffer_store_dwordx4 v[48:51], v3, s[28:31], s50 offen {sc}')
    a(f'buffer_store_dwordx4 v[52:55], v3, s[28:31], s51 offen {sc}')
    for h in range(4):
        a(f's_mov_b32 exec_lo, {(0xffff << (16*h)) & 0xffffffff if h < 2 else 0}')
        a(f's_mov_b32 exec_hi, {(0xffff << (16*(h-2))) if h >= 2 else 0}')
        a(f'v_cvt_pk_bf16_f32 v56, v{SP(h)}, v{SP(h)+1}'); a(f'v_cvt_pk_bf16_f32 v57, v{SP(h)+2}, v{SP(h)+3}')
    a('s_mov_b64 exec, -1')
    a('v_mov_b32 v58, v56'); a('v_mov_b32 v59, v57')
    a('v_permlane16_swap_b32 v56, v58'); a('v_permlane16_swap_b32 v57, v59')
    a(f'buffer_store_dwordx4 v[56:59], v71, s[28:31], s52 offen {sc}')
    a('s_mov_b64 s[66:67], 0xff')
    a('s_waitcnt vmcnt(0)')
    last_wave_signal(a, 'a_sig', LCN + 4, 'v133', 'v134', 's[66:67]', 'v0', 'v1', off=128)
    stamp_flush(a, 0)
    a('s_endpgm')

def spare(a):
    L = 'v243'
    a('s_lshl_b32 s45, s45, 1'); a('s_add_u32 s45, s45, s46'); a('s_sub_u32 s45, s45, 30')
    a('s_lshl_b32 s41, s45, 3'); a('s_add_u32 s41, s41, s40'); a('s_lshl_b32 s41, s41, 5')
    a(f'v_lshrrev_b32 v1, 4, {L}'); a(f'v_and_b32 v2, 15, {L}'); a('v_add_u32 v1, s41, v1')
    a('s_movk_i32 s42, 1280'); a('v_lshlrev_b32 v3, 4, v2'); a('v_mad_u32_u24 v3, v1, s42, v3')
    a('s_waitcnt lgkmcnt(0)')
    srd(a, 24, 4, 5, XSZ); srd(a, 28, 22, 23, 32768, WS_STAT); cntbase(a)
    for s in range(8):
        a(f's_movk_i32 s43, {s*5120}' if s * 5120 < 32768 else f's_mov_b32 s43, {s*5120}')
        for j in range(5):
            d = 40 + 20 * s + 4 * j
            a(f'buffer_load_dwordx4 v[{d}:{d+3}], v3, s[24:27], s43 offen offset:{j*256}')
    for n in range(16): a(f'v_mov_b32 v{8+n}, 0')
    a('v_mov_b32 v4, 0x3f803f80')
    a(f'v_mov_b32 v5, {LCN}'); a('ds_write_b64 v5, v[8:9]')
    for s in range(8):
        a(f's_waitcnt vmcnt({35-5*s})')
        for n in range(20):
            d = 40 + 20 * s + n
            a(f'v_dot2c_f32_bf16 v{8+s}, v{d}, v4'); a(f'v_dot2c_f32_bf16 v{16+s}, v{d}, v{d}')
    a.fence(4)
    for ro in (8, 4, 2, 1):
        for n in range(16): a(f'v_add_f32_dpp v{8+n}, v{8+n}, v{8+n} row_ror:{ro} row_mask:0xf bank_mask:0xf')
    a(f's_mov_b32 s43, {f32(1.0/640)}')
    a('v_lshlrev_b32 v5, 4, v1'); a('v_cmp_eq_u32 vcc, 0, v2'); a(f'v_mov_b32 v6, {OOB}'); a('v_cndmask_b32 v5, v6, v5, vcc')
    for s in range(8):
        b = 40 + 4 * s
        a(f'v_mul_f32 v{b}, s43, v{8+s}'); a(f'v_mul_f32 v{b+2}, s43, v{16+s}')
        a(f'v_fma_f32 v{b+2}, -v{b}, v{b}, v{b+2}'); a(f'v_max_f32 v{b+2}, 0, v{b+2}'); a(f'v_add_f32 v{b+2}, {f32(1e-5)}, v{b+2}')
        a(f'v_rsq_f32 v{b+1}, v{b+2}'); a(f'v_sub_f32 v{b}, 0, v{b}'); a(f'v_mov_b32 v{b+3}, 0')
        a(f'buffer_store_dwordx4 v[{b}:{b+3}], v5, s[28:31], 0 offen offset:{s*64} sc1')
    a('v_mov_b32 v30, 0')
    poll(a, 'v30', 'v31', 0, 8, 1, base='s[20:21]')
    a('s_waitcnt lgkmcnt(0)'); a('s_barrier')
    a('s_cmp_lg_u32 s40, 0'); a('s_cbranch_scc1 s_p2')
    a('v_mov_b32 v31, 1'); a('s_mov_b64 exec, 1')
    a('global_atomic_add v30, v31, s[10:11]')
    a('s_mov_b64 exec, -1')
    a.label('s_p2')
    stamp(a, 1)
    a('s_cmp_lt_u32 s40, 4'); a('s_cbranch_scc1 k_attn')
    a('s_sub_u32 s40, s40, 4'); a('s_mov_b32 s69, 1')
    decode2(a)
    a(f's_add_u32 s46, s42, {C_W2}'); a('s_lshl_b32 s46, s46, 8'); a('v_mov_b32 v18, s46')
    poll(a, 'v18', 'v31', 0, 8, 68)
    a('s_branch k_gemm2')
    a.label('k_init')
    a('s_waitcnt lgkmcnt(0)')
    cntbase(a)
    a('v_mov_b32 v8, 0'); a('v_mov_b32 v9, 0'); a(f'v_mov_b32 v5, {LCN}'); a('ds_write_b64 v5, v[8:9]')
    a('v_lshlrev_b32 v1, 7, v0'); a('v_add_u32 v2, 65536, v1')
    a('global_store_dword v1, v8, s[10:11] sc1'); a('global_store_dword v2, v8, s[10:11] sc1')
    a('s_waitcnt vmcnt(0) lgkmcnt(0)'); a('s_barrier')
    a('s_cmp_lg_u32 s40, 0'); a('s_cbranch_scc1 s_p2')
    a('v_mov_b32 v9, 1'); a('s_mov_b64 exec, 1')
    a('global_store_dword v8, v9, s[20:21] sc1')
    a('s_mov_b64 exec, -1')
    a('s_branch s_p2')

def main():
    a = Asm()
    ref = open('cdna_kernels/' + NAME + '.s.ref').read().split('\n')
    for l in ref:
        if l.startswith('; @launch'): break
        a.raw(l)
    if E("LIST", 0): a.raw(f'; @launch kernel={KN} grid=(256,1,1) block=(512,1,1) lds=163840')
    else: a.raw('; @launch grid=(256,1,1) block=(512,1,1) lds=163840')
    a.raw('.amdgcn_target "amdgcn-amd-amdhsa--gfx950"')
    a.raw('.text'); a.raw(f'.globl {KN}'); a.raw(f'.type {KN},@function')
    kernel(a)
    a.raw('.section .rodata,"a"'); a.raw('.p2align 6')
    a.raw(f'''.amdhsa_kernel {KN}
  .amdhsa_next_free_vgpr 256
  .amdhsa_next_free_sgpr 100
  .amdhsa_accum_offset 256
  .amdhsa_group_segment_fixed_size 0
  .amdhsa_kernarg_size 80
  .amdhsa_user_sgpr_count 2
  .amdhsa_user_sgpr_kernarg_segment_ptr 1
  .amdhsa_system_sgpr_workgroup_id_x 1
.end_amdhsa_kernel''')
    open(sys.argv[1], 'w').write(a.text())
    print('nops inserted', a.nops)
main()
```

```python
import sys, math, os
from asmlib import *

NAME = "parallel_sum__sliding_local_dilated__glu_gated_geglu__prompt"
KN = NAME + "_kernel"
A2_RB, A2_SZ = 278528, 32 * 278528
WS_W2, W2_CB, W2_SZ = 0x900000, 348160, 8 * 348160
WS_STAT, WS_CNT = 0x1400000, 0x1410000
C_STAT, C_W2, C_WG = 0, 16, 32
XSZ = 2048 * 1280
OOB = 0x7f000000
LOG2E = 1.4426950408889634
C1 = -2.0 * LOG2E * math.sqrt(2.0 / math.pi)
C2 = C1 * 0.044715
E = lambda k, d: int(os.environ.get(k, d))
PROF = E("PROF", 0); CLK = E("CLK", 0); SPROF = E("SPROF", 0)
RETOUCH = E("RETOUCH", 1); MAP2 = E("MAP2", 0); QLATE = E("QLATE", 0); OCHK = E("OCHK", 7)
SPIN = 30000; SLEEP = E("SLEEP", 2)
CH = [int(c) for c in os.environ.get("CH", "2222")]
WS_PROF = 0x2000000
GX, GXS, GWS = 98304, 14336, 24576
QX, QXS, QWS = 61440, 22528, 15360
LT2 = 141312
LST = LT2 + 3 * 5120
LRP = LST + 3072
LCN = LRP + 512
PB_HI = 61440
LS2 = LCN + 64
QST = 520
L = 'v243'

def srd(a, d, lo, hi, size, add=None):
    if add is None:
        a(f's_mov_b32 s{d}, s{lo}'); a(f's_mov_b32 s{d+1}, s{hi}')
    else:
        a(f's_add_u32 s{d}, s{lo}, {add}'); a(f's_addc_u32 s{d+1}, s{hi}, 0')
    a(f's_mov_b32 s{d+2}, {size}'); a(f's_mov_b32 s{d+3}, 0x20000')

MUTE = [False]
def stamp(a, n):
    if PROF and not (MUTE[0] and n < 7):
        a(f'{"s_memtime" if CLK else "s_memrealtime"} s[{80+2*n}:{81+2*n}]'); a('s_waitcnt lgkmcnt(0)')
def stamp_flush(a, waveadd=0):
    if not PROF: return
    a('s_waitcnt vmcnt(0)'); stamp(a, 7)
    a(f's_add_u32 s96, s22, {WS_PROF}'); a('s_addc_u32 s97, s23, 0')
    a(f's_lshl_b32 s98, s2, 3'); a(f's_add_u32 s98, s98, s40'); a(f's_add_u32 s98, s98, {waveadd}'); a('s_lshl_b32 s98, s98, 6')
    a('v_mov_b32 v0, s98')
    for n in range(8):
        a(f'v_mov_b32 v2, s{80+2*n}'); a(f'v_mov_b32 v3, s{81+2*n}')
        a(f'global_store_dwordx2 v0, v[2:3], s[96:97] offset:{8*n}')

class Q:
    def __init__(s, a, cnt, mx): s.a = a; s.q = []; s.cnt = cnt; s.mx = mx; s.n = {}
    def issue(s, tag, text):
        if len(s.q) >= s.mx:
            s.a(f's_waitcnt {s.cnt}({s.mx - 1})'); s.q = s.q[-(s.mx - 1):]
        s.a(text); s.q.append(tag); s.n[tag] = s.n.get(tag, 0) + 1; s.tot = getattr(s, 'tot', 0) + 1
    def wait(s, tag):
        if tag not in s.q: return
        idx = max(i for i, t in enumerate(s.q) if t == tag)
        n = len(s.q) - 1 - idx
        s.a(f's_waitcnt {s.cnt}({n})'); s.q = s.q[idx + 1:]
    def clear(s): s.q = []

_pl = [0]
def poll(a, va, vp, target, base='s[10:11]', preissued=False, st='s70', mask=False):
    _pl[0] += 1; n = _pl[0]
    a(f's_mov_b32 {st}, 0')
    if preissued: a(f's_branch pl{n}_chk')
    a.label(f'pl{n}_top')
    a(f'global_load_dword {vp}, {va}, {base} sc1')
    a.label(f'pl{n}_chk')
    a('s_waitcnt vmcnt(0)')
    if mask: a(f'v_and_b32 {vp}, {target}, {vp}')
    a(f'v_cmp_ne_u32 vcc, {target}, {vp}')
    a('s_nop 1')
    a(f's_cbranch_vccz pl{n}_ok')
    a(f's_sleep {SLEEP}')
    a(f's_add_u32 {st}, {st}, 1'); a(f's_cmp_lt_u32 {st}, {SPIN}'); a(f's_cbranch_scc1 pl{n}_top')
    a('s_endpgm')
    a.label(f'pl{n}_ok')

assert all((x * 607) >> 16 == x // 108 for x in range(2112))
assert all((x * 410) >> 16 == x // 160 for x in range(0, 2560, 16))
def cntbase(a):
    a(f's_add_u32 s10, s22, {WS_CNT}'); a('s_addc_u32 s11, s23, 0')
def bar(a, n=1):
    for _ in range(n): a('s_barrier')

_ls = [0]
def lds_arrive(a, off, va, vb):
    a(f'v_mov_b32 {va}, {off}'); a(f'v_mov_b32 {vb}, 1')
    a('s_mov_b64 exec, 1'); a(f'ds_add_u32 {va}, {vb}'); a('s_mov_b64 exec, -1')
def lds_wait(a, off, va, vb, sleep=0, setaddr=True):
    _ls[0] += 1; n = _ls[0]
    if setaddr: a(f'v_mov_b32 {va}, {off}')
    a('s_mov_b32 s70, 0')
    a.label(f'lw{n}')
    a(f'ds_read_b32 {vb}, {va}'); a('s_waitcnt lgkmcnt(0)'); a(f'v_readfirstlane_b32 s71, {vb}')
    a('s_cmp_ge_u32 s71, 4'); a(f's_cbranch_scc1 lw{n}_ok')
    if sleep: a(f's_sleep {sleep}')
    a('s_add_u32 s70, s70, 1'); a('s_cmp_lt_u32 s70, 200000'); a(f's_cbranch_scc1 lw{n}')
    a('s_endpgm')
    a.label(f'lw{n}_ok')

def kernel(a):
    a.raw('.p2align 8'); a.label(KN)
    a('s_cmp_ge_u32 s2, 256'); a('s_cbranch_scc1 k_exit')
    a('s_load_dwordx4 s[4:7], s[0:1], 0'); a('s_load_dwordx4 s[12:15], s[0:1], 32'); a('s_load_dwordx4 s[20:23], s[0:1], 64')
    a('s_load_dwordx2 s[8:9], s[0:1], 16'); a('s_load_dwordx4 s[16:19], s[0:1], 48')
    a('v_lshrrev_b32 v1, 6, v0'); a('v_and_b32 v243, 63, v0')
    a('v_readfirstlane_b32 s40, v1')
    a('s_getpc_b64 s[46:47]')
    a.label('k_pc')
    a('s_cmp_ge_u32 s40, 4'); a('s_cbranch_scc1 k_nopf')
    a('v_lshlrev_b32 v2, 7, v0'); a('v_add_u32 v3, 32768, v2')
    a('v_min_u32 v2, k_end-k_pc-4, v2'); a('v_min_u32 v3, k_end-k_pc-4, v3'); a('v_and_b32 v2, -4, v2'); a('v_and_b32 v3, -4, v3')
    a('global_load_dword v255, v2, s[46:47]'); a('global_load_dword v254, v3, s[46:47]')
    a.label('k_nopf')
    stamp(a, 0)
    a('s_and_b32 s44, s2, 3'); a('s_bfe_u32 s48, s2, 0x10002'); a('s_lshr_b32 s46, s2, 3')
    a('s_sub_u32 s49, 10, s48'); a('s_lshl_b32 s50, s49, 1')
    a('s_mul_i32 s51, s48, 10')
    a('s_cmp_ge_u32 s46, s50'); a('s_cselect_b32 s43, 1, 0'); a('s_cbranch_scc0 k_d1')
    a('s_sub_u32 s46, s46, s50'); a('s_add_u32 s49, s48, 6'); a('s_mul_i32 s51, s48, 6')
    a.label('k_d1')
    a('s_cmp_ge_u32 s46, s49'); a('s_cselect_b32 s47, 1, 0'); a('s_cselect_b32 s50, s49, 0'); a('s_sub_u32 s46, s46, s50')
    a('s_lshl_b32 s44, s44, 1'); a('s_add_u32 s44, s44, s47')
    a('s_add_u32 s45, s46, s51')
    a('s_mul_i32 s41, s45, 108'); a('s_mul_i32 s50, s45, 160'); a('s_sub_u32 s50, s50, 16')
    a('s_cmp_eq_u32 s43, 1'); a('s_cselect_b32 s41, s50, s41')
    a('s_cmp_lt_u32 s40, 4'); a('s_cbranch_scc1 k_cons')
    a('s_sub_u32 s40, s40, 4')
    a('s_cmp_eq_u32 s40, 3'); a('s_cbranch_scc1 k_serv')
    a('s_lshl_b32 s68, s47, 1'); a('s_add_u32 s68, s68, s46'); a('s_add_u32 s68, s68, s43')
    a('s_mul_i32 s46, s68, 205'); a('s_lshr_b32 s46, s46, 10'); a('s_mul_i32 s46, s46, 5'); a('s_sub_u32 s68, s68, s46'); a('s_lshl_b32 s68, s68, 1')
    a(f'v_lshrrev_b32 v2, 3, {L}'); a(f'v_and_b32 v3, 7, {L}')
    a('s_movk_i32 s53, 1280'); a('s_lshl_b32 s58, s68, 7'); a('s_lshl_b32 s54, s40, 10'); a('s_mov_b32 s61, 0')
    a(f'v_mov_b32 v9, {OOB}')
    a('s_cmp_eq_u32 s43, 1'); a('s_cbranch_scc1 k_ldq')
    loader(a, False)
    a('s_branch k_gemm2')
    a.label('k_ldq'); loader(a, True)
    a.label('k_gemm2'); gemm2(a)
    a.label('k_serv'); service(a)
    a.label('k_cons')
    a('s_cmp_eq_u32 s43, 1'); a('s_cbranch_scc1 k_consq')
    consumerG(a)
    a.label('k_consq'); consumerQ(a)
    a.label('k_pub'); publish(a)
    a.label('k_exit'); a('s_endpgm')
    a.label('k_end')

def loader(a, isq):
    P = 'lq' if isq else 'lg'
    NXM = 8 if isq else 5; NQ = 22 if isq else 14
    XO, XS, WS = (QX, QXS, QWS) if isq else (GX, GXS, GWS)
    RS = 3840 if isq else 3072
    XV = 12
    a('v_lshrrev_b32 v4, 1, v2'); a('v_xor_b32 v4, v4, v3'); a('s_and_b32 s51, s40, 1'); a('s_lshl_b32 s51, s51, 2'); a('v_xor_b32 v4, s51, v4')
    a('v_lshlrev_b32 v4, 4, v4')
    a('s_lshl_b32 s52, s40, 3'); a('s_add_u32 s52, s52, s41'); a('v_add_u32 v5, s52, v2')
    a('v_mul_lo_u32 v6, v5, s53'); a(f'v_add_u32 v{XV}, v6, v4')
    for m in range(1, NXM):
        if m == 1: a(f'v_xor_b32 v7, 64, v{XV}')
        a(f'v_add_u32 v{XV+m}, {m*24*1280}, v{XV if m % 2 == 0 else 7}')
    if isq:
        a('v_cmp_gt_i32 vcc, 0, v5'); a(f'v_cndmask_b32 v{XV}, v{XV}, v9, vcc')
    else:
        a('v_subrev_u32 v5, s41, v5'); a('v_cmp_gt_u32 vcc, 12, v5'); a(f'v_cndmask_b32 v{XV+4}, v9, v{XV+4}, vcc')
    a(f's_add_u32 s59, s54, {XO}')
    a('s_waitcnt lgkmcnt(0)')
    srd(a, 24, 4, 5, XSZ)
    cnt = [0]
    def Xl(m):
        last = m == NXM - 1
        if last:
            cnt[0] += 1
            a(f's_cmp_ge_u32 s40, {NQ - 3*(NXM-1)}'); a(f's_cbranch_scc1 {P}_sk{cnt[0]}')
        a(f's_add_u32 m0, s59, {m*3072}')
        a(f'buffer_load_dwordx4 v{XV+m}, s[24:27], s58 offen lds')
        if last: a.label(f'{P}_sk{cnt[0]}')
    def Xadv():
        a('s_add_u32 s58, s58, 128'); a('s_cmp_ge_u32 s58, 1280'); a('s_cselect_b32 s58, 0, s58')
        a(f's_add_u32 s59, s59, {XS}')
        a(f's_cmp_ge_u32 s59, {XO+3*XS}'); a(f's_cselect_b32 s60, {3*XS}, 0'); a('s_sub_u32 s59, s59, s60')
    def issueX():
        for m in range(NXM): Xl(m)
        Xadv()
    if SPROF == 4: stamp(a, 1)
    issueX()
    WV = 20
    a(f's_movk_i32 s42, {RS}')
    if isq:
        NW = 5
        srd(a, 28, 6, 7, 640 * 3840)
        a('s_mul_i32 s46, s40, 1280'); a('s_mul_i32 s47, s44, 160'); a('s_add_u32 s46, s46, s47')
        for n in range(5):
            a(f'v_add_u32 v4, {64*n}, {L}'); a('v_mul_u32_u24 v5, 205, v4'); a('v_lshrrev_b32 v5, 11, v5')
            a('v_mul_u32_u24 v6, 10, v5'); a('v_sub_u32 v4, v4, v6'); a('v_lshl_add_u32 v4, v4, 4, s46')
            a('v_lshrrev_b32 v6, 1, v5'); a('v_xor_b32 v6, v6, v5'); a('v_and_b32 v6, 4, v6'); a('v_mul_u32_u24 v6, 3, v6'); a('v_xor_b32 v5, v5, v6')
            a(f'v_mad_u32_u24 v{WV+n}, v5, s42, v4')
        a('s_mul_i32 s57, s40, 5120')
        def Wl(n):
            a(f's_add_u32 m0, s57, {n*1024}')
            a(f'buffer_load_dwordx4 v{WV+n}, s[28:31], s56 offen lds')
    else:
        NW = 8
        srd(a, 28, 12, 13, 640 * 3072); srd(a, 32, 14, 15, 640 * 3072)
        a(f'v_bfe_u32 v4, {L}, 4, 1'); a('v_lshlrev_b32 v4, 2, v4'); a('v_xor_b32 v4, v4, v3'); a('v_lshlrev_b32 v4, 4, v4')
        a('s_mul_i32 s46, s44, 384'); a('s_lshl_b32 s47, s40, 7'); a('s_add_u32 s46, s46, s47')
        a('v_mad_u32_u24 v4, v2, s42, v4'); a(f'v_add_u32 v{WV}, s46, v4'); a(f'v_xor_b32 v4, 16, v{WV}')
        a(f'v_add_u32 v{WV+1}, {8*3072}, v4'); a(f'v_add_u32 v{WV+2}, {16*3072}, v{WV}'); a(f'v_add_u32 v{WV+3}, {24*3072}, v4')
        a('s_lshl_b32 s57, s40, 12')
        def Wl(n):
            half, g = n >> 2, n & 3
            a(f's_add_u32 m0, s57, {half*12288 + g*1024}')
            a(f'buffer_load_dwordx4 v{WV+g}, s[{28+4*half}:{31+4*half}], s56 offen lds')
    a(f's_mul_i32 s56, s68, {64*RS}')
    def Wadv():
        a(f's_add_u32 s56, s56, {32*RS}'); a(f's_cmp_ge_u32 s56, {640*RS}'); a('s_cselect_b32 s56, 0, s56')
        a(f's_add_u32 s57, s57, {WS}')
        a(f's_cmp_ge_u32 s57, {4*WS}'); a(f's_cselect_b32 s60, {4*WS}, 0'); a('s_sub_u32 s57, s57, s60')
    def issueW():
        for n in range(NW): Wl(n)
        Wadv()
    issueW(); issueW()
    if SPROF == 4: stamp(a, 2)
    cntbase(a)
    XA = (NXM + 1) // 2; XB_ = NXM - XA
    a(f's_waitcnt vmcnt({NW})')
    if SPROF == 4: stamp(a, 3)
    bar(a)
    if SPROF == 4: stamp(a, 4)
    issueW(); issueX()
    a(f's_waitcnt vmcnt({NW + NXM - 1})'); bar(a)
    if SPROF == 4: stamp(a, 5)
    issueW()
    if SPROF == 4: stamp(a, 6)
    if PROF:
        a('s_memtime s[72:73]'); a('s_waitcnt lgkmcnt(0)'); a('v_mov_b32 v60, s72')
    a.label(f'{P}_loop')
    for n in range(NW): Wl(n)
    for m in range(XA): Xl(m)
    Wadv()
    a(f's_waitcnt vmcnt({2*NW + XA})'); bar(a)
    for m in range(XA, NXM): Xl(m)
    for n in range(NW): Wl(n)
    Wadv(); Xadv()
    a('s_add_u32 s61, s61, 1'); a('s_cmp_lt_u32 s61, 8')
    a(f's_waitcnt vmcnt({2*NW + NXM - 1})'); bar(a)
    if PROF:
        a('s_memtime s[72:73]'); a('s_waitcnt lgkmcnt(0)')
        for r in range(69, 60, -1): a(f'v_mov_b32 v{r}, v{r-1}')
        a('v_mov_b32 v60, s72')
    a(f's_cbranch_scc1 {P}_loop')
    if PROF:
        a(f's_add_u32 s96, s22, {WS_PROF + 0x20000}'); a('s_addc_u32 s97, s23, 0')
        a('s_lshl_b32 s98, s2, 3'); a('s_add_u32 s98, s98, s40'); a('s_lshl_b32 s98, s98, 6'); a('v_mov_b32 v59, s98')
        for r in range(9): a(f'global_store_dword v59, v{68-r}, s[96:97] offset:{4*r}')

def service(a):
    a('s_and_b32 s50, s2, 7'); a('s_lshl_b32 s51, s50, 5'); a('s_lshr_b32 s46, s2, 3'); a('s_add_u32 s51, s51, s46'); a('s_lshl_b32 s52, s51, 3')
    a(f'v_lshrrev_b32 v1, 4, {L}'); a(f'v_and_b32 v2, 15, {L}'); a('v_add_u32 v1, s52, v1')
    a('s_movk_i32 s53, 1280'); a('v_lshlrev_b32 v3, 4, v2'); a('v_mad_u32_u24 v3, v1, s53, v3')
    a('v_mov_b32 v30, 0')
    a('s_waitcnt lgkmcnt(0)')
    srd(a, 24, 4, 5, XSZ); cntbase(a)
    a('s_movk_i32 s54, 5120')
    for s in range(2):
        for j in range(5):
            d = 40 + 20 * s + 4 * j
            a(f'buffer_load_dwordx4 v[{d}:{d+3}], v3, s[24:27], {"s54" if s else "0"} offen offset:{j*256}')
    a('s_cmp_lg_u32 s2, 0'); a('s_cbranch_scc1 sv_ni')
    a(f'v_lshlrev_b32 v4, 7, {L}')
    for n in range(5):
        a('global_store_dword v4, v30, s[10:11] sc1'); a('v_add_u32 v4, 8192, v4')
    a('s_waitcnt vmcnt(0)')
    a('v_mov_b32 v4, 1'); a('s_mov_b64 exec, 1'); a('global_store_dword v30, v4, s[20:21] sc1'); a('s_mov_b64 exec, -1')
    a.label('sv_ni')
    if SPROF == 4: stamp(a, 1)
    a('s_mul_i32 s55, s50, 160')
    for n in range(5):
        a(f'v_add_u32 v4, {64*n}, {L}'); a('v_mul_u32_u24 v5, 205, v4'); a('v_lshrrev_b32 v5, 11, v5')
        a('v_mul_u32_u24 v6, 10, v5'); a('v_sub_u32 v4, v4, v6'); a('v_lshl_add_u32 v4, v4, 4, s55')
        a(f'v_lshrrev_b32 v{100+n}, 3, v5'); a(f'v_bfe_u32 v{105+n}, v5, 2, 1'); a('v_and_b32 v5, 3, v5'); a(f'v_mad_u32_u24 v{110+n}, v5, s53, v4')
    for un in range(3):
        sb = 28 + 4 * un
        a(f's_add_u32 s56, s46, {32*un}'); a('s_mul_i32 s57, s56, 241'); a('s_lshr_b32 s57, s57, 12'); a('s_mul_i32 s58, s57, 17'); a('s_sub_u32 s58, s56, s58')
        a('s_cmp_ge_u32 s58, 12'); a(f's_cbranch_scc1 sv_o{un}')
        srd(a, sb, 16, 17, 1536 * 1280)
        a('s_mul_i32 s59, s57, 12'); a('s_add_u32 s59, s59, s58'); a('s_lshl_b32 s59, s59, 5')
        a(f's_movk_i32 s60, {8*1280}'); a(f's_movk_i32 s61, {4*1280}'); a('s_mov_b32 s62, 1'); a('s_mov_b32 s67, 0')
        a(f's_branch sv_c{un}')
        a.label(f'sv_o{un}')
        srd(a, sb, 8, 9, 640 * 1280)
        a('s_sub_u32 s58, s58, 12'); a('s_mul_i32 s59, s57, 160'); a('s_mul_i32 s63, s58, 40')
        a(f's_movk_i32 s60, {8*1280}')
        a('s_cmp_eq_u32 s58, 4'); a('s_cselect_b32 s63, 16, s63'); a(f's_cselect_b32 s60, {40*1280}, s60'); a(f's_cselect_b32 s61, {20*1280}, s54'); a('s_cselect_b32 s67, 0, s54')
        a('s_add_u32 s59, s59, s63'); a('s_mov_b32 s62, 0')
        a.label(f'sv_c{un}')
        a(f's_mul_i32 s{64+un}, s59, 1280')
        for n in range(5):
            a(f'v_and_b32 v4, s62, v{100+n}'); a(f'v_xor_b32 v4, v4, v{105+n}')
            a(f'v_mad_u32_u24 v4, v4, s61, v{110+n}'); a(f'v_mad_u32_u24 v4, v{100+n}, s60, v4')
            a(f'v_lshrrev_b32 v5, 1, v{100+n}'); a(f'v_mad_u32_u24 v{120+5*un+n}, v5, s67, v4')
    for un in range(3):
        if un == 2: a('s_cmp_ge_u32 s46, 4'); a('s_cbranch_scc1 sv_d3')
        for n in range(5):
            a(f's_mov_b32 m0, {LT2 + un*5120 + n*1024}'); a(f'buffer_load_dwordx4 v{120+5*un+n}, s[{28+4*un}:{31+4*un}], s{64+un} offen lds')
    a.label('sv_d3')
    if SPROF == 4: stamp(a, 2)
    a(f'v_lshrrev_b32 v4, 4, {L}'); a(f'v_bfe_u32 v5, {L}, 2, 2'); a('v_lshl_add_u32 v4, v4, 3, v5'); a('v_mul_u32_u24 v4, 160, v4')
    a(f'v_add_u32 v4, {LT2}, v4'); a(f'v_and_b32 v5, 3, {L}'); a('v_lshl_add_u32 v26, v5, 4, v4'); a('v_lshl_add_u32 v27, v5, 3, v4')
    a(f'v_lshlrev_b32 v28, 4, {L}'); a('v_add_u32 v29, 4096, v28')
    a(f'v_add_u32 v5, s41, {L}'); a('v_lshlrev_b32 v20, 4, v5'); a('v_add_u32 v21, 1024, v20')
    a(f's_mov_b32 s56, {A2_RB}'); a('s_movk_i32 s57, 2048'); a(f'v_mov_b32 v9, {OOB}')
    a(f'v_lshlrev_b32 v8, 2, {L}'); a(f'v_add_u32 v8, {LRP}, v8')
    for n in range(2):
        if n: a('v_add_u32 v5, 64, v5')
        a('v_lshrrev_b32 v6, 6, v5'); a('v_mul_lo_u32 v6, v6, s56'); a('v_bfe_u32 v7, v5, 4, 2'); a('v_lshl_add_u32 v6, v7, 10, v6')
        a('v_and_b32 v7, 15, v5'); a('v_lshl_add_u32 v6, v7, 4, v6')
        if n:
            a(f'v_cmp_gt_u32 vcc, 44, {L}'); a('v_cmp_gt_u32 s[58:59], s57, v5'); a('s_and_b64 vcc, vcc, s[58:59]'); a('v_cndmask_b32 v6, v9, v6, vcc')
        a(f'ds_write_b32 v8, v6 offset:{256*n}')
    a('s_max_i32 s56, s41, 0'); a('s_lshr_b32 s56, s56, 7'); a('s_add_u32 s57, s41, 175'); a('s_lshr_b32 s57, s57, 7'); a('s_min_u32 s57, s57, 15')
    a(f'v_add_u32 v18, s56, {L}'); a('v_min_u32 v18, s57, v18')
    if MAP2 == 0: a('s_and_b32 s56, s46, 7')
    else: a('s_and_b32 s56, s2, 1'); a('s_lshl_b32 s56, s56, 2'); a('s_and_b32 s57, s46, 3'); a('s_add_u32 s56, s56, s57')
    a(f's_add_u32 s56, s56, {C_W2}'); a('v_mov_b32 v4, s56')
    a(f'v_cmp_gt_u32 vcc, 3, {L}'); a('v_cndmask_b32 v18, v4, v18, vcc'); a('v_lshlrev_b32 v18, 7, v18')
    a('v_mov_b32 v4, 68'); a('v_cndmask_b32 v19, v4, 16, vcc')
    a(f's_add_u32 s56, s50, {C_W2}'); a('s_lshl_b32 s56, s56, 7'); a('v_mov_b32 v22, s56')
    a('s_cmp_lt_u32 s46, 4'); a('s_cselect_b32 s56, 3, 2'); a('v_mov_b32 v23, s56')
    a('s_lshr_b32 s56, s51, 4'); a('s_lshl_b32 s56, s56, 7'); a('v_writelane_b32 v22, s56, 0'); a('v_writelane_b32 v23, 1, 0')
    a('v_lshlrev_b32 v24, 4, v1'); a('v_cmp_eq_u32 vcc, 0, v2'); a('v_cndmask_b32 v24, v9, v24, vcc')
    a(f'v_add_u32 v25, {LST}, v28')
    a(f'v_lshlrev_b32 v17, 7, {L}'); a(f'v_lshlrev_b32 v16, 2, {L}'); a(f'v_add_u32 v16, {LS2}, v16')
    srd(a, 76, 22, 23, 32768, WS_STAT); srd(a, 24, 22, 23, W2_SZ, WS_W2)
    for n in range(4): a(f'v_mov_b32 v{8+n}, 0')
    a('v_mov_b32 v4, 0x3f803f80')
    if SPROF == 4: stamp(a, 3)
    bar(a, 2)
    if SPROF == 4: stamp(a, 4)
    a('s_waitcnt vmcnt(10)')
    for s in range(2):
        for n in range(20):
            d = 40 + 20 * s + n
            a(f'v_dot2c_f32_bf16 v{8+s}, v{d}, v4'); a(f'v_dot2c_f32_bf16 v{10+s}, v{d}, v{d}')
    a.fence(4)
    for ro in (8, 4, 2, 1):
        for n in range(4): a(f'v_add_f32_dpp v{8+n}, v{8+n}, v{8+n} row_ror:{ro} row_mask:0xf bank_mask:0xf')
    a(f's_mov_b32 s56, {f32(1.0/640)}')
    for s in range(2):
        b = 32 + 4 * s
        a(f'v_mul_f32 v{b}, s56, v{8+s}'); a(f'v_mul_f32 v{b+2}, s56, v{10+s}')
        a(f'v_fma_f32 v{b+2}, -v{b}, v{b}, v{b+2}'); a(f'v_max_f32 v{b+2}, 0, v{b+2}'); a(f'v_add_f32 v{b+2}, {f32(1e-5)}, v{b+2}')
        a(f'v_rsq_f32 v{b+1}, v{b+2}'); a(f'v_sub_f32 v{b}, 0, v{b}'); a(f'v_mov_b32 v{b+3}, 0')
        a(f'buffer_store_dwordx4 v[{b}:{b+3}], v24, s[76:79], 0 offen offset:{s*64} sc1')
    if SPROF == 4: stamp(a, 5)
    bar(a)
    a(f's_mul_i32 s56, s50, {W2_CB}'); a('s_mul_i32 s57, s46, 5120'); a('s_add_u32 s56, s56, s57')
    a('s_waitcnt vmcnt(2)')
    for un in range(3):
        if un == 2: a('s_cmp_ge_u32 s46, 4'); a('s_cbranch_scc1 sv_s3')
        for t in range(5):
            d = 40 + 20 * un + 4 * t; ad = 26 if t < 4 else 27; off = un * 5120 + (64 * (t >> 1) + 8 * (t & 1) if t < 4 else 128)
            a(f'ds_read_b64_tr_b16 v[{d}:{d+1}], v{ad} offset:{off}'); a(f'ds_read_b64_tr_b16 v[{d+2}:{d+3}], v{ad} offset:{off+640}')
        a('s_waitcnt lgkmcnt(0)')
        for t in range(5):
            d = 40 + 20 * un + 4 * t
            if t < 4: a(f'buffer_store_dwordx4 v[{d}:{d+3}], v28, s[24:27], s56 offen offset:{t*1024} sc1')
            else: a(f'buffer_store_dwordx4 v[{d}:{d+3}], v29, s[24:27], s56 offen sc1')
        a(f's_add_u32 s56, s56, {32*5120}')
    a.label('sv_s3')
    if SPROF == 4: stamp(a, 6)
    a('global_load_dword v31, v30, s[20:21] sc1')
    bar(a, 4)
    poll(a, 'v30', 'v31', 1, base='s[20:21]', preissued=True)
    a('s_mov_b64 exec, 3'); a('global_atomic_add v22, v23, s[10:11]'); a('s_mov_b64 exec, -1')
    bar(a, 5)
    a('global_load_dword v31, v18, s[10:11] sc1')
    bar(a, 2)
    poll(a, 'v18', 'v31', 'v19', preissued=True)
    a('buffer_load_dwordx4 v[32:35], v20, s[76:79], 0 offen sc1')
    for n in range(1, 3): a(f'buffer_load_dwordx4 v[{32+4*n}:{35+4*n}], v21, s[76:79], 0 offen offset:{(n-1)*1024} sc1')
    bar(a, 2)
    a(f's_mov_b32 s56, {f32(C2)}'); a('s_cmp_eq_u32 s43, 1'); a(f's_cselect_b32 s57, 1.0, {f32(C1)}')
    a('s_waitcnt vmcnt(0)')
    if RETOUCH:
        a('s_getpc_b64 s[58:59]')
        a.label('sv_pc')
        a('s_sub_u32 s58, s58, sv_pc-k_gemm2'); a('s_subb_u32 s59, s59, 0')
        for n in range(4):
            a(f'v_min_u32 v{48+n}, k_end-k_gemm2-4, v17'); a(f'v_and_b32 v{48+n}, -4, v{48+n}')
            a(f'global_load_dword v{48+n}, v{48+n}, s[58:59]')
            if n < 3: a('v_add_u32 v17, 8192, v17')
    for n in range(3):
        b = 32 + 4 * n
        a(f'v_mov_b32 v{b+3}, v{b+2}')
        a(f'v_mul_f32 v{b+2}, v{b+1}, v{b+1}'); a(f'v_mul_f32 v{b+2}, v{b+2}, v{b+1}'); a(f'v_mul_f32 v{b+2}, s56, v{b+2}'); a(f'v_mul_f32 v{b+1}, s57, v{b+1}')
        a(f'ds_write_b128 v25, v[{b}:{b+3}] offset:{n*1024}')
        a(f'ds_write2st64_b32 v16, v{b}, v{b+1} offset0:{n} offset1:{3+n}')
    a('s_waitcnt lgkmcnt(0)')
    bar(a, 2)
    a('s_branch k_gemm2')

WSRC = os.environ.get("WSRC", "HHHLHSLHSLHSLLSLL")
LA_A = E("LA_A", 4); LA_W = E("LA_W", 4); PACE = E("PACE", 3); PRE = E("PRE", 2)
WREG = 35840
def gemm2(a):
    MUTE[0] = SPROF == 4
    a('s_and_b32 s41, s2, 7'); a('s_lshl_b32 s41, s41, 2'); a('s_lshr_b32 s47, s2, 6'); a('s_add_u32 s41, s41, s47')
    a('s_bfe_u32 s42, s2, 0x30003')
    a(f'v_lshlrev_b32 v248, 4, {L}')
    srd(a, 28, 22, 23, W2_SZ, WS_W2)
    a(f's_mul_i32 s52, s42, {W2_CB}'); a(f's_mul_i32 s46, s40, {17*5120}'); a('s_add_u32 s52, s52, s46')
    a('s_mul_i32 s56, s42, 3'); a('s_lshr_b32 s56, s56, 1'); a('s_mul_i32 s46, s47, 3'); a('s_add_u32 s56, s56, s46')
    a('s_cmp_ge_u32 s56, 12'); a('s_cselect_b32 s46, 12, 0'); a('s_sub_u32 s56, s56, s46'); a('s_add_u32 s57, s42, s47')
    a(f's_mul_i32 s62, s40, {WREG}')
    q = Q(a, 'vmcnt', 63)
    def soff(s, dst, base, stride):
        if s == 16: a(f's_add_u32 {dst}, {base}, {16*stride}'); return
        if s < 12:
            a(f's_add_u32 {dst}, s56, {s}'); a(f's_cmp_ge_u32 {dst}, 12'); a('s_cselect_b32 s60, 12, 0'); a(f's_sub_u32 {dst}, {dst}, s60')
        else:
            a(f's_add_u32 {dst}, s57, {s}'); a(f's_and_b32 {dst}, {dst}, 3'); a(f's_add_u32 {dst}, {dst}, 12')
        a(f's_mul_i32 {dst}, {dst}, {stride}'); a(f's_add_u32 {dst}, {dst}, {base}')
    free = list(range(80, 248, 4))
    WRg, ARg = {}, {}
    HS = [s for s in range(17) if WSRC[s] == 'H']; LS = [s for s in range(17) if WSRC[s] == 'L']; SS = [s for s in range(17) if WSRC[s] == 'S']
    assert len(WSRC) == 17 and len(LS) <= 7 and len(SS) <= 4 and WSRC[0] == 'H'
    def alloc(n):
        r = free[:n]; del free[:n]; assert len(r) == n; return r
    def wload(s, t, s0, s1):
        d = WRg[s][t]
        if t < 4: q.issue(('W', s), f'buffer_load_dwordx4 v[{d}:{d+3}], v248, s[28:31], {s0} offen offset:{t*1024} sc1')
        else: q.issue(('W', s), f'buffer_load_dwordx4 v[{d}:{d+3}], v248, s[28:31], {s1} offen sc1')
    def ldW(s):
        WRg[s] = alloc(5); soff(s, 's55', 's52', 5120); a('s_add_u32 s54, s55, 4096')
        for t in range(5): wload(s, t, 's55', 's54')
    def dmaW(s):
        po = LS.index(s) * 5120
        soff(s, 's55', 's52', 5120); a('s_add_u32 s54, s55, 4096')
        a(f's_add_u32 m0, s62, {po}')
        for t in range(4): q.issue(('W', s), f'buffer_load_dwordx4 v248, s[28:31], s55 offen offset:{t*1024} sc1 lds')
        a(f's_add_u32 m0, s62, {po+4096}')
        q.issue(('W', s), f'buffer_load_dwordx4 v248, s[28:31], s54 offen sc1 lds')
    for s in HS[:PRE]: ldW(s)
    a(f's_waitcnt vmcnt({5*PRE})'); bar(a)
    for s in HS[PRE:]: ldW(s)
    a('v_add_u32 v249, s62, v248')
    for t in range(4):
        a(f's_add_u32 s47, s40, {t}'); a('s_and_b32 s47, s47, 3'); a('s_lshl_b32 s47, s47, 10'); a(f'v_add_u32 v{250+t}, s47, v248')
    srd(a, 24, 22, 23, A2_SZ); srd(a, 32, 4, 5, XSZ); srd(a, 36, 18, 19, XSZ)
    a(f's_mul_i32 s50, s41, {A2_RB}'); a(f's_mul_i32 s46, s40, {17*4096}'); a('s_add_u32 s50, s50, s46')
    a(f'v_and_b32 v2, 15, {L}'); a(f'v_lshrrev_b32 v3, 4, {L}')
    a('s_lshl_b32 s47, s41, 6'); a('s_lshl_b32 s58, s40, 4'); a('s_add_u32 s58, s47, s58'); a('v_add_u32 v2, s58, v2')
    a('s_movk_i32 s58, 1280'); a('s_mul_i32 s59, s42, 160'); a('v_mul_lo_u32 v2, v2, s58'); a('v_add_u32 v2, s59, v2')
    a('v_lshl_add_u32 v254, v3, 4, v2'); a('v_lshl_add_u32 v255, v3, 3, v2')
    a('s_lshl_b32 s61, s40, 1'); a('s_lshl_b32 s61, 3, s61'); a('s_add_u32 s48, s47, 63')
    a('s_mul_i32 s58, s47, 607'); a('s_lshr_b32 s58, s58, 16'); a('s_mul_i32 s59, s48, 607'); a('s_lshr_b32 s59, s59, 16')
    a('s_cmp_lg_u32 s58, s59'); a('s_cselect_b32 s64, 0x101, 1')
    a('s_add_u32 s48, s47, 48')
    a('s_mul_i32 s58, s47, 410'); a('s_lshr_b32 s58, s58, 16'); a('s_mul_i32 s59, s48, 410'); a('s_lshr_b32 s59, s59, 16')
    a('s_cmp_lg_u32 s58, s59'); a('s_mov_b32 s65, 0x10000'); a('s_cselect_b32 s65, 0x1010000, s65')
    a('s_mul_i32 s64, s64, s61'); a('s_mul_i32 s66, s65, s61')
    a('s_lshl_b32 s65, s41, 3'); a('s_add_u32 s65, s65, s42'); a(f's_add_u32 s65, s65, {C_WG}'); a('s_lshl_b32 s65, s65, 7')
    a('v_mov_b32 v4, s65')
    SA = [3, 4, 5, 6, 7, 8, 9, 12, 13, 14, 15, 16, 17, 18, 19, 20, 21]
    for s in range(17): soff(s, f's{SA[s]}', 's50', 4096)
    for n, s in enumerate(SS): soff(s, f's{72+2*n}', 's52', 5120); a(f's_add_u32 s{73+2*n}, s{72+2*n}, 4096')
    lds_wait(a, LCN + 4, 'v0', 'v1', sleep=1)
    stamp(a, 3)
    for s in LS: dmaW(s)
    if PROF: a('s_waitcnt vmcnt(0)'); stamp(a, 1)
    poll(a, 'v4', 'v1', 's64', mask=True); q.clear()
    stamp(a, 4)
    pend = []
    for s in range(17):
        if s in SS: pend.append(('W', s))
        pend.append(('A', s))
    pend.append(('X', 17))
    ogate = [False]; XR = []
    dq = []
    def refill(cur, resv):
        while pend:
            k, s = pend[0]
            n = {'W': 5, 'A': 4, 'X': 3}[k]
            if len(free) - resv < n or s > cur + (LA_W if k == 'W' else LA_A): break
            if k == 'A' and s >= 12 and not ogate[0]: break
            pend.pop(0); regs = alloc(n)
            if k == 'W':
                WRg[s] = regs; z = SS.index(s)
                for t in range(5): dq.append((s, lambda s=s, t=t, z=z: wload(s, t, f's{72+2*z}', f's{73+2*z}')))
            elif k == 'X':
                XR.extend(regs)
                dq.append((s, lambda: q.issue('X', f'buffer_load_dwordx4 v[{XR[0]}:{XR[0]+3}], v254, s[32:35], 0 offen')))
                dq.append((s, lambda: q.issue('X', f'buffer_load_dwordx4 v[{XR[1]}:{XR[1]+3}], v254, s[32:35], 0 offen offset:64')))
                dq.append((s, lambda: q.issue('X', f'buffer_load_dwordx2 v[{XR[2]}:{XR[2]+1}], v255, s[32:35], 0 offen offset:128')))
            else:
                ARg[s] = regs
                for t in range(4):
                    d = regs[t]
                    if s < 16: dq.append((s, lambda d=d, t=t, s=s: q.issue(('A', s), f'buffer_load_dwordx4 v[{d}:{d+3}], v{250+t}, s[24:27], s{SA[s]} offen sc1')))
                    else:
                        dq.append((s, lambda d=d, t=t, s=s: (a(f'v_bfe_u32 v{d}, v{250+t}, 1, 9'), a(f'v_sub_u32 v{250+t}, v{250+t}, v{d}'),
                                   q.issue(('A', s), f'buffer_load_dwordx2 v[{d}:{d+1}], v{250+t}, s[24:27], s{SA[s]} offen sc1'))))
                        dq.append((s, lambda d=d, t=t, s=s: q.issue(('A', s), f'buffer_load_dwordx2 v[{d+2}:{d+3}], v{250+t}, s[24:27], s{SA[s]} offen offset:512 sc1')))
    refill(0, 0)
    while dq: dq.pop(0)[1]()
    AC = lambda tr, tc: (tr * 5 + tc) * 4
    for s in range(17):
        while dq and dq[0][0] <= s + 1: dq.pop(0)[1]()
        assert q.n.get(('A', s)) == (4 if s < 16 else 8) and q.n.get(('W', s), 0) == 5, s
        q.wait(('W', s)); q.wait(('A', s))
        if SPROF == 1 and s in (0, 4, 8, 12): stamp(a, {0: 0, 4: 2, 8: 3, 12: 5}[s])
        if s in LS: a('s_waitcnt lgkmcnt(0)')
        lq = []
        if s + 1 in LS:
            WRg[s + 1] = alloc(5)
            lq = [f'ds_read_b128 v[{d}:{d+3}], v249 offset:{LS.index(s+1)*5120 + t*1024}' for t, d in enumerate(WRg[s + 1])]
        n = 0
        for tr in range(4):
            for tc in range(5):
                c = AC(tr, tc); w = WRg[s][tc]; x = ARg[s][tr]
                src = '0' if s == 0 else f'v[{c}:{c+3}]'
                a(f'v_mfma_f32_16x16x32_bf16 v[{c}:{c+3}], v[{w}:{w+3}], v[{x}:{x+3}], {src}')
                pace = PACE if len(dq) <= 8 else 2
                if dq and n % pace == 0: dq.pop(0)[1]()
                elif lq: a(lq.pop(0))
                n += 1
            free.append(ARg[s][tr])
            if tr < 3: refill(s, 0)
        assert not lq
        free.extend(WRg[s])
        if s == OCHK - 2:
            PR = alloc(1)[0]
            dq.insert(0, (s + 1, lambda: (a(f'v_mov_b32 v{PR}, s65'), q.issue('P', f'global_load_dword v{PR+1}, v{PR}, s[10:11] sc1'))))
        if s == OCHK:
            q.wait('P')
            a(f'v_and_b32 v{PR+1}, s66, v{PR+1}'); a(f'v_cmp_ne_u32 vcc, s66, v{PR+1}'); a('s_nop 1'); a('s_cbranch_vccz g_ook')
            poll(a, f'v{PR}', f'v{PR+1}', 's66', mask=True)
            a.label('g_ook')
            if not SPROF: stamp(a, 2)
            free.append(PR); ogate[0] = True
        refill(s + 1, 5 if s + 2 in LS else 0)
    while dq: dq.pop(0)[1]()
    assert not pend
    if not SPROF: stamp(a, 5)
    for tp in range(1, 4):
        for tc in range(5):
            c = AC(tp, tc)
            a(f'ds_write_b128 v249, v[{c}:{c+3}] offset:{(tp-1)*5120 + tc*1024}')
    for tp in range(1, 4):
        a(f's_sub_u32 s47, s40, {tp}'); a('s_and_b32 s47, s47, 3'); a(f's_mul_i32 s47, s47, {WREG}'); a(f'v_add_u32 v{249+tp}, s47, v248')
    q.wait('X')
    U = alloc(5); RD = alloc(15)
    xs = [XR[0] + n for n in range(4)] + [XR[1] + n for n in range(4)] + [XR[2], XR[2] + 1]
    P = lambda r: f'v[{r}:{r+1}]'
    for n in range(10):
        u = U[n >> 1] + 2 * (n & 1)
        a(f'v_lshlrev_b32 v{u}, 16, v{xs[n]}'); a(f'v_and_b32 v{u+1}, 0xffff0000, v{xs[n]}')
    for n in range(10): a(f'v_pk_add_f32 {P(2*n)}, {P(2*n)}, {P(U[n >> 1] + 2 * (n & 1))}')
    a('s_waitcnt lgkmcnt(0)'); bar(a); stamp(a, 6)
    for tp in range(1, 4):
        for tc in range(5):
            d = RD[5 * (tp - 1) + tc]
            a(f'ds_read_b128 v[{d}:{d+3}], v{249+tp} offset:{(tp-1)*5120 + tc*1024}')
    for sl in range(3):
        a(f's_waitcnt lgkmcnt({10-5*sl})')
        for n in range(10): a(f'v_pk_add_f32 {P(2*n)}, {P(2*n)}, {P(RD[5*sl + (n >> 1)] + 2 * (n & 1))}')
    for n in range(10): a(f'v_cvt_pk_bf16_f32 v{40+n}, v{2*n}, v{2*n+1}')
    a('buffer_store_dwordx4 v[40:43], v254, s[36:39], 0 offen')
    a('buffer_store_dwordx4 v[44:47], v254, s[36:39], 0 offen offset:64')
    a('buffer_store_dwordx2 v[48:49], v255, s[36:39], 0 offen offset:128')
    stamp_flush(a, 4); MUTE[0] = False
    a('s_endpgm')

def mainloop(a, P, NT, NJ, ACC, WF, XB, wread, nw, onest, XS, swapj=-1):
    q = Q(a, 'lgkmcnt', 15)
    def xread(step, t):
        b = XB((NT * step + t) % 4)
        q.issue(('X', step % 4, t), f'ds_read_b128 v[{b}:{b+3}], v{238 + (step & 1)} offset:{t*2048}')
    def fix(step, h):
        b = XB((NT * step + onest) % 4) + 2 * h
        a(f'v_cndmask_b32 v{b}, v{b}, v242, s[64:65]'); a(f'v_cndmask_b32 v{b+1}, v{b+1}, v242, s[64:65]')
    a('s_mov_b32 s60, 0'); a('s_mov_b32 s61, 0')
    stamp(a, 1); bar(a); stamp(a, 2)
    for idx in range(nw): wread(q, 0, 0, idx)
    for t in range(3): xread(0, t)
    if onest == 0:
        q.wait(('X', 0, 0)); fix(0, 0); fix(0, 1)
    a.label(f'{P}_loop')
    wper = 3 if NJ == 6 else 1
    for k in range(4):
        cur, nxt = k & 1, (k + 1) & 1
        widx = 0
        for t in range(NT):
            q.wait(('X', k, t))
            fill = []
            tt = t + 3
            fill.append(lambda tt=tt: xread(k if tt < NT else k + 1, tt if tt < NT else tt - NT))
            if t == 0:
                if k < 2: fill.append(lambda: bar(a))
                else: fill.append(lambda: (a('s_cmp_eq_u32 s61, 4'), a(f's_cbranch_scc1 {P}_nb{k}'), bar(a), a.label(f'{P}_nb{k}')))
            for _ in range(wper + (1 if (NJ == 4 and t in (1, 2)) else 0)):
                if widx < nw:
                    fill.append(lambda w=widx: wread(q, (k + 1) % 4, nxt, w)); widx += 1
            if t == NT - 3:
                if k & 1 == 0:
                    fill.append(lambda: (a(f's_add_u32 s60, s60, {XS}'), a(f's_cmp_ge_u32 s60, {3*XS}')))
                    fill.append(lambda: (a('s_cselect_b32 s60, 0, s60'), a('v_add_u32 v238, s60, v240')))
                else:
                    fill.append(lambda: a('v_add_u32 v239, s60, v241'))
            if t == (onest - 1) % NT:
                st = k if onest > 0 else k + 1
                fill.append(lambda st=st: (q.wait(('X', st % 4, onest)), fix(st, 0)))
                fill.append(lambda st=st: fix(st, 1))
            if t == NT - 2 and k == 3:
                fill.append(lambda: (a('s_add_u32 s61, s61, 1'), a('s_cmp_lt_u32 s61, 5')))
            xb = XB((NT * k + t) % 4)
            for j in range(NJ):
                cc = ACC(j, t)
                oa, ob = (xb, WF(cur, j)) if j == swapj else (WF(cur, j), xb)
                a(f'v_mfma_f32_16x16x32_bf16 v[{cc}:{cc+3}], v[{oa}:{oa+3}], v[{ob}:{ob+3}], v[{cc}:{cc+3}]')
                if fill: fill.pop(0)()
            assert not fill, (t, len(fill))
        assert widx == nw
    a(f's_cbranch_scc1 {P}_loop')
    a('s_waitcnt lgkmcnt(0)')
    stamp(a, 3)
    if not (QLATE and swapj >= 0): lds_arrive(a, LCN + 4, 'v246', 'v247')

def cons_common(a, T0, nacc, XO, onelane):
    g, i, r, c, t5 = [f'v{T0+8+n}' for n in range(5)]
    for n in range(4): a(f'v_mov_b32 v{T0+n}, 0')
    a(f'v_lshrrev_b32 {g}, 4, {L}'); a(f'v_and_b32 {i}, 15, {L}'); a(f'v_bfe_u32 {r}, {L}, 2, 2'); a(f'v_and_b32 {c}, 3, {L}')
    for n in range(nacc // 16): a(f'v_mfma_f32_32x32x16_bf16 v[{16*n}:{16*n+15}], v[{T0}:{T0+3}], v[{T0}:{T0+3}], 0')
    for n in range(nacc // 16 * 16, nacc, 4): a(f'v_mfma_f32_16x16x32_bf16 v[{n}:{n+3}], v[{T0}:{T0+3}], v[{T0}:{T0+3}], 0')
    a(f'v_lshrrev_b32 {t5}, 1, {i}'); a(f'v_xor_b32 {t5}, {t5}, {g}'); a(f'v_lshlrev_b32 {t5}, 4, {t5}'); a(f'v_lshl_or_b32 {t5}, {i}, 7, {t5}')
    a(f'v_add_u32 v240, {XO}, {t5}'); a('v_xor_b32 v241, 64, v240')
    a('v_mov_b32 v238, v240'); a('v_mov_b32 v239, v241')
    a('v_mov_b32 v242, 0x3f803f80'); a(f'v_cmp_eq_u32 s[64:65], {onelane}, {i}')
    a(f'v_mov_b32 {t5}, {LCN}'); a(f'ds_write_b128 {t5}, v[{T0}:{T0+3}]')
    a(f'v_lshlrev_b32 v248, 4, {i}'); a(f'v_add_u32 v248, {LST}, v248')

Pk = lambda r: f'v[{r}:{r+1}]'
def consumerG(a):
    ACC = lambda j, t: (j * 7 + t) * 4
    WF = lambda s, j: 168 + s * 24 + j * 4
    XB = lambda b: 216 + 4 * b
    WA = lambda hi, j: 232 + 3 * hi + j
    T0 = 168
    g, i, r, c, t5, t6, t7, t8 = [f'v{T0+8+n}' for n in range(8)]
    cons_common(a, T0, 168, GX, 15)
    a(f'v_lshrrev_b32 {t5}, 1, {r}'); a(f'v_lshlrev_b32 {t5}, 2, {t5}'); a(f'v_and_b32 {t6}, 1, {g}'); a(f'v_or_b32 {t5}, {t5}, {t6}')
    a(f'v_lshlrev_b32 {t5}, 4, {t5}'); a(f'v_lshl_or_b32 {t5}, {r}, 7, {t5}'); a(f'v_lshl_or_b32 {t5}, {g}, 10, {t5}')
    a('s_lshr_b32 s51, s40, 1'); a('s_mul_i32 s51, s51, 3'); a('s_add_u32 s52, s51, 1')
    a('s_and_b32 s53, s40, 1'); a('s_lshl_b32 s54, s53, 1'); a('s_add_u32 s51, s51, s54')
    a(f'v_and_b32 {t6}, 1, {c}'); a(f'v_lshlrev_b32 {t7}, 4, {c}'); a(f'v_lshl_or_b32 {t7}, {t6}, 3, {t7}'); a(f'v_xor_b32 {t7}, {t7}, {t5}')
    a('s_and_b32 s54, s51, 1'); a('s_lshl_b32 s54, s54, 6'); a('s_lshr_b32 s55, s51, 1'); a('s_lshl_b32 s55, s55, 12')
    a(f'v_xor_b32 {t7}, s54, {t7}'); a(f'v_add_u32 v{WA(0,0)}, s55, {t7}'); a(f'v_xor_b32 v{WA(0,1)}, 8, v{WA(0,0)}')
    a(f'v_lshrrev_b32 {t7}, 1, {c}'); a(f'v_xor_b32 {t6}, {t6}, {t7}'); a(f'v_lshlrev_b32 {t7}, 4, {t7}'); a(f'v_lshl_or_b32 {t7}, {t6}, 3, {t7}')
    a(f'v_xor_b32 {t7}, {t7}, {t5}')
    a('s_and_b32 s54, s52, 1'); a('s_lshl_b32 s54, s54, 6'); a('s_lshl_b32 s56, s53, 5'); a('s_or_b32 s54, s54, s56')
    a('s_lshr_b32 s55, s52, 1'); a('s_lshl_b32 s55, s55, 12')
    a(f'v_xor_b32 {t7}, s54, {t7}'); a(f'v_add_u32 v{WA(0,2)}, s55, {t7}')
    for j in range(3): a(f'v_add_u32 v{WA(1,j)}, 49152, v{WA(0,j)}')
    a(f'v_lshrrev_b32 {t8}, 1, {g}'); a('s_lshl_b32 s56, s53, 1'); a(f'v_add_u32 {t8}, s56, {t8}')
    a('s_lshr_b32 s54, s44, 1'); a('s_mul_i32 s54, s54, 17'); a('s_and_b32 s55, s44, 1'); a('s_mul_i32 s55, s55, 6'); a('s_add_u32 s54, s54, s55')
    a('s_add_u32 s55, s54, s51'); a('s_lshl_b32 s55, s55, 12'); a(f'v_lshl_add_u32 v251, {g}, 8, s55')
    a('s_add_u32 s55, s54, s52'); a('s_lshl_b32 s55, s55, 12'); a(f'v_lshl_add_u32 v252, {t8}, 8, s55')
    a(f'v_lshlrev_b32 v249, 2, {i}'); a(f'v_add_u32 v249, {LRP}, v249')
    a(f'v_and_b32 {t5}, 1, {g}'); a(f'v_lshl_add_u32 v250, {t5}, 6, v249')
    a('s_waitcnt lgkmcnt(0)')
    cntbase(a); srd(a, 36, 22, 23, A2_SZ)
    def wread(q, slot, setn, idx):
        j, hf = idx >> 1, idx & 1
        off = (slot & 1) * 24576 + (j // 3) * 12288 + hf * 512
        d = WF(setn, j) + 2 * hf
        q.issue('W', f'ds_read_b64_tr_b16 v[{d}:{d+1}], v{WA(slot >> 1, j % 3)} offset:{off}')
    mainloop(a, 'cg', 7, 6, ACC, WF, XB, wread, 12, 6, GXS)
    ST = lambda t: 168 + 4 * t
    CS = lambda j: 196 + 4 * j
    RP = lambda t: 232 + t
    RS = lambda p: 244 + p
    for p in range(4): a(f'ds_read2_b32 v[{RP(2*p)}:{RP(2*p)+1}], v249 offset0:{32*p} offset1:{32*p+16}')
    for p in range(2): a(f'ds_read2_b32 v[{RS(2*p)}:{RS(2*p)+1}], v250 offset0:{64*p} offset1:{64*p+32}')
    for t in range(7): a(f'ds_read_b128 v[{ST(t)}:{ST(t)+3}], v248 offset:{t*256}')
    for j in range(6):
        for rr in range(4):
            a(f'v_mov_b32_dpp v{CS(j)+rr}, v{ACC(j,6)+rr} row_newbcast:15 row_mask:0xf bank_mask:0xf')
    P = Pk
    for t in range(7):
        a(f's_waitcnt lgkmcnt({6-t})')
        s01, s23 = P(ST(t)), P(ST(t) + 2)
        prs = [(j, hp) for j in range(3) for hp in range(2)]
        T = lambda n: 220 + 2 * n
        G = lambda j, hp: ACC(j, t) + 2 * hp
        U = lambda j, hp: ACC(j + 3, t) + 2 * hp
        for j, hp in prs: a(f'v_pk_fma_f32 {P(G(j,hp))}, {P(CS(j)+2*hp)}, {s01}, {P(G(j,hp))} op_sel:[0,0,0] op_sel_hi:[1,0,1]')
        for n, (j, hp) in enumerate(prs): a(f'v_pk_mul_f32 {P(T(n))}, {P(G(j,hp))}, {P(G(j,hp))}')
        for n, (j, hp) in enumerate(prs): a(f'v_pk_fma_f32 {P(T(n))}, {P(T(n))}, {s23}, {s01} op_sel:[0,0,1] op_sel_hi:[1,0,1]')
        for n, (j, hp) in enumerate(prs): a(f'v_pk_mul_f32 {P(T(n))}, {P(T(n))}, {P(G(j,hp))}')
        for n, (j, hp) in enumerate(prs):
            a(f'v_exp_f32 v{T(n)}, v{T(n)}'); a(f'v_exp_f32 v{T(n)+1}, v{T(n)+1}')
            a(f'v_pk_fma_f32 {P(U(j,hp))}, {P(CS(j+3)+2*hp)}, {s01}, {P(U(j,hp))} op_sel:[0,0,0] op_sel_hi:[1,0,1]')
        for n, (j, hp) in enumerate(prs): a(f'v_pk_fma_f32 {P(T(n))}, {P(T(n))}, {s23}, {s23} op_sel:[0,1,1] op_sel_hi:[1,1,1]')
        for n, (j, hp) in enumerate(prs):
            a(f'v_rcp_f32 v{T(n)}, v{T(n)}'); a(f'v_rcp_f32 v{T(n)+1}, v{T(n)+1}')
            a(f'v_pk_mul_f32 {P(U(j,hp))}, {P(U(j,hp))}, {P(G(j,hp))}')
        for n, (j, hp) in enumerate(prs): a(f'v_pk_mul_f32 {P(U(j,hp))}, {P(U(j,hp))}, {P(T(n))}')
        o4, Ep = ACC(0, t), ACC(1, t & ~1)
        for n, (j, hp) in enumerate(prs):
            d = o4 + n if n < 4 else Ep + 2 * (t & 1) + n - 4
            a(f'v_cvt_pk_bf16_f32 v{d}, v{U(j,hp)}, v{U(j,hp)+1}')
        a(f'v_add_u32 v{ACC(2,t)}, v{RP(t)}, v251')
        a(f'buffer_store_dwordx4 v[{o4}:{o4+3}], v{ACC(2,t)}, s[36:39], 0 offen sc1')
        if t & 1 or t == 6:
            ad = ACC(2, t) + 1
            a(f'v_add_u32 v{ad}, v{RS(t >> 1)}, v252')
            a(f'v_permlane16_swap_b32 v{Ep}, v{Ep+2}'); a(f'v_permlane16_swap_b32 v{Ep+1}, v{Ep+3}')
            a(f'buffer_store_dwordx4 v[{Ep}:{Ep+3}], v{ad}, s[36:39], 0 offen sc1')
    a('s_mov_b32 s62, s41'); a('s_add_u32 s63, s41, 107'); a('s_movk_i32 s66, 607'); a('s_mov_b32 s67, s44')
    a('s_branch k_pub')

def publish(a):
    stamp(a, 4)
    a('s_lshr_b32 s62, s62, 6'); a(f'v_lshrrev_b32 v250, 3, {L}'); a('v_add_u32 v250, s62, v250')
    a('v_lshlrev_b32 v251, 6, v250'); a('s_min_u32 s63, s63, 2047'); a('v_cmp_ge_u32 s[68:69], s63, v251')
    a('v_mul_u32_u24 v251, s66, v251'); a('v_lshrrev_b32 v251, 16, v251')
    a('v_sub_u32 v251, s45, v251'); a('v_lshl_add_u32 v251, v251, 3, s67')
    a('v_mov_b32 v252, 1'); a('v_lshlrev_b32 v251, v251, v252')
    a('s_lshl_b32 s62, s62, 3'); a(f's_add_u32 s62, s62, {C_WG}'); a(f'v_add_u32 v250, s62, {L}'); a('v_lshlrev_b32 v250, 7, v250')
    a(f'v_mov_b32 v253, {LCN}')
    a('s_waitcnt vmcnt(0)')
    if SPROF != 3: stamp(a, 5)
    a('s_mov_b64 exec, 1')
    a('ds_add_rtn_u32 v252, v253, v252')
    a('s_waitcnt lgkmcnt(0)')
    a('v_readfirstlane_b32 s71, v252')
    a('s_cmp_lg_u32 s71, 3'); a('s_cbranch_scc1 pub_x')
    a('s_mov_b64 exec, s[68:69]')
    a('global_atomic_add v250, v251, s[10:11]')
    a.label('pub_x')
    a('s_mov_b64 exec, -1')
    stamp_flush(a, 0)

def consumerQ(a):
    ACC = lambda j, t: (j * 11 + t) * 4
    WF = lambda s, j: 176 + s * 16 + j * 4
    XB = lambda b: 208 + 4 * b
    T0 = 176
    g, i, r, c, t5, t6, t7 = [f'v{T0+8+n}' for n in range(7)]
    cons_common(a, T0, 176, QX, 0)
    a(f'v_lshrrev_b32 {t5}, 1, {g}'); a(f'v_lshlrev_b32 {t5}, 4, {t5}'); a(f'v_and_b32 {t6}, 1, {g}'); a(f'v_lshl_add_u32 {t5}, {t6}, 2, {t5}'); a(f'v_add_u32 {t5}, {t5}, {r}')
    a(f'v_mul_u32_u24 {t5}, 160, {t5}'); a('s_mul_i32 s51, s40, 40'); a(f'v_add_u32 {t5}, s51, {t5}')
    a(f'v_lshl_add_u32 v224, {c}, 3, {t5}')
    a(f'v_min_u32 {t6}, 2, {c}'); a(f'v_mul_u32_u24 {t6}, 5120, {t6}'); a(f'v_add3_u32 v225, {t5}, {t6}, 32')
    a('s_mul_i32 s51, s40, 1408'); a(f's_add_u32 s51, s51, {4*WREG}')
    a(f'v_lshl_add_u32 v228, {i}, 3, s51'); a(f'v_add_u32 {t5}, 5632, v228'); a(f'v_cmp_eq_u32 vcc, 2, {g}'); a(f'v_cndmask_b32 v228, {t5}, v228, vcc')
    a(f'v_lshrrev_b32 {t5}, 2, {L}'); a(f'v_lshl_add_u32 v229, {t5}, 3, s51')
    a(f'v_lshlrev_b32 v230, 4, {g}'); a(f'v_add_u32 v230, {LS2}, v230')
    a(f'v_and_b32 {t5}, 1, {i}'); a(f'v_cmp_eq_u32 s[74:75], 1, {t5}')
    a(f'v_lshl_add_u32 {t6}, {g}, 2, {t5}'); a(f'v_cmp_le_u32 s[76:77], {t6}, {i}')
    a(f'v_add_u32 {t6}, 2, {t6}'); a(f'v_cmp_le_u32 s[78:79], {t6}, {i}')
    a(f'v_mov_b32 {t7}, 0x0c0c0c0c')
    a(f'v_mov_b32 {t5}, 0x0c0c0100'); a(f'v_mov_b32 {t6}, 0x01000c0c'); a(f'v_cndmask_b32 {t5}, {t5}, {t6}, s[74:75]')
    a(f'v_cndmask_b32 v232, {t5}, {t7}, s[76:77]'); a(f'v_cndmask_b32 v234, {t7}, {t5}, s[76:77]')
    a(f'v_mov_b32 {t5}, 0x0c0c0302'); a(f'v_mov_b32 {t6}, 0x03020c0c'); a(f'v_cndmask_b32 {t5}, {t5}, {t6}, s[74:75]')
    a(f'v_cndmask_b32 v233, {t5}, {t7}, s[78:79]'); a(f'v_cndmask_b32 v235, {t7}, {t5}, s[78:79]')
    a('s_mul_i32 s56, s45, 10')
    a('s_lshr_b32 s57, s44, 1'); a('s_mul_i32 s57, s57, 17'); a('s_add_u32 s57, s57, 12'); a('s_and_b32 s58, s44, 1'); a('s_lshl_b32 s58, s58, 1')
    a('s_lshr_b32 s52, s40, 1'); a('s_add_u32 s58, s58, s52'); a('s_and_b32 s53, s40, 1')
    a('s_add_u32 s59, s57, s58'); a('s_lshl_b32 s59, s59, 12'); a('s_lshl_b32 s52, s53, 9'); a('s_add_u32 s59, s59, s52')
    a(f'v_lshrrev_b32 {t5}, 1, {g}'); a(f'v_lshlrev_b32 {t5}, 8, {t5}'); a(f'v_and_b32 {t6}, 1, {g}'); a(f'v_lshl_add_u32 {t5}, {t6}, 10, {t5}')
    a(f'v_lshl_add_u32 {t5}, {i}, 4, {t5}'); a(f'v_add_u32 v236, s59, {t5}')
    a('s_add_u32 s57, s57, 4'); a('s_lshl_b32 s57, s57, 12'); a('s_add_u32 s57, s57, s52'); a('s_lshl_b32 s58, s58, 7'); a('s_add_u32 s57, s57, s58')
    a(f'v_add_u32 {t5}, s56, {g}'); a(f'v_lshrrev_b32 {t6}, 2, {t5}'); a(f's_mov_b32 s58, {A2_RB}'); a(f'v_mul_lo_u32 {t6}, {t6}, s58')
    a(f'v_and_b32 {t5}, 3, {t5}'); a(f'v_lshl_add_u32 {t6}, {t5}, 10, {t6}'); a(f'v_lshl_add_u32 {t6}, {i}, 3, {t6}'); a(f'v_add_u32 v237, s57, {t6}')
    a(f'v_mov_b32 {t5}, {OOB}'); a(f'v_cmp_gt_u32 vcc, 2, {g}'); a(f'v_cndmask_b32 v244, {t5}, v237, vcc')
    for n in range(5):
        a(f's_add_u32 s57, s56, {2*n}'); a('s_lshr_b32 s59, s57, 2'); a('s_mul_i32 s59, s59, s58'); a('s_and_b32 s57, s57, 3'); a('s_lshl_b32 s57, s57, 10'); a(f's_add_u32 s{48+n}, s59, s57')
    a('s_lshl_b32 s53, s58, 1')
    a('s_waitcnt lgkmcnt(0)')
    cntbase(a); srd(a, 36, 22, 23, A2_SZ)
    def wread(q, slot, setn, idx):
        j, hf = idx >> 1, idx & 1
        d = WF(setn, j) + 2 * hf
        if j < 3: q.issue('W', f'ds_read_b64_tr_b16 v[{d}:{d+1}], v224 offset:{slot*QWS + j*5120 + hf*1280}')
        else: q.issue('W', f'ds_read_b64_tr_b16 v[{d}:{d+1}], v225 offset:{slot*QWS + hf*1280}')
    mainloop(a, 'cq', 11, 4, ACC, WF, XB, wread, 8, 0, QXS, swapj=2)
    ST = lambda t: 176 + 2 * t
    CS = lambda j: 198 + 4 * (j if j < 2 else 2)
    VS = lambda t: (212, 220, 238)[t % 3]
    VR = lambda t: (216, 224, 250)[t % 3]
    Vp = lambda t: 88 + 2 * t
    Vl = lambda t: 110 + 2 * t
    P = Pk
    q = Q(a, 'lgkmcnt', 15)
    for t in range(11): q.issue('S', f'ds_read_b64 v[{ST(t)}:{ST(t)+1}], v248 offset:{t*256}')
    def rdVS(t):
        q.issue(('VS', t), f'ds_read_b128 v[{VS(t)}:{VS(t)+3}], v230 offset:{t*64}')
        q.issue(('VS', t), f'ds_read_b128 v[{VR(t)}:{VR(t)+3}], v230 offset:{t*64+768}')
    rdVS(0); rdVS(1)
    for j in (0, 1, 3):
        for rr in range(4):
            a(f'v_mov_b32_dpp v{CS(j)+rr}, v{ACC(j,0)+rr} row_newbcast:0 row_mask:0xf bank_mask:0xf')
    a(f'v_mov_b32 v210, v{ACC(2,0)}'); a(f'v_mov_b32 v211, v{ACC(2,0)}'); a('v_permlane16_swap_b32 v210, v211')
    a('v_mov_b32 v211, v210'); a('v_permlane32_swap_b32 v210, v211')
    for t in range(11):
        q.wait(('VS', t))
        if t < 9: rdVS(t + 2)
        s01 = P(ST(t))
        js = (1, 3) if t == 0 else (0, 1, 3)
        prs = [(j, hp) for j in js for hp in range(2)]
        G = lambda j, hp: ACC(j, t) + 2 * hp
        for j, hp in prs: a(f'v_pk_fma_f32 {P(G(j,hp))}, {P(CS(j)+2*hp)}, {s01}, {P(G(j,hp))} op_sel:[0,0,0] op_sel_hi:[1,0,1]')
        for hp in range(2): a(f'v_pk_fma_f32 {P(G(2,hp))}, {P(VS(t)+2*hp)}, v[210:211], {P(G(2,hp))} op_sel:[0,0,0] op_sel_hi:[1,0,1]')
        for j, hp in prs: a(f'v_pk_mul_f32 {P(G(j,hp))}, {P(G(j,hp))}, {s01} op_sel:[0,1] op_sel_hi:[1,1]')
        for hp in range(2): a(f'v_pk_mul_f32 {P(G(2,hp))}, {P(G(2,hp))}, {P(VR(t)+2*hp)}')
        for j in js[:-1]:
            for hp in range(2): a(f'v_cvt_pk_bf16_f32 v{ACC(j,t)+hp}, v{G(j,hp)}, v{G(j,hp)+1}')
        for j in (0, 1):
            for hp in range(2): a(f'v_cvt_pk_bf16_f32 v{ACC(j,t)+2+hp}, v{G(3,hp)}, v{G(3,hp)+1}')
        for hp in range(2): a(f'v_cvt_pk_bf16_f32 v{Vp(t)+hp}, v{G(2,hp)}, v{G(2,hp)+1}')
        q.issue('w', f'ds_write_b64 v228, v[{ACC(1,t)+2}:{ACC(1,t)+3}] offset:{t*128}')
    if SPROF == 3: stamp(a, 1)
    SC = lambda u: 132 + 8 * u; SP = lambda u: 136 + 8 * u
    Qf = lambda u: ACC(0, u + 1); Kf = lambda t: ACC(1, t)
    for t in range(11):
        for hp in range(2): a(f'v_permlane16_swap_b32 v{ACC(0,t)+2+hp}, v{ACC(1,t)+2+hp}')
    q.wait('w')
    for t in range(11): q.issue('V', f'ds_read_b64_tr_b16 v[{Vl(t)}:{Vl(t)+1}], v229 offset:{t*128}')
    a('s_mov_b32 exec_lo, 0xffff0000')
    for u in range(10): a(f'v_mov_b64 v[{Qf(u)+2}:{Qf(u)+3}], 0')
    a('s_mov_b64 exec, -1')
    def sel1(u):
        a(f'v_cndmask_b32 v{SC(u)}, v{SC(u)}, v{SC(u)+1}, s[74:75]'); a(f'v_cndmask_b32 v{SC(u)+2}, v{SC(u)+2}, v{SC(u)+3}, s[74:75]')
        a(f'v_cndmask_b32 v{SP(u)}, v{SP(u)}, v{SP(u)+1}, s[74:75]'); a(f'v_cndmask_b32 v{SP(u)+2}, v{SP(u)+2}, v{SP(u)+3}, s[74:75]')
    for u in range(10):
        a(f'v_mfma_f32_16x16x32_bf16 v[{SC(u)}:{SC(u)+3}], v[{Kf(u+1)}:{Kf(u+1)+3}], v[{Qf(u)}:{Qf(u)+3}], 0')
        a(f'v_mfma_f32_16x16x32_bf16 v[{SP(u)}:{SP(u)+3}], v[{Kf(u)}:{Kf(u)+3}], v[{Qf(u)}:{Qf(u)+3}], 0')
        if u >= 3: sel1(u - 3)
    for u in range(7, 10): sel1(u)
    a('s_cmp_lg_u32 s56, 0'); a('s_cbranch_scc1 cq_nofix')
    a(f'v_mov_b32 v{SP(0)}, {f32(-1e30)}'); a(f'v_mov_b32 v{SP(0)+2}, {f32(-1e30)}')
    a.label('cq_nofix')
    if QLATE: lds_arrive(a, LCN + 4, 'v238', 'v239')
    if SPROF == 3: stamp(a, 2)
    LA = lambda u: 44 + 2 * u; LB = lambda u: 45 + 2 * u; M = lambda u: 64 + u
    for u in range(10):
        a(f'v_cndmask_b32 v{LA(u)}, v{SP(u)}, v{SC(u)}, s[76:77]'); a(f'v_cndmask_b32 v{LB(u)}, v{SP(u)+2}, v{SC(u)+2}, s[78:79]')
    for u in range(10): a(f'v_max_f32 v{M(u)}, v{LA(u)}, v{LB(u)}')
    a('v_mov_b32 v74, 1.0'); a('v_mov_b32 v75, 1.0')
    def reduce12(op, post):
        B4 = [64, 68, 72]
        for A in B4: a(f'v_permlane16_swap_b32 v{A}, v{A+1}'); a(f'v_permlane16_swap_b32 v{A+2}, v{A+3}')
        for A in B4: a(f'{op} v{A}, v{A}, v{A+1}'); a(f'{op} v{A+2}, v{A+2}, v{A+3}')
        for A in B4: a(f'v_permlane32_swap_b32 v{A}, v{A+2}')
        for A in B4: a(f'{op} v{A}, v{A}, v{A+2}')
        for A in B4: post(A)
        for A in B4: a(f'v_mov_b32 v{A+2}, v{A}')
        for A in B4: a(f'v_permlane32_swap_b32 v{A}, v{A+2}')
        for A in B4: a(f'v_mov_b32 v{A+1}, v{A}'); a(f'v_mov_b32 v{A+3}, v{A+2}')
        for A in B4: a(f'v_permlane16_swap_b32 v{A}, v{A+1}'); a(f'v_permlane16_swap_b32 v{A+2}, v{A+3}')
    cs = 20 ** -0.5 * LOG2E
    a(f's_mov_b32 s68, {f32(cs)}'); a(f's_mov_b32 s69, {f32(cs)}')
    reduce12('v_max_f32', lambda r: a(f'v_mul_f32 v{r}, s68, v{r}'))
    for u in range(10):
        h = M(u) & 1
        a(f'v_pk_fma_f32 {P(LA(u))}, {P(LA(u))}, s[68:69], {P(M(u) & ~1)} op_sel:[0,0,{h}] op_sel_hi:[1,1,{h}] neg_lo:[0,0,1] neg_hi:[0,0,1]')
    for u in range(10):
        a(f'v_exp_f32 v{LA(u)}, v{LA(u)}'); a(f'v_exp_f32 v{LB(u)}, v{LB(u)}')
    for u in range(10): a(f'v_add_f32 v{M(u)}, v{LA(u)}, v{LB(u)}')
    reduce12('v_add_f32', lambda r: a(f'v_rcp_f32 v{r}, v{r}'))
    for u in range(10):
        h = M(u) & 1
        a(f'v_pk_mul_f32 {P(LA(u))}, {P(LA(u))}, {P(M(u) & ~1)} op_sel:[0,{h}] op_sel_hi:[1,{h}]')
    for u in range(10): a(f'v_cvt_pk_bf16_f32 v{LA(u)}, v{LA(u)}, v{LB(u)}')
    a('s_waitcnt lgkmcnt(0)')
    if SPROF == 3: stamp(a, 5)
    PF = Qf
    def pv(u):
        a(f'v_mfma_f32_16x16x32_bf16 v[{SC(u)}:{SC(u)+3}], v[{Vp(u)}:{Vp(u)+3}], v[{PF(u)}:{PF(u)+3}], 0')
        a(f'v_mfma_f32_16x16x32_bf16 v[{SP(u)}:{SP(u)+3}], v[{Vl(u)}:{Vl(u)+3}], v[{PF(u)}:{PF(u)+3}], 0')
    for u in range(10):
        for z in range(4): a(f'v_perm_b32 v{PF(u)+z}, v{LA(u)}, v{LA(u)}, v{232+z}')
        if u: pv(u - 1)
    pv(9)
    OM = lambda n: 44 + 4 * n
    for n in range(5):
        for e in range(2):
            u = 2 * n + e
            a(f'v_cvt_pk_bf16_f32 v{OM(n)+2*e}, v{SC(u)}, v{SC(u)+1}'); a(f'v_cvt_pk_bf16_f32 v{OM(n)+2*e+1}, v{SC(u)+2}, v{SC(u)+3}')
        if n:
            m = n - 1
            a(f'v_permlane16_swap_b32 v{OM(m)}, v{OM(m)+2}'); a(f'v_permlane16_swap_b32 v{OM(m)+1}, v{OM(m)+3}')
            a(f'buffer_store_dwordx4 v[{OM(m)}:{OM(m)+3}], v236, s[36:39], s{48+m} offen sc1')
    for z in range(4):
        a(f's_mov_b32 exec_lo, {(0xffff << (16*z)) & 0xffffffff if z < 2 else 0}')
        a(f's_mov_b32 exec_hi, {(0xffff << (16*(z-2))) if z >= 2 else 0}')
        for m in range(3):
            u = 4 * m + z
            if u < 10:
                a(f'v_cvt_pk_bf16_f32 v{64+2*m}, v{SP(u)}, v{SP(u)+1}'); a(f'v_cvt_pk_bf16_f32 v{65+2*m}, v{SP(u)+2}, v{SP(u)+3}')
    a('s_mov_b64 exec, -1')
    a(f'v_permlane16_swap_b32 v{OM(4)}, v{OM(4)+2}'); a(f'v_permlane16_swap_b32 v{OM(4)+1}, v{OM(4)+3}')
    a(f'buffer_store_dwordx4 v[{OM(4)}:{OM(4)+3}], v236, s[36:39], s52 offen sc1')
    a('buffer_store_dwordx2 v[64:65], v237, s[36:39], 0 offen sc1')
    a('buffer_store_dwordx2 v[66:67], v237, s[36:39], s58 offen sc1')
    a('buffer_store_dwordx2 v[68:69], v244, s[36:39], s53 offen sc1')
    a('s_add_u32 s62, s41, 16'); a('s_add_u32 s63, s41, 175'); a('s_movk_i32 s66, 410'); a('s_add_u32 s67, s44, 16')

def main():
    a = Asm()
    ref = open('cdna_kernels/' + NAME + '.s.ref').read().split('\n')
    for l in ref:
        if l.startswith('; @launch'): break
        a.raw(l)
    if E("LIST", 0): a.raw(f'; @launch kernel={KN} grid=(256,1,1) block=(512,1,1) lds=163840')
    else: a.raw('; @launch grid=(256,1,1) block=(512,1,1) lds=163840')
    a.raw('.amdgcn_target "amdgcn-amd-amdhsa--gfx950"')
    a.raw('.text'); a.raw(f'.globl {KN}'); a.raw(f'.type {KN},@function')
    kernel(a)
    a.raw('.section .rodata,"a"'); a.raw('.p2align 6')
    a.raw(f'''.amdhsa_kernel {KN}
  .amdhsa_next_free_vgpr 256
  .amdhsa_next_free_sgpr 100
  .amdhsa_accum_offset 256
  .amdhsa_group_segment_fixed_size 0
  .amdhsa_kernarg_size 80
  .amdhsa_user_sgpr_count 2
  .amdhsa_user_sgpr_kernarg_segment_ptr 1
  .amdhsa_system_sgpr_workgroup_id_x 1
.end_amdhsa_kernel''')
    open(sys.argv[1], 'w').write(a.text())
    print('nops inserted', a.nops)
main()
```

```python
import sys, math, os
from asmlib import *

NAME = "parallel_sum__sliding_local_dilated__glu_gated_geglu__prompt"
KN = NAME + "_kernel"
A2_RB, A2_SZ = 278528, 32 * 278528
WS_W2, W2_CB, W2_SZ = 0x900000, 348160, 8 * 348160
WS_STAT, WS_CNT = 0x1400000, 0x1410000
C_STAT, C_W2, C_WG = 0, 16, 32
XSZ = 2048 * 1280
OOB = 0x7f000000
LOG2E = 1.4426950408889634
C1 = -2.0 * LOG2E * math.sqrt(2.0 / math.pi)
C2 = C1 * 0.044715
E = lambda k, d: int(os.environ.get(k, d))
PROF = E("PROF", 0); CLK = E("CLK", 0); SPROF = E("SPROF", 0)
ORD = [int(c) for c in os.environ.get("ORD", "55")]; PRE2 = E("PRE2", 0); TA = E("TA", 0); NSTG = E("NSTG", 4); STG0 = E("STG0", -2); TW = E("TW", 1); TB = E("TB", 7); TCB = E("TCB", 2); DRY = E("DRY", 0); OSC = os.environ.get("OSC", ""); GLATE = E("GLATE", -1); EB0 = E("EB0", 1); RETOUCH = E("RETOUCH", 1); MAP2 = E("MAP2", 0); QLATE = E("QLATE", 0); OCHK = E("OCHK", 7)
WSRC = os.environ.get("WSRC", "HHHLHSLHSLHSLLSLL")
LA_A = E("LA_A", 4); LA_W = E("LA_W", 4); PACE = E("PACE", 3); PRE = E("PRE", 2)
OWN = E("OWN", 1); PPOLL = E("PPOLL", 0); PSL = E("PSL", 2)
NTW = os.environ.get("NTW", ""); NTX = os.environ.get("NTX", ""); NTT = os.environ.get("NTT", "")
SPIN = 30000; SLEEP = E("SLEEP", 4)
CH = [int(c) for c in os.environ.get("CH", "2222")]
WS_PROF = 0x2000000
GX, GXS, GWS = 98304, 14336, 24576
QX, QXS, QWS = 61440, 22528, 15360
LT2 = 141312
LST = LT2 + 3 * 5120
LRP = LST + 3072
LCN = LRP + 512
PB_HI = 61440
LS2 = LCN + 64
QST = 520
L = 'v243'

def srd(a, d, lo, hi, size, add=None):
    if add is None:
        a(f's_mov_b32 s{d}, s{lo}'); a(f's_mov_b32 s{d+1}, s{hi}')
    else:
        a(f's_add_u32 s{d}, s{lo}, {add}'); a(f's_addc_u32 s{d+1}, s{hi}, 0')
    a(f's_mov_b32 s{d+2}, {size}'); a(f's_mov_b32 s{d+3}, 0x20000')

MUTE = [False]
def stamp(a, n):
    if PROF and not (MUTE[0] and n < 7):
        a(f'{"s_memtime" if CLK else "s_memrealtime"} s[{80+2*n}:{81+2*n}]'); a('s_waitcnt lgkmcnt(0)')
def stamp_flush(a, waveadd=0):
    if not PROF: return
    a('s_waitcnt vmcnt(0)'); stamp(a, 7)
    a(f's_add_u32 s96, s22, {WS_PROF}'); a('s_addc_u32 s97, s23, 0')
    a(f's_lshl_b32 s98, s2, 3'); a(f's_add_u32 s98, s98, s40'); a(f's_add_u32 s98, s98, {waveadd}'); a('s_lshl_b32 s98, s98, 6')
    a('v_mov_b32 v0, s98')
    for n in range(8):
        a(f'v_mov_b32 v2, s{80+2*n}'); a(f'v_mov_b32 v3, s{81+2*n}')
        a(f'global_store_dwordx2 v0, v[2:3], s[96:97] offset:{8*n}')

class Q:
    def __init__(s, a, cnt, mx): s.a = a; s.q = []; s.cnt = cnt; s.mx = mx; s.n = {}
    def issue(s, tag, text):
        if len(s.q) >= s.mx:
            s.a(f's_waitcnt {s.cnt}({s.mx - 1})'); s.q = s.q[-(s.mx - 1):]
        s.a(text); s.q.append(tag); s.n[tag] = s.n.get(tag, 0) + 1; s.tot = getattr(s, 'tot', 0) + 1
    def wait(s, tag):
        if tag not in s.q: return
        idx = max(i for i, t in enumerate(s.q) if t == tag)
        n = len(s.q) - 1 - idx
        s.a(f's_waitcnt {s.cnt}({n})'); s.q = s.q[idx + 1:]
    def clear(s): s.q = []

_pl = [0]
def poll(a, va, vp, target, base='s[10:11]', preissued=False, st='s70', mask=False):
    _pl[0] += 1; n = _pl[0]
    a(f's_mov_b32 {st}, 0')
    if preissued: a(f's_branch pl{n}_chk')
    a.label(f'pl{n}_top')
    a(f'global_load_dword {vp}, {va}, {base} sc1')
    a.label(f'pl{n}_chk')
    a('s_waitcnt vmcnt(0)')
    if mask: a(f'v_and_b32 {vp}, {target}, {vp}')
    a(f'v_cmp_ne_u32 vcc, {target}, {vp}')
    a('s_nop 1')
    a(f's_cbranch_vccz pl{n}_ok')
    a(f's_sleep {SLEEP}')
    a(f's_add_u32 {st}, {st}, 1'); a(f's_cmp_lt_u32 {st}, {SPIN}'); a(f's_cbranch_scc1 pl{n}_top')
    a('s_endpgm')
    a.label(f'pl{n}_ok')

assert all((x * 607) >> 16 == x // 108 for x in range(2112))
assert all((x * 410) >> 16 == x // 160 for x in range(0, 2560, 16))
def cntbase(a):
    a(f's_add_u32 s10, s22, {WS_CNT}'); a('s_addc_u32 s11, s23, 0')
def bar(a, n=1):
    for _ in range(n): a('s_barrier')

_ls = [0]
def lds_arrive(a, off, va, vb):
    a(f'v_mov_b32 {va}, {off}'); a(f'v_mov_b32 {vb}, 1')
    a('s_mov_b64 exec, 1'); a(f'ds_add_u32 {va}, {vb}'); a('s_mov_b64 exec, -1')
def lds_wait(a, off, va, vb, sleep=0, setaddr=True):
    _ls[0] += 1; n = _ls[0]
    if setaddr: a(f'v_mov_b32 {va}, {off}')
    a('s_mov_b32 s70, 0')
    a.label(f'lw{n}')
    a(f'ds_read_b32 {vb}, {va}'); a('s_waitcnt lgkmcnt(0)'); a(f'v_readfirstlane_b32 s71, {vb}')
    a('s_cmp_ge_u32 s71, 4'); a(f's_cbranch_scc1 lw{n}_ok')
    if sleep: a(f's_sleep {sleep}')
    a('s_add_u32 s70, s70, 1'); a('s_cmp_lt_u32 s70, 200000'); a(f's_cbranch_scc1 lw{n}')
    a('s_endpgm')
    a.label(f'lw{n}_ok')

_gd = [0]
def guard(a, *ins):
    _gd[0] += 1
    if DRY: a(f's_cbranch_execz gd{_gd[0]}')
    for t in ins: a(t)
    if DRY: a.label(f'gd{_gd[0]}')
def seg(a, P, n):
    if not DRY: return
    if n > 0: a(f's_cbranch_execz {P}_ret')
    if n < 4: a.label(f'{P}_seg{n}')
def dryrun(a, P):
    if not DRY: return
    a('s_mov_b64 exec, 0')
    for n in range(3):
        a(f's_cmp_eq_u32 s40, {n}'); a(f's_cbranch_scc1 {P}_seg{n}')
    a(f's_branch {P}_seg3')
    a.label(f'{P}_ret')
    a('s_mov_b64 exec, -1')
    a.fence(12)

def kernel(a):
    a.raw('.p2align 8'); a.label(KN)
    a('s_cmp_ge_u32 s2, 256'); a('s_cbranch_scc1 k_exit')
    a('s_load_dwordx4 s[4:7], s[0:1], 0'); a('s_load_dwordx4 s[12:15], s[0:1], 32'); a('s_load_dwordx4 s[20:23], s[0:1], 64')
    a('s_load_dwordx2 s[8:9], s[0:1], 16'); a('s_load_dwordx4 s[16:19], s[0:1], 48')
    a('v_lshrrev_b32 v1, 6, v0'); a('v_and_b32 v243, 63, v0')
    a('v_readfirstlane_b32 s40, v1')
    a('s_getpc_b64 s[46:47]')
    a.label('k_pc')
    a('s_cmp_ge_u32 s40, 4'); a('s_cbranch_scc1 k_nopf')
    a('v_lshlrev_b32 v2, 7, v0'); a('v_add_u32 v3, 32768, v2')
    a('v_min_u32 v2, k_end-k_pc-4, v2'); a('v_min_u32 v3, k_end-k_pc-4, v3'); a('v_and_b32 v2, -4, v2'); a('v_and_b32 v3, -4, v3')
    a('global_load_dword v255, v2, s[46:47]'); a('global_load_dword v254, v3, s[46:47]')
    a.label('k_nopf')
    stamp(a, 0)
    a('s_and_b32 s44, s2, 3'); a('s_bfe_u32 s48, s2, 0x10002'); a('s_lshr_b32 s46, s2, 3')
    a('s_sub_u32 s49, 10, s48'); a('s_lshl_b32 s50, s49, 1')
    a('s_mul_i32 s51, s48, 10')
    a('s_cmp_ge_u32 s46, s50'); a('s_cselect_b32 s43, 1, 0'); a('s_cbranch_scc0 k_d1')
    a('s_sub_u32 s46, s46, s50'); a('s_add_u32 s49, s48, 6'); a('s_mul_i32 s51, s48, 6')
    a.label('k_d1')
    a('s_cmp_ge_u32 s46, s49'); a('s_cselect_b32 s47, 1, 0'); a('s_cselect_b32 s50, s49, 0'); a('s_sub_u32 s46, s46, s50')
    a('s_lshl_b32 s44, s44, 1'); a('s_add_u32 s44, s44, s47')
    a('s_add_u32 s45, s46, s51')
    a('s_mul_i32 s41, s45, 108'); a('s_mul_i32 s50, s45, 160'); a('s_sub_u32 s50, s50, 16')
    a('s_cmp_eq_u32 s43, 1'); a('s_cselect_b32 s41, s50, s41')
    a('s_cmp_lt_u32 s40, 4'); a('s_cbranch_scc1 k_cons')
    a('s_sub_u32 s40, s40, 4')
    a('s_cmp_eq_u32 s40, 3'); a('s_cbranch_scc1 k_serv')
    if TA:
        for cls in range(3):
            if cls < 2: a(f's_cmp_lg_u32 s40, {cls}'); a(f's_cbranch_scc1 k_t{cls}')
            touch_setup(a, cls, 'v40', 'v41', 'v42')
            a('s_waitcnt lgkmcnt(0)')
            for _ in range(TA):
                touch(a, cls, 'v40', 'v43')
                if cls != 1: a('global_load_dword v43, v44, s[4:5]') if False else None
            if cls < 2: a('s_branch k_td'); a.label(f'k_t{cls}')
        a.label('k_td')
    NK = E("NK", max(ORD)); KS = E("KS", 2); KT = E("KT", 1)
    assert sum(ORD) == 10
    def order(key):
        first, rest, base = [], [], 0
        for n in ORD:
            z = key % n
            first.append(base + z); rest += [base + (z + d) % n for d in range(1, n)]; base += n
        return first + rest
    def order5(key):
        return [(2 * key + d) % 10 for d in range(10)]
    a(f's_mul_i32 s68, s47, {KS}'); a('s_add_u32 s68, s68, s46'); a(f's_mul_i32 s46, s43, {KT}'); a('s_add_u32 s68, s68, s46')
    for _ in range(2):
        a(f's_cmp_ge_u32 s68, {NK}'); a(f's_cselect_b32 s46, {NK}, 0'); a('s_sub_u32 s68, s68, s46')
    assert NK == 1 or 9 + KS + KT < 3 * NK
    for key in range(NK):
        o = order5(key) if ORD == [5, 5] else order(key)
        v = sum(x << (4 * n) for n, x in enumerate(o))
        if key == 0: a(f's_mov_b32 s64, {v & 0xffffffff}'); a(f's_mov_b32 s65, {v >> 32}')
        else: a(f's_cmp_eq_u32 s68, {key}'); a(f's_cselect_b32 s64, {v & 0xffffffff}, s64'); a(f's_cselect_b32 s65, {v >> 32}, s65')
    a('s_mov_b64 s[66:67], s[64:65]'); a('s_and_b32 s68, s64, 15'); a('s_mov_b32 s69, 0')
    a(f'v_lshrrev_b32 v2, 3, {L}'); a(f'v_and_b32 v3, 7, {L}')
    a('s_movk_i32 s53, 1280'); a('s_lshl_b32 s58, s68, 7'); a('s_lshl_b32 s54, s40, 10'); a('s_mov_b32 s61, 0')
    a(f'v_mov_b32 v9, {OOB}')
    a('s_cmp_eq_u32 s43, 1'); a('s_cbranch_scc1 k_ldq')
    loader(a, False)
    a('s_branch k_gemm2')
    a.label('k_ldq'); loader(a, True)
    a.label('k_gemm2'); gemm2(a)
    a.label('k_serv'); service(a)
    a.label('k_cons')
    a('s_cmp_eq_u32 s43, 1'); a('s_cbranch_scc1 k_consq')
    consumerG(a)
    a.label('k_consq'); consumerQ(a)
    a.label('k_pub'); publish(a)
    a.label('k_exit'); a('s_endpgm')
    a.label('k_end')

def touch_setup(a, cls, v, t1, t2):
    a('s_lshr_b32 s72, s2, 3'); a('s_and_b32 s73, s2, 3')
    if cls == 0:
        a('s_bfe_u32 s74, s2, 0x10002'); a('s_mul_i32 s74, s74, 944'); a('s_mul_i32 s72, s72, 35'); a('s_add_u32 s72, s72, s74')
        a(f'v_min_u32 {v}, 34, {L}'); a(f'v_add_u32 {v}, s72, {v}'); a(f'v_min_u32 {v}, 2047, {v}'); a(f'v_mul_u32_u24 {v}, 1280, {v}')
    elif cls == 1:
        a(f's_mul_i32 s72, s72, {2*3072}'); a('s_mul_i32 s73, s73, 768'); a('s_add_u32 s72, s72, s73')
        a(f'v_min_u32 {v}, 11, {L}'); a(f'v_cmp_lt_u32 vcc, 5, {v}'); a(f'v_mov_b32 {t1}, {3072-768}'); a(f'v_cndmask_b32 {t1}, 0, {t1}, vcc')
        a(f'v_lshl_add_u32 {v}, {v}, 7, {t1}'); a(f'v_add_u32 {v}, s72, {v}')
    else:
        a(f's_mul_i32 s72, s72, {2*3840}'); a('s_mul_i32 s73, s73, 320'); a('s_and_b32 s73, s73, -128'); a('s_add_u32 s72, s72, s73')
        a(f'v_min_u32 {v}, 17, {L}'); a(f'v_mul_u32_u24 {t1}, 86, {v}'); a(f'v_lshrrev_b32 {t1}, 8, {t1}')
        a(f'v_mul_u32_u24 {t1}, {1280-384}, {t1}'); a(f'v_lshl_add_u32 {v}, {v}, 7, {t1}'); a(f'v_add_u32 {v}, s72, {v}')
def touch(a, cls, v, dst):
    if cls == 0: a(f'global_load_dword {dst}, {v}, s[4:5]'); a(f'v_add_u32 {v}, 128, {v}')
    elif cls == 1: a(f'global_load_dword {dst}, {v}, s[12:13]'); a(f'global_load_dword {dst}, {v}, s[14:15]'); a(f'v_add_u32 {v}, {64*3072}, {v}')
    else: a(f'global_load_dword {dst}, {v}, s[6:7]'); a(f'v_add_u32 {v}, {64*3840}, {v}')

def loader(a, isq):
    P = 'lq' if isq else 'lg'
    NXM = 8 if isq else 5; NQ = 22 if isq else 14
    XO, XS, WS = (QX, QXS, QWS) if isq else (GX, GXS, GWS)
    RS = 3840 if isq else 3072
    XV = 12
    a('v_lshrrev_b32 v4, 1, v2'); a('v_xor_b32 v4, v4, v3'); a('s_and_b32 s51, s40, 1'); a('s_lshl_b32 s51, s51, 2'); a('v_xor_b32 v4, s51, v4')
    a('v_lshlrev_b32 v4, 4, v4')
    a('s_lshl_b32 s52, s40, 3'); a('s_add_u32 s52, s52, s41'); a('v_add_u32 v5, s52, v2')
    a('v_mul_lo_u32 v6, v5, s53'); a(f'v_add_u32 v{XV}, v6, v4')
    for m in range(1, NXM):
        if m == 1: a(f'v_xor_b32 v7, 64, v{XV}')
        a(f'v_add_u32 v{XV+m}, {m*24*1280}, v{XV if m % 2 == 0 else 7}')
    if isq:
        a('v_cmp_gt_i32 vcc, 0, v5'); a(f'v_cndmask_b32 v{XV}, v{XV}, v9, vcc')
    else:
        a('v_subrev_u32 v5, s41, v5'); a('v_cmp_gt_u32 vcc, 12, v5'); a(f'v_cndmask_b32 v{XV+4}, v9, v{XV+4}, vcc')
    a(f's_add_u32 s59, s54, {XO}')
    a('s_waitcnt lgkmcnt(0)')
    srd(a, 24, 4, 5, XSZ)
    cnt = [0]
    def Xl(m):
        last = m == NXM - 1
        if last:
            cnt[0] += 1
            a(f's_cmp_ge_u32 s40, {NQ - 3*(NXM-1)}'); a(f's_cbranch_scc1 {P}_sk{cnt[0]}')
        a(f's_add_u32 m0, s59, {m*3072}')
        a(f'buffer_load_dwordx4 v{XV+m}, s[24:27], s58 offen {NTX} lds')
        if last: a.label(f'{P}_sk{cnt[0]}')
    def Xadv():
        a('s_lshr_b64 s[66:67], s[66:67], 4'); a('s_and_b32 s58, s66, 15'); a('s_lshl_b32 s58, s58, 7')
        a(f's_add_u32 s59, s59, {XS}')
        a(f's_cmp_ge_u32 s59, {XO+3*XS}'); a(f's_cselect_b32 s60, {3*XS}, 0'); a('s_sub_u32 s59, s59, s60')
    def issueX():
        for m in range(NXM): Xl(m)
        Xadv()
    if TA: a(f's_waitcnt vmcnt({TA - TW})')
    if SPROF == 4: stamp(a, 1)
    issueX()
    WV = 20
    a(f's_movk_i32 s42, {RS}')
    if isq:
        NW = 5
        srd(a, 28, 6, 7, 640 * 3840)
        a('s_mul_i32 s46, s40, 1280'); a('s_mul_i32 s47, s44, 160'); a('s_add_u32 s46, s46, s47')
        for n in range(5):
            a(f'v_add_u32 v4, {64*n}, {L}'); a('v_mul_u32_u24 v5, 205, v4'); a('v_lshrrev_b32 v5, 11, v5')
            a('v_mul_u32_u24 v6, 10, v5'); a('v_sub_u32 v4, v4, v6'); a('v_lshl_add_u32 v4, v4, 4, s46')
            a('v_lshrrev_b32 v6, 1, v5'); a('v_xor_b32 v6, v6, v5'); a('v_and_b32 v6, 4, v6'); a('v_mul_u32_u24 v6, 3, v6'); a('v_xor_b32 v5, v5, v6')
            a(f'v_mad_u32_u24 v{WV+n}, v5, s42, v4')
        a('s_mul_i32 s57, s40, 5120')
        def Wl(n):
            a(f's_add_u32 m0, s57, {n*1024}')
            a(f'buffer_load_dwordx4 v{WV+n}, s[28:31], s56 offen {NTW} lds')
    else:
        NW = 8
        srd(a, 28, 12, 13, 640 * 3072); srd(a, 32, 14, 15, 640 * 3072)
        a(f'v_bfe_u32 v4, {L}, 4, 1'); a('v_lshlrev_b32 v4, 2, v4'); a('v_xor_b32 v4, v4, v3'); a('v_lshlrev_b32 v4, 4, v4')
        a('s_mul_i32 s46, s44, 384'); a('s_lshl_b32 s47, s40, 7'); a('s_add_u32 s46, s46, s47')
        a('v_mad_u32_u24 v4, v2, s42, v4'); a(f'v_add_u32 v{WV}, s46, v4'); a(f'v_xor_b32 v4, 16, v{WV}')
        a(f'v_add_u32 v{WV+1}, {8*3072}, v4'); a(f'v_add_u32 v{WV+2}, {16*3072}, v{WV}'); a(f'v_add_u32 v{WV+3}, {24*3072}, v4')
        a('s_lshl_b32 s57, s40, 12')
        def Wl(n):
            half, g = n >> 2, n & 3
            a(f's_add_u32 m0, s57, {half*12288 + g*1024}')
            a(f'buffer_load_dwordx4 v{WV+g}, s[{28+4*half}:{31+4*half}], s56 offen {NTW} lds')
    a(f's_mul_i32 s56, s68, {64*RS}')
    wpar = [0]
    def Wadv():
        if wpar[0] == 0: a(f's_add_u32 s56, s56, {32*RS}')
        else: a('s_lshr_b64 s[64:65], s[64:65], 4'); a('s_and_b32 s56, s64, 15'); a(f's_mul_i32 s56, s56, {64*RS}')
        wpar[0] ^= 1
        a(f's_add_u32 s57, s57, {WS}')
        a(f's_cmp_ge_u32 s57, {4*WS}'); a(f's_cselect_b32 s60, {4*WS}, 0'); a('s_sub_u32 s57, s57, s60')
    def issueW():
        for n in range(NW): Wl(n)
        Wadv()
    issueW(); issueW()
    if SPROF == 4: stamp(a, 2)
    cntbase(a)
    XA = (NXM + 1) // 2; XB_ = NXM - XA
    a(f's_waitcnt vmcnt({NW})')
    if SPROF == 4: stamp(a, 3)
    bar(a)
    if SPROF == 4: stamp(a, 4)
    if EB0:
        issueW(); a(f's_waitcnt vmcnt({NW})'); bar(a); issueX()
    else:
        issueW(); issueX()
        a(f's_waitcnt vmcnt({NW + NXM - 1})'); bar(a)
    if SPROF == 4: stamp(a, 5)
    issueW()
    if SPROF == 4: stamp(a, 6)
    if PROF:
        a('s_memtime s[72:73]'); a('s_waitcnt lgkmcnt(0)'); a('v_mov_b32 v60, s72')
    a.label(f'{P}_loop')
    for n in range(NW): Wl(n)
    for m in range(XA): Xl(m)
    Wadv()
    a(f's_waitcnt vmcnt({2*NW + XA})'); bar(a)
    for m in range(XA, NXM): Xl(m)
    for n in range(NW): Wl(n)
    Wadv(); Xadv()
    a('s_add_u32 s61, s61, 1'); a('s_cmp_lt_u32 s61, 8')
    a(f's_waitcnt vmcnt({2*NW + NXM - 1})'); bar(a)
    if PROF:
        a('s_memtime s[72:73]'); a('s_waitcnt lgkmcnt(0)')
        for r in range(69, 60, -1): a(f'v_mov_b32 v{r}, v{r-1}')
        a('v_mov_b32 v60, s72')
    a(f's_cbranch_scc1 {P}_loop')
    if not PRE: a('s_waitcnt vmcnt(0)'); bar(a)
    if PROF:
        a(f's_add_u32 s96, s22, {WS_PROF + 0x20000}'); a('s_addc_u32 s97, s23, 0')
        a('s_lshl_b32 s98, s2, 3'); a('s_add_u32 s98, s98, s40'); a('s_lshl_b32 s98, s98, 6'); a('v_mov_b32 v59, s98')
        for r in range(9): a(f'global_store_dword v59, v{68-r}, s[96:97] offset:{4*r}')

def service(a):
    a('s_and_b32 s50, s2, 7'); a('s_lshl_b32 s51, s50, 5'); a('s_lshr_b32 s46, s2, 3'); a('s_add_u32 s51, s51, s46'); a('s_lshl_b32 s52, s51, 3')
    a(f'v_lshrrev_b32 v1, 4, {L}'); a(f'v_and_b32 v2, 15, {L}'); a('v_add_u32 v1, s52, v1')
    a('s_movk_i32 s53, 1280'); a('v_lshlrev_b32 v3, 4, v2'); a('v_mad_u32_u24 v3, v1, s53, v3')
    a('v_mov_b32 v30, 0')
    a('s_waitcnt lgkmcnt(0)')
    srd(a, 24, 4, 5, XSZ); cntbase(a)
    a('s_movk_i32 s54, 5120')
    for s in range(2):
        for j in range(5):
            d = 140 + 20 * s + 4 * j
            a(f'buffer_load_dwordx4 v[{d}:{d+3}], v3, s[24:27], {"s54" if s else "0"} offen offset:{j*256}')
    a('s_cmp_lg_u32 s2, 0'); a('s_cbranch_scc1 sv_ni')
    a(f'v_lshlrev_b32 v4, 7, {L}')
    for n in range(5):
        a('global_store_dword v4, v30, s[10:11] sc1'); a('v_add_u32 v4, 8192, v4')
    a.label('sv_ni')
    if SPROF == 4: stamp(a, 1)
    a('s_mul_i32 s55, s50, 160')
    for n in range(5):
        a(f'v_add_u32 v4, {64*n}, {L}'); a('v_mul_u32_u24 v5, 205, v4'); a('v_lshrrev_b32 v5, 11, v5')
        a('v_mul_u32_u24 v6, 10, v5'); a('v_sub_u32 v4, v4, v6'); a('v_lshl_add_u32 v4, v4, 4, s55')
        a(f'v_lshrrev_b32 v{100+n}, 3, v5'); a(f'v_bfe_u32 v{105+n}, v5, 2, 1'); a('v_and_b32 v5, 3, v5'); a(f'v_mad_u32_u24 v{110+n}, v5, s53, v4')
    for un in range(3):
        sb = 28 + 4 * un
        a(f's_add_u32 s56, s46, {32*un}'); a('s_mul_i32 s57, s56, 241'); a('s_lshr_b32 s57, s57, 12'); a('s_mul_i32 s58, s57, 17'); a('s_sub_u32 s58, s56, s58')
        a('s_cmp_ge_u32 s58, 12'); a(f's_cbranch_scc1 sv_o{un}')
        srd(a, sb, 16, 17, 1536 * 1280)
        a('s_mul_i32 s59, s57, 12'); a('s_add_u32 s59, s59, s58'); a('s_lshl_b32 s59, s59, 5')
        a(f's_movk_i32 s60, {8*1280}'); a(f's_movk_i32 s61, {4*1280}'); a('s_mov_b32 s62, 1'); a('s_mov_b32 s67, 0')
        a(f's_branch sv_c{un}')
        a.label(f'sv_o{un}')
        srd(a, sb, 8, 9, 640 * 1280)
        a('s_sub_u32 s58, s58, 12'); a('s_mul_i32 s59, s57, 160'); a('s_mul_i32 s63, s58, 40')
        a(f's_movk_i32 s60, {8*1280}')
        a('s_cmp_eq_u32 s58, 4'); a('s_cselect_b32 s63, 16, s63'); a(f's_cselect_b32 s60, {40*1280}, s60'); a(f's_cselect_b32 s61, {20*1280}, s54'); a('s_cselect_b32 s67, 0, s54')
        a('s_add_u32 s59, s59, s63'); a('s_mov_b32 s62, 0')
        a.label(f'sv_c{un}')
        a(f's_mul_i32 s{64+un}, s59, 1280')
        for n in range(5):
            a(f'v_and_b32 v4, s62, v{100+n}'); a(f'v_xor_b32 v4, v4, v{105+n}')
            a(f'v_mad_u32_u24 v4, v4, s61, v{110+n}'); a(f'v_mad_u32_u24 v4, v{100+n}, s60, v4')
            a(f'v_lshrrev_b32 v5, 1, v{100+n}'); a(f'v_mad_u32_u24 v{120+5*un+n}, v5, s67, v4')
    if SPROF == 4: stamp(a, 2)
    a(f'v_lshrrev_b32 v4, 4, {L}'); a(f'v_bfe_u32 v5, {L}, 2, 2'); a('v_lshl_add_u32 v4, v4, 3, v5'); a('v_mul_u32_u24 v4, 160, v4')
    a(f'v_add_u32 v4, {LT2}, v4'); a(f'v_and_b32 v5, 3, {L}'); a('v_lshl_add_u32 v26, v5, 4, v4'); a('v_lshl_add_u32 v27, v5, 3, v4')
    a(f'v_lshlrev_b32 v28, 4, {L}'); a('v_add_u32 v29, 4096, v28')
    a(f'v_add_u32 v5, s41, {L}'); a('v_lshlrev_b32 v20, 4, v5'); a('v_add_u32 v21, 1024, v20')
    a(f's_mov_b32 s56, {A2_RB}'); a('s_movk_i32 s57, 2048'); a(f'v_mov_b32 v9, {OOB}')
    a(f'v_lshlrev_b32 v8, 2, {L}'); a(f'v_add_u32 v8, {LRP}, v8')
    for n in range(2):
        if n: a('v_add_u32 v5, 64, v5')
        a('v_lshrrev_b32 v6, 6, v5'); a('v_mul_lo_u32 v6, v6, s56'); a('v_bfe_u32 v7, v5, 4, 2'); a('v_lshl_add_u32 v6, v7, 10, v6')
        a('v_and_b32 v7, 15, v5'); a('v_lshl_add_u32 v6, v7, 4, v6')
        if n:
            a(f'v_cmp_gt_u32 vcc, 44, {L}'); a('v_cmp_gt_u32 s[58:59], s57, v5'); a('s_and_b64 vcc, vcc, s[58:59]'); a('v_cndmask_b32 v6, v9, v6, vcc')
        a(f'ds_write_b32 v8, v6 offset:{256*n}')
    a('s_max_i32 s56, s41, 0'); a('s_lshr_b32 s56, s56, 7'); a('s_add_u32 s57, s41, 175'); a('s_lshr_b32 s57, s57, 7'); a('s_min_u32 s57, s57, 15')
    a(f'v_add_u32 v18, s56, {L}'); a('v_min_u32 v18, s57, v18')
    if MAP2 == 0: a('s_and_b32 s56, s46, 7')
    else: a('s_and_b32 s56, s2, 1'); a('s_lshl_b32 s56, s56, 2'); a('s_and_b32 s57, s46, 3'); a('s_add_u32 s56, s56, s57')
    a(f's_add_u32 s56, s56, {C_W2}'); a('v_mov_b32 v4, s56')
    a(f'v_cmp_gt_u32 vcc, 3, {L}'); a('v_cndmask_b32 v18, v4, v18, vcc'); a('v_lshlrev_b32 v18, 7, v18')
    a('v_mov_b32 v4, 68'); a('v_cndmask_b32 v19, v4, 16, vcc')
    a(f's_add_u32 s56, s50, {C_W2}'); a('s_lshl_b32 s56, s56, 7'); a('v_mov_b32 v22, s56')
    a('s_cmp_lt_u32 s46, 4'); a('s_cselect_b32 s56, 3, 2'); a('v_mov_b32 v23, s56')
    a('s_lshr_b32 s56, s51, 4'); a('s_lshl_b32 s56, s56, 7'); a('v_writelane_b32 v22, s56, 0'); a('v_writelane_b32 v23, 1, 0')
    a('v_lshlrev_b32 v24, 4, v1'); a('v_cmp_eq_u32 vcc, 0, v2'); a('v_cndmask_b32 v24, v9, v24, vcc')
    a(f'v_add_u32 v25, {LST}, v28')
    a(f'v_lshlrev_b32 v17, 7, {L}'); a(f'v_lshlrev_b32 v16, 2, {L}'); a(f'v_add_u32 v16, {LS2}, v16')
    srd(a, 76, 22, 23, 32768, WS_STAT)
    for n in range(4): a(f'v_mov_b32 v{8+n}, 0')
    srd(a, 24, 22, 23, W2_SZ, WS_W2)
    a('v_mov_b32 v4, 0x3f803f80')
    def tbatch(n):
        for _ in range(n):
            for cls in range(3): touch(a, cls, f'v{12+cls}', 'v15')
    def t2dma():
        for un in range(3):
            if un == 2: a('s_cmp_ge_u32 s46, 4'); a('s_cbranch_scc1 sv_d3')
            for n in range(5):
                a(f's_mov_b32 m0, {LT2 + un*5120 + n*1024}'); a(f'buffer_load_dwordx4 v{120+5*un+n}, s[{28+4*un}:{31+4*un}], s{64+un} offen {NTT} lds')
        a.label('sv_d3')
    def stload():
        for s in range(2):
            for j in range(5):
                d = 140 + 20 * s + 4 * j
                a(f'buffer_load_dwordx4 v[{d}:{d+3}], v3, s[24:27], {"s54" if s else "0"} offen offset:{j*256}')
        srd(a, 24, 22, 23, W2_SZ, WS_W2)
    def stdot(s):
        for n in range(20):
            d = 140 + 20 * s + n
            a(f'v_dot2c_f32_bf16 v{8+s}, v{d}, v4'); a(f'v_dot2c_f32_bf16 v{10+s}, v{d}, v{d}')
    def stfin():
        a.fence(4)
        for ro in (8, 4, 2, 1):
            for n in range(4): a(f'v_add_f32_dpp v{8+n}, v{8+n}, v{8+n} row_ror:{ro} row_mask:0xf bank_mask:0xf')
        a(f's_mov_b32 s57, {f32(1.0/640)}')
        for s in range(2):
            b = 32 + 4 * s
            a(f'v_mul_f32 v{b}, s57, v{8+s}'); a(f'v_mul_f32 v{b+2}, s57, v{10+s}')
            a(f'v_fma_f32 v{b+2}, -v{b}, v{b}, v{b+2}'); a(f'v_max_f32 v{b+2}, 0, v{b+2}'); a(f'v_add_f32 v{b+2}, {f32(1e-5)}, v{b+2}')
            a(f'v_rsq_f32 v{b+1}, v{b+2}'); a(f'v_sub_f32 v{b}, 0, v{b}'); a(f'v_mov_b32 v{b+3}, 0')
            a(f'buffer_store_dwordx4 v[{b}:{b+3}], v24, s[76:79], 0 offen offset:{s*64} sc1')
    def trst(un):
        if un == 2: a('s_cmp_ge_u32 s46, 4'); a('s_cbranch_scc1 sv_s3')
        for t in range(5):
            d = 40 + 20 * un + 4 * t; ad = 26 if t < 4 else 27; off = un * 5120 + (64 * (t >> 1) + 8 * (t & 1) if t < 4 else 128)
            a(f'ds_read_b64_tr_b16 v[{d}:{d+1}], v{ad} offset:{off}'); a(f'ds_read_b64_tr_b16 v[{d+2}:{d+3}], v{ad} offset:{off+640}')
        a('s_waitcnt lgkmcnt(0)')
        for t in range(5):
            d = 40 + 20 * un + 4 * t
            if t < 4: a(f'buffer_store_dwordx4 v[{d}:{d+3}], v28, s[24:27], s56 offen offset:{t*1024} sc1')
            else: a(f'buffer_store_dwordx4 v[{d}:{d+3}], v29, s[24:27], s56 offen sc1')
        a(f's_add_u32 s56, s56, {32*5120}')
        if un == 2: a.label('sv_s3')
    a(f's_mul_i32 s56, s50, {W2_CB}'); a('s_mul_i32 s57, s46, 5120'); a('s_add_u32 s56, s56, s57')
    if STG0 == -1: t2dma()
    if SPROF == 4: stamp(a, 3)
    bar(a, 2)
    if SPROF == 4: stamp(a, 4)
    assert STG0 == -2
    a('s_cmp_lg_u32 s2, 0'); a('s_cbranch_scc1 sv_n2')
    a('s_waitcnt vmcnt(0)')
    a('v_mov_b32 v5, 1'); a('s_mov_b64 exec, 1'); a('global_store_dword v30, v5, s[20:21] sc1'); a('s_mov_b64 exec, -1')
    a.label('sv_n2')
    t2dma()
    a(f's_waitcnt vmcnt(10)'); stdot(0); stdot(1); stfin()
    if SPROF == 4: stamp(a, 5)
    if STG0 < 0: a('s_mov_b32 s68, 1')
    else:
        a(f's_mul_i32 s68, s46, {(65536 + NSTG - 1) // NSTG}'); a('s_lshr_b32 s68, s68, 16'); a(f's_mul_i32 s68, s68, {NSTG}'); a('s_sub_u32 s68, s68, s46')
        a(f's_sub_u32 s68, s68, {STG0}')
    a('s_mov_b32 s69, 0')
    a.label('sv_lp')
    bar(a)
    a('s_add_u32 s68, s68, 1')
    if STG0 >= 0: a('s_cmp_eq_u32 s68, 0'); a('s_cbranch_scc1 sv_e0')
    E1 = E('E1', 4)
    a(f's_cmp_eq_u32 s68, {E1}'); a('s_cbranch_scc1 sv_e1')
    a(f's_cmp_eq_u32 s68, {E1+1}'); a('s_cbranch_scc1 sv_e2')
    a(f's_cmp_eq_u32 s68, {E1+3}'); a('s_cbranch_scc1 sv_e3')
    a.label('sv_er')
    a('s_add_u32 s69, s69, 1'); a('s_cmp_lt_u32 s69, 11'); a('s_cbranch_scc1 sv_lp')
    a('s_branch sv_go')
    if STG0 >= 0:
        a.label('sv_e0'); t2dma(); a('s_branch sv_er')
    a.label('sv_e1'); a('s_waitcnt vmcnt(0)'); trst(0); a('s_branch sv_er')
    a.label('sv_e2'); trst(1); trst(2); a('global_load_dword v31, v30, s[20:21] sc1'); a('s_branch sv_er')
    a.label('sv_e3')
    poll(a, 'v30', 'v31', 1, base='s[20:21]', preissued=True); a('s_mov_b64 exec, 3'); a('global_atomic_add v22, v23, s[10:11]'); a('s_mov_b64 exec, -1')
    a('s_branch sv_er')
    a.label('sv_go')
    assert STG0 + NSTG - 1 + 5 <= 11
    a('global_load_dword v31, v18, s[10:11] sc1')
    bar(a, 2)
    poll(a, 'v18', 'v31', 'v19', preissued=True)
    a('buffer_load_dwordx4 v[32:35], v20, s[76:79], 0 offen sc1')
    for n in range(1, 3): a(f'buffer_load_dwordx4 v[{32+4*n}:{35+4*n}], v21, s[76:79], 0 offen offset:{(n-1)*1024} sc1')
    bar(a, 2)
    a(f's_mov_b32 s56, {f32(C2)}'); a('s_cmp_eq_u32 s43, 1'); a(f's_cselect_b32 s57, 1.0, {f32(C1)}')
    a('s_waitcnt vmcnt(0)')
    if RETOUCH:
        a('s_getpc_b64 s[58:59]')
        a.label('sv_pc')
        a('s_sub_u32 s58, s58, sv_pc-k_gemm2'); a('s_subb_u32 s59, s59, 0')
        for n in range(4):
            a(f'v_min_u32 v{48+n}, k_end-k_gemm2-4, v17'); a(f'v_and_b32 v{48+n}, -4, v{48+n}')
            a(f'global_load_dword v{48+n}, v{48+n}, s[58:59]')
            if n < 3: a('v_add_u32 v17, 8192, v17')
    for n in range(3):
        b = 32 + 4 * n
        a(f'v_mov_b32 v{b+3}, v{b+2}')
        a(f'v_mul_f32 v{b+2}, v{b+1}, v{b+1}'); a(f'v_mul_f32 v{b+2}, v{b+2}, v{b+1}'); a(f'v_mul_f32 v{b+2}, s56, v{b+2}'); a(f'v_mul_f32 v{b+1}, s57, v{b+1}')
        a(f'ds_write_b128 v25, v[{b}:{b+3}] offset:{n*1024}')
        a(f'ds_write2st64_b32 v16, v{b}, v{b+1} offset0:{n} offset1:{3+n}')
    a('s_waitcnt lgkmcnt(0)')
    bar(a, 1 if PRE else 2)
    a('s_branch k_gemm2')

WREG = 35840
def gemm2(a):
    MUTE[0] = SPROF == 4
    if MAP2 == 0:
        a('s_and_b32 s41, s2, 7'); a('s_lshl_b32 s41, s41, 2'); a('s_lshr_b32 s47, s2, 6'); a('s_add_u32 s41, s41, s47')
        a('s_bfe_u32 s42, s2, 0x30003'); a('s_mov_b32 s48, s42')
    else:
        a('s_and_b32 s41, s2, 6'); a('s_lshl_b32 s41, s41, 2'); a('s_lshr_b32 s48, s2, 5'); a('s_add_u32 s41, s41, s48')
        a('s_and_b32 s42, s2, 1'); a('s_lshl_b32 s42, s42, 2'); a('s_bfe_u32 s47, s2, 0x20003'); a('s_add_u32 s42, s42, s47')
    a(f'v_lshlrev_b32 v248, 4, {L}')
    srd(a, 28, 22, 23, W2_SZ, WS_W2)
    a(f's_mul_i32 s52, s42, {W2_CB}'); a(f's_mul_i32 s46, s40, {17*5120}'); a('s_add_u32 s52, s52, s46')
    a('s_mul_i32 s56, s48, 3'); a('s_lshr_b32 s56, s56, 1'); a('s_mul_i32 s46, s47, 3'); a('s_add_u32 s56, s56, s46')
    a('s_cmp_ge_u32 s56, 12'); a('s_cselect_b32 s46, 12, 0'); a('s_sub_u32 s56, s56, s46'); a('s_add_u32 s57, s48, s47')
    a(f's_mul_i32 s62, s40, {WREG}')
    q = Q(a, 'vmcnt', 63)
    def soff(s, dst, base, stride):
        if s == 16: a(f's_add_u32 {dst}, {base}, {16*stride}'); return
        if s < 12:
            a(f's_add_u32 {dst}, s56, {s}'); a(f's_cmp_ge_u32 {dst}, 12'); a('s_cselect_b32 s60, 12, 0'); a(f's_sub_u32 {dst}, {dst}, s60')
        else:
            a(f's_add_u32 {dst}, s57, {s}'); a(f's_and_b32 {dst}, {dst}, 3'); a(f's_add_u32 {dst}, {dst}, 12')
        a(f's_mul_i32 {dst}, {dst}, {stride}'); a(f's_add_u32 {dst}, {dst}, {base}')
    free = list(range(80, 248, 4))
    WRg, ARg = {}, {}
    HS = [s for s in range(17) if WSRC[s] == 'H']; LS = [s for s in range(17) if WSRC[s] == 'L']; SS = [s for s in range(17) if WSRC[s] == 'S']
    assert len(WSRC) == 17 and len(LS) <= 7 and len(SS) <= 8 and WSRC[0] == 'H'
    def alloc(n):
        r = free[:n]; del free[:n]; assert len(r) == n; return r
    def wload(s, t, s0, s1):
        d = WRg[s][t]
        if t < 4: q.issue(('W', s), f'buffer_load_dwordx4 v[{d}:{d+3}], v248, s[28:31], {s0} offen offset:{t*1024} sc1')
        else: q.issue(('W', s), f'buffer_load_dwordx4 v[{d}:{d+3}], v248, s[28:31], {s1} offen sc1')
    def ldW(s):
        WRg[s] = alloc(5); soff(s, 's55', 's52', 5120); a('s_add_u32 s54, s55, 4096')
        for t in range(5): wload(s, t, 's55', 's54')
    def dmaW(s):
        po = LS.index(s) * 5120
        soff(s, 's55', 's52', 5120); a('s_add_u32 s54, s55, 4096')
        a(f's_add_u32 m0, s62, {po}')
        for t in range(4): q.issue(('W', s), f'buffer_load_dwordx4 v248, s[28:31], s55 offen offset:{t*1024} sc1 lds')
        a(f's_add_u32 m0, s62, {po+4096}')
        q.issue(('W', s), f'buffer_load_dwordx4 v248, s[28:31], s54 offen sc1 lds')
    for s in HS[:PRE]: ldW(s)
    if PRE: a(f's_waitcnt vmcnt({5*PRE})'); bar(a)
    for s in HS[PRE:]: ldW(s)
    a('v_add_u32 v249, s62, v248')
    for t in range(4):
        a(f's_add_u32 s47, s40, {t}'); a('s_and_b32 s47, s47, 3'); a('s_lshl_b32 s47, s47, 10'); a(f'v_add_u32 v{250+t}, s47, v248')
    srd(a, 24, 22, 23, A2_SZ); srd(a, 32, 4, 5, XSZ); srd(a, 36, 18, 19, XSZ)
    a(f's_mul_i32 s50, s41, {A2_RB}'); a(f's_mul_i32 s46, s40, {17*4096}'); a('s_add_u32 s50, s50, s46')
    a(f'v_and_b32 v2, 15, {L}'); a(f'v_lshrrev_b32 v3, 4, {L}')
    a('s_lshl_b32 s47, s41, 6'); a('s_lshl_b32 s58, s40, 4'); a('s_add_u32 s58, s47, s58'); a('v_add_u32 v2, s58, v2')
    a('s_movk_i32 s58, 1280'); a('s_mul_i32 s59, s42, 160'); a('v_mul_lo_u32 v2, v2, s58'); a('v_add_u32 v2, s59, v2')
    a('v_lshl_add_u32 v254, v3, 4, v2'); a('v_lshl_add_u32 v255, v3, 3, v2')
    a('s_lshl_b32 s61, s40, 1'); a('s_lshl_b32 s61, 3, s61'); a('s_add_u32 s48, s47, 63')
    a('s_mul_i32 s58, s47, 607'); a('s_lshr_b32 s58, s58, 16'); a('s_mul_i32 s59, s48, 607'); a('s_lshr_b32 s59, s59, 16')
    a('s_cmp_lg_u32 s58, s59'); a('s_cselect_b32 s64, 0x101, 1')
    a('s_add_u32 s48, s47, 48')
    a('s_mul_i32 s58, s47, 410'); a('s_lshr_b32 s58, s58, 16'); a('s_mul_i32 s59, s48, 410'); a('s_lshr_b32 s59, s59, 16')
    a('s_cmp_lg_u32 s58, s59'); a('s_mov_b32 s65, 0x10000'); a('s_cselect_b32 s65, 0x1010000, s65')
    a('s_mul_i32 s64, s64, s61'); a('s_mul_i32 s66, s65, s61')
    a('s_lshl_b32 s65, s41, 3'); a('s_add_u32 s65, s65, s42'); a(f's_add_u32 s65, s65, {C_WG}'); a('s_lshl_b32 s65, s65, 7')
    a('v_mov_b32 v4, s65')
    SA = [3, 4, 5, 6, 7, 8, 9, 12, 13, 14, 15, 16, 17, 18, 19, 20, 21]
    for s in range(17): soff(s, f's{SA[s]}', 's50', 4096)
    SW = [72, 73, 74, 75, 76, 77, 78, 79, 63, 44, 45, 46, 48, 49, 51, 53]
    for n, s in enumerate(SS): soff(s, f's{SW[2*n]}', 's52', 5120); a(f's_add_u32 s{SW[2*n+1]}, s{SW[2*n]}, 4096')
    a(f'v_and_b32 v2, 1, {L}'); a('v_cmp_eq_u32 s[68:69], 1, v2')
    lds_wait(a, LCN + 4, 'v0', 'v1', sleep=1)
    stamp(a, 3)
    for s in LS: dmaW(s)
    if PROF: a('s_waitcnt vmcnt(0)'); stamp(a, 1)
    if OWN:
        if OWN == 1: a('s_cmp_eq_u32 s43, 1'); a('s_cbranch_scc1 g_own')
        lds_wait(a, LCN, 'v0', 'v1', sleep=2)
        a.label('g_own')
    if PPOLL:
        a('s_waitcnt vmcnt(0)'); a('s_mov_b32 s70, 0')
        for n in range(PPOLL - 1):
            a(f'global_load_dword v{8+n}, v4, s[10:11] sc1'); a(f's_sleep {PSL}')
        a.label('pp_top')
        for n in range(PPOLL):
            a(f'global_load_dword v{8+(n+PPOLL-1) % PPOLL}, v4, s[10:11] sc1')
            a(f's_waitcnt vmcnt({PPOLL-1})')
            a(f'v_and_b32 v1, s64, v{8+n}'); a('v_cmp_ne_u32 vcc, s64, v1'); a('s_nop 1'); a('s_cbranch_vccz pp_ok')
            a(f's_sleep {PSL}')
        a('s_add_u32 s70, s70, 1'); a(f's_cmp_lt_u32 s70, {SPIN}'); a('s_cbranch_scc1 pp_top')
        a('s_endpgm')
        a.label('pp_ok')
    else: poll(a, 'v4', 'v1', 's64', mask=True)
    q.clear()
    stamp(a, 4)
    pend = []
    for s in range(17):
        if s in SS: pend.append(('W', s))
        pend.append(('A', s))
    pend.append(('X', 17))
    ogate = [False]; XR = []
    dq = []
    def refill(cur, resv):
        while pend:
            k, s = pend[0]
            n = {'W': 5, 'A': 4, 'X': 3}[k]
            if (k, s) == ('A', 16): n = 8
            if len(free) - resv < n or s > cur + (LA_W if k == 'W' else LA_A): break
            if k == 'A' and s >= 12 and not ogate[0]: break
            pend.pop(0); regs = alloc(n)
            if k == 'W':
                WRg[s] = regs; z = SS.index(s)
                for t in range(5): dq.append((s, lambda s=s, t=t, z=z: wload(s, t, f's{SW[2*z]}', f's{SW[2*z+1]}')))
            elif k == 'X':
                XR.extend(regs)
                dq.append((s, lambda: q.issue('X', f'buffer_load_dwordx4 v[{XR[0]}:{XR[0]+3}], v254, s[32:35], 0 offen')))
                dq.append((s, lambda: q.issue('X', f'buffer_load_dwordx4 v[{XR[1]}:{XR[1]+3}], v254, s[32:35], 0 offen offset:64')))
                dq.append((s, lambda: q.issue('X', f'buffer_load_dwordx2 v[{XR[2]}:{XR[2]+1}], v255, s[32:35], 0 offen offset:128')))
            else:
                ARg[s] = regs
                for t in range(4):
                    d = regs[t]
                    if s < 16: dq.append((s, lambda d=d, t=t, s=s: q.issue(('A', s), f'buffer_load_dwordx4 v[{d}:{d+3}], v{250+t}, s[24:27], s{SA[s]} offen sc1')))
                    else:
                        e = regs[4 + t]
                        dq.append((s, lambda d=d, t=t, s=s: (a(f'v_bfe_u32 v{d}, v{250+t}, 1, 9'), a(f'v_sub_u32 v{250+t}, v{250+t}, v{d}'), a(f'v_and_b32 v{250+t}, -16, v{250+t}'),
                                   q.issue(('A', s), f'buffer_load_dwordx4 v[{d}:{d+3}], v{250+t}, s[24:27], s{SA[s]} offen sc1'))))
                        dq.append((s, lambda e=e, t=t, s=s: q.issue(('A', s), f'buffer_load_dwordx4 v[{e}:{e+3}], v{250+t}, s[24:27], s{SA[s]} offen offset:512 sc1')))
    refill(0, 0)
    while dq: dq.pop(0)[1]()
    AC = lambda tr, tc: (tr * 5 + tc) * 4
    for s in range(17):
        while dq and dq[0][0] <= s + 1: dq.pop(0)[1]()
        assert q.n.get(('A', s)) == (4 if s < 16 else 8) and q.n.get(('W', s), 0) == 5, s
        q.wait(('W', s)); q.wait(('A', s))
        if SPROF == 1 and s in (0, 4, 8, 12): stamp(a, {0: 0, 4: 2, 8: 3, 12: 5}[s])
        if s == 16:
            for t in (1, 2, 3, 0):
                d, e = ARg[s][t], ARg[s][4 + t]
                a(f'v_cndmask_b32 v{d}, v{d}, v{d+2}, s[68:69]'); a(f'v_cndmask_b32 v{d+1}, v{d+1}, v{d+3}, s[68:69]')
                a(f'v_cndmask_b32 v{d+2}, v{e}, v{e+2}, s[68:69]'); a(f'v_cndmask_b32 v{d+3}, v{e+1}, v{e+3}, s[68:69]')
            free.extend(ARg[s][4:])
        if s in LS: a('s_waitcnt lgkmcnt(0)')
        lq = []
        if s + 1 in LS:
            WRg[s + 1] = alloc(5)
            lq = [f'ds_read_b128 v[{d}:{d+3}], v249 offset:{LS.index(s+1)*5120 + t*1024}' for t, d in enumerate(WRg[s + 1])]
        n = 0
        if s == 16:
            while dq: dq.pop(0)[1]()
            wq = []
        for tr in (range(4) if s < 16 else (1, 2, 3, 0)):
            for tc in range(5):
                c = AC(tr, tc); w = WRg[s][tc]; x = ARg[s][tr]
                if s == 16:
                    if n >= 7: a(wq.pop(0))
                    if tr: wq.append(f'ds_write_b128 v249, v[{c}:{c+3}] offset:{(tr-1)*5120 + tc*1024}')
                src = '0' if s == 0 else f'v[{c}:{c+3}]'
                a(f'v_mfma_f32_16x16x32_bf16 v[{c}:{c+3}], v[{w}:{w+3}], v[{x}:{x+3}], {src}')
                pace = PACE if len(dq) <= 8 else 2
                if dq and n % pace == 0: dq.pop(0)[1]()
                elif lq: a(lq.pop(0))
                n += 1
            free.append(ARg[s][tr])
            if tr < 3: refill(s, 0)
        assert not lq
        free.extend(WRg[s])
        if s == OCHK - 2:
            PR = alloc(1)[0]
            dq.insert(0, (s + 1, lambda: (a(f'v_mov_b32 v{PR}, s65'), q.issue('P', f'global_load_dword v{PR+1}, v{PR}, s[10:11] sc1'))))
        if s == OCHK:
            q.wait('P')
            a(f'v_and_b32 v{PR+1}, s66, v{PR+1}'); a(f'v_cmp_ne_u32 vcc, s66, v{PR+1}'); a('s_nop 1'); a('s_cbranch_vccz g_ook')
            poll(a, f'v{PR}', f'v{PR+1}', 's66', mask=True)
            a.label('g_ook')
            if not SPROF: stamp(a, 2)
            free.append(PR); ogate[0] = True
        refill(s + 1, 5 if s + 2 in LS else 0)
    while dq: dq.pop(0)[1]()
    assert not pend
    if not SPROF: stamp(a, 5)
    for o in wq: a(o)
    for tp in range(1, 4):
        a(f's_sub_u32 s47, s40, {tp}'); a('s_and_b32 s47, s47, 3'); a(f's_mul_i32 s47, s47, {WREG}'); a(f'v_add_u32 v{249+tp}, s47, v248')
    q.wait('X')
    U = alloc(5); RD = alloc(15)
    xs = [XR[0] + n for n in range(4)] + [XR[1] + n for n in range(4)] + [XR[2], XR[2] + 1]
    P = lambda r: f'v[{r}:{r+1}]'
    for n in range(10):
        u = U[n >> 1] + 2 * (n & 1)
        a(f'v_lshlrev_b32 v{u}, 16, v{xs[n]}'); a(f'v_and_b32 v{u+1}, 0xffff0000, v{xs[n]}')
    for n in range(10): a(f'v_pk_add_f32 {P(2*n)}, {P(2*n)}, {P(U[n >> 1] + 2 * (n & 1))}')
    a('s_waitcnt lgkmcnt(0)'); bar(a); stamp(a, 6)
    for tp in range(1, 4):
        for tc in range(5):
            d = RD[5 * (tp - 1) + tc]
            a(f'ds_read_b128 v[{d}:{d+3}], v{249+tp} offset:{(tp-1)*5120 + tc*1024}')
    for sl in range(3):
        a(f's_waitcnt lgkmcnt({10-5*sl})')
        for n in range(10): a(f'v_pk_add_f32 {P(2*n)}, {P(2*n)}, {P(RD[5*sl + (n >> 1)] + 2 * (n & 1))}')
    for n in range(10): a(f'v_cvt_pk_bf16_f32 v{40+n}, v{2*n}, v{2*n+1}')
    a(f'buffer_store_dwordx4 v[40:43], v254, s[36:39], 0 offen {OSC}')
    a(f'buffer_store_dwordx4 v[44:47], v254, s[36:39], 0 offen offset:64 {OSC}')
    a(f'buffer_store_dwordx2 v[48:49], v255, s[36:39], 0 offen offset:128 {OSC}')
    stamp_flush(a, 4); MUTE[0] = False
    a('s_endpgm')

def mainloop(a, P, NT, NJ, ACC, WF, XB, wread, nw, onest, XS, swapj=-1):
    q = Q(a, 'lgkmcnt', 15)
    def xread(step, t):
        b = XB((NT * step + t) % 4)
        q.issue(('X', step % 4, t), f'ds_read_b128 v[{b}:{b+3}], v{238 + (step & 1)} offset:{t*2048}')
    def fix(step, h):
        b = XB((NT * step + onest) % 4) + 2 * h
        a(f'v_cndmask_b32 v{b}, v{b}, v242, s[64:65]'); a(f'v_cndmask_b32 v{b+1}, v{b+1}, v242, s[64:65]')
    a('s_mov_b32 s60, 0'); a('s_mov_b32 s61, 0')
    stamp(a, 1); bar(a); stamp(a, 2)
    for idx in range(nw): wread(q, 0, 0, idx)
    for t in range(3): xread(0, t)
    if onest == 0:
        q.wait(('X', 0, 0)); fix(0, 0); fix(0, 1)
    a.label(f'{P}_loop')
    wper = 3 if NJ == 6 else 1
    for k in range(4):
        cur, nxt = k & 1, (k + 1) & 1
        widx = 0
        for t in range(NT):
            q.wait(('X', k, t))
            fill = []
            tt = t + 3
            fill.append(lambda tt=tt: xread(k if tt < NT else k + 1, tt if tt < NT else tt - NT))
            if t == 0:
                if k < 2: fill.append(lambda: bar(a))
                else: fill.append(lambda: (a('s_cmp_eq_u32 s61, 4'), a(f's_cbranch_scc1 {P}_nb{k}'), bar(a), a.label(f'{P}_nb{k}')))
            for _ in range(wper + (1 if (NJ == 4 and t in (1, 2)) else 0)):
                if widx < nw:
                    fill.append(lambda w=widx: wread(q, (k + 1) % 4, nxt, w)); widx += 1
            if t == NT - 3:
                if k & 1 == 0:
                    fill.append(lambda: (a(f's_add_u32 s60, s60, {XS}'), a(f's_cmp_ge_u32 s60, {3*XS}')))
                    fill.append(lambda: (a('s_cselect_b32 s60, 0, s60'), a('v_add_u32 v238, s60, v240')))
                else:
                    fill.append(lambda: a('v_add_u32 v239, s60, v241'))
            if t == (onest - 1) % NT:
                st = k if onest > 0 else k + 1
                fill.append(lambda st=st: (q.wait(('X', st % 4, onest)), fix(st, 0)))
                fill.append(lambda st=st: fix(st, 1))
            if t == NT - 2 and k == 3:
                fill.append(lambda: (a('s_add_u32 s61, s61, 1'), a('s_cmp_lt_u32 s61, 5')))
            xb = XB((NT * k + t) % 4)
            for j in range(NJ):
                cc = ACC(j, t)
                oa, ob = (xb, WF(cur, j)) if j == swapj else (WF(cur, j), xb)
                a(f'v_mfma_f32_16x16x32_bf16 v[{cc}:{cc+3}], v[{oa}:{oa+3}], v[{ob}:{ob+3}], v[{cc}:{cc+3}]')
                if fill: fill.pop(0)()
            assert not fill, (t, len(fill))
        assert widx == nw
    a(f's_cbranch_scc1 {P}_loop')
    a('s_waitcnt lgkmcnt(0)')
    stamp(a, 3)
    if not ((QLATE and swapj >= 0) or (GLATE >= 0 and swapj < 0)): lds_arrive(a, LCN + 4, 'v246', 'v247')

def cons_common(a, T0, nacc, XO, onelane, P):
    if P == 'cq':
        for n in range(24, 36, 2): a(f's_mov_b64 s[{n}:{n+1}], 0')
        a('s_mov_b32 s56, 1')
    dryrun(a, P)
    g, i, r, c, t5 = [f'v{T0+8+n}' for n in range(5)]
    for n in range(4): a(f'v_mov_b32 v{T0+n}, 0')
    a(f'v_lshrrev_b32 {g}, 4, {L}'); a(f'v_and_b32 {i}, 15, {L}'); a(f'v_bfe_u32 {r}, {L}, 2, 2'); a(f'v_and_b32 {c}, 3, {L}')
    for n in range(nacc // 16): a(f'v_mfma_f32_32x32x16_bf16 v[{16*n}:{16*n+15}], v[{T0}:{T0+3}], v[{T0}:{T0+3}], 0')
    for n in range(nacc // 16 * 16, nacc, 4): a(f'v_mfma_f32_16x16x32_bf16 v[{n}:{n+3}], v[{T0}:{T0+3}], v[{T0}:{T0+3}], 0')
    a(f'v_lshrrev_b32 {t5}, 1, {i}'); a(f'v_xor_b32 {t5}, {t5}, {g}'); a(f'v_lshlrev_b32 {t5}, 4, {t5}'); a(f'v_lshl_or_b32 {t5}, {i}, 7, {t5}')
    a(f'v_add_u32 v240, {XO}, {t5}'); a('v_xor_b32 v241, 64, v240')
    a('v_mov_b32 v238, v240'); a('v_mov_b32 v239, v241')
    a('v_mov_b32 v242, 0x3f803f80'); a(f'v_cmp_eq_u32 s[64:65], {onelane}, {i}')
    a(f'v_mov_b32 {t5}, {LCN}'); a(f'ds_write_b128 {t5}, v[{T0}:{T0+3}]')
    a(f'v_lshlrev_b32 v248, 4, {i}'); a(f'v_add_u32 v248, {LST}, v248')

Pk = lambda r: f'v[{r}:{r+1}]'
def consumerG(a):
    ACC = lambda j, t: (j * 7 + t) * 4
    WF = lambda s, j: 168 + s * 24 + j * 4
    XB = lambda b: 216 + 4 * b
    WA = lambda hi, j: 232 + 3 * hi + j
    T0 = 168
    g, i, r, c, t5, t6, t7, t8 = [f'v{T0+8+n}' for n in range(8)]
    cons_common(a, T0, 168, GX, 15, 'cg')
    a(f'v_lshrrev_b32 {t5}, 1, {r}'); a(f'v_lshlrev_b32 {t5}, 2, {t5}'); a(f'v_and_b32 {t6}, 1, {g}'); a(f'v_or_b32 {t5}, {t5}, {t6}')
    a(f'v_lshlrev_b32 {t5}, 4, {t5}'); a(f'v_lshl_or_b32 {t5}, {r}, 7, {t5}'); a(f'v_lshl_or_b32 {t5}, {g}, 10, {t5}')
    a('s_lshr_b32 s51, s40, 1'); a('s_mul_i32 s51, s51, 3'); a('s_add_u32 s52, s51, 1')
    a('s_and_b32 s53, s40, 1'); a('s_lshl_b32 s54, s53, 1'); a('s_add_u32 s51, s51, s54')
    a(f'v_and_b32 {t6}, 1, {c}'); a(f'v_lshlrev_b32 {t7}, 4, {c}'); a(f'v_lshl_or_b32 {t7}, {t6}, 3, {t7}'); a(f'v_xor_b32 {t7}, {t7}, {t5}')
    a('s_and_b32 s54, s51, 1'); a('s_lshl_b32 s54, s54, 6'); a('s_lshr_b32 s55, s51, 1'); a('s_lshl_b32 s55, s55, 12')
    a(f'v_xor_b32 {t7}, s54, {t7}'); a(f'v_add_u32 v{WA(0,0)}, s55, {t7}'); a(f'v_xor_b32 v{WA(0,1)}, 8, v{WA(0,0)}')
    a(f'v_lshrrev_b32 {t7}, 1, {c}'); a(f'v_xor_b32 {t6}, {t6}, {t7}'); a(f'v_lshlrev_b32 {t7}, 4, {t7}'); a(f'v_lshl_or_b32 {t7}, {t6}, 3, {t7}')
    a(f'v_xor_b32 {t7}, {t7}, {t5}')
    a('s_and_b32 s54, s52, 1'); a('s_lshl_b32 s54, s54, 6'); a('s_lshl_b32 s56, s53, 5'); a('s_or_b32 s54, s54, s56')
    a('s_lshr_b32 s55, s52, 1'); a('s_lshl_b32 s55, s55, 12')
    a(f'v_xor_b32 {t7}, s54, {t7}'); a(f'v_add_u32 v{WA(0,2)}, s55, {t7}')
    for j in range(3): a(f'v_add_u32 v{WA(1,j)}, 49152, v{WA(0,j)}')
    a(f'v_lshrrev_b32 {t8}, 1, {g}'); a('s_lshl_b32 s56, s53, 1'); a(f'v_add_u32 {t8}, s56, {t8}')
    a('s_lshr_b32 s54, s44, 1'); a('s_mul_i32 s54, s54, 17'); a('s_and_b32 s55, s44, 1'); a('s_mul_i32 s55, s55, 6'); a('s_add_u32 s54, s54, s55')
    a('s_add_u32 s55, s54, s51'); a('s_lshl_b32 s55, s55, 12'); a(f'v_lshl_add_u32 v251, {g}, 8, s55')
    a('s_add_u32 s55, s54, s52'); a('s_lshl_b32 s55, s55, 12'); a(f'v_lshl_add_u32 v252, {t8}, 8, s55')
    a(f'v_lshlrev_b32 v249, 2, {i}'); a(f'v_add_u32 v249, {LRP}, v249')
    a(f'v_and_b32 {t5}, 1, {g}'); a(f'v_lshl_add_u32 v250, {t5}, 6, v249')
    a('s_waitcnt lgkmcnt(0)')
    cntbase(a); srd(a, 36, 22, 23, A2_SZ)
    def wread(q, slot, setn, idx):
        j, hf = idx >> 1, idx & 1
        off = (slot & 1) * 24576 + (j // 3) * 12288 + hf * 512
        d = WF(setn, j) + 2 * hf
        q.issue('W', f'ds_read_b64_tr_b16 v[{d}:{d+1}], v{WA(slot >> 1, j % 3)} offset:{off}')
    mainloop(a, 'cg', 7, 6, ACC, WF, XB, wread, 12, 6, GXS)
    ST = lambda t: 168 + 4 * t
    CS = lambda j: 196 + 4 * j
    RP = lambda t: 232 + t
    RS = lambda p: 244 + p
    seg(a, 'cg', 0)
    for p in range(4): a(f'ds_read2_b32 v[{RP(2*p)}:{RP(2*p)+1}], v249 offset0:{32*p} offset1:{32*p+16}')
    for p in range(2): a(f'ds_read2_b32 v[{RS(2*p)}:{RS(2*p)+1}], v250 offset0:{64*p} offset1:{64*p+32}')
    for t in range(7): a(f'ds_read_b128 v[{ST(t)}:{ST(t)+3}], v248 offset:{t*256}')
    for j in range(6):
        for rr in range(4):
            a(f'v_mov_b32_dpp v{CS(j)+rr}, v{ACC(j,6)+rr} row_newbcast:15 row_mask:0xf bank_mask:0xf')
    P = Pk
    for t in range(7):
        if t in (2, 4, 6): seg(a, 'cg', t // 2)
        a(f's_waitcnt lgkmcnt({6-t})')
        s01, s23 = P(ST(t)), P(ST(t) + 2)
        prs = [(j, hp) for j in range(3) for hp in range(2)]
        T = lambda n: 220 + 2 * n
        G = lambda j, hp: ACC(j, t) + 2 * hp
        U = lambda j, hp: ACC(j + 3, t) + 2 * hp
        for j, hp in prs: a(f'v_pk_fma_f32 {P(G(j,hp))}, {P(CS(j)+2*hp)}, {s01}, {P(G(j,hp))} op_sel:[0,0,0] op_sel_hi:[1,0,1]')
        for n, (j, hp) in enumerate(prs): a(f'v_pk_mul_f32 {P(T(n))}, {P(G(j,hp))}, {P(G(j,hp))}')
        for n, (j, hp) in enumerate(prs): a(f'v_pk_fma_f32 {P(T(n))}, {P(T(n))}, {s23}, {s01} op_sel:[0,0,1] op_sel_hi:[1,0,1]')
        for n, (j, hp) in enumerate(prs): a(f'v_pk_mul_f32 {P(T(n))}, {P(T(n))}, {P(G(j,hp))}')
        for n, (j, hp) in enumerate(prs):
            a(f'v_exp_f32 v{T(n)}, v{T(n)}'); a(f'v_exp_f32 v{T(n)+1}, v{T(n)+1}')
            a(f'v_pk_fma_f32 {P(U(j,hp))}, {P(CS(j+3)+2*hp)}, {s01}, {P(U(j,hp))} op_sel:[0,0,0] op_sel_hi:[1,0,1]')
        for n, (j, hp) in enumerate(prs): a(f'v_pk_fma_f32 {P(T(n))}, {P(T(n))}, {s23}, {s23} op_sel:[0,1,1] op_sel_hi:[1,1,1]')
        for n, (j, hp) in enumerate(prs):
            a(f'v_rcp_f32 v{T(n)}, v{T(n)}'); a(f'v_rcp_f32 v{T(n)+1}, v{T(n)+1}')
            a(f'v_pk_mul_f32 {P(U(j,hp))}, {P(U(j,hp))}, {P(G(j,hp))}')
        for n, (j, hp) in enumerate(prs): a(f'v_pk_mul_f32 {P(U(j,hp))}, {P(U(j,hp))}, {P(T(n))}')
        o4, Ep = ACC(0, t), ACC(1, t & ~1)
        for n, (j, hp) in enumerate(prs):
            d = o4 + n if n < 4 else Ep + 2 * (t & 1) + n - 4
            a(f'v_cvt_pk_bf16_f32 v{d}, v{U(j,hp)}, v{U(j,hp)+1}')
        a(f'v_add_u32 v{ACC(2,t)}, v{RP(t)}, v251')
        guard(a, f'buffer_store_dwordx4 v[{o4}:{o4+3}], v{ACC(2,t)}, s[36:39], 0 offen sc1')
        if t == GLATE: a('s_waitcnt lgkmcnt(0)'); lds_arrive(a, LCN + 4, 'v240', 'v241')
        if t & 1 or t == 6:
            ad = ACC(2, t) + 1
            a(f'v_add_u32 v{ad}, v{RS(t >> 1)}, v252')
            a(f'v_permlane16_swap_b32 v{Ep}, v{Ep+2}'); a(f'v_permlane16_swap_b32 v{Ep+1}, v{Ep+3}')
            guard(a, f'buffer_store_dwordx4 v[{Ep}:{Ep+3}], v{ad}, s[36:39], 0 offen sc1')
    seg(a, 'cg', 4)
    a('s_mov_b32 s62, s41'); a('s_add_u32 s63, s41, 107'); a('s_movk_i32 s66, 607'); a('s_mov_b32 s67, s44')
    a('s_branch k_pub')

def publish(a):
    stamp(a, 4)
    a('s_lshr_b32 s62, s62, 6'); a(f'v_lshrrev_b32 v250, 3, {L}'); a('v_add_u32 v250, s62, v250')
    a('v_lshlrev_b32 v251, 6, v250'); a('s_min_u32 s63, s63, 2047'); a('v_cmp_ge_u32 s[68:69], s63, v251')
    a('v_mul_u32_u24 v251, s66, v251'); a('v_lshrrev_b32 v251, 16, v251')
    a('v_sub_u32 v251, s45, v251'); a('v_lshl_add_u32 v251, v251, 3, s67')
    a('v_mov_b32 v252, 1'); a('v_lshlrev_b32 v251, v251, v252')
    a('s_lshl_b32 s62, s62, 3'); a(f's_add_u32 s62, s62, {C_WG}'); a(f'v_add_u32 v250, s62, {L}'); a('v_lshlrev_b32 v250, 7, v250')
    a(f'v_mov_b32 v253, {LCN}')
    a('s_waitcnt vmcnt(0)')
    if SPROF != 3: stamp(a, 5)
    a('s_mov_b64 exec, 1')
    a('ds_add_rtn_u32 v252, v253, v252')
    a('s_waitcnt lgkmcnt(0)')
    a('v_readfirstlane_b32 s71, v252')
    a('s_cmp_lg_u32 s71, 3'); a('s_cbranch_scc1 pub_x')
    a('s_mov_b64 exec, s[68:69]')
    a('global_atomic_add v250, v251, s[10:11]')
    a.label('pub_x')
    a('s_mov_b64 exec, -1')
    stamp_flush(a, 0)

def consumerQ(a):
    ACC = lambda j, t: (j * 11 + t) * 4
    WF = lambda s, j: 176 + s * 16 + j * 4
    XB = lambda b: 208 + 4 * b
    T0 = 176
    g, i, r, c, t5, t6, t7 = [f'v{T0+8+n}' for n in range(7)]
    cons_common(a, T0, 176, QX, 0, 'cq')
    a('s_mov_b64 s[24:25], -1'); a('s_mov_b32 s26, 0xffff0000'); a('s_mov_b32 s27, -1')
    a('s_mov_b32 s28, 0xffff'); a('s_mov_b32 s30, 0xffff0000'); a('s_mov_b32 s33, 0xffff'); a('s_mov_b32 s35, 0xffff0000')
    a(f'v_lshrrev_b32 {t5}, 1, {g}'); a(f'v_lshlrev_b32 {t5}, 4, {t5}'); a(f'v_and_b32 {t6}, 1, {g}'); a(f'v_lshl_add_u32 {t5}, {t6}, 2, {t5}'); a(f'v_add_u32 {t5}, {t5}, {r}')
    a(f'v_mul_u32_u24 {t5}, 160, {t5}'); a('s_mul_i32 s51, s40, 40'); a(f'v_add_u32 {t5}, s51, {t5}')
    a(f'v_lshl_add_u32 v224, {c}, 3, {t5}')
    a(f'v_min_u32 {t6}, 2, {c}'); a(f'v_mul_u32_u24 {t6}, 5120, {t6}'); a(f'v_add3_u32 v225, {t5}, {t6}, 32')
    a('s_mul_i32 s51, s40, 1408'); a(f's_add_u32 s51, s51, {4*WREG}')
    a(f'v_lshl_add_u32 v228, {i}, 3, s51'); a(f'v_add_u32 {t5}, 5632, v228'); a(f'v_cmp_eq_u32 vcc, 2, {g}'); a(f'v_cndmask_b32 v228, {t5}, v228, vcc')
    a(f'v_lshrrev_b32 {t5}, 2, {L}'); a(f'v_lshl_add_u32 v229, {t5}, 3, s51')
    a(f'v_lshlrev_b32 v230, 4, {g}'); a(f'v_add_u32 v230, {LS2}, v230')
    a(f'v_and_b32 {t5}, 1, {i}'); a(f'v_cmp_eq_u32 s[74:75], 1, {t5}')
    a(f'v_lshl_add_u32 {t6}, {g}, 2, {t5}'); a(f'v_cmp_le_u32 s[76:77], {t6}, {i}')
    a(f'v_add_u32 {t6}, 2, {t6}'); a(f'v_cmp_le_u32 s[78:79], {t6}, {i}')
    a(f'v_mov_b32 {t7}, 0x0c0c0c0c')
    a(f'v_mov_b32 {t5}, 0x0c0c0100'); a(f'v_mov_b32 {t6}, 0x01000c0c'); a(f'v_cndmask_b32 {t5}, {t5}, {t6}, s[74:75]')
    a(f'v_cndmask_b32 v232, {t5}, {t7}, s[76:77]'); a(f'v_cndmask_b32 v234, {t7}, {t5}, s[76:77]')
    a(f'v_mov_b32 {t5}, 0x0c0c0302'); a(f'v_mov_b32 {t6}, 0x03020c0c'); a(f'v_cndmask_b32 {t5}, {t5}, {t6}, s[74:75]')
    a(f'v_cndmask_b32 v233, {t5}, {t7}, s[78:79]'); a(f'v_cndmask_b32 v235, {t7}, {t5}, s[78:79]')
    a('s_mul_i32 s56, s45, 10')
    a('s_lshr_b32 s57, s44, 1'); a('s_mul_i32 s57, s57, 17'); a('s_add_u32 s57, s57, 12'); a('s_and_b32 s58, s44, 1'); a('s_lshl_b32 s58, s58, 1')
    a('s_lshr_b32 s52, s40, 1'); a('s_add_u32 s58, s58, s52'); a('s_and_b32 s53, s40, 1')
    a('s_add_u32 s59, s57, s58'); a('s_lshl_b32 s59, s59, 12'); a('s_lshl_b32 s52, s53, 9'); a('s_add_u32 s59, s59, s52')
    a(f'v_lshrrev_b32 {t5}, 1, {g}'); a(f'v_lshlrev_b32 {t5}, 8, {t5}'); a(f'v_and_b32 {t6}, 1, {g}'); a(f'v_lshl_add_u32 {t5}, {t6}, 10, {t5}')
    a(f'v_lshl_add_u32 {t5}, {i}, 4, {t5}'); a(f'v_add_u32 v236, s59, {t5}')
    a('s_add_u32 s57, s57, 4'); a('s_lshl_b32 s57, s57, 12'); a('s_add_u32 s57, s57, s52'); a('s_lshl_b32 s58, s58, 7'); a('s_add_u32 s57, s57, s58')
    a(f'v_add_u32 {t5}, s56, {g}'); a(f'v_lshrrev_b32 {t6}, 2, {t5}'); a(f's_mov_b32 s58, {A2_RB}'); a(f'v_mul_lo_u32 {t6}, {t6}, s58')
    a(f'v_and_b32 {t5}, 3, {t5}'); a(f'v_lshl_add_u32 {t6}, {t5}, 10, {t6}'); a(f'v_lshl_add_u32 {t6}, {i}, 3, {t6}'); a(f'v_add_u32 v237, s57, {t6}')
    a(f'v_mov_b32 {t5}, {OOB}'); a(f'v_cmp_gt_u32 vcc, 2, {g}'); a(f'v_cndmask_b32 v244, {t5}, v237, vcc')
    for n in range(5):
        a(f's_add_u32 s57, s56, {2*n}'); a('s_lshr_b32 s59, s57, 2'); a('s_mul_i32 s59, s59, s58'); a('s_and_b32 s57, s57, 3'); a('s_lshl_b32 s57, s57, 10'); a(f's_add_u32 s{48+n}, s59, s57')
    a('s_lshl_b32 s53, s58, 1')
    a('s_waitcnt lgkmcnt(0)')
    cntbase(a); srd(a, 36, 22, 23, A2_SZ)
    def wread(q, slot, setn, idx):
        j, hf = idx >> 1, idx & 1
        d = WF(setn, j) + 2 * hf
        if j < 3: q.issue('W', f'ds_read_b64_tr_b16 v[{d}:{d+1}], v224 offset:{slot*QWS + j*5120 + hf*1280}')
        else: q.issue('W', f'ds_read_b64_tr_b16 v[{d}:{d+1}], v225 offset:{slot*QWS + hf*1280}')
    mainloop(a, 'cq', 11, 4, ACC, WF, XB, wread, 8, 0, QXS, swapj=2)
    ST = lambda t: 176 + 2 * t
    CS = lambda j: 198 + 4 * (j if j < 2 else 2)
    VS = lambda t: (212, 220, 238)[t % 3]
    VR = lambda t: (216, 224, 250)[t % 3]
    Vp = lambda t: 88 + 2 * t
    Vl = lambda t: 110 + 2 * t
    P = Pk
    q = Q(a, 'lgkmcnt', 15)
    seg(a, 'cq', 0)
    for t in range(11): q.issue('S', f'ds_read_b64 v[{ST(t)}:{ST(t)+1}], v248 offset:{t*256}')
    def rdVS(t):
        q.issue(('VS', t), f'ds_read_b128 v[{VS(t)}:{VS(t)+3}], v230 offset:{t*64}')
        q.issue(('VS', t), f'ds_read_b128 v[{VR(t)}:{VR(t)+3}], v230 offset:{t*64+768}')
    rdVS(0); rdVS(1)
    for j in (0, 1, 3):
        for rr in range(4):
            a(f'v_mov_b32_dpp v{CS(j)+rr}, v{ACC(j,0)+rr} row_newbcast:0 row_mask:0xf bank_mask:0xf')
    a(f'v_mov_b32 v210, v{ACC(2,0)}'); a(f'v_mov_b32 v211, v{ACC(2,0)}'); a('v_permlane16_swap_b32 v210, v211')
    a('v_mov_b32 v211, v210'); a('v_permlane32_swap_b32 v210, v211')
    for t in range(11):
        if t == 5: seg(a, 'cq', 1)
        q.wait(('VS', t))
        if t < 9: rdVS(t + 2)
        s01 = P(ST(t))
        js = (1, 3) if t == 0 else (0, 1, 3)
        prs = [(j, hp) for j in js for hp in range(2)]
        G = lambda j, hp: ACC(j, t) + 2 * hp
        for j, hp in prs: a(f'v_pk_fma_f32 {P(G(j,hp))}, {P(CS(j)+2*hp)}, {s01}, {P(G(j,hp))} op_sel:[0,0,0] op_sel_hi:[1,0,1]')
        for hp in range(2): a(f'v_pk_fma_f32 {P(G(2,hp))}, {P(VS(t)+2*hp)}, v[210:211], {P(G(2,hp))} op_sel:[0,0,0] op_sel_hi:[1,0,1]')
        for j, hp in prs: a(f'v_pk_mul_f32 {P(G(j,hp))}, {P(G(j,hp))}, {s01} op_sel:[0,1] op_sel_hi:[1,1]')
        for hp in range(2): a(f'v_pk_mul_f32 {P(G(2,hp))}, {P(G(2,hp))}, {P(VR(t)+2*hp)}')
        for j in js[:-1]:
            for hp in range(2): a(f'v_cvt_pk_bf16_f32 v{ACC(j,t)+hp}, v{G(j,hp)}, v{G(j,hp)+1}')
        for j in (0, 1):
            for hp in range(2): a(f'v_cvt_pk_bf16_f32 v{ACC(j,t)+2+hp}, v{G(3,hp)}, v{G(3,hp)+1}')
        for hp in range(2): a(f'v_cvt_pk_bf16_f32 v{Vp(t)+hp}, v{G(2,hp)}, v{G(2,hp)+1}')
        q.issue('w', f'ds_write_b64 v228, v[{ACC(1,t)+2}:{ACC(1,t)+3}] offset:{t*128}')
    seg(a, 'cq', 2)
    if SPROF == 3: stamp(a, 1)
    SC = lambda u: 132 + 8 * u; SP = lambda u: 136 + 8 * u
    Qf = lambda u: ACC(0, u + 1); Kf = lambda t: ACC(1, t)
    for t in range(11):
        for hp in range(2): a(f'v_permlane16_swap_b32 v{ACC(0,t)+2+hp}, v{ACC(1,t)+2+hp}')
    q.wait('w')
    for t in range(11): q.issue('V', f'ds_read_b64_tr_b16 v[{Vl(t)}:{Vl(t)+1}], v229 offset:{t*128}')
    a('s_mov_b64 exec, s[26:27]')
    for u in range(10): a(f'v_mov_b64 v[{Qf(u)+2}:{Qf(u)+3}], 0')
    a('s_mov_b64 exec, s[24:25]')
    def sel1(u):
        a(f'v_cndmask_b32 v{SC(u)}, v{SC(u)}, v{SC(u)+1}, s[74:75]'); a(f'v_cndmask_b32 v{SC(u)+2}, v{SC(u)+2}, v{SC(u)+3}, s[74:75]')
        a(f'v_cndmask_b32 v{SP(u)}, v{SP(u)}, v{SP(u)+1}, s[74:75]'); a(f'v_cndmask_b32 v{SP(u)+2}, v{SP(u)+2}, v{SP(u)+3}, s[74:75]')
    for u in range(10):
        a(f'v_mfma_f32_16x16x32_bf16 v[{SC(u)}:{SC(u)+3}], v[{Kf(u+1)}:{Kf(u+1)+3}], v[{Qf(u)}:{Qf(u)+3}], 0')
        a(f'v_mfma_f32_16x16x32_bf16 v[{SP(u)}:{SP(u)+3}], v[{Kf(u)}:{Kf(u)+3}], v[{Qf(u)}:{Qf(u)+3}], 0')
        if u >= 3: sel1(u - 3)
    for u in range(7, 10): sel1(u)
    a('s_cmp_lg_u32 s56, 0'); a('s_cbranch_scc1 cq_nofix')
    a(f'v_mov_b32 v{SP(0)}, {f32(-1e30)}'); a(f'v_mov_b32 v{SP(0)+2}, {f32(-1e30)}')
    a.label('cq_nofix')
    if QLATE: lds_arrive(a, LCN + 4, 'v238', 'v239')
    if SPROF == 3: stamp(a, 2)
    LA = lambda u: 44 + 2 * u; LB = lambda u: 45 + 2 * u; M = lambda u: 64 + u
    for u in range(10):
        a(f'v_cndmask_b32 v{LA(u)}, v{SP(u)}, v{SC(u)}, s[76:77]'); a(f'v_cndmask_b32 v{LB(u)}, v{SP(u)+2}, v{SC(u)+2}, s[78:79]')
    for u in range(10): a(f'v_max_f32 v{M(u)}, v{LA(u)}, v{LB(u)}')
    a('v_mov_b32 v74, 1.0'); a('v_mov_b32 v75, 1.0')
    def reduce12(op, post):
        B4 = [64, 68, 72]
        for A in B4: a(f'v_permlane16_swap_b32 v{A}, v{A+1}'); a(f'v_permlane16_swap_b32 v{A+2}, v{A+3}')
        for A in B4: a(f'{op} v{A}, v{A}, v{A+1}'); a(f'{op} v{A+2}, v{A+2}, v{A+3}')
        for A in B4: a(f'v_permlane32_swap_b32 v{A}, v{A+2}')
        for A in B4: a(f'{op} v{A}, v{A}, v{A+2}')
        for A in B4: post(A)
        for A in B4: a(f'v_mov_b32 v{A+2}, v{A}')
        for A in B4: a(f'v_permlane32_swap_b32 v{A}, v{A+2}')
        for A in B4: a(f'v_mov_b32 v{A+1}, v{A}'); a(f'v_mov_b32 v{A+3}, v{A+2}')
        for A in B4: a(f'v_permlane16_swap_b32 v{A}, v{A+1}'); a(f'v_permlane16_swap_b32 v{A+2}, v{A+3}')
    cs = 20 ** -0.5 * LOG2E
    a(f's_mov_b32 s68, {f32(cs)}'); a(f's_mov_b32 s69, {f32(cs)}')
    reduce12('v_max_f32', lambda r: a(f'v_mul_f32 v{r}, s68, v{r}'))
    for u in range(10):
        h = M(u) & 1
        a(f'v_pk_fma_f32 {P(LA(u))}, {P(LA(u))}, s[68:69], {P(M(u) & ~1)} op_sel:[0,0,{h}] op_sel_hi:[1,1,{h}] neg_lo:[0,0,1] neg_hi:[0,0,1]')
    for u in range(10):
        a(f'v_exp_f32 v{LA(u)}, v{LA(u)}'); a(f'v_exp_f32 v{LB(u)}, v{LB(u)}')
    seg(a, 'cq', 3)
    for u in range(10): a(f'v_add_f32 v{M(u)}, v{LA(u)}, v{LB(u)}')
    reduce12('v_add_f32', lambda r: a(f'v_rcp_f32 v{r}, v{r}'))
    for u in range(10):
        h = M(u) & 1
        a(f'v_pk_mul_f32 {P(LA(u))}, {P(LA(u))}, {P(M(u) & ~1)} op_sel:[0,{h}] op_sel_hi:[1,{h}]')
    for u in range(10): a(f'v_cvt_pk_bf16_f32 v{LA(u)}, v{LA(u)}, v{LB(u)}')
    a('s_waitcnt lgkmcnt(0)')
    if SPROF == 3: stamp(a, 5)
    PF = Qf
    def pv(u):
        a(f'v_mfma_f32_16x16x32_bf16 v[{SC(u)}:{SC(u)+3}], v[{Vp(u)}:{Vp(u)+3}], v[{PF(u)}:{PF(u)+3}], 0')
        a(f'v_mfma_f32_16x16x32_bf16 v[{SP(u)}:{SP(u)+3}], v[{Vl(u)}:{Vl(u)+3}], v[{PF(u)}:{PF(u)+3}], 0')
    for u in range(10):
        for z in range(4): a(f'v_perm_b32 v{PF(u)+z}, v{LA(u)}, v{LA(u)}, v{232+z}')
        if u: pv(u - 1)
    pv(9)
    OM = lambda n: 44 + 4 * n
    for n in range(5):
        for e in range(2):
            u = 2 * n + e
            a(f'v_cvt_pk_bf16_f32 v{OM(n)+2*e}, v{SC(u)}, v{SC(u)+1}'); a(f'v_cvt_pk_bf16_f32 v{OM(n)+2*e+1}, v{SC(u)+2}, v{SC(u)+3}')
        if n:
            m = n - 1
            a(f'v_permlane16_swap_b32 v{OM(m)}, v{OM(m)+2}'); a(f'v_permlane16_swap_b32 v{OM(m)+1}, v{OM(m)+3}')
            guard(a, f'buffer_store_dwordx4 v[{OM(m)}:{OM(m)+3}], v236, s[36:39], s{48+m} offen sc1')
    for z in range(4):
        a(f's_mov_b64 exec, s[{28+2*z}:{29+2*z}]')
        for m in range(3):
            u = 4 * m + z
            if u < 10:
                a(f'v_cvt_pk_bf16_f32 v{64+2*m}, v{SP(u)}, v{SP(u)+1}'); a(f'v_cvt_pk_bf16_f32 v{65+2*m}, v{SP(u)+2}, v{SP(u)+3}')
    a('s_mov_b64 exec, s[24:25]')
    a(f'v_permlane16_swap_b32 v{OM(4)}, v{OM(4)+2}'); a(f'v_permlane16_swap_b32 v{OM(4)+1}, v{OM(4)+3}')
    seg(a, 'cq', 4)
    a(f'buffer_store_dwordx4 v[{OM(4)}:{OM(4)+3}], v236, s[36:39], s52 offen sc1')
    a('buffer_store_dwordx2 v[64:65], v237, s[36:39], 0 offen sc1')
    a('buffer_store_dwordx2 v[66:67], v237, s[36:39], s58 offen sc1')
    a('buffer_store_dwordx2 v[68:69], v244, s[36:39], s53 offen sc1')
    a('s_add_u32 s62, s41, 16'); a('s_add_u32 s63, s41, 175'); a('s_movk_i32 s66, 410'); a('s_add_u32 s67, s44, 16')

def main():
    a = Asm()
    ref = open('cdna_kernels/' + NAME + '.s.ref').read().split('\n')
    for l in ref:
        if l.startswith('; @launch'): break
        a.raw(l)
    if E("LIST", 0): a.raw(f'; @launch kernel={KN} grid=(256,1,1) block=(512,1,1) lds=163840')
    else: a.raw('; @launch grid=(256,1,1) block=(512,1,1) lds=163840')
    a.raw('.amdgcn_target "amdgcn-amd-amdhsa--gfx950"')
    a.raw('.text'); a.raw(f'.globl {KN}'); a.raw(f'.type {KN},@function')
    kernel(a)
    a.raw('.section .rodata,"a"'); a.raw('.p2align 6')
    a.raw(f'''.amdhsa_kernel {KN}
  .amdhsa_next_free_vgpr 256
  .amdhsa_next_free_sgpr 100
  .amdhsa_accum_offset 256
  .amdhsa_group_segment_fixed_size 0
  .amdhsa_kernarg_size 80
  .amdhsa_user_sgpr_count 2
  .amdhsa_user_sgpr_kernarg_segment_ptr 1
  .amdhsa_system_sgpr_workgroup_id_x 1
.end_amdhsa_kernel''')
    open(sys.argv[1], 'w').write(a.text())
    print('nops inserted', a.nops)
main()
```

```python
import sys, math, os
from asmlib import *

NAME = "parallel_sum__sliding_local_dilated__glu_gated_geglu__prompt"
KN = NAME + "_kernel"
A2_RB, A2_SZ = 278528, 32 * 278528
WS_W2, W2_CB, W2_SZ = 0x900000, 348160, 8 * 348160
WS_STAT, WS_CNT = 0x1400000, 0x1410000
C_STAT, C_W2, C_WG = 0, 16, 32
XSZ = 2048 * 1280
OOB = 0x7f000000
LOG2E = 1.4426950408889634
C1 = -2.0 * LOG2E * math.sqrt(2.0 / math.pi)
C2 = C1 * 0.044715
E = lambda k, d: int(os.environ.get(k, d))
PROF = E("PROF", 0); CLK = E("CLK", 0); SPROF = E("SPROF", 0)
ORD = [int(c) for c in os.environ.get("ORD", "55")]; PRE2 = E("PRE2", 0); TA = E("TA", 0); NSTG = E("NSTG", 4); STG0 = E("STG0", -2); TW = E("TW", 1); TB = E("TB", 7); TCB = E("TCB", 2); DRY = E("DRY", 0); OSC = os.environ.get("OSC", ""); GLATE = E("GLATE", -1); EB0 = E("EB0", 1); RETOUCH = E("RETOUCH", 1); MAP2 = E("MAP2", 0); QLATE = E("QLATE", 0); OCHK = E("OCHK", 7)
WSRC = os.environ.get("WSRC", "HHHLHSLHSLHSLLSLL")
LA_A = E("LA_A", 4); LA_W = E("LA_W", 4); PACE = E("PACE", 3); PRE = E("PRE", 2)
OWN = E("OWN", 1); PPOLL = E("PPOLL", 0); PSL = E("PSL", 2)
NTP = os.environ.get("NTP", ""); NTW = os.environ.get("NTW", ""); NTX = os.environ.get("NTX", ""); NTT = os.environ.get("NTT", "")
SPIN = 30000; SLEEP = E("SLEEP", 4)
CH = [int(c) for c in os.environ.get("CH", "2222")]
WS_PROF = 0x2000000
GX, GXS, GWS = 98304, 14336, 24576
QX, QXS, QWS = 61440, 22528, 15360
LT2 = 141312
LST = LT2 + 3 * 5120
LRP = LST + 3072
LCN = LRP + 512
PB_HI = 61440
LS2 = LCN + 64
QST = 520
L = 'v243'

def srd(a, d, lo, hi, size, add=None):
    if add is None:
        a(f's_mov_b32 s{d}, s{lo}'); a(f's_mov_b32 s{d+1}, s{hi}')
    else:
        a(f's_add_u32 s{d}, s{lo}, {add}'); a(f's_addc_u32 s{d+1}, s{hi}, 0')
    a(f's_mov_b32 s{d+2}, {size}'); a(f's_mov_b32 s{d+3}, 0x20000')

MUTE = [False]
def stamp(a, n):
    if PROF and not (MUTE[0] and n < 7):
        a(f'{"s_memtime" if CLK else "s_memrealtime"} s[{80+2*n}:{81+2*n}]'); a('s_waitcnt lgkmcnt(0)')
def stamp_flush(a, waveadd=0):
    if not PROF: return
    a('s_waitcnt vmcnt(0)'); stamp(a, 7)
    a(f's_add_u32 s96, s22, {WS_PROF}'); a('s_addc_u32 s97, s23, 0')
    a(f's_lshl_b32 s98, s2, 3'); a(f's_add_u32 s98, s98, s40'); a(f's_add_u32 s98, s98, {waveadd}'); a('s_lshl_b32 s98, s98, 6')
    a('v_mov_b32 v0, s98')
    for n in range(8):
        a(f'v_mov_b32 v2, s{80+2*n}'); a(f'v_mov_b32 v3, s{81+2*n}')
        a(f'global_store_dwordx2 v0, v[2:3], s[96:97] offset:{8*n}')

class Q:
    def __init__(s, a, cnt, mx): s.a = a; s.q = []; s.cnt = cnt; s.mx = mx; s.n = {}
    def issue(s, tag, text):
        if len(s.q) >= s.mx:
            s.a(f's_waitcnt {s.cnt}({s.mx - 1})'); s.q = s.q[-(s.mx - 1):]
        s.a(text); s.q.append(tag); s.n[tag] = s.n.get(tag, 0) + 1; s.tot = getattr(s, 'tot', 0) + 1
    def wait(s, tag):
        if tag not in s.q: return
        idx = max(i for i, t in enumerate(s.q) if t == tag)
        n = len(s.q) - 1 - idx
        s.a(f's_waitcnt {s.cnt}({n})'); s.q = s.q[idx + 1:]
    def clear(s): s.q = []

_pl = [0]
def poll(a, va, vp, target, base='s[10:11]', preissued=False, st='s70', mask=False):
    _pl[0] += 1; n = _pl[0]
    a(f's_mov_b32 {st}, 0')
    if preissued: a(f's_branch pl{n}_chk')
    a.label(f'pl{n}_top')
    a(f'global_load_dword {vp}, {va}, {base} sc1')
    a.label(f'pl{n}_chk')
    a('s_waitcnt vmcnt(0)')
    if mask: a(f'v_and_b32 {vp}, {target}, {vp}')
    a(f'v_cmp_ne_u32 vcc, {target}, {vp}')
    a('s_nop 1')
    a(f's_cbranch_vccz pl{n}_ok')
    a(f's_sleep {SLEEP}')
    a(f's_add_u32 {st}, {st}, 1'); a(f's_cmp_lt_u32 {st}, {SPIN}'); a(f's_cbranch_scc1 pl{n}_top')
    a('s_endpgm')
    a.label(f'pl{n}_ok')

assert all((x * 607) >> 16 == x // 108 for x in range(2112))
assert all((x * 410) >> 16 == x // 160 for x in range(0, 2560, 16))
def cntbase(a):
    a(f's_add_u32 s10, s22, {WS_CNT}'); a('s_addc_u32 s11, s23, 0')
def bar(a, n=1):
    for _ in range(n): a('s_barrier')

_ls = [0]
def lds_arrive(a, off, va, vb):
    a(f'v_mov_b32 {va}, {off}'); a(f'v_mov_b32 {vb}, 1')
    a('s_mov_b64 exec, 1'); a(f'ds_add_u32 {va}, {vb}'); a('s_mov_b64 exec, -1')
def lds_wait(a, off, va, vb, sleep=0, setaddr=True):
    _ls[0] += 1; n = _ls[0]
    if setaddr: a(f'v_mov_b32 {va}, {off}')
    a('s_mov_b32 s70, 0')
    a.label(f'lw{n}')
    a(f'ds_read_b32 {vb}, {va}'); a('s_waitcnt lgkmcnt(0)'); a(f'v_readfirstlane_b32 s71, {vb}')
    a('s_cmp_ge_u32 s71, 4'); a(f's_cbranch_scc1 lw{n}_ok')
    if sleep: a(f's_sleep {sleep}')
    a('s_add_u32 s70, s70, 1'); a('s_cmp_lt_u32 s70, 200000'); a(f's_cbranch_scc1 lw{n}')
    a('s_endpgm')
    a.label(f'lw{n}_ok')

_gd = [0]
def guard(a, *ins):
    _gd[0] += 1
    if DRY: a(f's_cbranch_execz gd{_gd[0]}')
    for t in ins: a(t)
    if DRY: a.label(f'gd{_gd[0]}')
def seg(a, P, n):
    if not DRY: return
    if n > 0: a(f's_cbranch_execz {P}_ret')
    if n < 4: a.label(f'{P}_seg{n}')
def dryrun(a, P):
    if not DRY: return
    a('s_mov_b64 exec, 0')
    for n in range(3):
        a(f's_cmp_eq_u32 s40, {n}'); a(f's_cbranch_scc1 {P}_seg{n}')
    a(f's_branch {P}_seg3')
    a.label(f'{P}_ret')
    a('s_mov_b64 exec, -1')
    a.fence(12)

def kernel(a):
    a.raw('.p2align 8'); a.label(KN)
    a('s_cmp_ge_u32 s2, 256'); a('s_cbranch_scc1 k_exit')
    if E('SCRAMBLE', 0) == 2: a('s_bfe_u32 s3, s2, 0x30003'); a('s_xor_b32 s2, s2, s3')
    if E('SCRAMBLE', 0) == 1: a('s_and_b32 s3, s2, 7'); a('s_lshl_b32 s3, s3, 5'); a('s_lshr_b32 s2, s2, 3'); a('s_or_b32 s2, s2, s3')
    a('s_load_dwordx4 s[4:7], s[0:1], 0'); a('s_load_dwordx4 s[12:15], s[0:1], 32'); a('s_load_dwordx4 s[20:23], s[0:1], 64')
    a('s_load_dwordx2 s[8:9], s[0:1], 16'); a('s_load_dwordx4 s[16:19], s[0:1], 48')
    a('v_lshrrev_b32 v1, 6, v0'); a('v_and_b32 v243, 63, v0')
    a('v_readfirstlane_b32 s40, v1')
    a('s_getpc_b64 s[46:47]')
    a.label('k_pc')
    a('s_cmp_ge_u32 s40, 4'); a('s_cbranch_scc1 k_nopf')
    a('v_lshlrev_b32 v2, 7, v0'); a('v_add_u32 v3, 32768, v2')
    a('v_min_u32 v2, k_end-k_pc-4, v2'); a('v_min_u32 v3, k_end-k_pc-4, v3'); a('v_and_b32 v2, -4, v2'); a('v_and_b32 v3, -4, v3')
    a('global_load_dword v255, v2, s[46:47]'); a('global_load_dword v254, v3, s[46:47]')
    a.label('k_nopf')
    stamp(a, 0)
    a('s_and_b32 s44, s2, 3'); a('s_bfe_u32 s48, s2, 0x10002'); a('s_lshr_b32 s46, s2, 3')
    a('s_sub_u32 s49, 10, s48'); a('s_lshl_b32 s50, s49, 1')
    a('s_mul_i32 s51, s48, 10')
    a('s_cmp_ge_u32 s46, s50'); a('s_cselect_b32 s43, 1, 0'); a('s_cbranch_scc0 k_d1')
    a('s_sub_u32 s46, s46, s50'); a('s_add_u32 s49, s48, 6'); a('s_mul_i32 s51, s48, 6')
    a.label('k_d1')
    a('s_cmp_ge_u32 s46, s49'); a('s_cselect_b32 s47, 1, 0'); a('s_cselect_b32 s50, s49, 0'); a('s_sub_u32 s46, s46, s50')
    a('s_lshl_b32 s44, s44, 1'); a('s_add_u32 s44, s44, s47')
    a('s_add_u32 s45, s46, s51')
    a('s_mul_i32 s41, s45, 108'); a('s_mul_i32 s50, s45, 160'); a('s_sub_u32 s50, s50, 16')
    a('s_cmp_eq_u32 s43, 1'); a('s_cselect_b32 s41, s50, s41')
    a('s_cmp_lt_u32 s40, 4'); a('s_cbranch_scc1 k_cons')
    a('s_sub_u32 s40, s40, 4')
    a('s_cmp_eq_u32 s40, 3'); a('s_cbranch_scc1 k_serv')
    if TA:
        for cls in range(3):
            if cls < 2: a(f's_cmp_lg_u32 s40, {cls}'); a(f's_cbranch_scc1 k_t{cls}')
            touch_setup(a, cls, 'v40', 'v41', 'v42')
            a('s_waitcnt lgkmcnt(0)')
            for _ in range(TA):
                touch(a, cls, 'v40', 'v43')
                if cls != 1: a('global_load_dword v43, v44, s[4:5]') if False else None
            if cls < 2: a('s_branch k_td'); a.label(f'k_t{cls}')
        a.label('k_td')
    NK = E("NK", max(ORD)); KS = E("KS", 2); KT = E("KT", 1)
    assert sum(ORD) == 10
    def order(key):
        first, rest, base = [], [], 0
        for n in ORD:
            z = key % n
            first.append(base + z); rest += [base + (z + d) % n for d in range(1, n)]; base += n
        return first + rest
    def order5(key):
        return [(2 * key + d) % 10 for d in range(10)]
    a(f's_mul_i32 s68, s47, {KS}'); a('s_add_u32 s68, s68, s46'); a(f's_mul_i32 s46, s43, {KT}'); a('s_add_u32 s68, s68, s46')
    for _ in range(2):
        a(f's_cmp_ge_u32 s68, {NK}'); a(f's_cselect_b32 s46, {NK}, 0'); a('s_sub_u32 s68, s68, s46')
    assert NK == 1 or 9 + KS + KT < 3 * NK
    for key in range(NK):
        o = order5(key) if ORD == [5, 5] else order(key)
        v = sum(x << (4 * n) for n, x in enumerate(o))
        if key == 0: a(f's_mov_b32 s64, {v & 0xffffffff}'); a(f's_mov_b32 s65, {v >> 32}')
        else: a(f's_cmp_eq_u32 s68, {key}'); a(f's_cselect_b32 s64, {v & 0xffffffff}, s64'); a(f's_cselect_b32 s65, {v >> 32}, s65')
    a('s_mov_b64 s[66:67], s[64:65]'); a('s_and_b32 s68, s64, 15'); a('s_mov_b32 s69, 0')
    a(f'v_lshrrev_b32 v2, 3, {L}'); a(f'v_and_b32 v3, 7, {L}')
    a('s_movk_i32 s53, 1280'); a('s_lshl_b32 s58, s68, 7'); a('s_lshl_b32 s54, s40, 10'); a('s_mov_b32 s61, 0')
    a(f'v_mov_b32 v9, {OOB}')
    a('s_cmp_eq_u32 s43, 1'); a('s_cbranch_scc1 k_ldq')
    loader(a, False)
    a('s_branch k_gemm2')
    a.label('k_ldq'); loader(a, True)
    a.label('k_gemm2'); gemm2(a)
    a.label('k_serv'); service(a)
    a.label('k_cons')
    a('s_cmp_eq_u32 s43, 1'); a('s_cbranch_scc1 k_consq')
    consumerG(a)
    a.label('k_consq'); consumerQ(a)
    a.label('k_pub'); publish(a)
    a.label('k_exit'); a('s_endpgm')
    a.label('k_end')

def touch_setup(a, cls, v, t1, t2):
    a('s_lshr_b32 s72, s2, 3'); a('s_and_b32 s73, s2, 3')
    if cls == 0:
        a('s_bfe_u32 s74, s2, 0x10002'); a('s_mul_i32 s74, s74, 944'); a('s_mul_i32 s72, s72, 35'); a('s_add_u32 s72, s72, s74')
        a(f'v_min_u32 {v}, 34, {L}'); a(f'v_add_u32 {v}, s72, {v}'); a(f'v_min_u32 {v}, 2047, {v}'); a(f'v_mul_u32_u24 {v}, 1280, {v}')
    elif cls == 1:
        a(f's_mul_i32 s72, s72, {2*3072}'); a('s_mul_i32 s73, s73, 768'); a('s_add_u32 s72, s72, s73')
        a(f'v_min_u32 {v}, 11, {L}'); a(f'v_cmp_lt_u32 vcc, 5, {v}'); a(f'v_mov_b32 {t1}, {3072-768}'); a(f'v_cndmask_b32 {t1}, 0, {t1}, vcc')
        a(f'v_lshl_add_u32 {v}, {v}, 7, {t1}'); a(f'v_add_u32 {v}, s72, {v}')
    else:
        a(f's_mul_i32 s72, s72, {2*3840}'); a('s_mul_i32 s73, s73, 320'); a('s_and_b32 s73, s73, -128'); a('s_add_u32 s72, s72, s73')
        a(f'v_min_u32 {v}, 17, {L}'); a(f'v_mul_u32_u24 {t1}, 86, {v}'); a(f'v_lshrrev_b32 {t1}, 8, {t1}')
        a(f'v_mul_u32_u24 {t1}, {1280-384}, {t1}'); a(f'v_lshl_add_u32 {v}, {v}, 7, {t1}'); a(f'v_add_u32 {v}, s72, {v}')
def touch(a, cls, v, dst):
    if cls == 0: a(f'global_load_dword {dst}, {v}, s[4:5]'); a(f'v_add_u32 {v}, 128, {v}')
    elif cls == 1: a(f'global_load_dword {dst}, {v}, s[12:13]'); a(f'global_load_dword {dst}, {v}, s[14:15]'); a(f'v_add_u32 {v}, {64*3072}, {v}')
    else: a(f'global_load_dword {dst}, {v}, s[6:7]'); a(f'v_add_u32 {v}, {64*3840}, {v}')

def pre_setup(a):
    assert WSRC[:PRE] == 'H' * PRE and MAP2 == 0 and PRE <= 3
    srd(a, 36, 22, 23, W2_SZ, WS_W2)
    a(f'v_lshlrev_b32 v248, 4, {L}')
    a('s_lshr_b32 s47, s2, 6'); a('s_bfe_u32 s48, s2, 0x30003')
    a(f's_mul_i32 s49, s48, {W2_CB}'); a(f's_mul_i32 s50, s40, {17*5120}'); a('s_add_u32 s49, s49, s50')
    a('s_mul_i32 s48, s48, 3'); a('s_lshr_b32 s48, s48, 1'); a('s_mul_i32 s47, s47, 3'); a('s_add_u32 s48, s48, s47')
    a('s_cmp_ge_u32 s48, 12'); a('s_cselect_b32 s47, 12, 0'); a('s_sub_u32 s48, s48, s47')
    for n in range(PRE):
        d = f's{74+2*n}'
        a(f's_add_u32 {d}, s48, {n}'); a(f's_cmp_ge_u32 {d}, 12'); a('s_cselect_b32 s47, 12, 0'); a(f's_sub_u32 {d}, {d}, s47')
        a(f's_mul_i32 {d}, {d}, 5120'); a(f's_add_u32 {d}, {d}, s49'); a(f's_add_u32 s{75+2*n}, {d}, 4096')
def pre_issue(a, wait=True):
    if SPROF == 5: stamp(a, 1)
    if wait: a('s_waitcnt vmcnt(0)')
    if SPROF == 5: stamp(a, 2)
    for n in range(PRE):
        for t in range(5):
            d = 80 + 20 * n + 4 * t
            if t < 4: a(f'buffer_load_dwordx4 v[{d}:{d+3}], v248, s[36:39], s{74+2*n} offen offset:{t*1024} sc1')
            else: a(f'buffer_load_dwordx4 v[{d}:{d+3}], v248, s[36:39], s{75+2*n} offen sc1')
    if SPROF == 5: stamp(a, 3)
    bar(a)
    if SPROF == 5: stamp(a, 4)

def loader(a, isq):
    P = 'lq' if isq else 'lg'
    NXM = 8 if isq else 5; NQ = 22 if isq else 14
    XO, XS, WS = (QX, QXS, QWS) if isq else (GX, GXS, GWS)
    RS = 3840 if isq else 3072
    XV = 12
    a('v_lshrrev_b32 v4, 1, v2'); a('v_xor_b32 v4, v4, v3'); a('s_and_b32 s51, s40, 1'); a('s_lshl_b32 s51, s51, 2'); a('v_xor_b32 v4, s51, v4')
    a('v_lshlrev_b32 v4, 4, v4')
    a('s_lshl_b32 s52, s40, 3'); a('s_add_u32 s52, s52, s41'); a('v_add_u32 v5, s52, v2')
    a('v_mul_lo_u32 v6, v5, s53'); a(f'v_add_u32 v{XV}, v6, v4')
    for m in range(1, NXM):
        if m == 1: a(f'v_xor_b32 v7, 64, v{XV}')
        a(f'v_add_u32 v{XV+m}, {m*24*1280}, v{XV if m % 2 == 0 else 7}')
    if isq:
        a('v_cmp_gt_i32 vcc, 0, v5'); a(f'v_cndmask_b32 v{XV}, v{XV}, v9, vcc')
    else:
        a('v_subrev_u32 v5, s41, v5'); a('v_cmp_gt_u32 vcc, 12, v5'); a(f'v_cndmask_b32 v{XV+4}, v9, v{XV+4}, vcc')
    a(f's_add_u32 s59, s54, {XO}')
    a('s_waitcnt lgkmcnt(0)')
    srd(a, 24, 4, 5, XSZ)
    cnt = [0]
    def Xl(m):
        last = m == NXM - 1
        if last:
            cnt[0] += 1
            a(f's_cmp_ge_u32 s40, {NQ - 3*(NXM-1)}'); a(f's_cbranch_scc1 {P}_sk{cnt[0]}')
        a(f's_add_u32 m0, s59, {m*3072}')
        a(f'buffer_load_dwordx4 v{XV+m}, s[24:27], s58 offen {NTX} lds')
        if last: a.label(f'{P}_sk{cnt[0]}')
    def Xadv():
        a('s_lshr_b64 s[66:67], s[66:67], 4'); a('s_and_b32 s58, s66, 15'); a('s_lshl_b32 s58, s58, 7')
        a(f's_add_u32 s59, s59, {XS}')
        a(f's_cmp_ge_u32 s59, {XO+3*XS}'); a(f's_cselect_b32 s60, {3*XS}, 0'); a('s_sub_u32 s59, s59, s60')
    def issueX():
        for m in range(NXM): Xl(m)
        Xadv()
    if TA: a(f's_waitcnt vmcnt({TA - TW})')
    if SPROF == 4: stamp(a, 1)
    issueX()
    WV = 20
    a(f's_movk_i32 s42, {RS}')
    if isq:
        NW = 5
        srd(a, 28, 6, 7, 640 * 3840)
        a('s_mul_i32 s46, s40, 1280'); a('s_mul_i32 s47, s44, 160'); a('s_add_u32 s46, s46, s47')
        for n in range(5):
            a(f'v_add_u32 v4, {64*n}, {L}'); a('v_mul_u32_u24 v5, 205, v4'); a('v_lshrrev_b32 v5, 11, v5')
            a('v_mul_u32_u24 v6, 10, v5'); a('v_sub_u32 v4, v4, v6'); a('v_lshl_add_u32 v4, v4, 4, s46')
            a('v_lshrrev_b32 v6, 1, v5'); a('v_xor_b32 v6, v6, v5'); a('v_and_b32 v6, 4, v6'); a('v_mul_u32_u24 v6, 3, v6'); a('v_xor_b32 v5, v5, v6')
            a(f'v_mad_u32_u24 v{WV+n}, v5, s42, v4')
        a('s_mul_i32 s57, s40, 5120')
        def Wl(n):
            a(f's_add_u32 m0, s57, {n*1024}')
            a(f'buffer_load_dwordx4 v{WV+n}, s[28:31], s56 offen {NTW} lds')
    else:
        NW = 8
        srd(a, 28, 12, 13, 640 * 3072); srd(a, 32, 14, 15, 640 * 3072)
        a(f'v_bfe_u32 v4, {L}, 4, 1'); a('v_lshlrev_b32 v4, 2, v4'); a('v_xor_b32 v4, v4, v3'); a('v_lshlrev_b32 v4, 4, v4')
        a('s_mul_i32 s46, s44, 384'); a('s_lshl_b32 s47, s40, 7'); a('s_add_u32 s46, s46, s47')
        a('v_mad_u32_u24 v4, v2, s42, v4'); a(f'v_add_u32 v{WV}, s46, v4'); a(f'v_xor_b32 v4, 16, v{WV}')
        a(f'v_add_u32 v{WV+1}, {8*3072}, v4'); a(f'v_add_u32 v{WV+2}, {16*3072}, v{WV}'); a(f'v_add_u32 v{WV+3}, {24*3072}, v4')
        a('s_lshl_b32 s57, s40, 12')
        def Wl(n):
            half, g = n >> 2, n & 3
            a(f's_add_u32 m0, s57, {half*12288 + g*1024}')
            a(f'buffer_load_dwordx4 v{WV+g}, s[{28+4*half}:{31+4*half}], s56 offen {NTW} lds')
    a(f's_mul_i32 s56, s68, {64*RS}')
    wpar = [0]
    def Wadv():
        if wpar[0] == 0: a(f's_add_u32 s56, s56, {32*RS}')
        else: a('s_lshr_b64 s[64:65], s[64:65], 4'); a('s_and_b32 s56, s64, 15'); a(f's_mul_i32 s56, s56, {64*RS}')
        wpar[0] ^= 1
        a(f's_add_u32 s57, s57, {WS}')
        a(f's_cmp_ge_u32 s57, {4*WS}'); a(f's_cselect_b32 s60, {4*WS}, 0'); a('s_sub_u32 s57, s57, s60')
    def issueW():
        for n in range(NW): Wl(n)
        Wadv()
    issueW(); issueW()
    if SPROF == 4: stamp(a, 2)
    cntbase(a); pre_setup(a)
    XA = (NXM + 1) // 2; XB_ = NXM - XA
    a(f's_waitcnt vmcnt({NW})')
    if SPROF == 4: stamp(a, 3)
    bar(a)
    if SPROF == 4: stamp(a, 4)
    if EB0:
        issueW(); a(f's_waitcnt vmcnt({NW})'); bar(a); issueX()
    else:
        issueW(); issueX()
        a(f's_waitcnt vmcnt({NW + NXM - 1})'); bar(a)
    if SPROF == 4: stamp(a, 5)
    issueW()
    if SPROF == 4: stamp(a, 6)
    if PROF:
        a('s_memtime s[72:73]'); a('s_waitcnt lgkmcnt(0)'); a('v_mov_b32 v60, s72')
    a.label(f'{P}_loop')
    for n in range(NW): Wl(n)
    for m in range(XA): Xl(m)
    Wadv()
    a(f's_waitcnt vmcnt({2*NW + XA})'); bar(a)
    for m in range(XA, NXM): Xl(m)
    for n in range(NW): Wl(n)
    Wadv(); Xadv()
    a('s_add_u32 s61, s61, 1'); a('s_cmp_lt_u32 s61, 8')
    a(f's_waitcnt vmcnt({2*NW + NXM - 1})'); bar(a)
    if PROF:
        a('s_memtime s[72:73]'); a('s_waitcnt lgkmcnt(0)')
        for r in range(69, 60, -1): a(f'v_mov_b32 v{r}, v{r-1}')
        a('v_mov_b32 v60, s72')
    a(f's_cbranch_scc1 {P}_loop')
    pre_issue(a)
    if PROF:
        a(f's_add_u32 s96, s22, {WS_PROF + 0x20000}'); a('s_addc_u32 s97, s23, 0')
        a('s_lshl_b32 s98, s2, 3'); a('s_add_u32 s98, s98, s40'); a('s_lshl_b32 s98, s98, 6'); a('v_mov_b32 v59, s98')
        for r in range(9): a(f'global_store_dword v59, v{68-r}, s[96:97] offset:{4*r}')

def service(a):
    a('s_and_b32 s50, s2, 7'); a('s_lshl_b32 s51, s50, 5'); a('s_lshr_b32 s46, s2, 3'); a('s_add_u32 s51, s51, s46'); a('s_lshl_b32 s52, s51, 3')
    a(f'v_lshrrev_b32 v1, 4, {L}'); a(f'v_and_b32 v2, 15, {L}'); a('v_add_u32 v1, s52, v1')
    a('s_movk_i32 s53, 1280'); a('v_lshlrev_b32 v3, 4, v2'); a('v_mad_u32_u24 v3, v1, s53, v3')
    a('v_mov_b32 v30, 0')
    a('s_waitcnt lgkmcnt(0)')
    srd(a, 24, 4, 5, XSZ); cntbase(a)
    a('s_movk_i32 s54, 5120')
    for s in range(2):
        for j in range(5):
            d = 140 + 20 * s + 4 * j
            a(f'buffer_load_dwordx4 v[{d}:{d+3}], v3, s[24:27], {"s54" if s else "0"} offen offset:{j*256}')
    a('s_cmp_lg_u32 s2, 0'); a('s_cbranch_scc1 sv_ni')
    a(f'v_lshlrev_b32 v4, 7, {L}')
    for n in range(5):
        a('global_store_dword v4, v30, s[10:11] sc1'); a('v_add_u32 v4, 8192, v4')
    a.label('sv_ni')
    if SPROF == 4: stamp(a, 1)
    a('s_mul_i32 s55, s50, 160')
    for n in range(5):
        a(f'v_add_u32 v4, {64*n}, {L}'); a('v_mul_u32_u24 v5, 205, v4'); a('v_lshrrev_b32 v5, 11, v5')
        a('v_mul_u32_u24 v6, 10, v5'); a('v_sub_u32 v4, v4, v6'); a('v_lshl_add_u32 v4, v4, 4, s55')
        a(f'v_lshrrev_b32 v{100+n}, 3, v5'); a(f'v_bfe_u32 v{105+n}, v5, 2, 1'); a('v_and_b32 v5, 3, v5'); a(f'v_mad_u32_u24 v{110+n}, v5, s53, v4')
    for un in range(3):
        sb = 28 + 4 * un
        a(f's_add_u32 s56, s46, {32*un}'); a('s_mul_i32 s57, s56, 241'); a('s_lshr_b32 s57, s57, 12'); a('s_mul_i32 s58, s57, 17'); a('s_sub_u32 s58, s56, s58')
        a('s_cmp_ge_u32 s58, 12'); a(f's_cbranch_scc1 sv_o{un}')
        srd(a, sb, 16, 17, 1536 * 1280)
        a('s_mul_i32 s59, s57, 12'); a('s_add_u32 s59, s59, s58'); a('s_lshl_b32 s59, s59, 5')
        a(f's_movk_i32 s60, {8*1280}'); a(f's_movk_i32 s61, {4*1280}'); a('s_mov_b32 s62, 1'); a('s_mov_b32 s67, 0')
        a(f's_branch sv_c{un}')
        a.label(f'sv_o{un}')
        srd(a, sb, 8, 9, 640 * 1280)
        a('s_sub_u32 s58, s58, 12'); a('s_mul_i32 s59, s57, 160'); a('s_mul_i32 s63, s58, 40')
        a(f's_movk_i32 s60, {8*1280}')
        a('s_cmp_eq_u32 s58, 4'); a('s_cselect_b32 s63, 16, s63'); a(f's_cselect_b32 s60, {40*1280}, s60'); a(f's_cselect_b32 s61, {20*1280}, s54'); a('s_cselect_b32 s67, 0, s54')
        a('s_add_u32 s59, s59, s63'); a('s_mov_b32 s62, 0')
        a.label(f'sv_c{un}')
        a(f's_mul_i32 s{64+un}, s59, 1280')
        for n in range(5):
            a(f'v_and_b32 v4, s62, v{100+n}'); a(f'v_xor_b32 v4, v4, v{105+n}')
            a(f'v_mad_u32_u24 v4, v4, s61, v{110+n}'); a(f'v_mad_u32_u24 v4, v{100+n}, s60, v4')
            a(f'v_lshrrev_b32 v5, 1, v{100+n}'); a(f'v_mad_u32_u24 v{120+5*un+n}, v5, s67, v4')
    if SPROF == 4: stamp(a, 2)
    a(f'v_lshrrev_b32 v4, 4, {L}'); a(f'v_bfe_u32 v5, {L}, 2, 2'); a('v_lshl_add_u32 v4, v4, 3, v5'); a('v_mul_u32_u24 v4, 160, v4')
    a(f'v_add_u32 v4, {LT2}, v4'); a(f'v_and_b32 v5, 3, {L}'); a('v_lshl_add_u32 v26, v5, 4, v4'); a('v_lshl_add_u32 v27, v5, 3, v4')
    a(f'v_lshlrev_b32 v28, 4, {L}'); a('v_add_u32 v29, 4096, v28')
    a(f'v_add_u32 v5, s41, {L}'); a('v_lshlrev_b32 v20, 4, v5'); a('v_add_u32 v21, 1024, v20')
    a(f's_mov_b32 s56, {A2_RB}'); a('s_movk_i32 s57, 2048'); a(f'v_mov_b32 v9, {OOB}')
    a(f'v_lshlrev_b32 v8, 2, {L}'); a(f'v_add_u32 v8, {LRP}, v8')
    for n in range(2):
        if n: a('v_add_u32 v5, 64, v5')
        a('v_lshrrev_b32 v6, 6, v5'); a('v_mul_lo_u32 v6, v6, s56'); a('v_bfe_u32 v7, v5, 4, 2'); a('v_lshl_add_u32 v6, v7, 10, v6')
        a('v_and_b32 v7, 15, v5'); a('v_lshl_add_u32 v6, v7, 4, v6')
        if n:
            a(f'v_cmp_gt_u32 vcc, 44, {L}'); a('v_cmp_gt_u32 s[58:59], s57, v5'); a('s_and_b64 vcc, vcc, s[58:59]'); a('v_cndmask_b32 v6, v9, v6, vcc')
        a(f'ds_write_b32 v8, v6 offset:{256*n}')
    a('s_max_i32 s56, s41, 0'); a('s_lshr_b32 s56, s56, 7'); a('s_add_u32 s57, s41, 175'); a('s_lshr_b32 s57, s57, 7'); a('s_min_u32 s57, s57, 15')
    a(f'v_add_u32 v18, s56, {L}'); a('v_min_u32 v18, s57, v18')
    if MAP2 == 0: a('s_and_b32 s56, s46, 7')
    else: a('s_and_b32 s56, s2, 1'); a('s_lshl_b32 s56, s56, 2'); a('s_and_b32 s57, s46, 3'); a('s_add_u32 s56, s56, s57')
    a(f's_add_u32 s56, s56, {C_W2}'); a('v_mov_b32 v4, s56')
    a(f'v_cmp_gt_u32 vcc, 3, {L}'); a('v_cndmask_b32 v18, v4, v18, vcc'); a('v_lshlrev_b32 v18, 7, v18')
    a('v_mov_b32 v4, 68'); a('v_cndmask_b32 v19, v4, 16, vcc')
    a(f's_add_u32 s56, s50, {C_W2}'); a('s_lshl_b32 s56, s56, 7'); a('v_mov_b32 v22, s56')
    a('s_cmp_lt_u32 s46, 4'); a('s_cselect_b32 s56, 3, 2'); a('v_mov_b32 v23, s56')
    a('s_lshr_b32 s56, s51, 4'); a('s_lshl_b32 s56, s56, 7'); a('v_writelane_b32 v22, s56, 0'); a('v_writelane_b32 v23, 1, 0')
    a('v_lshlrev_b32 v24, 4, v1'); a('v_cmp_eq_u32 vcc, 0, v2'); a('v_cndmask_b32 v24, v9, v24, vcc')
    a(f'v_add_u32 v25, {LST}, v28')
    a(f'v_lshlrev_b32 v17, 7, {L}'); a(f'v_lshlrev_b32 v16, 2, {L}'); a(f'v_add_u32 v16, {LS2}, v16')
    srd(a, 76, 22, 23, 32768, WS_STAT)
    for n in range(4): a(f'v_mov_b32 v{8+n}, 0')
    srd(a, 24, 22, 23, W2_SZ, WS_W2)
    a('v_mov_b32 v4, 0x3f803f80')
    def tbatch(n):
        for _ in range(n):
            for cls in range(3): touch(a, cls, f'v{12+cls}', 'v15')
    def t2dma():
        for un in range(3):
            if un == 2: a('s_cmp_ge_u32 s46, 4'); a('s_cbranch_scc1 sv_d3')
            for n in range(5):
                a(f's_mov_b32 m0, {LT2 + un*5120 + n*1024}'); a(f'buffer_load_dwordx4 v{120+5*un+n}, s[{28+4*un}:{31+4*un}], s{64+un} offen {NTT} lds')
        a.label('sv_d3')
    def stload():
        for s in range(2):
            for j in range(5):
                d = 140 + 20 * s + 4 * j
                a(f'buffer_load_dwordx4 v[{d}:{d+3}], v3, s[24:27], {"s54" if s else "0"} offen offset:{j*256}')
        srd(a, 24, 22, 23, W2_SZ, WS_W2)
    def stdot(s):
        for n in range(20):
            d = 140 + 20 * s + n
            a(f'v_dot2c_f32_bf16 v{8+s}, v{d}, v4'); a(f'v_dot2c_f32_bf16 v{10+s}, v{d}, v{d}')
    def stfin():
        a.fence(4)
        for ro in (8, 4, 2, 1):
            for n in range(4): a(f'v_add_f32_dpp v{8+n}, v{8+n}, v{8+n} row_ror:{ro} row_mask:0xf bank_mask:0xf')
        a(f's_mov_b32 s57, {f32(1.0/640)}')
        for s in range(2):
            b = 32 + 4 * s
            a(f'v_mul_f32 v{b}, s57, v{8+s}'); a(f'v_mul_f32 v{b+2}, s57, v{10+s}')
            a(f'v_fma_f32 v{b+2}, -v{b}, v{b}, v{b+2}'); a(f'v_max_f32 v{b+2}, 0, v{b+2}'); a(f'v_add_f32 v{b+2}, {f32(1e-5)}, v{b+2}')
            a(f'v_rsq_f32 v{b+1}, v{b+2}'); a(f'v_sub_f32 v{b}, 0, v{b}'); a(f'v_mov_b32 v{b+3}, 0')
            a(f'buffer_store_dwordx4 v[{b}:{b+3}], v24, s[76:79], 0 offen offset:{s*64} sc1')
    def trst(un):
        if un == 2: a('s_cmp_ge_u32 s46, 4'); a('s_cbranch_scc1 sv_s3')
        for t in range(5):
            d = 40 + 20 * un + 4 * t; ad = 26 if t < 4 else 27; off = un * 5120 + (64 * (t >> 1) + 8 * (t & 1) if t < 4 else 128)
            a(f'ds_read_b64_tr_b16 v[{d}:{d+1}], v{ad} offset:{off}'); a(f'ds_read_b64_tr_b16 v[{d+2}:{d+3}], v{ad} offset:{off+640}')
        a('s_waitcnt lgkmcnt(0)')
        for t in range(5):
            d = 40 + 20 * un + 4 * t
            if t < 4: a(f'buffer_store_dwordx4 v[{d}:{d+3}], v28, s[24:27], s56 offen offset:{t*1024} sc1')
            else: a(f'buffer_store_dwordx4 v[{d}:{d+3}], v29, s[24:27], s56 offen sc1')
        a(f's_add_u32 s56, s56, {32*5120}')
        if un == 2: a.label('sv_s3')
    a(f's_mul_i32 s56, s50, {W2_CB}'); a('s_mul_i32 s57, s46, 5120'); a('s_add_u32 s56, s56, s57')
    if STG0 == -1: t2dma()
    if SPROF == 4: stamp(a, 3)
    bar(a, 2)
    if SPROF == 4: stamp(a, 4)
    assert STG0 == -2
    a('s_cmp_lg_u32 s2, 0'); a('s_cbranch_scc1 sv_n2')
    a('s_waitcnt vmcnt(0)')
    a('v_mov_b32 v5, 1'); a('s_mov_b64 exec, 1'); a('global_store_dword v30, v5, s[20:21] sc1'); a('s_mov_b64 exec, -1')
    a.label('sv_n2')
    t2dma()
    a(f's_waitcnt vmcnt(10)'); stdot(0); stdot(1); stfin()
    if SPROF == 4: stamp(a, 5)
    if STG0 < 0: a('s_mov_b32 s68, 1')
    else:
        a(f's_mul_i32 s68, s46, {(65536 + NSTG - 1) // NSTG}'); a('s_lshr_b32 s68, s68, 16'); a(f's_mul_i32 s68, s68, {NSTG}'); a('s_sub_u32 s68, s68, s46')
        a(f's_sub_u32 s68, s68, {STG0}')
    a('s_mov_b32 s69, 0')
    a.label('sv_lp')
    bar(a)
    a('s_add_u32 s68, s68, 1')
    if STG0 >= 0: a('s_cmp_eq_u32 s68, 0'); a('s_cbranch_scc1 sv_e0')
    E1 = E('E1', 4)
    a(f's_cmp_eq_u32 s68, {E1}'); a('s_cbranch_scc1 sv_e1')
    a(f's_cmp_eq_u32 s68, {E1+1}'); a('s_cbranch_scc1 sv_e2')
    a(f's_cmp_eq_u32 s68, {E1+3}'); a('s_cbranch_scc1 sv_e3')
    a.label('sv_er')
    a('s_add_u32 s69, s69, 1'); a(f's_cmp_lt_u32 s69, {E("NLP", 11)}'); a('s_cbranch_scc1 sv_lp')
    a('s_branch sv_go')
    if STG0 >= 0:
        a.label('sv_e0'); t2dma(); a('s_branch sv_er')
    a.label('sv_e1'); a('s_waitcnt vmcnt(0)'); trst(0); a('s_branch sv_er')
    a.label('sv_e2'); trst(1); trst(2); a('global_load_dword v31, v30, s[20:21] sc1'); a('s_branch sv_er')
    a.label('sv_e3')
    poll(a, 'v30', 'v31', 1, base='s[20:21]', preissued=True); a('s_mov_b64 exec, 3'); a('global_atomic_add v22, v23, s[10:11]'); a('s_mov_b64 exec, -1')
    a('s_branch sv_er')
    a.label('sv_go')
    assert STG0 + NSTG - 1 + 5 <= 11
    a('global_load_dword v31, v18, s[10:11] sc1')
    bar(a, 2)
    poll(a, 'v18', 'v31', 'v19', preissued=True)
    a('buffer_load_dwordx4 v[32:35], v20, s[76:79], 0 offen sc1')
    for n in range(1, 3): a(f'buffer_load_dwordx4 v[{32+4*n}:{35+4*n}], v21, s[76:79], 0 offen offset:{(n-1)*1024} sc1')
    bar(a, 2)
    a(f's_mov_b32 s56, {f32(C2)}'); a('s_cmp_eq_u32 s43, 1'); a(f's_cselect_b32 s57, 1.0, {f32(C1)}')
    a('s_waitcnt vmcnt(0)')
    if RETOUCH:
        a('s_getpc_b64 s[58:59]')
        a.label('sv_pc')
        a('s_sub_u32 s58, s58, sv_pc-k_gemm2'); a('s_subb_u32 s59, s59, 0')
        for n in range(4):
            a(f'v_min_u32 v{48+n}, k_end-k_gemm2-4, v17'); a(f'v_and_b32 v{48+n}, -4, v{48+n}')
            a(f'global_load_dword v{48+n}, v{48+n}, s[58:59]')
            if n < 3: a('v_add_u32 v17, 8192, v17')
    for n in range(3):
        b = 32 + 4 * n
        a(f'v_mov_b32 v{b+3}, v{b+2}')
        a(f'v_mul_f32 v{b+2}, v{b+1}, v{b+1}'); a(f'v_mul_f32 v{b+2}, v{b+2}, v{b+1}'); a(f'v_mul_f32 v{b+2}, s56, v{b+2}'); a(f'v_mul_f32 v{b+1}, s57, v{b+1}')
        a(f'ds_write_b128 v25, v[{b}:{b+3}] offset:{n*1024}')
        a(f'ds_write2st64_b32 v16, v{b}, v{b+1} offset0:{n} offset1:{3+n}')
    a('s_waitcnt lgkmcnt(0)')
    pre_setup(a)
    bar(a, 12 - E('NLP', 11))
    pre_issue(a, False)
    a('s_branch k_gemm2')

WREG = 35840
def gemm2(a):
    MUTE[0] = SPROF in (4, 5)
    if MAP2 == 0:
        a('s_and_b32 s41, s2, 7'); a('s_lshl_b32 s41, s41, 2'); a('s_lshr_b32 s47, s2, 6'); a('s_add_u32 s41, s41, s47')
        a('s_bfe_u32 s42, s2, 0x30003'); a('s_mov_b32 s48, s42')
    else:
        a('s_and_b32 s41, s2, 6'); a('s_lshl_b32 s41, s41, 2'); a('s_lshr_b32 s48, s2, 5'); a('s_add_u32 s41, s41, s48')
        a('s_and_b32 s42, s2, 1'); a('s_lshl_b32 s42, s42, 2'); a('s_bfe_u32 s47, s2, 0x20003'); a('s_add_u32 s42, s42, s47')
    a(f'v_lshlrev_b32 v248, 4, {L}')
    srd(a, 28, 22, 23, W2_SZ, WS_W2)
    a(f's_mul_i32 s52, s42, {W2_CB}'); a(f's_mul_i32 s46, s40, {17*5120}'); a('s_add_u32 s52, s52, s46')
    a('s_mul_i32 s56, s48, 3'); a('s_lshr_b32 s56, s56, 1'); a('s_mul_i32 s46, s47, 3'); a('s_add_u32 s56, s56, s46')
    a('s_cmp_ge_u32 s56, 12'); a('s_cselect_b32 s46, 12, 0'); a('s_sub_u32 s56, s56, s46'); a('s_add_u32 s57, s48, s47')
    a(f's_mul_i32 s62, s40, {WREG}')
    q = Q(a, 'vmcnt', 63)
    def soff(s, dst, base, stride):
        if s == 16: a(f's_add_u32 {dst}, {base}, {16*stride}'); return
        if s < 12:
            a(f's_add_u32 {dst}, s56, {s}'); a(f's_cmp_ge_u32 {dst}, 12'); a('s_cselect_b32 s60, 12, 0'); a(f's_sub_u32 {dst}, {dst}, s60')
        else:
            a(f's_add_u32 {dst}, s57, {s}'); a(f's_and_b32 {dst}, {dst}, 3'); a(f's_add_u32 {dst}, {dst}, 12')
        a(f's_mul_i32 {dst}, {dst}, {stride}'); a(f's_add_u32 {dst}, {dst}, {base}')
    free = list(range(80, 248, 4))
    WRg, ARg = {}, {}
    HS = [s for s in range(17) if WSRC[s] == 'H']; LS = [s for s in range(17) if WSRC[s] == 'L']; SS = [s for s in range(17) if WSRC[s] == 'S']
    assert len(WSRC) == 17 and len(LS) <= 7 and len(SS) <= 8 and WSRC[0] == 'H'
    def alloc(n):
        r = free[:n]; del free[:n]; assert len(r) == n; return r
    def wload(s, t, s0, s1):
        d = WRg[s][t]
        if t < 4: q.issue(('W', s), f'buffer_load_dwordx4 v[{d}:{d+3}], v248, s[28:31], {s0} offen offset:{t*1024} sc1')
        else: q.issue(('W', s), f'buffer_load_dwordx4 v[{d}:{d+3}], v248, s[28:31], {s1} offen sc1')
    def ldW(s):
        WRg[s] = alloc(5); soff(s, 's55', 's52', 5120); a('s_add_u32 s54, s55, 4096')
        for t in range(5): wload(s, t, 's55', 's54')
    def dmaW(s):
        po = LS.index(s) * 5120
        soff(s, 's55', 's52', 5120); a('s_add_u32 s54, s55, 4096')
        a(f's_add_u32 m0, s62, {po}')
        for t in range(4): q.issue(('W', s), f'buffer_load_dwordx4 v248, s[28:31], s55 offen offset:{t*1024} sc1 {NTP} lds')
        a(f's_add_u32 m0, s62, {po+4096}')
        q.issue(('W', s), f'buffer_load_dwordx4 v248, s[28:31], s54 offen sc1 {NTP} lds')
    for s in HS[:PRE]:
        WRg[s] = alloc(5); q.n[('W', s)] = 5; q.q += [('W', s)] * 5
    for s in HS[PRE:]: ldW(s)
    a('v_add_u32 v249, s62, v248')
    for t in range(4):
        a(f's_add_u32 s47, s40, {t}'); a('s_and_b32 s47, s47, 3'); a('s_lshl_b32 s47, s47, 10'); a(f'v_add_u32 v{250+t}, s47, v248')
    srd(a, 24, 22, 23, A2_SZ); srd(a, 32, 4, 5, XSZ); srd(a, 36, 18, 19, XSZ)
    a(f's_mul_i32 s50, s41, {A2_RB}'); a(f's_mul_i32 s46, s40, {17*4096}'); a('s_add_u32 s50, s50, s46')
    a(f'v_and_b32 v2, 15, {L}'); a(f'v_lshrrev_b32 v3, 4, {L}')
    a('s_lshl_b32 s47, s41, 6'); a('s_lshl_b32 s58, s40, 4'); a('s_add_u32 s58, s47, s58'); a('v_add_u32 v2, s58, v2')
    a('s_movk_i32 s58, 1280'); a('s_mul_i32 s59, s42, 160'); a('v_mul_lo_u32 v2, v2, s58'); a('v_add_u32 v2, s59, v2')
    a('v_lshl_add_u32 v254, v3, 4, v2'); a('v_lshl_add_u32 v255, v3, 3, v2')
    a('s_lshl_b32 s61, s40, 1'); a('s_lshl_b32 s61, 3, s61'); a('s_add_u32 s48, s47, 63')
    a('s_mul_i32 s58, s47, 607'); a('s_lshr_b32 s58, s58, 16'); a('s_mul_i32 s59, s48, 607'); a('s_lshr_b32 s59, s59, 16')
    a('s_cmp_lg_u32 s58, s59'); a('s_cselect_b32 s64, 0x101, 1')
    a('s_add_u32 s48, s47, 48')
    a('s_mul_i32 s58, s47, 410'); a('s_lshr_b32 s58, s58, 16'); a('s_mul_i32 s59, s48, 410'); a('s_lshr_b32 s59, s59, 16')
    a('s_cmp_lg_u32 s58, s59'); a('s_mov_b32 s65, 0x10000'); a('s_cselect_b32 s65, 0x1010000, s65')
    a('s_mul_i32 s64, s64, s61'); a('s_mul_i32 s66, s65, s61')
    a('s_lshl_b32 s65, s41, 3'); a('s_add_u32 s65, s65, s42'); a(f's_add_u32 s65, s65, {C_WG}'); a('s_lshl_b32 s65, s65, 7')
    a('v_mov_b32 v4, s65')
    SA = [3, 4, 5, 6, 7, 8, 9, 12, 13, 14, 15, 16, 17, 18, 19, 20, 21]
    for s in range(17): soff(s, f's{SA[s]}', 's50', 4096)
    SW = [72, 73, 74, 75, 76, 77, 78, 79, 63, 44, 45, 46, 48, 49, 51, 53]
    for n, s in enumerate(SS): soff(s, f's{SW[2*n]}', 's52', 5120); a(f's_add_u32 s{SW[2*n+1]}, s{SW[2*n]}, 4096')
    a(f'v_and_b32 v2, 1, {L}'); a('v_cmp_eq_u32 s[68:69], 1, v2')
    lds_wait(a, LCN + 4, 'v0', 'v1', sleep=1)
    stamp(a, 3)
    for s in LS: dmaW(s)
    if PROF: a('s_waitcnt vmcnt(0)'); stamp(a, 1)
    if OWN:
        if OWN == 1: a('s_cmp_eq_u32 s43, 1'); a('s_cbranch_scc1 g_own')
        lds_wait(a, LCN, 'v0', 'v1', sleep=2)
        a.label('g_own')
    if PPOLL:
        a('s_waitcnt vmcnt(0)'); a('s_mov_b32 s70, 0')
        for n in range(PPOLL - 1):
            a(f'global_load_dword v{8+n}, v4, s[10:11] sc1'); a(f's_sleep {PSL}')
        a.label('pp_top')
        for n in range(PPOLL):
            a(f'global_load_dword v{8+(n+PPOLL-1) % PPOLL}, v4, s[10:11] sc1')
            a(f's_waitcnt vmcnt({PPOLL-1})')
            a(f'v_and_b32 v1, s64, v{8+n}'); a('v_cmp_ne_u32 vcc, s64, v1'); a('s_nop 1'); a('s_cbranch_vccz pp_ok')
            a(f's_sleep {PSL}')
        a('s_add_u32 s70, s70, 1'); a(f's_cmp_lt_u32 s70, {SPIN}'); a('s_cbranch_scc1 pp_top')
        a('s_endpgm')
        a.label('pp_ok')
    else: poll(a, 'v4', 'v1', 's64', mask=True)
    q.clear()
    stamp(a, 4)
    pend = []
    for s in range(17):
        if s in SS: pend.append(('W', s))
        pend.append(('A', s))
    pend.append(('X', 17))
    ogate = [False]; XR = []
    dq = []
    def refill(cur, resv):
        while pend:
            k, s = pend[0]
            n = {'W': 5, 'A': 4, 'X': 3}[k]
            if (k, s) == ('A', 16): n = 8
            if len(free) - resv < n or s > cur + (LA_W if k == 'W' else LA_A): break
            if k == 'A' and s >= 12 and not ogate[0]: break
            pend.pop(0); regs = alloc(n)
            if k == 'W':
                WRg[s] = regs; z = SS.index(s)
                for t in range(5): dq.append((s, lambda s=s, t=t, z=z: wload(s, t, f's{SW[2*z]}', f's{SW[2*z+1]}')))
            elif k == 'X':
                XR.extend(regs)
                dq.append((s, lambda: q.issue('X', f'buffer_load_dwordx4 v[{XR[0]}:{XR[0]+3}], v254, s[32:35], 0 offen')))
                dq.append((s, lambda: q.issue('X', f'buffer_load_dwordx4 v[{XR[1]}:{XR[1]+3}], v254, s[32:35], 0 offen offset:64')))
                dq.append((s, lambda: q.issue('X', f'buffer_load_dwordx2 v[{XR[2]}:{XR[2]+1}], v255, s[32:35], 0 offen offset:128')))
            else:
                ARg[s] = regs
                for t in range(4):
                    d = regs[t]
                    if s < 16: dq.append((s, lambda d=d, t=t, s=s: q.issue(('A', s), f'buffer_load_dwordx4 v[{d}:{d+3}], v{250+t}, s[24:27], s{SA[s]} offen sc1')))
                    else:
                        e = regs[4 + t]
                        dq.append((s, lambda d=d, t=t, s=s: (a(f'v_bfe_u32 v{d}, v{250+t}, 1, 9'), a(f'v_sub_u32 v{250+t}, v{250+t}, v{d}'), a(f'v_and_b32 v{250+t}, -16, v{250+t}'),
                                   q.issue(('A', s), f'buffer_load_dwordx4 v[{d}:{d+3}], v{250+t}, s[24:27], s{SA[s]} offen sc1'))))
                        dq.append((s, lambda e=e, t=t, s=s: q.issue(('A', s), f'buffer_load_dwordx4 v[{e}:{e+3}], v{250+t}, s[24:27], s{SA[s]} offen offset:512 sc1')))
    refill(0, 0)
    while dq: dq.pop(0)[1]()
    AC = lambda tr, tc: (tr * 5 + tc) * 4
    for s in range(17):
        while dq and dq[0][0] <= s + 1: dq.pop(0)[1]()
        assert q.n.get(('A', s)) == (4 if s < 16 else 8) and q.n.get(('W', s), 0) == 5, s
        q.wait(('W', s)); q.wait(('A', s))
        if SPROF == 1 and s in (0, 4, 8, 12): stamp(a, {0: 0, 4: 2, 8: 3, 12: 5}[s])
        if s == 16:
            for t in (1, 2, 3, 0):
                d, e = ARg[s][t], ARg[s][4 + t]
                a(f'v_cndmask_b32 v{d}, v{d}, v{d+2}, s[68:69]'); a(f'v_cndmask_b32 v{d+1}, v{d+1}, v{d+3}, s[68:69]')
                a(f'v_cndmask_b32 v{d+2}, v{e}, v{e+2}, s[68:69]'); a(f'v_cndmask_b32 v{d+3}, v{e+1}, v{e+3}, s[68:69]')
            free.extend(ARg[s][4:])
        if s in LS: a('s_waitcnt lgkmcnt(0)')
        lq = []
        if s + 1 in LS:
            WRg[s + 1] = alloc(5)
            lq = [f'ds_read_b128 v[{d}:{d+3}], v249 offset:{LS.index(s+1)*5120 + t*1024}' for t, d in enumerate(WRg[s + 1])]
        n = 0
        if s == 16:
            while dq: dq.pop(0)[1]()
            wq = []
        for tr in (range(4) if s < 16 else (1, 2, 3, 0)):
            for tc in range(5):
                c = AC(tr, tc); w = WRg[s][tc]; x = ARg[s][tr]
                if s == 16:
                    if n >= 7: a(wq.pop(0))
                    if tr: wq.append(f'ds_write_b128 v249, v[{c}:{c+3}] offset:{(tr-1)*5120 + tc*1024}')
                src = '0' if s == 0 else f'v[{c}:{c+3}]'
                a(f'v_mfma_f32_16x16x32_bf16 v[{c}:{c+3}], v[{w}:{w+3}], v[{x}:{x+3}], {src}')
                pace = PACE if len(dq) <= 8 else 2
                if dq and n % pace == 0: dq.pop(0)[1]()
                elif lq: a(lq.pop(0))
                n += 1
            free.append(ARg[s][tr])
            if tr < 3: refill(s, 0)
        assert not lq
        free.extend(WRg[s])
        if s == OCHK - 2:
            PR = alloc(1)[0]
            dq.insert(0, (s + 1, lambda: (a(f'v_mov_b32 v{PR}, s65'), q.issue('P', f'global_load_dword v{PR+1}, v{PR}, s[10:11] sc1'))))
        if s == OCHK:
            q.wait('P')
            a(f'v_and_b32 v{PR+1}, s66, v{PR+1}'); a(f'v_cmp_ne_u32 vcc, s66, v{PR+1}'); a('s_nop 1'); a('s_cbranch_vccz g_ook')
            poll(a, f'v{PR}', f'v{PR+1}', 's66', mask=True)
            a.label('g_ook')
            if not SPROF: stamp(a, 2)
            free.append(PR); ogate[0] = True
        refill(s + 1, 5 if s + 2 in LS else 0)
    while dq: dq.pop(0)[1]()
    assert not pend
    if not SPROF: stamp(a, 5)
    for o in wq: a(o)
    for tp in range(1, 4):
        a(f's_sub_u32 s47, s40, {tp}'); a('s_and_b32 s47, s47, 3'); a(f's_mul_i32 s47, s47, {WREG}'); a(f'v_add_u32 v{249+tp}, s47, v248')
    q.wait('X')
    U = alloc(5); RD = alloc(15)
    xs = [XR[0] + n for n in range(4)] + [XR[1] + n for n in range(4)] + [XR[2], XR[2] + 1]
    P = lambda r: f'v[{r}:{r+1}]'
    for n in range(10):
        u = U[n >> 1] + 2 * (n & 1)
        a(f'v_lshlrev_b32 v{u}, 16, v{xs[n]}'); a(f'v_and_b32 v{u+1}, 0xffff0000, v{xs[n]}')
    for n in range(10): a(f'v_pk_add_f32 {P(2*n)}, {P(2*n)}, {P(U[n >> 1] + 2 * (n & 1))}')
    a('s_waitcnt lgkmcnt(0)'); bar(a); stamp(a, 6)
    for tp in range(1, 4):
        for tc in range(5):
            d = RD[5 * (tp - 1) + tc]
            a(f'ds_read_b128 v[{d}:{d+3}], v{249+tp} offset:{(tp-1)*5120 + tc*1024}')
    for sl in range(3):
        a(f's_waitcnt lgkmcnt({10-5*sl})')
        for n in range(10): a(f'v_pk_add_f32 {P(2*n)}, {P(2*n)}, {P(RD[5*sl + (n >> 1)] + 2 * (n & 1))}')
    for n in range(10): a(f'v_cvt_pk_bf16_f32 v{40+n}, v{2*n}, v{2*n+1}')
    a(f'buffer_store_dwordx4 v[40:43], v254, s[36:39], 0 offen {OSC}')
    a(f'buffer_store_dwordx4 v[44:47], v254, s[36:39], 0 offen offset:64 {OSC}')
    a(f'buffer_store_dwordx2 v[48:49], v255, s[36:39], 0 offen offset:128 {OSC}')
    stamp_flush(a, 4); MUTE[0] = False
    a('s_endpgm')

def mainloop(a, P, NT, NJ, ACC, WF, XB, wread, nw, onest, XS, swapj=-1):
    q = Q(a, 'lgkmcnt', 15)
    def xread(step, t):
        b = XB((NT * step + t) % 4)
        q.issue(('X', step % 4, t), f'ds_read_b128 v[{b}:{b+3}], v{238 + (step & 1)} offset:{t*2048}')
    def fix(step, h):
        b = XB((NT * step + onest) % 4) + 2 * h
        a(f'v_cndmask_b32 v{b}, v{b}, v242, s[64:65]'); a(f'v_cndmask_b32 v{b+1}, v{b+1}, v242, s[64:65]')
    a('s_mov_b32 s60, 0'); a('s_mov_b32 s61, 0')
    if E('CPRIO', 0): a(f's_setprio {E("CPRIO", 0)}')
    stamp(a, 1); bar(a); stamp(a, 2)
    for idx in range(nw): wread(q, 0, 0, idx)
    for t in range(3): xread(0, t)
    if onest == 0:
        q.wait(('X', 0, 0)); fix(0, 0); fix(0, 1)
    a.label(f'{P}_loop')
    wper = 3 if NJ == 6 else 1
    for k in range(4):
        cur, nxt = k & 1, (k + 1) & 1
        widx = 0
        for t in range(NT):
            q.wait(('X', k, t))
            fill = []
            tt = t + 3
            fill.append(lambda tt=tt: xread(k if tt < NT else k + 1, tt if tt < NT else tt - NT))
            if t == 0:
                if k < 2: fill.append(lambda: bar(a))
                else: fill.append(lambda: (a('s_cmp_eq_u32 s61, 4'), a(f's_cbranch_scc1 {P}_nb{k}'), bar(a), a.label(f'{P}_nb{k}')))
            for _ in range(wper + (1 if (NJ == 4 and t in (1, 2)) else 0)):
                if widx < nw:
                    fill.append(lambda w=widx: wread(q, (k + 1) % 4, nxt, w)); widx += 1
            if t == NT - 3:
                if k & 1 == 0:
                    fill.append(lambda: (a(f's_add_u32 s60, s60, {XS}'), a(f's_cmp_ge_u32 s60, {3*XS}')))
                    fill.append(lambda: (a('s_cselect_b32 s60, 0, s60'), a('v_add_u32 v238, s60, v240')))
                else:
                    fill.append(lambda: a('v_add_u32 v239, s60, v241'))
            if t == (onest - 1) % NT:
                st = k if onest > 0 else k + 1
                fill.append(lambda st=st: (q.wait(('X', st % 4, onest)), fix(st, 0)))
                fill.append(lambda st=st: fix(st, 1))
            if t == NT - 2 and k == 3:
                fill.append(lambda: (a('s_add_u32 s61, s61, 1'), a('s_cmp_lt_u32 s61, 5')))
            xb = XB((NT * k + t) % 4)
            for j in (range(NJ) if not (E('SNAKE', 0) and t & 1) else range(NJ - 1, -1, -1)):
                cc = ACC(j, t)
                oa, ob = (xb, WF(cur, j)) if j == swapj else (WF(cur, j), xb)
                a(f'v_mfma_f32_16x16x32_bf16 v[{cc}:{cc+3}], v[{oa}:{oa+3}], v[{ob}:{ob+3}], v[{cc}:{cc+3}]')
                if fill: fill.pop(0)()
            assert not fill, (t, len(fill))
        assert widx == nw
    a(f's_cbranch_scc1 {P}_loop')
    a('s_waitcnt lgkmcnt(0)')
    stamp(a, 3)
    if not ((QLATE and swapj >= 0) or (GLATE >= 0 and swapj < 0)): lds_arrive(a, LCN + 4, 'v246', 'v247')

def cons_common(a, T0, nacc, XO, onelane, P):
    if P == 'cq':
        for n in range(24, 36, 2): a(f's_mov_b64 s[{n}:{n+1}], 0')
        a('s_mov_b32 s56, 1')
    dryrun(a, P)
    g, i, r, c, t5 = [f'v{T0+8+n}' for n in range(5)]
    for n in range(4): a(f'v_mov_b32 v{T0+n}, 0')
    a(f'v_lshrrev_b32 {g}, 4, {L}'); a(f'v_and_b32 {i}, 15, {L}'); a(f'v_bfe_u32 {r}, {L}, 2, 2'); a(f'v_and_b32 {c}, 3, {L}')
    for n in range(nacc // 16): a(f'v_mfma_f32_32x32x16_bf16 v[{16*n}:{16*n+15}], v[{T0}:{T0+3}], v[{T0}:{T0+3}], 0')
    for n in range(nacc // 16 * 16, nacc, 4): a(f'v_mfma_f32_16x16x32_bf16 v[{n}:{n+3}], v[{T0}:{T0+3}], v[{T0}:{T0+3}], 0')
    a(f'v_lshrrev_b32 {t5}, 1, {i}'); a(f'v_xor_b32 {t5}, {t5}, {g}'); a(f'v_lshlrev_b32 {t5}, 4, {t5}'); a(f'v_lshl_or_b32 {t5}, {i}, 7, {t5}')
    a(f'v_add_u32 v240, {XO}, {t5}'); a('v_xor_b32 v241, 64, v240')
    a('v_mov_b32 v238, v240'); a('v_mov_b32 v239, v241')
    a('v_mov_b32 v242, 0x3f803f80'); a(f'v_cmp_eq_u32 s[64:65], {onelane}, {i}')
    a(f'v_mov_b32 {t5}, {LCN}'); a(f'ds_write_b128 {t5}, v[{T0}:{T0+3}]')
    a(f'v_lshlrev_b32 v248, 4, {i}'); a(f'v_add_u32 v248, {LST}, v248')

Pk = lambda r: f'v[{r}:{r+1}]'
def consumerG(a):
    ACC = lambda j, t: (j * 7 + t) * 4
    WF = lambda s, j: 168 + s * 24 + j * 4
    XB = lambda b: 216 + 4 * b
    WA = lambda hi, j: 232 + 3 * hi + j
    T0 = 168
    g, i, r, c, t5, t6, t7, t8 = [f'v{T0+8+n}' for n in range(8)]
    cons_common(a, T0, 168, GX, 15, 'cg')
    a(f'v_lshrrev_b32 {t5}, 1, {r}'); a(f'v_lshlrev_b32 {t5}, 2, {t5}'); a(f'v_and_b32 {t6}, 1, {g}'); a(f'v_or_b32 {t5}, {t5}, {t6}')
    a(f'v_lshlrev_b32 {t5}, 4, {t5}'); a(f'v_lshl_or_b32 {t5}, {r}, 7, {t5}'); a(f'v_lshl_or_b32 {t5}, {g}, 10, {t5}')
    a('s_lshr_b32 s51, s40, 1'); a('s_mul_i32 s51, s51, 3'); a('s_add_u32 s52, s51, 1')
    a('s_and_b32 s53, s40, 1'); a('s_lshl_b32 s54, s53, 1'); a('s_add_u32 s51, s51, s54')
    a(f'v_and_b32 {t6}, 1, {c}'); a(f'v_lshlrev_b32 {t7}, 4, {c}'); a(f'v_lshl_or_b32 {t7}, {t6}, 3, {t7}'); a(f'v_xor_b32 {t7}, {t7}, {t5}')
    a('s_and_b32 s54, s51, 1'); a('s_lshl_b32 s54, s54, 6'); a('s_lshr_b32 s55, s51, 1'); a('s_lshl_b32 s55, s55, 12')
    a(f'v_xor_b32 {t7}, s54, {t7}'); a(f'v_add_u32 v{WA(0,0)}, s55, {t7}'); a(f'v_xor_b32 v{WA(0,1)}, 8, v{WA(0,0)}')
    a(f'v_lshrrev_b32 {t7}, 1, {c}'); a(f'v_xor_b32 {t6}, {t6}, {t7}'); a(f'v_lshlrev_b32 {t7}, 4, {t7}'); a(f'v_lshl_or_b32 {t7}, {t6}, 3, {t7}')
    a(f'v_xor_b32 {t7}, {t7}, {t5}')
    a('s_and_b32 s54, s52, 1'); a('s_lshl_b32 s54, s54, 6'); a('s_lshl_b32 s56, s53, 5'); a('s_or_b32 s54, s54, s56')
    a('s_lshr_b32 s55, s52, 1'); a('s_lshl_b32 s55, s55, 12')
    a(f'v_xor_b32 {t7}, s54, {t7}'); a(f'v_add_u32 v{WA(0,2)}, s55, {t7}')
    for j in range(3): a(f'v_add_u32 v{WA(1,j)}, 49152, v{WA(0,j)}')
    a(f'v_lshrrev_b32 {t8}, 1, {g}'); a('s_lshl_b32 s56, s53, 1'); a(f'v_add_u32 {t8}, s56, {t8}')
    a('s_lshr_b32 s54, s44, 1'); a('s_mul_i32 s54, s54, 17'); a('s_and_b32 s55, s44, 1'); a('s_mul_i32 s55, s55, 6'); a('s_add_u32 s54, s54, s55')
    a('s_add_u32 s55, s54, s51'); a('s_lshl_b32 s55, s55, 12'); a(f'v_lshl_add_u32 v251, {g}, 8, s55')
    a('s_add_u32 s55, s54, s52'); a('s_lshl_b32 s55, s55, 12'); a(f'v_lshl_add_u32 v252, {t8}, 8, s55')
    a(f'v_lshlrev_b32 v249, 2, {i}'); a(f'v_add_u32 v249, {LRP}, v249')
    a(f'v_and_b32 {t5}, 1, {g}'); a(f'v_lshl_add_u32 v250, {t5}, 6, v249')
    a('s_waitcnt lgkmcnt(0)')
    cntbase(a); srd(a, 36, 22, 23, A2_SZ)
    def wread(q, slot, setn, idx):
        j, hf = idx >> 1, idx & 1
        off = (slot & 1) * 24576 + (j // 3) * 12288 + hf * 512
        d = WF(setn, j) + 2 * hf
        q.issue('W', f'ds_read_b64_tr_b16 v[{d}:{d+1}], v{WA(slot >> 1, j % 3)} offset:{off}')
    mainloop(a, 'cg', 7, 6, ACC, WF, XB, wread, 12, 6, GXS)
    ST = lambda t: 168 + 4 * t
    CS = lambda j: 196 + 4 * j
    RP = lambda t: 232 + t
    RS = lambda p: 244 + p
    seg(a, 'cg', 0)
    for p in range(4): a(f'ds_read2_b32 v[{RP(2*p)}:{RP(2*p)+1}], v249 offset0:{32*p} offset1:{32*p+16}')
    for p in range(2): a(f'ds_read2_b32 v[{RS(2*p)}:{RS(2*p)+1}], v250 offset0:{64*p} offset1:{64*p+32}')
    for t in range(7): a(f'ds_read_b128 v[{ST(t)}:{ST(t)+3}], v248 offset:{t*256}')
    for j in range(6):
        for rr in range(4):
            a(f'v_mov_b32_dpp v{CS(j)+rr}, v{ACC(j,6)+rr} row_newbcast:15 row_mask:0xf bank_mask:0xf')
    P = Pk
    for t in range(7):
        if t in (2, 4, 6): seg(a, 'cg', t // 2)
        a(f's_waitcnt lgkmcnt({6-t})')
        s01, s23 = P(ST(t)), P(ST(t) + 2)
        prs = [(j, hp) for j in range(3) for hp in range(2)]
        T = lambda n: 220 + 2 * n
        G = lambda j, hp: ACC(j, t) + 2 * hp
        U = lambda j, hp: ACC(j + 3, t) + 2 * hp
        for j, hp in prs: a(f'v_pk_fma_f32 {P(G(j,hp))}, {P(CS(j)+2*hp)}, {s01}, {P(G(j,hp))} op_sel:[0,0,0] op_sel_hi:[1,0,1]')
        for n, (j, hp) in enumerate(prs): a(f'v_pk_mul_f32 {P(T(n))}, {P(G(j,hp))}, {P(G(j,hp))}')
        for n, (j, hp) in enumerate(prs): a(f'v_pk_fma_f32 {P(T(n))}, {P(T(n))}, {s23}, {s01} op_sel:[0,0,1] op_sel_hi:[1,0,1]')
        for n, (j, hp) in enumerate(prs): a(f'v_pk_mul_f32 {P(T(n))}, {P(T(n))}, {P(G(j,hp))}')
        for n, (j, hp) in enumerate(prs):
            a(f'v_exp_f32 v{T(n)}, v{T(n)}'); a(f'v_exp_f32 v{T(n)+1}, v{T(n)+1}')
            a(f'v_pk_fma_f32 {P(U(j,hp))}, {P(CS(j+3)+2*hp)}, {s01}, {P(U(j,hp))} op_sel:[0,0,0] op_sel_hi:[1,0,1]')
        for n, (j, hp) in enumerate(prs): a(f'v_pk_fma_f32 {P(T(n))}, {P(T(n))}, {s23}, {s23} op_sel:[0,1,1] op_sel_hi:[1,1,1]')
        for n, (j, hp) in enumerate(prs):
            a(f'v_rcp_f32 v{T(n)}, v{T(n)}'); a(f'v_rcp_f32 v{T(n)+1}, v{T(n)+1}')
            a(f'v_pk_mul_f32 {P(U(j,hp))}, {P(U(j,hp))}, {P(G(j,hp))}')
        for n, (j, hp) in enumerate(prs): a(f'v_pk_mul_f32 {P(U(j,hp))}, {P(U(j,hp))}, {P(T(n))}')
        o4, Ep = ACC(0, t), ACC(1, t & ~1)
        for n, (j, hp) in enumerate(prs):
            d = o4 + n if n < 4 else Ep + 2 * (t & 1) + n - 4
            a(f'v_cvt_pk_bf16_f32 v{d}, v{U(j,hp)}, v{U(j,hp)+1}')
        a(f'v_add_u32 v{ACC(2,t)}, v{RP(t)}, v251')
        guard(a, f'buffer_store_dwordx4 v[{o4}:{o4+3}], v{ACC(2,t)}, s[36:39], 0 offen sc1')
        if t == GLATE: a('s_waitcnt lgkmcnt(0)'); lds_arrive(a, LCN + 4, 'v240', 'v241')
        if t & 1 or t == 6:
            ad = ACC(2, t) + 1
            a(f'v_add_u32 v{ad}, v{RS(t >> 1)}, v252')
            a(f'v_permlane16_swap_b32 v{Ep}, v{Ep+2}'); a(f'v_permlane16_swap_b32 v{Ep+1}, v{Ep+3}')
            guard(a, f'buffer_store_dwordx4 v[{Ep}:{Ep+3}], v{ad}, s[36:39], 0 offen sc1')
    seg(a, 'cg', 4)
    a('s_mov_b32 s62, s41'); a('s_add_u32 s63, s41, 107'); a('s_movk_i32 s66, 607'); a('s_mov_b32 s67, s44')
    a('s_branch k_pub')

def publish(a):
    stamp(a, 4)
    a('s_lshr_b32 s62, s62, 6'); a(f'v_lshrrev_b32 v250, 3, {L}'); a('v_add_u32 v250, s62, v250')
    a('v_lshlrev_b32 v251, 6, v250'); a('s_min_u32 s63, s63, 2047'); a('v_cmp_ge_u32 s[68:69], s63, v251')
    a('v_mul_u32_u24 v251, s66, v251'); a('v_lshrrev_b32 v251, 16, v251')
    a('v_sub_u32 v251, s45, v251'); a('v_lshl_add_u32 v251, v251, 3, s67')
    a('v_mov_b32 v252, 1'); a('v_lshlrev_b32 v251, v251, v252')
    a('s_lshl_b32 s62, s62, 3'); a(f's_add_u32 s62, s62, {C_WG}'); a(f'v_add_u32 v250, s62, {L}'); a('v_lshlrev_b32 v250, 7, v250')
    a(f'v_mov_b32 v253, {LCN}')
    a('s_waitcnt vmcnt(0)')
    if SPROF != 3: stamp(a, 5)
    a('s_mov_b64 exec, 1')
    a('ds_add_rtn_u32 v252, v253, v252')
    a('s_waitcnt lgkmcnt(0)')
    a('v_readfirstlane_b32 s71, v252')
    a('s_cmp_lg_u32 s71, 3'); a('s_cbranch_scc1 pub_x')
    a('s_mov_b64 exec, s[68:69]')
    a('global_atomic_add v250, v251, s[10:11]')
    a.label('pub_x')
    a('s_mov_b64 exec, -1')
    stamp_flush(a, 0)

def consumerQ(a):
    ACC = lambda j, t: (j * 11 + t) * 4
    WF = lambda s, j: 176 + s * 16 + j * 4
    XB = lambda b: 208 + 4 * b
    T0 = 176
    g, i, r, c, t5, t6, t7 = [f'v{T0+8+n}' for n in range(7)]
    cons_common(a, T0, 176, QX, 0, 'cq')
    a('s_mov_b64 s[24:25], -1'); a('s_mov_b32 s26, 0xffff0000'); a('s_mov_b32 s27, -1')
    a('s_mov_b32 s28, 0xffff'); a('s_mov_b32 s30, 0xffff0000'); a('s_mov_b32 s33, 0xffff'); a('s_mov_b32 s35, 0xffff0000')
    a(f'v_lshrrev_b32 {t5}, 1, {g}'); a(f'v_lshlrev_b32 {t5}, 4, {t5}'); a(f'v_and_b32 {t6}, 1, {g}'); a(f'v_lshl_add_u32 {t5}, {t6}, 2, {t5}'); a(f'v_add_u32 {t5}, {t5}, {r}')
    a(f'v_mul_u32_u24 {t5}, 160, {t5}'); a('s_mul_i32 s51, s40, 40'); a(f'v_add_u32 {t5}, s51, {t5}')
    a(f'v_lshl_add_u32 v224, {c}, 3, {t5}')
    a(f'v_min_u32 {t6}, 2, {c}'); a(f'v_mul_u32_u24 {t6}, 5120, {t6}'); a(f'v_add3_u32 v225, {t5}, {t6}, 32')
    if E('ZQ', 0): a(f'v_cmp_eq_u32 vcc, 3, {c}'); a(f'v_mov_b32 {t6}, 0x30000'); a(f'v_cndmask_b32 v225, v225, {t6}, vcc')
    a('s_mul_i32 s51, s40, 1408'); a(f's_add_u32 s51, s51, {4*WREG}')
    a(f'v_lshl_add_u32 v228, {i}, 3, s51'); a(f'v_add_u32 {t5}, 5632, v228'); a(f'v_cmp_eq_u32 vcc, 2, {g}'); a(f'v_cndmask_b32 v228, {t5}, v228, vcc')
    a(f'v_lshrrev_b32 {t5}, 2, {L}'); a(f'v_lshl_add_u32 v229, {t5}, 3, s51')
    a(f'v_lshlrev_b32 v230, 4, {g}'); a(f'v_add_u32 v230, {LS2}, v230')
    a(f'v_and_b32 {t5}, 1, {i}'); a(f'v_cmp_eq_u32 s[74:75], 1, {t5}')
    a(f'v_lshl_add_u32 {t6}, {g}, 2, {t5}'); a(f'v_cmp_le_u32 s[76:77], {t6}, {i}')
    a(f'v_add_u32 {t6}, 2, {t6}'); a(f'v_cmp_le_u32 s[78:79], {t6}, {i}')
    a(f'v_mov_b32 {t7}, 0x0c0c0c0c')
    a(f'v_mov_b32 {t5}, 0x0c0c0100'); a(f'v_mov_b32 {t6}, 0x01000c0c'); a(f'v_cndmask_b32 {t5}, {t5}, {t6}, s[74:75]')
    a(f'v_cndmask_b32 v232, {t5}, {t7}, s[76:77]'); a(f'v_cndmask_b32 v234, {t7}, {t5}, s[76:77]')
    a(f'v_mov_b32 {t5}, 0x0c0c0302'); a(f'v_mov_b32 {t6}, 0x03020c0c'); a(f'v_cndmask_b32 {t5}, {t5}, {t6}, s[74:75]')
    a(f'v_cndmask_b32 v233, {t5}, {t7}, s[78:79]'); a(f'v_cndmask_b32 v235, {t7}, {t5}, s[78:79]')
    a('s_mul_i32 s56, s45, 10')
    a('s_lshr_b32 s57, s44, 1'); a('s_mul_i32 s57, s57, 17'); a('s_add_u32 s57, s57, 12'); a('s_and_b32 s58, s44, 1'); a('s_lshl_b32 s58, s58, 1')
    a('s_lshr_b32 s52, s40, 1'); a('s_add_u32 s58, s58, s52'); a('s_and_b32 s53, s40, 1')
    a('s_add_u32 s59, s57, s58'); a('s_lshl_b32 s59, s59, 12'); a('s_lshl_b32 s52, s53, 9'); a('s_add_u32 s59, s59, s52')
    a(f'v_lshrrev_b32 {t5}, 1, {g}'); a(f'v_lshlrev_b32 {t5}, 8, {t5}'); a(f'v_and_b32 {t6}, 1, {g}'); a(f'v_lshl_add_u32 {t5}, {t6}, 10, {t5}')
    a(f'v_lshl_add_u32 {t5}, {i}, 4, {t5}'); a(f'v_add_u32 v236, s59, {t5}')
    a('s_add_u32 s57, s57, 4'); a('s_lshl_b32 s57, s57, 12'); a('s_add_u32 s57, s57, s52'); a('s_lshl_b32 s58, s58, 7'); a('s_add_u32 s57, s57, s58')
    a(f'v_add_u32 {t5}, s56, {g}'); a(f'v_lshrrev_b32 {t6}, 2, {t5}'); a(f's_mov_b32 s58, {A2_RB}'); a(f'v_mul_lo_u32 {t6}, {t6}, s58')
    a(f'v_and_b32 {t5}, 3, {t5}'); a(f'v_lshl_add_u32 {t6}, {t5}, 10, {t6}'); a(f'v_lshl_add_u32 {t6}, {i}, 3, {t6}'); a(f'v_add_u32 v237, s57, {t6}')
    a(f'v_mov_b32 {t5}, {OOB}'); a(f'v_cmp_gt_u32 vcc, 2, {g}'); a(f'v_cndmask_b32 v244, {t5}, v237, vcc')
    for n in range(5):
        a(f's_add_u32 s57, s56, {2*n}'); a('s_lshr_b32 s59, s57, 2'); a('s_mul_i32 s59, s59, s58'); a('s_and_b32 s57, s57, 3'); a('s_lshl_b32 s57, s57, 10'); a(f's_add_u32 s{48+n}, s59, s57')
    a('s_lshl_b32 s53, s58, 1')
    a('s_waitcnt lgkmcnt(0)')
    cntbase(a); srd(a, 36, 22, 23, A2_SZ)
    def wread(q, slot, setn, idx):
        j, hf = idx >> 1, idx & 1
        d = WF(setn, j) + 2 * hf
        if j < 3: q.issue('W', f'ds_read_b64_tr_b16 v[{d}:{d+1}], v224 offset:{slot*QWS + j*5120 + hf*1280}')
        else: q.issue('W', f'ds_read_b64_tr_b16 v[{d}:{d+1}], v225 offset:{slot*QWS + hf*1280}')
    mainloop(a, 'cq', 11, 4, ACC, WF, XB, wread, 8, 0, QXS, swapj=2)
    ST = lambda t: 176 + 2 * t
    CS = lambda j: 198 + 4 * (j if j < 2 else 2)
    VS = lambda t: (212, 220, 238)[t % 3]
    VR = lambda t: (216, 224, 250)[t % 3]
    Vp = lambda t: 88 + 2 * t
    Vl = lambda t: 110 + 2 * t
    P = Pk
    q = Q(a, 'lgkmcnt', 15)
    seg(a, 'cq', 0)
    for t in range(11): q.issue('S', f'ds_read_b64 v[{ST(t)}:{ST(t)+1}], v248 offset:{t*256}')
    def rdVS(t):
        q.issue(('VS', t), f'ds_read_b128 v[{VS(t)}:{VS(t)+3}], v230 offset:{t*64}')
        q.issue(('VS', t), f'ds_read_b128 v[{VR(t)}:{VR(t)+3}], v230 offset:{t*64+768}')
    rdVS(0); rdVS(1)
    for j in (0, 1, 3):
        for rr in range(4):
            a(f'v_mov_b32_dpp v{CS(j)+rr}, v{ACC(j,0)+rr} row_newbcast:0 row_mask:0xf bank_mask:0xf')
    a(f'v_mov_b32 v210, v{ACC(2,0)}'); a(f'v_mov_b32 v211, v{ACC(2,0)}'); a('v_permlane16_swap_b32 v210, v211')
    a('v_mov_b32 v211, v210'); a('v_permlane32_swap_b32 v210, v211')
    for t in range(11):
        if t == 5: seg(a, 'cq', 1)
        q.wait(('VS', t))
        if t < 9: rdVS(t + 2)
        s01 = P(ST(t))
        js = (1, 3) if t == 0 else (0, 1, 3)
        prs = [(j, hp) for j in js for hp in range(2)]
        G = lambda j, hp: ACC(j, t) + 2 * hp
        for j, hp in prs: a(f'v_pk_fma_f32 {P(G(j,hp))}, {P(CS(j)+2*hp)}, {s01}, {P(G(j,hp))} op_sel:[0,0,0] op_sel_hi:[1,0,1]')
        for hp in range(2): a(f'v_pk_fma_f32 {P(G(2,hp))}, {P(VS(t)+2*hp)}, v[210:211], {P(G(2,hp))} op_sel:[0,0,0] op_sel_hi:[1,0,1]')
        for j, hp in prs: a(f'v_pk_mul_f32 {P(G(j,hp))}, {P(G(j,hp))}, {s01} op_sel:[0,1] op_sel_hi:[1,1]')
        for hp in range(2): a(f'v_pk_mul_f32 {P(G(2,hp))}, {P(G(2,hp))}, {P(VR(t)+2*hp)}')
        for j in js[:-1]:
            for hp in range(2): a(f'v_cvt_pk_bf16_f32 v{ACC(j,t)+hp}, v{G(j,hp)}, v{G(j,hp)+1}')
        for j in (0, 1):
            for hp in range(2): a(f'v_cvt_pk_bf16_f32 v{ACC(j,t)+2+hp}, v{G(3,hp)}, v{G(3,hp)+1}')
        for hp in range(2): a(f'v_cvt_pk_bf16_f32 v{Vp(t)+hp}, v{G(2,hp)}, v{G(2,hp)+1}')
        q.issue('w', f'ds_write_b64 v228, v[{ACC(1,t)+2}:{ACC(1,t)+3}] offset:{t*128}')
    seg(a, 'cq', 2)
    if SPROF == 3: stamp(a, 1)
    SC = lambda u: 132 + 8 * u; SP = lambda u: 136 + 8 * u
    Qf = lambda u: ACC(0, u + 1); Kf = lambda t: ACC(1, t)
    for t in range(11):
        for hp in range(2): a(f'v_permlane16_swap_b32 v{ACC(0,t)+2+hp}, v{ACC(1,t)+2+hp}')
    q.wait('w')
    for t in range(11): q.issue('V', f'ds_read_b64_tr_b16 v[{Vl(t)}:{Vl(t)+1}], v229 offset:{t*128}')
    a('s_mov_b64 exec, s[26:27]')
    for u in range(10): a(f'v_mov_b64 v[{Qf(u)+2}:{Qf(u)+3}], 0')
    a('s_mov_b64 exec, s[24:25]')
    def sel1(u):
        a(f'v_cndmask_b32 v{SC(u)}, v{SC(u)}, v{SC(u)+1}, s[74:75]'); a(f'v_cndmask_b32 v{SC(u)+2}, v{SC(u)+2}, v{SC(u)+3}, s[74:75]')
        a(f'v_cndmask_b32 v{SP(u)}, v{SP(u)}, v{SP(u)+1}, s[74:75]'); a(f'v_cndmask_b32 v{SP(u)+2}, v{SP(u)+2}, v{SP(u)+3}, s[74:75]')
    for u in range(10):
        a(f'v_mfma_f32_16x16x32_bf16 v[{SC(u)}:{SC(u)+3}], v[{Kf(u+1)}:{Kf(u+1)+3}], v[{Qf(u)}:{Qf(u)+3}], 0')
        a(f'v_mfma_f32_16x16x32_bf16 v[{SP(u)}:{SP(u)+3}], v[{Kf(u)}:{Kf(u)+3}], v[{Qf(u)}:{Qf(u)+3}], 0')
        if u >= 3: sel1(u - 3)
    for u in range(7, 10): sel1(u)
    a('s_cmp_lg_u32 s56, 0'); a('s_cbranch_scc1 cq_nofix')
    a(f'v_mov_b32 v{SP(0)}, {f32(-1e30)}'); a(f'v_mov_b32 v{SP(0)+2}, {f32(-1e30)}')
    a.label('cq_nofix')
    if QLATE: lds_arrive(a, LCN + 4, 'v238', 'v239')
    if SPROF == 3: stamp(a, 2)
    LA = lambda u: 44 + 2 * u; LB = lambda u: 45 + 2 * u; M = lambda u: 64 + u
    for u in range(10):
        a(f'v_cndmask_b32 v{LA(u)}, v{SP(u)}, v{SC(u)}, s[76:77]'); a(f'v_cndmask_b32 v{LB(u)}, v{SP(u)+2}, v{SC(u)+2}, s[78:79]')
    for u in range(10): a(f'v_max_f32 v{M(u)}, v{LA(u)}, v{LB(u)}')
    a('v_mov_b32 v74, 1.0'); a('v_mov_b32 v75, 1.0')
    def reduce12(op, post):
        B4 = [64, 68, 72]
        for A in B4: a(f'v_permlane16_swap_b32 v{A}, v{A+1}'); a(f'v_permlane16_swap_b32 v{A+2}, v{A+3}')
        for A in B4: a(f'{op} v{A}, v{A}, v{A+1}'); a(f'{op} v{A+2}, v{A+2}, v{A+3}')
        for A in B4: a(f'v_permlane32_swap_b32 v{A}, v{A+2}')
        for A in B4: a(f'{op} v{A}, v{A}, v{A+2}')
        for A in B4: post(A)
        for A in B4: a(f'v_mov_b32 v{A+2}, v{A}')
        for A in B4: a(f'v_permlane32_swap_b32 v{A}, v{A+2}')
        for A in B4: a(f'v_mov_b32 v{A+1}, v{A}'); a(f'v_mov_b32 v{A+3}, v{A+2}')
        for A in B4: a(f'v_permlane16_swap_b32 v{A}, v{A+1}'); a(f'v_permlane16_swap_b32 v{A+2}, v{A+3}')
    cs = 20 ** -0.5 * LOG2E
    a(f's_mov_b32 s68, {f32(cs)}'); a(f's_mov_b32 s69, {f32(cs)}')
    reduce12('v_max_f32', lambda r: a(f'v_mul_f32 v{r}, s68, v{r}'))
    for u in range(10):
        h = M(u) & 1
        a(f'v_pk_fma_f32 {P(LA(u))}, {P(LA(u))}, s[68:69], {P(M(u) & ~1)} op_sel:[0,0,{h}] op_sel_hi:[1,1,{h}] neg_lo:[0,0,1] neg_hi:[0,0,1]')
    for u in range(10):
        a(f'v_exp_f32 v{LA(u)}, v{LA(u)}'); a(f'v_exp_f32 v{LB(u)}, v{LB(u)}')
    seg(a, 'cq', 3)
    for u in range(10): a(f'v_add_f32 v{M(u)}, v{LA(u)}, v{LB(u)}')
    reduce12('v_add_f32', lambda r: a(f'v_rcp_f32 v{r}, v{r}'))
    for u in range(10):
        h = M(u) & 1
        a(f'v_pk_mul_f32 {P(LA(u))}, {P(LA(u))}, {P(M(u) & ~1)} op_sel:[0,{h}] op_sel_hi:[1,{h}]')
    for u in range(10): a(f'v_cvt_pk_bf16_f32 v{LA(u)}, v{LA(u)}, v{LB(u)}')
    a('s_waitcnt lgkmcnt(0)')
    if SPROF == 3: stamp(a, 5)
    PF = Qf
    def pv(u):
        a(f'v_mfma_f32_16x16x32_bf16 v[{SC(u)}:{SC(u)+3}], v[{Vp(u)}:{Vp(u)+3}], v[{PF(u)}:{PF(u)+3}], 0')
        a(f'v_mfma_f32_16x16x32_bf16 v[{SP(u)}:{SP(u)+3}], v[{Vl(u)}:{Vl(u)+3}], v[{PF(u)}:{PF(u)+3}], 0')
    for u in range(10):
        for z in range(4): a(f'v_perm_b32 v{PF(u)+z}, v{LA(u)}, v{LA(u)}, v{232+z}')
        if u: pv(u - 1)
    pv(9)
    OM = lambda n: 44 + 4 * n
    for n in range(5):
        for e in range(2):
            u = 2 * n + e
            a(f'v_cvt_pk_bf16_f32 v{OM(n)+2*e}, v{SC(u)}, v{SC(u)+1}'); a(f'v_cvt_pk_bf16_f32 v{OM(n)+2*e+1}, v{SC(u)+2}, v{SC(u)+3}')
        if n:
            m = n - 1
            a(f'v_permlane16_swap_b32 v{OM(m)}, v{OM(m)+2}'); a(f'v_permlane16_swap_b32 v{OM(m)+1}, v{OM(m)+3}')
            guard(a, f'buffer_store_dwordx4 v[{OM(m)}:{OM(m)+3}], v236, s[36:39], s{48+m} offen sc1')
    for z in range(4):
        a(f's_mov_b64 exec, s[{28+2*z}:{29+2*z}]')
        for m in range(3):
            u = 4 * m + z
            if u < 10:
                a(f'v_cvt_pk_bf16_f32 v{64+2*m}, v{SP(u)}, v{SP(u)+1}'); a(f'v_cvt_pk_bf16_f32 v{65+2*m}, v{SP(u)+2}, v{SP(u)+3}')
    a('s_mov_b64 exec, s[24:25]')
    a(f'v_permlane16_swap_b32 v{OM(4)}, v{OM(4)+2}'); a(f'v_permlane16_swap_b32 v{OM(4)+1}, v{OM(4)+3}')
    seg(a, 'cq', 4)
    a(f'buffer_store_dwordx4 v[{OM(4)}:{OM(4)+3}], v236, s[36:39], s52 offen sc1')
    a('buffer_store_dwordx2 v[64:65], v237, s[36:39], 0 offen sc1')
    a('buffer_store_dwordx2 v[66:67], v237, s[36:39], s58 offen sc1')
    a('buffer_store_dwordx2 v[68:69], v244, s[36:39], s53 offen sc1')
    a('s_add_u32 s62, s41, 16'); a('s_add_u32 s63, s41, 175'); a('s_movk_i32 s66, 410'); a('s_add_u32 s67, s44, 16')

def main():
    a = Asm()
    ref = open('cdna_kernels/' + NAME + '.s.ref').read().split('\n')
    for l in ref:
        if l.startswith('; @launch'): break
        a.raw(l)
    if E("LIST", 0): a.raw(f'; @launch kernel={KN} grid=(256,1,1) block=(512,1,1) lds=163840')
    else: a.raw('; @launch grid=(256,1,1) block=(512,1,1) lds=163840')
    a.raw('.amdgcn_target "amdgcn-amd-amdhsa--gfx950"')
    a.raw('.text'); a.raw(f'.globl {KN}'); a.raw(f'.type {KN},@function')
    kernel(a)
    a.raw('.section .rodata,"a"'); a.raw('.p2align 6')
    a.raw(f'''.amdhsa_kernel {KN}
  .amdhsa_next_free_vgpr 256
  .amdhsa_next_free_sgpr 100
  .amdhsa_accum_offset 256
  .amdhsa_group_segment_fixed_size 0
  .amdhsa_kernarg_size 80
  .amdhsa_user_sgpr_count 2
  .amdhsa_user_sgpr_kernarg_segment_ptr 1
  .amdhsa_system_sgpr_workgroup_id_x 1
.end_amdhsa_kernel''')
    open(sys.argv[1], 'w').write(a.text())
    print('nops inserted', a.nops)
main()
```

```python
import sys, math, os
from asmlib import *

NAME = "parallel_sum__sliding_local_dilated__glu_gated_geglu__prompt"
KN = NAME + "_kernel"
A2_RB, A2_SZ = 278528, 32 * 278528
WS_W2, W2_CB, W2_SZ = 0x900000, 348160, 8 * 348160
WS_STAT, WS_CNT = 0x1400000, 0x1410000
C_STAT, C_W2, C_WG = 0, 16, 32
XSZ = 2048 * 1280
OOB = 0x7f000000
LOG2E = 1.4426950408889634
C1 = -2.0 * LOG2E * math.sqrt(2.0 / math.pi)
C2 = C1 * 0.044715
E = lambda k, d: int(os.environ.get(k, d))
PROF = E("PROF", 0); CLK = E("CLK", 0); SPROF = E("SPROF", 0)
ORD = [int(c) for c in os.environ.get("ORD", "55")]; PRE2 = E("PRE2", 0); TA = E("TA", 0); NSTG = E("NSTG", 4); STG0 = E("STG0", -2); TW = E("TW", 1); TB = E("TB", 7); TCB = E("TCB", 2); DRY = E("DRY", 0); OSC = os.environ.get("OSC", ""); GLATE = E("GLATE", -1); EB0 = E("EB0", 1); RETOUCH = E("RETOUCH", 1); MAP2 = E("MAP2", 0); QLATE = E("QLATE", 0); OCHK = E("OCHK", 7)
WSRC = os.environ.get("WSRC", "HHHLHSLHSLHSLLSLL")
LA_A = E("LA_A", 4); LA_W = E("LA_W", 4); PACE = E("PACE", 3); PRE = E("PRE", 2)
OWN = E("OWN", 1); PPOLL = E("PPOLL", 0); PSL = E("PSL", 2)
NTP = os.environ.get("NTP", ""); NTW = os.environ.get("NTW", ""); NTX = os.environ.get("NTX", ""); NTT = os.environ.get("NTT", "")
CSTR = E('CSTR', 256); ALLM = E('ALLM', 0); SPOLL = E('SPOLL', 1); SO = E('SO', 1); SS_ = E('SS', 0)
SPIN = 30000; SLEEP = E("SLEEP", 4)
CH = [int(c) for c in os.environ.get("CH", "2222")]
WS_PROF = 0x2000000
GX, GXS, GWS = 98304, 14336, 24576
QX, QXS, QWS = 61440, 22528, 15360
LT2 = 141312
LST = LT2 + 3 * 5120
LRP = LST + 3072
LCN = LRP + 512
PB_HI = 61440
LS2 = LCN + 64
QST = 520
L = 'v243'

def srd(a, d, lo, hi, size, add=None):
    if add is None:
        a(f's_mov_b32 s{d}, s{lo}'); a(f's_mov_b32 s{d+1}, s{hi}')
    else:
        a(f's_add_u32 s{d}, s{lo}, {add}'); a(f's_addc_u32 s{d+1}, s{hi}, 0')
    a(f's_mov_b32 s{d+2}, {size}'); a(f's_mov_b32 s{d+3}, 0x20000')

MUTE = [False]
def stamp(a, n):
    if PROF and not (MUTE[0] and n < 7):
        a(f'{"s_memtime" if CLK else "s_memrealtime"} s[{80+2*n}:{81+2*n}]'); a('s_waitcnt lgkmcnt(0)')
def stamp_flush(a, waveadd=0):
    if not PROF: return
    a('s_waitcnt vmcnt(0)'); stamp(a, 7)
    a(f's_add_u32 s96, s22, {WS_PROF}'); a('s_addc_u32 s97, s23, 0')
    a(f's_lshl_b32 s98, s2, 3'); a(f's_add_u32 s98, s98, s40'); a(f's_add_u32 s98, s98, {waveadd}'); a('s_lshl_b32 s98, s98, 6')
    a('v_mov_b32 v0, s98')
    for n in range(8):
        a(f'v_mov_b32 v2, s{80+2*n}'); a(f'v_mov_b32 v3, s{81+2*n}')
        a(f'global_store_dwordx2 v0, v[2:3], s[96:97] offset:{8*n}')

class Q:
    def __init__(s, a, cnt, mx): s.a = a; s.q = []; s.cnt = cnt; s.mx = mx; s.n = {}
    def issue(s, tag, text):
        if len(s.q) >= s.mx:
            s.a(f's_waitcnt {s.cnt}({s.mx - 1})'); s.q = s.q[-(s.mx - 1):]
        s.a(text); s.q.append(tag); s.n[tag] = s.n.get(tag, 0) + 1; s.tot = getattr(s, 'tot', 0) + 1
    def wait(s, tag):
        if tag not in s.q: return
        idx = max(i for i, t in enumerate(s.q) if t == tag)
        n = len(s.q) - 1 - idx
        s.a(f's_waitcnt {s.cnt}({n})'); s.q = s.q[idx + 1:]
    def clear(s): s.q = []

_pl = [0]
def poll(a, va, vp, target, base='s[10:11]', preissued=False, st='s70', mask=False):
    _pl[0] += 1; n = _pl[0]
    a(f's_mov_b32 {st}, 0')
    if preissued: a(f's_branch pl{n}_chk')
    a.label(f'pl{n}_top')
    a(f'global_load_dword {vp}, {va}, {base} sc1')
    a.label(f'pl{n}_chk')
    a('s_waitcnt vmcnt(0)')
    if mask: a(f'v_and_b32 {vp}, {target}, {vp}')
    a(f'v_cmp_ne_u32 vcc, {target}, {vp}')
    a('s_nop 1')
    a(f's_cbranch_vccz pl{n}_ok')
    a(f's_sleep {SLEEP}')
    a(f's_add_u32 {st}, {st}, 1'); a(f's_cmp_lt_u32 {st}, {SPIN}'); a(f's_cbranch_scc1 pl{n}_top')
    a('s_endpgm')
    a.label(f'pl{n}_ok')

assert all((x * 607) >> 16 == x // 108 for x in range(2112))
assert all((x * 410) >> 16 == x // 160 for x in range(0, 2560, 16))
_sp = [0]
def sread(a, dst, off, base='s[10:11]', load=False):
    if SPOLL == 1 and not load: a(f's_mov_b32 {dst}, 0'); a(f's_atomic_add {dst}, {base}, {off} glc')
    else: a(f's_load_dword {dst}, {base}, {off} glc')
def spoll(a, items, base='s[10:11]', preissued=False, load=False):
    _sp[0] += 1; n = _sp[0]
    a('s_mov_b32 s70, 0')
    if preissued: a(f's_branch sq{n}_chk')
    a.label(f'sq{n}_top')
    for d, o, t, m in items: sread(a, d, o, base, load)
    a.label(f'sq{n}_chk')
    a('s_waitcnt lgkmcnt(0)')
    for k, (d, o, t, m) in enumerate(items):
        if m: a(f's_and_b32 {d}, {d}, {t}')
        a(f's_cmp_eq_u32 {d}, {t}')
        a(f's_cbranch_scc1 sq{n}_ok' if k == len(items) - 1 else f's_cbranch_scc0 sq{n}_no')
    a.label(f'sq{n}_no')
    a(f's_sleep {SLEEP}')
    a('s_add_u32 s70, s70, 1'); a(f's_cmp_lt_u32 s70, {SPIN}'); a(f's_cbranch_scc1 sq{n}_top')
    a('s_endpgm')
    a.label(f'sq{n}_ok')
def cntbase(a):
    a(f's_add_u32 s10, s22, {WS_CNT}'); a('s_addc_u32 s11, s23, 0')
def bar(a, n=1):
    for _ in range(n): a('s_barrier')

_ls = [0]
def lds_arrive(a, off, va, vb):
    a(f'v_mov_b32 {va}, {off}'); a(f'v_mov_b32 {vb}, 1')
    a('s_mov_b64 exec, 1'); a(f'ds_add_u32 {va}, {vb}'); a('s_mov_b64 exec, -1')
def lds_wait(a, off, va, vb, sleep=0, setaddr=True):
    _ls[0] += 1; n = _ls[0]
    if setaddr: a(f'v_mov_b32 {va}, {off}')
    a('s_mov_b32 s70, 0')
    a.label(f'lw{n}')
    a(f'ds_read_b32 {vb}, {va}'); a('s_waitcnt lgkmcnt(0)'); a(f'v_readfirstlane_b32 s71, {vb}')
    a('s_cmp_ge_u32 s71, 4'); a(f's_cbranch_scc1 lw{n}_ok')
    if sleep: a(f's_sleep {sleep}')
    a('s_add_u32 s70, s70, 1'); a('s_cmp_lt_u32 s70, 200000'); a(f's_cbranch_scc1 lw{n}')
    a('s_endpgm')
    a.label(f'lw{n}_ok')

_gd = [0]
def guard(a, *ins):
    _gd[0] += 1
    if DRY: a(f's_cbranch_execz gd{_gd[0]}')
    for t in ins: a(t)
    if DRY: a.label(f'gd{_gd[0]}')
def seg(a, P, n):
    if not DRY: return
    if n > 0: a(f's_cbranch_execz {P}_ret')
    if n < 4: a.label(f'{P}_seg{n}')
def dryrun(a, P):
    if not DRY: return
    a('s_mov_b64 exec, 0')
    for n in range(3):
        a(f's_cmp_eq_u32 s40, {n}'); a(f's_cbranch_scc1 {P}_seg{n}')
    a(f's_branch {P}_seg3')
    a.label(f'{P}_ret')
    a('s_mov_b64 exec, -1')
    a.fence(12)

def kernel(a):
    a.raw('.p2align 8'); a.label(KN)
    a('s_cmp_ge_u32 s2, 256'); a('s_cbranch_scc1 k_exit')
    if E('SCRAMBLE', 0) == 2: a('s_bfe_u32 s3, s2, 0x30003'); a('s_xor_b32 s2, s2, s3')
    if E('SCRAMBLE', 0) == 1: a('s_and_b32 s3, s2, 7'); a('s_lshl_b32 s3, s3, 5'); a('s_lshr_b32 s2, s2, 3'); a('s_or_b32 s2, s2, s3')
    a('s_load_dwordx4 s[4:7], s[0:1], 0'); a('s_load_dwordx4 s[12:15], s[0:1], 32'); a('s_load_dwordx4 s[20:23], s[0:1], 64')
    a('s_load_dwordx2 s[8:9], s[0:1], 16'); a('s_load_dwordx4 s[16:19], s[0:1], 48')
    a('v_lshrrev_b32 v1, 6, v0'); a('v_and_b32 v243, 63, v0')
    a('v_readfirstlane_b32 s40, v1')
    a('s_getpc_b64 s[46:47]')
    a.label('k_pc')
    a('s_cmp_ge_u32 s40, 4'); a('s_cbranch_scc1 k_nopf')
    a('v_lshlrev_b32 v2, 7, v0'); a('v_add_u32 v3, 32768, v2')
    a('v_min_u32 v2, k_end-k_pc-4, v2'); a('v_min_u32 v3, k_end-k_pc-4, v3'); a('v_and_b32 v2, -4, v2'); a('v_and_b32 v3, -4, v3')
    a('global_load_dword v255, v2, s[46:47]'); a('global_load_dword v254, v3, s[46:47]')
    a.label('k_nopf')
    stamp(a, 0)
    a('s_and_b32 s44, s2, 3'); a('s_bfe_u32 s48, s2, 0x10002'); a('s_lshr_b32 s46, s2, 3')
    a('s_sub_u32 s49, 10, s48'); a('s_lshl_b32 s50, s49, 1')
    a('s_mul_i32 s51, s48, 10')
    a('s_cmp_ge_u32 s46, s50'); a('s_cselect_b32 s43, 1, 0'); a('s_cbranch_scc0 k_d1')
    a('s_sub_u32 s46, s46, s50'); a('s_add_u32 s49, s48, 6'); a('s_mul_i32 s51, s48, 6')
    a.label('k_d1')
    a('s_cmp_ge_u32 s46, s49'); a('s_cselect_b32 s47, 1, 0'); a('s_cselect_b32 s50, s49, 0'); a('s_sub_u32 s46, s46, s50')
    a('s_lshl_b32 s44, s44, 1'); a('s_add_u32 s44, s44, s47')
    a('s_add_u32 s45, s46, s51')
    a('s_mul_i32 s41, s45, 108'); a('s_mul_i32 s50, s45, 160'); a('s_sub_u32 s50, s50, 16')
    a('s_cmp_eq_u32 s43, 1'); a('s_cselect_b32 s41, s50, s41')
    a('s_cmp_lt_u32 s40, 4'); a('s_cbranch_scc1 k_cons')
    a('s_sub_u32 s40, s40, 4')
    a('s_cmp_eq_u32 s40, 3'); a('s_cbranch_scc1 k_serv')
    if TA:
        for cls in range(3):
            if cls < 2: a(f's_cmp_lg_u32 s40, {cls}'); a(f's_cbranch_scc1 k_t{cls}')
            touch_setup(a, cls, 'v40', 'v41', 'v42')
            a('s_waitcnt lgkmcnt(0)')
            for _ in range(TA):
                touch(a, cls, 'v40', 'v43')
                if cls != 1: a('global_load_dword v43, v44, s[4:5]') if False else None
            if cls < 2: a('s_branch k_td'); a.label(f'k_t{cls}')
        a.label('k_td')
    NK = E("NK", max(ORD)); KS = E("KS", 2); KT = E("KT", 1)
    assert sum(ORD) == 10
    def order(key):
        first, rest, base = [], [], 0
        for n in ORD:
            z = key % n
            first.append(base + z); rest += [base + (z + d) % n for d in range(1, n)]; base += n
        return first + rest
    def order5(key):
        return [(2 * key + d) % 10 for d in range(10)]
    a(f's_mul_i32 s68, s47, {KS}'); a('s_add_u32 s68, s68, s46'); a(f's_mul_i32 s46, s43, {KT}'); a('s_add_u32 s68, s68, s46')
    for _ in range(2):
        a(f's_cmp_ge_u32 s68, {NK}'); a(f's_cselect_b32 s46, {NK}, 0'); a('s_sub_u32 s68, s68, s46')
    assert NK == 1 or 9 + KS + KT < 3 * NK
    for key in range(NK):
        o = order5(key) if ORD == [5, 5] else order(key)
        v = sum(x << (4 * n) for n, x in enumerate(o))
        if key == 0: a(f's_mov_b32 s64, {v & 0xffffffff}'); a(f's_mov_b32 s65, {v >> 32}')
        else: a(f's_cmp_eq_u32 s68, {key}'); a(f's_cselect_b32 s64, {v & 0xffffffff}, s64'); a(f's_cselect_b32 s65, {v >> 32}, s65')
    a('s_mov_b64 s[66:67], s[64:65]'); a('s_and_b32 s68, s64, 15'); a('s_mov_b32 s69, 0')
    a(f'v_lshrrev_b32 v2, 3, {L}'); a(f'v_and_b32 v3, 7, {L}')
    a('s_movk_i32 s53, 1280'); a('s_lshl_b32 s58, s68, 7'); a('s_lshl_b32 s54, s40, 10'); a('s_mov_b32 s61, 0')
    a(f'v_mov_b32 v9, {OOB}')
    a('s_cmp_eq_u32 s43, 1'); a('s_cbranch_scc1 k_ldq')
    loader(a, False)
    a('s_branch k_gemm2')
    a.label('k_ldq'); loader(a, True)
    a.label('k_gemm2'); gemm2(a)
    a.label('k_serv'); service(a)
    a.label('k_cons')
    a('s_cmp_eq_u32 s43, 1'); a('s_cbranch_scc1 k_consq')
    consumerG(a)
    a.label('k_consq'); consumerQ(a)
    a.label('k_pub'); publish(a)
    a.label('k_exit'); a('s_endpgm')
    a.label('k_end')

def touch_setup(a, cls, v, t1, t2):
    a('s_lshr_b32 s72, s2, 3'); a('s_and_b32 s73, s2, 3')
    if cls == 0:
        a('s_bfe_u32 s74, s2, 0x10002'); a('s_mul_i32 s74, s74, 944'); a('s_mul_i32 s72, s72, 35'); a('s_add_u32 s72, s72, s74')
        a(f'v_min_u32 {v}, 34, {L}'); a(f'v_add_u32 {v}, s72, {v}'); a(f'v_min_u32 {v}, 2047, {v}'); a(f'v_mul_u32_u24 {v}, 1280, {v}')
    elif cls == 1:
        a(f's_mul_i32 s72, s72, {2*3072}'); a('s_mul_i32 s73, s73, 768'); a('s_add_u32 s72, s72, s73')
        a(f'v_min_u32 {v}, 11, {L}'); a(f'v_cmp_lt_u32 vcc, 5, {v}'); a(f'v_mov_b32 {t1}, {3072-768}'); a(f'v_cndmask_b32 {t1}, 0, {t1}, vcc')
        a(f'v_lshl_add_u32 {v}, {v}, 7, {t1}'); a(f'v_add_u32 {v}, s72, {v}')
    else:
        a(f's_mul_i32 s72, s72, {2*3840}'); a('s_mul_i32 s73, s73, 320'); a('s_and_b32 s73, s73, -128'); a('s_add_u32 s72, s72, s73')
        a(f'v_min_u32 {v}, 17, {L}'); a(f'v_mul_u32_u24 {t1}, 86, {v}'); a(f'v_lshrrev_b32 {t1}, 8, {t1}')
        a(f'v_mul_u32_u24 {t1}, {1280-384}, {t1}'); a(f'v_lshl_add_u32 {v}, {v}, 7, {t1}'); a(f'v_add_u32 {v}, s72, {v}')
def touch(a, cls, v, dst):
    if cls == 0: a(f'global_load_dword {dst}, {v}, s[4:5]'); a(f'v_add_u32 {v}, 128, {v}')
    elif cls == 1: a(f'global_load_dword {dst}, {v}, s[12:13]'); a(f'global_load_dword {dst}, {v}, s[14:15]'); a(f'v_add_u32 {v}, {64*3072}, {v}')
    else: a(f'global_load_dword {dst}, {v}, s[6:7]'); a(f'v_add_u32 {v}, {64*3840}, {v}')

def pre_setup(a):
    assert WSRC[:PRE] == 'H' * PRE and MAP2 == 0 and PRE <= 3
    srd(a, 36, 22, 23, W2_SZ, WS_W2)
    a(f'v_lshlrev_b32 v248, 4, {L}')
    a('s_lshr_b32 s47, s2, 6'); a('s_bfe_u32 s48, s2, 0x30003')
    a(f's_mul_i32 s49, s48, {W2_CB}'); a(f's_mul_i32 s50, s40, {17*5120}'); a('s_add_u32 s49, s49, s50')
    a('s_mul_i32 s48, s48, 3'); a('s_lshr_b32 s48, s48, 1'); a('s_mul_i32 s47, s47, 3'); a('s_add_u32 s48, s48, s47')
    a('s_cmp_ge_u32 s48, 12'); a('s_cselect_b32 s47, 12, 0'); a('s_sub_u32 s48, s48, s47')
    for n in range(PRE):
        d = f's{74+2*n}'
        a(f's_add_u32 {d}, s48, {n}'); a(f's_cmp_ge_u32 {d}, 12'); a('s_cselect_b32 s47, 12, 0'); a(f's_sub_u32 {d}, {d}, s47')
        a(f's_mul_i32 {d}, {d}, 5120'); a(f's_add_u32 {d}, {d}, s49'); a(f's_add_u32 s{75+2*n}, {d}, 4096')
def pre_issue(a, wait=True):
    if SPROF == 5: stamp(a, 1)
    if wait: a('s_waitcnt vmcnt(0)')
    if SPROF == 5: stamp(a, 2)
    for n in range(PRE):
        for t in range(5):
            d = 80 + 20 * n + 4 * t
            if t < 4: a(f'buffer_load_dwordx4 v[{d}:{d+3}], v248, s[36:39], s{74+2*n} offen offset:{t*1024} sc1')
            else: a(f'buffer_load_dwordx4 v[{d}:{d+3}], v248, s[36:39], s{75+2*n} offen sc1')
    if SPROF == 5: stamp(a, 3)
    bar(a)
    if SPROF == 5: stamp(a, 4)

def loader(a, isq):
    P = 'lq' if isq else 'lg'
    NXM = 8 if isq else 5; NQ = 22 if isq else 14
    XO, XS, WS = (QX, QXS, QWS) if isq else (GX, GXS, GWS)
    RS = 3840 if isq else 3072
    XV = 12
    a('v_lshrrev_b32 v4, 1, v2'); a('v_xor_b32 v4, v4, v3'); a('s_and_b32 s51, s40, 1'); a('s_lshl_b32 s51, s51, 2'); a('v_xor_b32 v4, s51, v4')
    a('v_lshlrev_b32 v4, 4, v4')
    a('s_lshl_b32 s52, s40, 3'); a('s_add_u32 s52, s52, s41'); a('v_add_u32 v5, s52, v2')
    a('v_mul_lo_u32 v6, v5, s53'); a(f'v_add_u32 v{XV}, v6, v4')
    for m in range(1, NXM):
        if m == 1: a(f'v_xor_b32 v7, 64, v{XV}')
        a(f'v_add_u32 v{XV+m}, {m*24*1280}, v{XV if m % 2 == 0 else 7}')
    if isq:
        a('v_cmp_gt_i32 vcc, 0, v5'); a(f'v_cndmask_b32 v{XV}, v{XV}, v9, vcc')
    else:
        a('v_subrev_u32 v5, s41, v5'); a('v_cmp_gt_u32 vcc, 12, v5'); a(f'v_cndmask_b32 v{XV+4}, v9, v{XV+4}, vcc')
    a(f's_add_u32 s59, s54, {XO}')
    a('s_waitcnt lgkmcnt(0)')
    srd(a, 24, 4, 5, XSZ)
    cnt = [0]
    def Xl(m):
        last = m == NXM - 1
        if last:
            cnt[0] += 1
            a(f's_cmp_ge_u32 s40, {NQ - 3*(NXM-1)}'); a(f's_cbranch_scc1 {P}_sk{cnt[0]}')
        a(f's_add_u32 m0, s59, {m*3072}')
        a(f'buffer_load_dwordx4 v{XV+m}, s[24:27], s58 offen {NTX} lds')
        if last: a.label(f'{P}_sk{cnt[0]}')
    def Xadv():
        a('s_lshr_b64 s[66:67], s[66:67], 4'); a('s_and_b32 s58, s66, 15'); a('s_lshl_b32 s58, s58, 7')
        a(f's_add_u32 s59, s59, {XS}')
        a(f's_cmp_ge_u32 s59, {XO+3*XS}'); a(f's_cselect_b32 s60, {3*XS}, 0'); a('s_sub_u32 s59, s59, s60')
    def issueX():
        for m in range(NXM): Xl(m)
        Xadv()
    if TA: a(f's_waitcnt vmcnt({TA - TW})')
    if SPROF == 4: stamp(a, 1)
    issueX()
    WV = 20
    a(f's_movk_i32 s42, {RS}')
    if isq:
        NW = 5
        srd(a, 28, 6, 7, 640 * 3840)
        a('s_mul_i32 s46, s40, 1280'); a('s_mul_i32 s47, s44, 160'); a('s_add_u32 s46, s46, s47')
        for n in range(5):
            a(f'v_add_u32 v4, {64*n}, {L}'); a('v_mul_u32_u24 v5, 205, v4'); a('v_lshrrev_b32 v5, 11, v5')
            a('v_mul_u32_u24 v6, 10, v5'); a('v_sub_u32 v4, v4, v6'); a('v_lshl_add_u32 v4, v4, 4, s46')
            a('v_lshrrev_b32 v6, 1, v5'); a('v_xor_b32 v6, v6, v5'); a('v_and_b32 v6, 4, v6'); a('v_mul_u32_u24 v6, 3, v6'); a('v_xor_b32 v5, v5, v6')
            a(f'v_mad_u32_u24 v{WV+n}, v5, s42, v4')
        a('s_mul_i32 s57, s40, 5120')
        def Wl(n):
            a(f's_add_u32 m0, s57, {n*1024}')
            a(f'buffer_load_dwordx4 v{WV+n}, s[28:31], s56 offen {NTW} lds')
    else:
        NW = 8
        srd(a, 28, 12, 13, 640 * 3072); srd(a, 32, 14, 15, 640 * 3072)
        a(f'v_bfe_u32 v4, {L}, 4, 1'); a('v_lshlrev_b32 v4, 2, v4'); a('v_xor_b32 v4, v4, v3'); a('v_lshlrev_b32 v4, 4, v4')
        a('s_mul_i32 s46, s44, 384'); a('s_lshl_b32 s47, s40, 7'); a('s_add_u32 s46, s46, s47')
        a('v_mad_u32_u24 v4, v2, s42, v4'); a(f'v_add_u32 v{WV}, s46, v4'); a(f'v_xor_b32 v4, 16, v{WV}')
        a(f'v_add_u32 v{WV+1}, {8*3072}, v4'); a(f'v_add_u32 v{WV+2}, {16*3072}, v{WV}'); a(f'v_add_u32 v{WV+3}, {24*3072}, v4')
        a('s_lshl_b32 s57, s40, 12')
        def Wl(n):
            half, g = n >> 2, n & 3
            a(f's_add_u32 m0, s57, {half*12288 + g*1024}')
            a(f'buffer_load_dwordx4 v{WV+g}, s[{28+4*half}:{31+4*half}], s56 offen {NTW} lds')
    a(f's_mul_i32 s56, s68, {64*RS}')
    wpar = [0]
    def Wadv():
        if wpar[0] == 0: a(f's_add_u32 s56, s56, {32*RS}')
        else: a('s_lshr_b64 s[64:65], s[64:65], 4'); a('s_and_b32 s56, s64, 15'); a(f's_mul_i32 s56, s56, {64*RS}')
        wpar[0] ^= 1
        a(f's_add_u32 s57, s57, {WS}')
        a(f's_cmp_ge_u32 s57, {4*WS}'); a(f's_cselect_b32 s60, {4*WS}, 0'); a('s_sub_u32 s57, s57, s60')
    def issueW():
        for n in range(NW): Wl(n)
        Wadv()
    issueW(); issueW()
    if SPROF == 4: stamp(a, 2)
    cntbase(a); pre_setup(a)
    XA = (NXM + 1) // 2; XB_ = NXM - XA
    a(f's_waitcnt vmcnt({NW})')
    if SPROF == 4: stamp(a, 3)
    bar(a)
    if SPROF == 4: stamp(a, 4)
    if EB0:
        issueW(); a(f's_waitcnt vmcnt({NW})'); bar(a); issueX()
    else:
        issueW(); issueX()
        a(f's_waitcnt vmcnt({NW + NXM - 1})'); bar(a)
    if SPROF == 4: stamp(a, 5)
    issueW()
    if SPROF == 4: stamp(a, 6)
    if PROF:
        a('s_memtime s[72:73]'); a('s_waitcnt lgkmcnt(0)'); a('v_mov_b32 v60, s72')
    a.label(f'{P}_loop')
    for n in range(NW): Wl(n)
    for m in range(XA): Xl(m)
    Wadv()
    a(f's_waitcnt vmcnt({2*NW + XA})'); bar(a)
    for m in range(XA, NXM): Xl(m)
    for n in range(NW): Wl(n)
    Wadv(); Xadv()
    a('s_add_u32 s61, s61, 1'); a('s_cmp_lt_u32 s61, 8')
    a(f's_waitcnt vmcnt({2*NW + NXM - 1})'); bar(a)
    if PROF:
        a('s_memtime s[72:73]'); a('s_waitcnt lgkmcnt(0)')
        for r in range(69, 60, -1): a(f'v_mov_b32 v{r}, v{r-1}')
        a('v_mov_b32 v60, s72')
    a(f's_cbranch_scc1 {P}_loop')
    pre_issue(a)
    if PROF:
        a(f's_add_u32 s96, s22, {WS_PROF + 0x20000}'); a('s_addc_u32 s97, s23, 0')
        a('s_lshl_b32 s98, s2, 3'); a('s_add_u32 s98, s98, s40'); a('s_lshl_b32 s98, s98, 6'); a('v_mov_b32 v59, s98')
        for r in range(9): a(f'global_store_dword v59, v{68-r}, s[96:97] offset:{4*r}')

def service(a):
    a('s_and_b32 s50, s2, 7'); a('s_lshl_b32 s51, s50, 5'); a('s_lshr_b32 s46, s2, 3'); a('s_add_u32 s51, s51, s46'); a('s_lshl_b32 s52, s51, 3')
    a(f'v_lshrrev_b32 v1, 4, {L}'); a(f'v_and_b32 v2, 15, {L}'); a('v_add_u32 v1, s52, v1')
    a('s_movk_i32 s53, 1280'); a('v_lshlrev_b32 v3, 4, v2'); a('v_mad_u32_u24 v3, v1, s53, v3')
    a('v_mov_b32 v30, 0')
    a('s_waitcnt lgkmcnt(0)')
    srd(a, 24, 4, 5, XSZ); cntbase(a)
    a('s_movk_i32 s54, 5120')
    for s in range(2):
        for j in range(5):
            d = 140 + 20 * s + 4 * j
            a(f'buffer_load_dwordx4 v[{d}:{d+3}], v3, s[24:27], {"s54" if s else "0"} offen offset:{j*256}')
    a('s_cmp_lg_u32 s2, 0'); a('s_cbranch_scc1 sv_ni')
    a(f'v_mul_u32_u24 v4, {CSTR}, {L}')
    for n in range(5):
        a('global_store_dword v4, v30, s[10:11] sc1'); a(f'v_add_u32 v4, {64*CSTR}, v4')
    a.label('sv_ni')
    if SPROF == 4: stamp(a, 1)
    a('s_mul_i32 s55, s50, 160')
    for n in range(5):
        a(f'v_add_u32 v4, {64*n}, {L}'); a('v_mul_u32_u24 v5, 205, v4'); a('v_lshrrev_b32 v5, 11, v5')
        a('v_mul_u32_u24 v6, 10, v5'); a('v_sub_u32 v4, v4, v6'); a('v_lshl_add_u32 v4, v4, 4, s55')
        a(f'v_lshrrev_b32 v{100+n}, 3, v5'); a(f'v_bfe_u32 v{105+n}, v5, 2, 1'); a('v_and_b32 v5, 3, v5'); a(f'v_mad_u32_u24 v{110+n}, v5, s53, v4')
    for un in range(3):
        sb = 28 + 4 * un
        a(f's_add_u32 s56, s46, {32*un}'); a('s_mul_i32 s57, s56, 241'); a('s_lshr_b32 s57, s57, 12'); a('s_mul_i32 s58, s57, 17'); a('s_sub_u32 s58, s56, s58')
        a('s_cmp_ge_u32 s58, 12'); a(f's_cbranch_scc1 sv_o{un}')
        srd(a, sb, 16, 17, 1536 * 1280)
        a('s_mul_i32 s59, s57, 12'); a('s_add_u32 s59, s59, s58'); a('s_lshl_b32 s59, s59, 5')
        a(f's_movk_i32 s60, {8*1280}'); a(f's_movk_i32 s61, {4*1280}'); a('s_mov_b32 s62, 1'); a('s_mov_b32 s67, 0')
        a(f's_branch sv_c{un}')
        a.label(f'sv_o{un}')
        srd(a, sb, 8, 9, 640 * 1280)
        a('s_sub_u32 s58, s58, 12'); a('s_mul_i32 s59, s57, 160'); a('s_mul_i32 s63, s58, 40')
        a(f's_movk_i32 s60, {8*1280}')
        a('s_cmp_eq_u32 s58, 4'); a('s_cselect_b32 s63, 16, s63'); a(f's_cselect_b32 s60, {40*1280}, s60'); a(f's_cselect_b32 s61, {20*1280}, s54'); a('s_cselect_b32 s67, 0, s54')
        a('s_add_u32 s59, s59, s63'); a('s_mov_b32 s62, 0')
        a.label(f'sv_c{un}')
        a(f's_mul_i32 s{64+un}, s59, 1280')
        for n in range(5):
            a(f'v_and_b32 v4, s62, v{100+n}'); a(f'v_xor_b32 v4, v4, v{105+n}')
            a(f'v_mad_u32_u24 v4, v4, s61, v{110+n}'); a(f'v_mad_u32_u24 v4, v{100+n}, s60, v4')
            a(f'v_lshrrev_b32 v5, 1, v{100+n}'); a(f'v_mad_u32_u24 v{120+5*un+n}, v5, s67, v4')
    if SPROF == 4: stamp(a, 2)
    a(f'v_lshrrev_b32 v4, 4, {L}'); a(f'v_bfe_u32 v5, {L}, 2, 2'); a('v_lshl_add_u32 v4, v4, 3, v5'); a('v_mul_u32_u24 v4, 160, v4')
    a(f'v_add_u32 v4, {LT2}, v4'); a(f'v_and_b32 v5, 3, {L}'); a('v_lshl_add_u32 v26, v5, 4, v4'); a('v_lshl_add_u32 v27, v5, 3, v4')
    a(f'v_lshlrev_b32 v28, 4, {L}'); a('v_add_u32 v29, 4096, v28')
    a(f'v_add_u32 v5, s41, {L}'); a('v_lshlrev_b32 v20, 4, v5'); a('v_add_u32 v21, 1024, v20')
    a(f's_mov_b32 s56, {A2_RB}'); a('s_movk_i32 s57, 2048'); a(f'v_mov_b32 v9, {OOB}')
    a(f'v_lshlrev_b32 v8, 2, {L}'); a(f'v_add_u32 v8, {LRP}, v8')
    for n in range(2):
        if n: a('v_add_u32 v5, 64, v5')
        a('v_lshrrev_b32 v6, 6, v5'); a('v_mul_lo_u32 v6, v6, s56'); a('v_bfe_u32 v7, v5, 4, 2'); a('v_lshl_add_u32 v6, v7, 10, v6')
        a('v_and_b32 v7, 15, v5'); a('v_lshl_add_u32 v6, v7, 4, v6')
        if n:
            a(f'v_cmp_gt_u32 vcc, 44, {L}'); a('v_cmp_gt_u32 s[58:59], s57, v5'); a('s_and_b64 vcc, vcc, s[58:59]'); a('v_cndmask_b32 v6, v9, v6, vcc')
        a(f'ds_write_b32 v8, v6 offset:{256*n}')
    a('s_max_i32 s56, s41, 0'); a('s_lshr_b32 s56, s56, 7'); a('s_add_u32 s57, s41, 175'); a('s_lshr_b32 s57, s57, 7'); a('s_min_u32 s57, s57, 15')
    a(f'v_add_u32 v18, s56, {L}'); a('v_min_u32 v18, s57, v18')
    if MAP2 == 0: a('s_and_b32 s56, s46, 7')
    else: a('s_and_b32 s56, s2, 1'); a('s_lshl_b32 s56, s56, 2'); a('s_and_b32 s57, s46, 3'); a('s_add_u32 s56, s56, s57')
    a(f's_add_u32 s56, s56, {C_W2}'); a('v_mov_b32 v4, s56')
    a(f'v_cmp_gt_u32 vcc, 3, {L}'); a('v_cndmask_b32 v18, v4, v18, vcc'); a(f'v_mul_u32_u24 v18, {CSTR}, v18')
    a('v_mov_b32 v4, 68'); a('v_cndmask_b32 v19, v4, 16, vcc')
    a(f's_add_u32 s56, s50, {C_W2}'); a(f's_mul_i32 s56, s56, {CSTR}'); a('v_mov_b32 v22, s56')
    a('s_cmp_lt_u32 s46, 4'); a('s_cselect_b32 s56, 3, 2'); a('v_mov_b32 v23, s56')
    a('s_lshr_b32 s56, s51, 4'); a(f's_mul_i32 s56, s56, {CSTR}'); a('v_writelane_b32 v22, s56, 0'); a('v_writelane_b32 v23, 1, 0')
    a('v_lshlrev_b32 v24, 4, v1'); a('v_cmp_eq_u32 vcc, 0, v2'); a('v_cndmask_b32 v24, v9, v24, vcc')
    a(f'v_add_u32 v25, {LST}, v28')
    a(f'v_lshlrev_b32 v17, 7, {L}'); a(f'v_lshlrev_b32 v16, 2, {L}'); a(f'v_add_u32 v16, {LS2}, v16')
    srd(a, 76, 22, 23, 32768, WS_STAT)
    for n in range(4): a(f'v_mov_b32 v{8+n}, 0')
    srd(a, 24, 22, 23, W2_SZ, WS_W2)
    a('v_mov_b32 v4, 0x3f803f80')
    def tbatch(n):
        for _ in range(n):
            for cls in range(3): touch(a, cls, f'v{12+cls}', 'v15')
    def t2dma():
        for un in range(3):
            if un == 2: a('s_cmp_ge_u32 s46, 4'); a('s_cbranch_scc1 sv_d3')
            for n in range(5):
                a(f's_mov_b32 m0, {LT2 + un*5120 + n*1024}'); a(f'buffer_load_dwordx4 v{120+5*un+n}, s[{28+4*un}:{31+4*un}], s{64+un} offen {NTT} lds')
        a.label('sv_d3')
    def stload():
        for s in range(2):
            for j in range(5):
                d = 140 + 20 * s + 4 * j
                a(f'buffer_load_dwordx4 v[{d}:{d+3}], v3, s[24:27], {"s54" if s else "0"} offen offset:{j*256}')
        srd(a, 24, 22, 23, W2_SZ, WS_W2)
    def stdot(s):
        for n in range(20):
            d = 140 + 20 * s + n
            a(f'v_dot2c_f32_bf16 v{8+s}, v{d}, v4'); a(f'v_dot2c_f32_bf16 v{10+s}, v{d}, v{d}')
    def stfin():
        a.fence(4)
        for ro in (8, 4, 2, 1):
            for n in range(4): a(f'v_add_f32_dpp v{8+n}, v{8+n}, v{8+n} row_ror:{ro} row_mask:0xf bank_mask:0xf')
        a(f's_mov_b32 s57, {f32(1.0/640)}')
        for s in range(2):
            b = 32 + 4 * s
            a(f'v_mul_f32 v{b}, s57, v{8+s}'); a(f'v_mul_f32 v{b+2}, s57, v{10+s}')
            a(f'v_fma_f32 v{b+2}, -v{b}, v{b}, v{b+2}'); a(f'v_max_f32 v{b+2}, 0, v{b+2}'); a(f'v_add_f32 v{b+2}, {f32(1e-5)}, v{b+2}')
            a(f'v_rsq_f32 v{b+1}, v{b+2}'); a(f'v_sub_f32 v{b}, 0, v{b}'); a(f'v_mov_b32 v{b+3}, 0')
            a(f'buffer_store_dwordx4 v[{b}:{b+3}], v24, s[76:79], 0 offen offset:{s*64} sc1')
    def trst(un):
        if un == 2: a('s_cmp_ge_u32 s46, 4'); a('s_cbranch_scc1 sv_s3')
        for t in range(5):
            d = 40 + 20 * un + 4 * t; ad = 26 if t < 4 else 27; off = un * 5120 + (64 * (t >> 1) + 8 * (t & 1) if t < 4 else 128)
            a(f'ds_read_b64_tr_b16 v[{d}:{d+1}], v{ad} offset:{off}'); a(f'ds_read_b64_tr_b16 v[{d+2}:{d+3}], v{ad} offset:{off+640}')
        a('s_waitcnt lgkmcnt(0)')
        for t in range(5):
            d = 40 + 20 * un + 4 * t
            if t < 4: a(f'buffer_store_dwordx4 v[{d}:{d+3}], v28, s[24:27], s56 offen offset:{t*1024} sc1')
            else: a(f'buffer_store_dwordx4 v[{d}:{d+3}], v29, s[24:27], s56 offen sc1')
        a(f's_add_u32 s56, s56, {32*5120}')
        if un == 2: a.label('sv_s3')
    a(f's_mul_i32 s56, s50, {W2_CB}'); a('s_mul_i32 s57, s46, 5120'); a('s_add_u32 s56, s56, s57')
    if STG0 == -1: t2dma()
    if SPROF == 4: stamp(a, 3)
    bar(a, 2)
    if SPROF == 4: stamp(a, 4)
    assert STG0 == -2
    a('s_cmp_lg_u32 s2, 0'); a('s_cbranch_scc1 sv_n2')
    a('s_waitcnt vmcnt(0)')
    a('v_mov_b32 v5, 1'); a('s_mov_b64 exec, 1'); a('global_store_dword v30, v5, s[20:21] sc1'); a('s_mov_b64 exec, -1')
    a.label('sv_n2')
    t2dma()
    a(f's_waitcnt vmcnt(10)'); stdot(0); stdot(1); stfin()
    if SPROF == 4: stamp(a, 5)
    if STG0 < 0: a('s_mov_b32 s68, 1')
    else:
        a(f's_mul_i32 s68, s46, {(65536 + NSTG - 1) // NSTG}'); a('s_lshr_b32 s68, s68, 16'); a(f's_mul_i32 s68, s68, {NSTG}'); a('s_sub_u32 s68, s68, s46')
        a(f's_sub_u32 s68, s68, {STG0}')
    a('s_mov_b32 s69, 0')
    a.label('sv_lp')
    bar(a)
    a('s_add_u32 s68, s68, 1')
    if STG0 >= 0: a('s_cmp_eq_u32 s68, 0'); a('s_cbranch_scc1 sv_e0')
    E1 = E('E1', 4)
    a(f's_cmp_eq_u32 s68, {E1}'); a('s_cbranch_scc1 sv_e1')
    a(f's_cmp_eq_u32 s68, {E1+1}'); a('s_cbranch_scc1 sv_e2')
    a(f's_cmp_eq_u32 s68, {E1+3}'); a('s_cbranch_scc1 sv_e3')
    a.label('sv_er')
    a('s_add_u32 s69, s69, 1'); a(f's_cmp_lt_u32 s69, {E("NLP", 11)}'); a('s_cbranch_scc1 sv_lp')
    a('s_branch sv_go')
    if STG0 >= 0:
        a.label('sv_e0'); t2dma(); a('s_branch sv_er')
    a.label('sv_e1'); a('s_waitcnt vmcnt(0)'); trst(0); a('s_branch sv_er')
    a.label('sv_e2'); trst(1); trst(2)
    if SS_: sread(a, 's72', 0, 's[20:21]', True)
    else: a('global_load_dword v31, v30, s[20:21] sc1')
    a('s_branch sv_er')
    a.label('sv_e3')
    if SS_: spoll(a, [('s72', 0, 1, False)], 's[20:21]', True, True); a('s_waitcnt vmcnt(0)')
    else: poll(a, 'v30', 'v31', 1, base='s[20:21]', preissued=True)
    a('s_mov_b64 exec, 3'); a('global_atomic_add v22, v23, s[10:11]'); a('s_mov_b64 exec, -1')
    a('s_branch sv_er')
    a.label('sv_go')
    assert STG0 + NSTG - 1 + 5 <= 11
    its = [('s72', 's60', 16, False), ('s73', 's61', 16, False), ('s74', 's62', 16, False), ('s75', 's63', 68, False)]
    if SS_:
        for n in range(4): a(f'v_readlane_b32 s{60+n}, v18, {n}')
        a('s_nop 3')
        for d, o, t, m in its: sread(a, d, o)
    else: a('global_load_dword v31, v18, s[10:11] sc1')
    bar(a, 2)
    if SS_: spoll(a, its, preissued=True)
    else: poll(a, 'v18', 'v31', 'v19', preissued=True)
    a('buffer_load_dwordx4 v[32:35], v20, s[76:79], 0 offen sc1')
    for n in range(1, 3): a(f'buffer_load_dwordx4 v[{32+4*n}:{35+4*n}], v21, s[76:79], 0 offen offset:{(n-1)*1024} sc1')
    bar(a, 2)
    a(f's_mov_b32 s56, {f32(C2)}'); a('s_cmp_eq_u32 s43, 1'); a(f's_cselect_b32 s57, 1.0, {f32(C1)}')
    a('s_waitcnt vmcnt(0)')
    if RETOUCH:
        a('s_getpc_b64 s[58:59]')
        a.label('sv_pc')
        a('s_sub_u32 s58, s58, sv_pc-k_gemm2'); a('s_subb_u32 s59, s59, 0')
        for n in range(4):
            a(f'v_min_u32 v{48+n}, k_end-k_gemm2-4, v17'); a(f'v_and_b32 v{48+n}, -4, v{48+n}')
            a(f'global_load_dword v{48+n}, v{48+n}, s[58:59]')
            if n < 3: a('v_add_u32 v17, 8192, v17')
    for n in range(3):
        b = 32 + 4 * n
        a(f'v_mov_b32 v{b+3}, v{b+2}')
        a(f'v_mul_f32 v{b+2}, v{b+1}, v{b+1}'); a(f'v_mul_f32 v{b+2}, v{b+2}, v{b+1}'); a(f'v_mul_f32 v{b+2}, s56, v{b+2}'); a(f'v_mul_f32 v{b+1}, s57, v{b+1}')
        a(f'ds_write_b128 v25, v[{b}:{b+3}] offset:{n*1024}')
        a(f'ds_write2st64_b32 v16, v{b}, v{b+1} offset0:{n} offset1:{3+n}')
    a('s_waitcnt lgkmcnt(0)')
    pre_setup(a)
    bar(a, 12 - E('NLP', 11))
    pre_issue(a, False)
    a('s_branch k_gemm2')

WREG = 35840
def gemm2(a):
    MUTE[0] = SPROF in (4, 5)
    if MAP2 == 0:
        a('s_and_b32 s41, s2, 7'); a('s_lshl_b32 s41, s41, 2'); a('s_lshr_b32 s47, s2, 6'); a('s_add_u32 s41, s41, s47')
        a('s_bfe_u32 s42, s2, 0x30003'); a('s_mov_b32 s48, s42')
    else:
        a('s_and_b32 s41, s2, 6'); a('s_lshl_b32 s41, s41, 2'); a('s_lshr_b32 s48, s2, 5'); a('s_add_u32 s41, s41, s48')
        a('s_and_b32 s42, s2, 1'); a('s_lshl_b32 s42, s42, 2'); a('s_bfe_u32 s47, s2, 0x20003'); a('s_add_u32 s42, s42, s47')
    a(f'v_lshlrev_b32 v248, 4, {L}')
    srd(a, 28, 22, 23, W2_SZ, WS_W2)
    a(f's_mul_i32 s52, s42, {W2_CB}'); a(f's_mul_i32 s46, s40, {17*5120}'); a('s_add_u32 s52, s52, s46')
    a('s_mul_i32 s56, s48, 3'); a('s_lshr_b32 s56, s56, 1'); a('s_mul_i32 s46, s47, 3'); a('s_add_u32 s56, s56, s46')
    a('s_cmp_ge_u32 s56, 12'); a('s_cselect_b32 s46, 12, 0'); a('s_sub_u32 s56, s56, s46'); a('s_add_u32 s57, s48, s47')
    a(f's_mul_i32 s62, s40, {WREG}')
    q = Q(a, 'vmcnt', 63)
    def soff(s, dst, base, stride):
        if s == 16: a(f's_add_u32 {dst}, {base}, {16*stride}'); return
        if s < 12:
            a(f's_add_u32 {dst}, s56, {s}'); a(f's_cmp_ge_u32 {dst}, 12'); a('s_cselect_b32 s60, 12, 0'); a(f's_sub_u32 {dst}, {dst}, s60')
        else:
            a(f's_add_u32 {dst}, s57, {s}'); a(f's_and_b32 {dst}, {dst}, 3'); a(f's_add_u32 {dst}, {dst}, 12')
        a(f's_mul_i32 {dst}, {dst}, {stride}'); a(f's_add_u32 {dst}, {dst}, {base}')
    free = list(range(80, 248, 4))
    WRg, ARg = {}, {}
    HS = [s for s in range(17) if WSRC[s] == 'H']; LS = [s for s in range(17) if WSRC[s] == 'L']; SS = [s for s in range(17) if WSRC[s] == 'S']
    assert len(WSRC) == 17 and len(LS) <= 7 and len(SS) <= 8 and WSRC[0] == 'H'
    def alloc(n):
        r = free[:n]; del free[:n]; assert len(r) == n; return r
    def wload(s, t, s0, s1):
        d = WRg[s][t]
        if t < 4: q.issue(('W', s), f'buffer_load_dwordx4 v[{d}:{d+3}], v248, s[28:31], {s0} offen offset:{t*1024} sc1')
        else: q.issue(('W', s), f'buffer_load_dwordx4 v[{d}:{d+3}], v248, s[28:31], {s1} offen sc1')
    def ldW(s):
        WRg[s] = alloc(5); soff(s, 's55', 's52', 5120); a('s_add_u32 s54, s55, 4096')
        for t in range(5): wload(s, t, 's55', 's54')
    def dmaW(s):
        po = LS.index(s) * 5120
        soff(s, 's55', 's52', 5120); a('s_add_u32 s54, s55, 4096')
        a(f's_add_u32 m0, s62, {po}')
        for t in range(4): q.issue(('W', s), f'buffer_load_dwordx4 v248, s[28:31], s55 offen offset:{t*1024} sc1 {NTP} lds')
        a(f's_add_u32 m0, s62, {po+4096}')
        q.issue(('W', s), f'buffer_load_dwordx4 v248, s[28:31], s54 offen sc1 {NTP} lds')
    for s in HS[:PRE]:
        WRg[s] = alloc(5); q.n[('W', s)] = 5; q.q += [('W', s)] * 5
    for s in HS[PRE:]: ldW(s)
    a('v_add_u32 v249, s62, v248')
    for t in range(4):
        a(f's_add_u32 s47, s40, {t}'); a('s_and_b32 s47, s47, 3'); a('s_lshl_b32 s47, s47, 10'); a(f'v_add_u32 v{250+t}, s47, v248')
    srd(a, 24, 22, 23, A2_SZ); srd(a, 32, 4, 5, XSZ); srd(a, 36, 18, 19, XSZ)
    a(f's_mul_i32 s50, s41, {A2_RB}'); a(f's_mul_i32 s46, s40, {17*4096}'); a('s_add_u32 s50, s50, s46')
    a(f'v_and_b32 v2, 15, {L}'); a(f'v_lshrrev_b32 v3, 4, {L}')
    a('s_lshl_b32 s47, s41, 6'); a('s_lshl_b32 s58, s40, 4'); a('s_add_u32 s58, s47, s58'); a('v_add_u32 v2, s58, v2')
    a('s_movk_i32 s58, 1280'); a('s_mul_i32 s59, s42, 160'); a('v_mul_lo_u32 v2, v2, s58'); a('v_add_u32 v2, s59, v2')
    a('v_lshl_add_u32 v254, v3, 4, v2'); a('v_lshl_add_u32 v255, v3, 3, v2')
    a('s_lshl_b32 s61, s40, 1'); a('s_lshl_b32 s61, 3, s61'); a('s_add_u32 s48, s47, 63')
    a('s_mul_i32 s58, s47, 607'); a('s_lshr_b32 s58, s58, 16'); a('s_mul_i32 s59, s48, 607'); a('s_lshr_b32 s59, s59, 16')
    a('s_cmp_lg_u32 s58, s59'); a('s_cselect_b32 s64, 0x101, 1')
    a('s_add_u32 s48, s47, 48')
    a('s_mul_i32 s58, s47, 410'); a('s_lshr_b32 s58, s58, 16'); a('s_mul_i32 s59, s48, 410'); a('s_lshr_b32 s59, s59, 16')
    a('s_cmp_lg_u32 s58, s59'); a('s_mov_b32 s65, 0x10000'); a('s_cselect_b32 s65, 0x1010000, s65')
    a(f's_mul_i32 s64, s64, {"255" if ALLM else "s61"}'); a('s_mul_i32 s66, s65, s61')
    a('s_lshl_b32 s65, s41, 3'); a('s_add_u32 s65, s65, s42'); a(f's_add_u32 s65, s65, {C_WG}'); a(f's_mul_i32 s65, s65, {CSTR}')
    a('v_mov_b32 v4, s65')
    SA = [3, 4, 5, 6, 7, 8, 9, 12, 13, 14, 15, 16, 17, 18, 19, 20, 21]
    for s in range(17): soff(s, f's{SA[s]}', 's50', 4096)
    SW = [72, 73, 74, 75, 76, 77, 78, 79, 63, 44, 45, 46, 48, 49, 51, 53]
    for n, s in enumerate(SS): soff(s, f's{SW[2*n]}', 's52', 5120); a(f's_add_u32 s{SW[2*n+1]}, s{SW[2*n]}, 4096')
    a(f'v_and_b32 v2, 1, {L}'); a('v_cmp_eq_u32 s[68:69], 1, v2')
    lds_wait(a, LCN + 4, 'v0', 'v1', sleep=1)
    stamp(a, 3)
    for s in LS: dmaW(s)
    if PROF: a('s_waitcnt vmcnt(0)'); stamp(a, 1)
    if OWN:
        if OWN == 1: a('s_cmp_eq_u32 s43, 1'); a('s_cbranch_scc1 g_own')
        lds_wait(a, LCN, 'v0', 'v1', sleep=2)
        a.label('g_own')
    if PPOLL:
        a('s_waitcnt vmcnt(0)'); a('s_mov_b32 s70, 0')
        for n in range(PPOLL - 1):
            a(f'global_load_dword v{8+n}, v4, s[10:11] sc1'); a(f's_sleep {PSL}')
        a.label('pp_top')
        for n in range(PPOLL):
            a(f'global_load_dword v{8+(n+PPOLL-1) % PPOLL}, v4, s[10:11] sc1')
            a(f's_waitcnt vmcnt({PPOLL-1})')
            a(f'v_and_b32 v1, s64, v{8+n}'); a('v_cmp_ne_u32 vcc, s64, v1'); a('s_nop 1'); a('s_cbranch_vccz pp_ok')
            a(f's_sleep {PSL}')
        a('s_add_u32 s70, s70, 1'); a(f's_cmp_lt_u32 s70, {SPIN}'); a('s_cbranch_scc1 pp_top')
        a('s_endpgm')
        a.label('pp_ok')
    elif SPOLL:
        a('s_waitcnt vmcnt(0)'); a('s_mov_b32 s70, 0')
        a.label('sp_top')
        if SPOLL == 1: a('s_mov_b32 s71, 0'); a('s_atomic_add s71, s[10:11], s65 glc')
        else: a('s_load_dword s71, s[10:11], s65 glc')
        a('s_waitcnt lgkmcnt(0)')
        a('s_and_b32 s71, s71, s64'); a('s_cmp_eq_u32 s71, s64'); a('s_cbranch_scc1 sp_ok')
        a(f's_sleep {SLEEP}')
        a('s_add_u32 s70, s70, 1'); a(f's_cmp_lt_u32 s70, {SPIN}'); a('s_cbranch_scc1 sp_top')
        a('s_endpgm')
        a.label('sp_ok')
    else: poll(a, 'v4', 'v1', 's64', mask=True)
    q.clear()
    stamp(a, 4)
    pend = []
    for s in range(17):
        if s in SS: pend.append(('W', s))
        pend.append(('A', s))
    pend.append(('X', 17))
    ogate = [False]; XR = []
    dq = []
    def refill(cur, resv):
        while pend:
            k, s = pend[0]
            n = {'W': 5, 'A': 4, 'X': 3}[k]
            if (k, s) == ('A', 16): n = 8
            if len(free) - resv < n or s > cur + (LA_W if k == 'W' else LA_A): break
            if k == 'A' and s >= 12 and not ogate[0]: break
            pend.pop(0); regs = alloc(n)
            if k == 'W':
                WRg[s] = regs; z = SS.index(s)
                for t in range(5): dq.append((s, lambda s=s, t=t, z=z: wload(s, t, f's{SW[2*z]}', f's{SW[2*z+1]}')))
            elif k == 'X':
                XR.extend(regs)
                dq.append((s, lambda: q.issue('X', f'buffer_load_dwordx4 v[{XR[0]}:{XR[0]+3}], v254, s[32:35], 0 offen')))
                dq.append((s, lambda: q.issue('X', f'buffer_load_dwordx4 v[{XR[1]}:{XR[1]+3}], v254, s[32:35], 0 offen offset:64')))
                dq.append((s, lambda: q.issue('X', f'buffer_load_dwordx2 v[{XR[2]}:{XR[2]+1}], v255, s[32:35], 0 offen offset:128')))
            else:
                ARg[s] = regs
                for t in range(4):
                    d = regs[t]
                    if s < 16: dq.append((s, lambda d=d, t=t, s=s: q.issue(('A', s), f'buffer_load_dwordx4 v[{d}:{d+3}], v{250+t}, s[24:27], s{SA[s]} offen sc1')))
                    else:
                        e = regs[4 + t]
                        dq.append((s, lambda d=d, t=t, s=s: (a(f'v_bfe_u32 v{d}, v{250+t}, 1, 9'), a(f'v_sub_u32 v{250+t}, v{250+t}, v{d}'), a(f'v_and_b32 v{250+t}, -16, v{250+t}'),
                                   q.issue(('A', s), f'buffer_load_dwordx4 v[{d}:{d+3}], v{250+t}, s[24:27], s{SA[s]} offen sc1'))))
                        dq.append((s, lambda e=e, t=t, s=s: q.issue(('A', s), f'buffer_load_dwordx4 v[{e}:{e+3}], v{250+t}, s[24:27], s{SA[s]} offen offset:512 sc1')))
    refill(0, 0)
    while dq: dq.pop(0)[1]()
    AC = lambda tr, tc: (tr * 5 + tc) * 4
    for s in range(17):
        while dq and dq[0][0] <= s + 1: dq.pop(0)[1]()
        assert q.n.get(('A', s)) == (4 if s < 16 else 8) and q.n.get(('W', s), 0) == 5, s
        q.wait(('W', s)); q.wait(('A', s))
        if SPROF == 1 and s in (0, 4, 8, 12): stamp(a, {0: 0, 4: 2, 8: 3, 12: 5}[s])
        if s == 16:
            for t in (1, 2, 3, 0):
                d, e = ARg[s][t], ARg[s][4 + t]
                a(f'v_cndmask_b32 v{d}, v{d}, v{d+2}, s[68:69]'); a(f'v_cndmask_b32 v{d+1}, v{d+1}, v{d+3}, s[68:69]')
                a(f'v_cndmask_b32 v{d+2}, v{e}, v{e+2}, s[68:69]'); a(f'v_cndmask_b32 v{d+3}, v{e+1}, v{e+3}, s[68:69]')
            free.extend(ARg[s][4:])
        if s in LS: a('s_waitcnt lgkmcnt(0)')
        if SO and s == OCHK - 1:
            assert OCHK not in LS
            sread(a, 's71', 's65')
        lq = []
        if s + 1 in LS:
            WRg[s + 1] = alloc(5)
            lq = [f'ds_read_b128 v[{d}:{d+3}], v249 offset:{LS.index(s+1)*5120 + t*1024}' for t, d in enumerate(WRg[s + 1])]
        n = 0
        if s == 16:
            while dq: dq.pop(0)[1]()
            wq = []
        for tr in (range(4) if s < 16 else (1, 2, 3, 0)):
            for tc in range(5):
                c = AC(tr, tc); w = WRg[s][tc]; x = ARg[s][tr]
                if s == 16:
                    if n >= 7: a(wq.pop(0))
                    if tr: wq.append(f'ds_write_b128 v249, v[{c}:{c+3}] offset:{(tr-1)*5120 + tc*1024}')
                src = '0' if s == 0 else f'v[{c}:{c+3}]'
                a(f'v_mfma_f32_16x16x32_bf16 v[{c}:{c+3}], v[{w}:{w+3}], v[{x}:{x+3}], {src}')
                pace = PACE if len(dq) <= 8 else 2
                if dq and n % pace == 0: dq.pop(0)[1]()
                elif lq: a(lq.pop(0))
                n += 1
            free.append(ARg[s][tr])
            if tr < 3: refill(s, 0)
        assert not lq
        free.extend(WRg[s])
        if SO:
            if s == OCHK:
                spoll(a, [('s71', 's65', 's66', True)], preissued=True)
                if not SPROF: stamp(a, 2)
                ogate[0] = True
        else:
            if s == OCHK - 2:
                PR = alloc(1)[0]
                dq.insert(0, (s + 1, lambda: (a(f'v_mov_b32 v{PR}, s65'), q.issue('P', f'global_load_dword v{PR+1}, v{PR}, s[10:11] sc1'))))
            if s == OCHK:
                q.wait('P')
                a(f'v_and_b32 v{PR+1}, s66, v{PR+1}'); a(f'v_cmp_ne_u32 vcc, s66, v{PR+1}'); a('s_nop 1'); a('s_cbranch_vccz g_ook')
                poll(a, f'v{PR}', f'v{PR+1}', 's66', mask=True)
                a.label('g_ook')
                if not SPROF: stamp(a, 2)
                free.append(PR); ogate[0] = True
        refill(s + 1, 5 if s + 2 in LS else 0)
    while dq: dq.pop(0)[1]()
    assert not pend
    if not SPROF: stamp(a, 5)
    for o in wq: a(o)
    for tp in range(1, 4):
        a(f's_sub_u32 s47, s40, {tp}'); a('s_and_b32 s47, s47, 3'); a(f's_mul_i32 s47, s47, {WREG}'); a(f'v_add_u32 v{249+tp}, s47, v248')
    q.wait('X')
    U = alloc(5); RD = alloc(15)
    xs = [XR[0] + n for n in range(4)] + [XR[1] + n for n in range(4)] + [XR[2], XR[2] + 1]
    P = lambda r: f'v[{r}:{r+1}]'
    for n in range(10):
        u = U[n >> 1] + 2 * (n & 1)
        a(f'v_lshlrev_b32 v{u}, 16, v{xs[n]}'); a(f'v_and_b32 v{u+1}, 0xffff0000, v{xs[n]}')
    for n in range(10): a(f'v_pk_add_f32 {P(2*n)}, {P(2*n)}, {P(U[n >> 1] + 2 * (n & 1))}')
    a('s_waitcnt lgkmcnt(0)'); bar(a); stamp(a, 6)
    for tp in range(1, 4):
        for tc in range(5):
            d = RD[5 * (tp - 1) + tc]
            a(f'ds_read_b128 v[{d}:{d+3}], v{249+tp} offset:{(tp-1)*5120 + tc*1024}')
    for sl in range(3):
        a(f's_waitcnt lgkmcnt({10-5*sl})')
        for n in range(10): a(f'v_pk_add_f32 {P(2*n)}, {P(2*n)}, {P(RD[5*sl + (n >> 1)] + 2 * (n & 1))}')
    for n in range(10): a(f'v_cvt_pk_bf16_f32 v{40+n}, v{2*n}, v{2*n+1}')
    a(f'buffer_store_dwordx4 v[40:43], v254, s[36:39], 0 offen {OSC}')
    a(f'buffer_store_dwordx4 v[44:47], v254, s[36:39], 0 offen offset:64 {OSC}')
    a(f'buffer_store_dwordx2 v[48:49], v255, s[36:39], 0 offen offset:128 {OSC}')
    stamp_flush(a, 4); MUTE[0] = False
    a('s_endpgm')

def mainloop(a, P, NT, NJ, ACC, WF, XB, wread, nw, onest, XS, swapj=-1):
    q = Q(a, 'lgkmcnt', 15)
    def xread(step, t):
        b = XB((NT * step + t) % 4)
        q.issue(('X', step % 4, t), f'ds_read_b128 v[{b}:{b+3}], v{238 + (step & 1)} offset:{t*2048}')
    def fix(step, h):
        b = XB((NT * step + onest) % 4) + 2 * h
        a(f'v_cndmask_b32 v{b}, v{b}, v242, s[64:65]'); a(f'v_cndmask_b32 v{b+1}, v{b+1}, v242, s[64:65]')
    a('s_mov_b32 s60, 0'); a('s_mov_b32 s61, 0')
    if E('CPRIO', 0): a(f's_setprio {E("CPRIO", 0)}')
    stamp(a, 1); bar(a); stamp(a, 2)
    for idx in range(nw): wread(q, 0, 0, idx)
    for t in range(3): xread(0, t)
    if onest == 0:
        q.wait(('X', 0, 0)); fix(0, 0); fix(0, 1)
    a.label(f'{P}_loop')
    wper = 3 if NJ == 6 else 1
    for k in range(4):
        cur, nxt = k & 1, (k + 1) & 1
        widx = 0
        for t in range(NT):
            q.wait(('X', k, t))
            fill = []
            tt = t + 3
            fill.append(lambda tt=tt: xread(k if tt < NT else k + 1, tt if tt < NT else tt - NT))
            if t == 0:
                if k < 2: fill.append(lambda: bar(a))
                else: fill.append(lambda: (a('s_cmp_eq_u32 s61, 4'), a(f's_cbranch_scc1 {P}_nb{k}'), bar(a), a.label(f'{P}_nb{k}')))
            for _ in range(wper + (1 if (NJ == 4 and t in (1, 2)) else 0)):
                if widx < nw:
                    fill.append(lambda w=widx: wread(q, (k + 1) % 4, nxt, w)); widx += 1
            if t == NT - 3:
                if k & 1 == 0:
                    fill.append(lambda: (a(f's_add_u32 s60, s60, {XS}'), a(f's_cmp_ge_u32 s60, {3*XS}')))
                    fill.append(lambda: (a('s_cselect_b32 s60, 0, s60'), a('v_add_u32 v238, s60, v240')))
                else:
                    fill.append(lambda: a('v_add_u32 v239, s60, v241'))
            if t == (onest - 1) % NT:
                st = k if onest > 0 else k + 1
                fill.append(lambda st=st: (q.wait(('X', st % 4, onest)), fix(st, 0)))
                fill.append(lambda st=st: fix(st, 1))
            if t == NT - 2 and k == 3:
                fill.append(lambda: (a('s_add_u32 s61, s61, 1'), a('s_cmp_lt_u32 s61, 5')))
            xb = XB((NT * k + t) % 4)
            for j in (range(NJ) if not (E('SNAKE', 0) and t & 1) else range(NJ - 1, -1, -1)):
                cc = ACC(j, t)
                oa, ob = (xb, WF(cur, j)) if j == swapj else (WF(cur, j), xb)
                a(f'v_mfma_f32_16x16x32_bf16 v[{cc}:{cc+3}], v[{oa}:{oa+3}], v[{ob}:{ob+3}], v[{cc}:{cc+3}]')
                if fill: fill.pop(0)()
            assert not fill, (t, len(fill))
        assert widx == nw
    a(f's_cbranch_scc1 {P}_loop')
    a('s_waitcnt lgkmcnt(0)')
    stamp(a, 3)
    if not ((QLATE and swapj >= 0) or (GLATE >= 0 and swapj < 0)): lds_arrive(a, LCN + 4, 'v246', 'v247')

def cons_common(a, T0, nacc, XO, onelane, P):
    if P == 'cq':
        for n in range(24, 36, 2): a(f's_mov_b64 s[{n}:{n+1}], 0')
        a('s_mov_b32 s56, 1')
    dryrun(a, P)
    g, i, r, c, t5 = [f'v{T0+8+n}' for n in range(5)]
    for n in range(4): a(f'v_mov_b32 v{T0+n}, 0')
    a(f'v_lshrrev_b32 {g}, 4, {L}'); a(f'v_and_b32 {i}, 15, {L}'); a(f'v_bfe_u32 {r}, {L}, 2, 2'); a(f'v_and_b32 {c}, 3, {L}')
    for n in range(nacc // 16): a(f'v_mfma_f32_32x32x16_bf16 v[{16*n}:{16*n+15}], v[{T0}:{T0+3}], v[{T0}:{T0+3}], 0')
    for n in range(nacc // 16 * 16, nacc, 4): a(f'v_mfma_f32_16x16x32_bf16 v[{n}:{n+3}], v[{T0}:{T0+3}], v[{T0}:{T0+3}], 0')
    a(f'v_lshrrev_b32 {t5}, 1, {i}'); a(f'v_xor_b32 {t5}, {t5}, {g}'); a(f'v_lshlrev_b32 {t5}, 4, {t5}'); a(f'v_lshl_or_b32 {t5}, {i}, 7, {t5}')
    a(f'v_add_u32 v240, {XO}, {t5}'); a('v_xor_b32 v241, 64, v240')
    a('v_mov_b32 v238, v240'); a('v_mov_b32 v239, v241')
    a('v_mov_b32 v242, 0x3f803f80'); a(f'v_cmp_eq_u32 s[64:65], {onelane}, {i}')
    a(f'v_mov_b32 {t5}, {LCN}'); a(f'ds_write_b128 {t5}, v[{T0}:{T0+3}]')
    a(f'v_lshlrev_b32 v248, 4, {i}'); a(f'v_add_u32 v248, {LST}, v248')

Pk = lambda r: f'v[{r}:{r+1}]'
def consumerG(a):
    ACC = lambda j, t: (j * 7 + t) * 4
    WF = lambda s, j: 168 + s * 24 + j * 4
    XB = lambda b: 216 + 4 * b
    WA = lambda hi, j: 232 + 3 * hi + j
    T0 = 168
    g, i, r, c, t5, t6, t7, t8 = [f'v{T0+8+n}' for n in range(8)]
    cons_common(a, T0, 168, GX, 15, 'cg')
    a(f'v_lshrrev_b32 {t5}, 1, {r}'); a(f'v_lshlrev_b32 {t5}, 2, {t5}'); a(f'v_and_b32 {t6}, 1, {g}'); a(f'v_or_b32 {t5}, {t5}, {t6}')
    a(f'v_lshlrev_b32 {t5}, 4, {t5}'); a(f'v_lshl_or_b32 {t5}, {r}, 7, {t5}'); a(f'v_lshl_or_b32 {t5}, {g}, 10, {t5}')
    a('s_lshr_b32 s51, s40, 1'); a('s_mul_i32 s51, s51, 3'); a('s_add_u32 s52, s51, 1')
    a('s_and_b32 s53, s40, 1'); a('s_lshl_b32 s54, s53, 1'); a('s_add_u32 s51, s51, s54')
    a(f'v_and_b32 {t6}, 1, {c}'); a(f'v_lshlrev_b32 {t7}, 4, {c}'); a(f'v_lshl_or_b32 {t7}, {t6}, 3, {t7}'); a(f'v_xor_b32 {t7}, {t7}, {t5}')
    a('s_and_b32 s54, s51, 1'); a('s_lshl_b32 s54, s54, 6'); a('s_lshr_b32 s55, s51, 1'); a('s_lshl_b32 s55, s55, 12')
    a(f'v_xor_b32 {t7}, s54, {t7}'); a(f'v_add_u32 v{WA(0,0)}, s55, {t7}'); a(f'v_xor_b32 v{WA(0,1)}, 8, v{WA(0,0)}')
    a(f'v_lshrrev_b32 {t7}, 1, {c}'); a(f'v_xor_b32 {t6}, {t6}, {t7}'); a(f'v_lshlrev_b32 {t7}, 4, {t7}'); a(f'v_lshl_or_b32 {t7}, {t6}, 3, {t7}')
    a(f'v_xor_b32 {t7}, {t7}, {t5}')
    a('s_and_b32 s54, s52, 1'); a('s_lshl_b32 s54, s54, 6'); a('s_lshl_b32 s56, s53, 5'); a('s_or_b32 s54, s54, s56')
    a('s_lshr_b32 s55, s52, 1'); a('s_lshl_b32 s55, s55, 12')
    a(f'v_xor_b32 {t7}, s54, {t7}'); a(f'v_add_u32 v{WA(0,2)}, s55, {t7}')
    for j in range(3): a(f'v_add_u32 v{WA(1,j)}, 49152, v{WA(0,j)}')
    a(f'v_lshrrev_b32 {t8}, 1, {g}'); a('s_lshl_b32 s56, s53, 1'); a(f'v_add_u32 {t8}, s56, {t8}')
    a('s_lshr_b32 s54, s44, 1'); a('s_mul_i32 s54, s54, 17'); a('s_and_b32 s55, s44, 1'); a('s_mul_i32 s55, s55, 6'); a('s_add_u32 s54, s54, s55')
    a('s_add_u32 s55, s54, s51'); a('s_lshl_b32 s55, s55, 12'); a(f'v_lshl_add_u32 v251, {g}, 8, s55')
    a('s_add_u32 s55, s54, s52'); a('s_lshl_b32 s55, s55, 12'); a(f'v_lshl_add_u32 v252, {t8}, 8, s55')
    a(f'v_lshlrev_b32 v249, 2, {i}'); a(f'v_add_u32 v249, {LRP}, v249')
    a(f'v_and_b32 {t5}, 1, {g}'); a(f'v_lshl_add_u32 v250, {t5}, 6, v249')
    a('s_waitcnt lgkmcnt(0)')
    cntbase(a); srd(a, 36, 22, 23, A2_SZ)
    def wread(q, slot, setn, idx):
        j, hf = idx >> 1, idx & 1
        off = (slot & 1) * 24576 + (j // 3) * 12288 + hf * 512
        d = WF(setn, j) + 2 * hf
        q.issue('W', f'ds_read_b64_tr_b16 v[{d}:{d+1}], v{WA(slot >> 1, j % 3)} offset:{off}')
    mainloop(a, 'cg', 7, 6, ACC, WF, XB, wread, 12, 6, GXS)
    ST = lambda t: 168 + 4 * t
    CS = lambda j: 196 + 4 * j
    RP = lambda t: 232 + t
    RS = lambda p: 244 + p
    seg(a, 'cg', 0)
    for p in range(4): a(f'ds_read2_b32 v[{RP(2*p)}:{RP(2*p)+1}], v249 offset0:{32*p} offset1:{32*p+16}')
    for p in range(2): a(f'ds_read2_b32 v[{RS(2*p)}:{RS(2*p)+1}], v250 offset0:{64*p} offset1:{64*p+32}')
    for t in range(7): a(f'ds_read_b128 v[{ST(t)}:{ST(t)+3}], v248 offset:{t*256}')
    for j in range(6):
        for rr in range(4):
            a(f'v_mov_b32_dpp v{CS(j)+rr}, v{ACC(j,6)+rr} row_newbcast:15 row_mask:0xf bank_mask:0xf')
    P = Pk
    for t in range(7):
        if t in (2, 4, 6): seg(a, 'cg', t // 2)
        a(f's_waitcnt lgkmcnt({6-t})')
        s01, s23 = P(ST(t)), P(ST(t) + 2)
        prs = [(j, hp) for j in range(3) for hp in range(2)]
        T = lambda n: 220 + 2 * n
        G = lambda j, hp: ACC(j, t) + 2 * hp
        U = lambda j, hp: ACC(j + 3, t) + 2 * hp
        for j, hp in prs: a(f'v_pk_fma_f32 {P(G(j,hp))}, {P(CS(j)+2*hp)}, {s01}, {P(G(j,hp))} op_sel:[0,0,0] op_sel_hi:[1,0,1]')
        for n, (j, hp) in enumerate(prs): a(f'v_pk_mul_f32 {P(T(n))}, {P(G(j,hp))}, {P(G(j,hp))}')
        for n, (j, hp) in enumerate(prs): a(f'v_pk_fma_f32 {P(T(n))}, {P(T(n))}, {s23}, {s01} op_sel:[0,0,1] op_sel_hi:[1,0,1]')
        for n, (j, hp) in enumerate(prs): a(f'v_pk_mul_f32 {P(T(n))}, {P(T(n))}, {P(G(j,hp))}')
        for n, (j, hp) in enumerate(prs):
            a(f'v_exp_f32 v{T(n)}, v{T(n)}'); a(f'v_exp_f32 v{T(n)+1}, v{T(n)+1}')
            a(f'v_pk_fma_f32 {P(U(j,hp))}, {P(CS(j+3)+2*hp)}, {s01}, {P(U(j,hp))} op_sel:[0,0,0] op_sel_hi:[1,0,1]')
        for n, (j, hp) in enumerate(prs): a(f'v_pk_fma_f32 {P(T(n))}, {P(T(n))}, {s23}, {s23} op_sel:[0,1,1] op_sel_hi:[1,1,1]')
        for n, (j, hp) in enumerate(prs):
            a(f'v_rcp_f32 v{T(n)}, v{T(n)}'); a(f'v_rcp_f32 v{T(n)+1}, v{T(n)+1}')
            a(f'v_pk_mul_f32 {P(U(j,hp))}, {P(U(j,hp))}, {P(G(j,hp))}')
        for n, (j, hp) in enumerate(prs): a(f'v_pk_mul_f32 {P(U(j,hp))}, {P(U(j,hp))}, {P(T(n))}')
        o4, Ep = ACC(0, t), ACC(1, t & ~1)
        for n, (j, hp) in enumerate(prs):
            d = o4 + n if n < 4 else Ep + 2 * (t & 1) + n - 4
            a(f'v_cvt_pk_bf16_f32 v{d}, v{U(j,hp)}, v{U(j,hp)+1}')
        a(f'v_add_u32 v{ACC(2,t)}, v{RP(t)}, v251')
        guard(a, f'buffer_store_dwordx4 v[{o4}:{o4+3}], v{ACC(2,t)}, s[36:39], 0 offen sc1')
        if t == GLATE: a('s_waitcnt lgkmcnt(0)'); lds_arrive(a, LCN + 4, 'v240', 'v241')
        if t & 1 or t == 6:
            ad = ACC(2, t) + 1
            a(f'v_add_u32 v{ad}, v{RS(t >> 1)}, v252')
            a(f'v_permlane16_swap_b32 v{Ep}, v{Ep+2}'); a(f'v_permlane16_swap_b32 v{Ep+1}, v{Ep+3}')
            guard(a, f'buffer_store_dwordx4 v[{Ep}:{Ep+3}], v{ad}, s[36:39], 0 offen sc1')
    seg(a, 'cg', 4)
    a('s_mov_b32 s62, s41'); a('s_add_u32 s63, s41, 107'); a('s_movk_i32 s66, 607'); a('s_mov_b32 s67, s44')
    a('s_branch k_pub')

def publish(a):
    stamp(a, 4)
    a('s_lshr_b32 s62, s62, 6'); a(f'v_lshrrev_b32 v250, 3, {L}'); a('v_add_u32 v250, s62, v250')
    a('v_lshlrev_b32 v251, 6, v250'); a('s_min_u32 s63, s63, 2047'); a('v_cmp_ge_u32 s[68:69], s63, v251')
    a('v_mul_u32_u24 v251, s66, v251'); a('v_lshrrev_b32 v251, 16, v251')
    a('v_sub_u32 v251, s45, v251'); a('v_lshl_add_u32 v251, v251, 3, s67')
    a('v_mov_b32 v252, 1'); a('v_lshlrev_b32 v251, v251, v252')
    a('s_lshl_b32 s62, s62, 3'); a(f's_add_u32 s62, s62, {C_WG}'); a(f'v_add_u32 v250, s62, {L}'); a(f'v_mul_u32_u24 v250, {CSTR}, v250')
    a(f'v_mov_b32 v253, {LCN}')
    a('s_waitcnt vmcnt(0)')
    if SPROF != 3: stamp(a, 5)
    a('s_mov_b64 exec, 1')
    a('ds_add_rtn_u32 v252, v253, v252')
    a('s_waitcnt lgkmcnt(0)')
    a('v_readfirstlane_b32 s71, v252')
    a('s_cmp_lg_u32 s71, 3'); a('s_cbranch_scc1 pub_x')
    a('s_mov_b64 exec, s[68:69]')
    a('global_atomic_add v250, v251, s[10:11]')
    a.label('pub_x')
    a('s_mov_b64 exec, -1')
    stamp_flush(a, 0)

def consumerQ(a):
    ACC = lambda j, t: (j * 11 + t) * 4
    WF = lambda s, j: 176 + s * 16 + j * 4
    XB = lambda b: 208 + 4 * b
    T0 = 176
    g, i, r, c, t5, t6, t7 = [f'v{T0+8+n}' for n in range(7)]
    cons_common(a, T0, 176, QX, 0, 'cq')
    a('s_mov_b64 s[24:25], -1'); a('s_mov_b32 s26, 0xffff0000'); a('s_mov_b32 s27, -1')
    a('s_mov_b32 s28, 0xffff'); a('s_mov_b32 s30, 0xffff0000'); a('s_mov_b32 s33, 0xffff'); a('s_mov_b32 s35, 0xffff0000')
    a(f'v_lshrrev_b32 {t5}, 1, {g}'); a(f'v_lshlrev_b32 {t5}, 4, {t5}'); a(f'v_and_b32 {t6}, 1, {g}'); a(f'v_lshl_add_u32 {t5}, {t6}, 2, {t5}'); a(f'v_add_u32 {t5}, {t5}, {r}')
    a(f'v_mul_u32_u24 {t5}, 160, {t5}'); a('s_mul_i32 s51, s40, 40'); a(f'v_add_u32 {t5}, s51, {t5}')
    a(f'v_lshl_add_u32 v224, {c}, 3, {t5}')
    a(f'v_min_u32 {t6}, 2, {c}'); a(f'v_mul_u32_u24 {t6}, 5120, {t6}'); a(f'v_add3_u32 v225, {t5}, {t6}, 32')
    if E('ZQ', 0): a(f'v_cmp_eq_u32 vcc, 3, {c}'); a(f'v_mov_b32 {t6}, 0x30000'); a(f'v_cndmask_b32 v225, v225, {t6}, vcc')
    a('s_mul_i32 s51, s40, 1408'); a(f's_add_u32 s51, s51, {4*WREG}')
    a(f'v_lshl_add_u32 v228, {i}, 3, s51'); a(f'v_add_u32 {t5}, 5632, v228'); a(f'v_cmp_eq_u32 vcc, 2, {g}'); a(f'v_cndmask_b32 v228, {t5}, v228, vcc')
    a(f'v_lshrrev_b32 {t5}, 2, {L}'); a(f'v_lshl_add_u32 v229, {t5}, 3, s51')
    a(f'v_lshlrev_b32 v230, 4, {g}'); a(f'v_add_u32 v230, {LS2}, v230')
    a(f'v_and_b32 {t5}, 1, {i}'); a(f'v_cmp_eq_u32 s[74:75], 1, {t5}')
    a(f'v_lshl_add_u32 {t6}, {g}, 2, {t5}'); a(f'v_cmp_le_u32 s[76:77], {t6}, {i}')
    a(f'v_add_u32 {t6}, 2, {t6}'); a(f'v_cmp_le_u32 s[78:79], {t6}, {i}')
    a(f'v_mov_b32 {t7}, 0x0c0c0c0c')
    a(f'v_mov_b32 {t5}, 0x0c0c0100'); a(f'v_mov_b32 {t6}, 0x01000c0c'); a(f'v_cndmask_b32 {t5}, {t5}, {t6}, s[74:75]')
    a(f'v_cndmask_b32 v232, {t5}, {t7}, s[76:77]'); a(f'v_cndmask_b32 v234, {t7}, {t5}, s[76:77]')
    a(f'v_mov_b32 {t5}, 0x0c0c0302'); a(f'v_mov_b32 {t6}, 0x03020c0c'); a(f'v_cndmask_b32 {t5}, {t5}, {t6}, s[74:75]')
    a(f'v_cndmask_b32 v233, {t5}, {t7}, s[78:79]'); a(f'v_cndmask_b32 v235, {t7}, {t5}, s[78:79]')
    a('s_mul_i32 s56, s45, 10')
    a('s_lshr_b32 s57, s44, 1'); a('s_mul_i32 s57, s57, 17'); a('s_add_u32 s57, s57, 12'); a('s_and_b32 s58, s44, 1'); a('s_lshl_b32 s58, s58, 1')
    a('s_lshr_b32 s52, s40, 1'); a('s_add_u32 s58, s58, s52'); a('s_and_b32 s53, s40, 1')
    a('s_add_u32 s59, s57, s58'); a('s_lshl_b32 s59, s59, 12'); a('s_lshl_b32 s52, s53, 9'); a('s_add_u32 s59, s59, s52')
    a(f'v_lshrrev_b32 {t5}, 1, {g}'); a(f'v_lshlrev_b32 {t5}, 8, {t5}'); a(f'v_and_b32 {t6}, 1, {g}'); a(f'v_lshl_add_u32 {t5}, {t6}, 10, {t5}')
    a(f'v_lshl_add_u32 {t5}, {i}, 4, {t5}'); a(f'v_add_u32 v236, s59, {t5}')
    a('s_add_u32 s57, s57, 4'); a('s_lshl_b32 s57, s57, 12'); a('s_add_u32 s57, s57, s52'); a('s_lshl_b32 s58, s58, 7'); a('s_add_u32 s57, s57, s58')
    a(f'v_add_u32 {t5}, s56, {g}'); a(f'v_lshrrev_b32 {t6}, 2, {t5}'); a(f's_mov_b32 s58, {A2_RB}'); a(f'v_mul_lo_u32 {t6}, {t6}, s58')
    a(f'v_and_b32 {t5}, 3, {t5}'); a(f'v_lshl_add_u32 {t6}, {t5}, 10, {t6}'); a(f'v_lshl_add_u32 {t6}, {i}, 3, {t6}'); a(f'v_add_u32 v237, s57, {t6}')
    a(f'v_mov_b32 {t5}, {OOB}'); a(f'v_cmp_gt_u32 vcc, 2, {g}'); a(f'v_cndmask_b32 v244, {t5}, v237, vcc')
    for n in range(5):
        a(f's_add_u32 s57, s56, {2*n}'); a('s_lshr_b32 s59, s57, 2'); a('s_mul_i32 s59, s59, s58'); a('s_and_b32 s57, s57, 3'); a('s_lshl_b32 s57, s57, 10'); a(f's_add_u32 s{48+n}, s59, s57')
    a('s_lshl_b32 s53, s58, 1')
    a('s_waitcnt lgkmcnt(0)')
    cntbase(a); srd(a, 36, 22, 23, A2_SZ)
    def wread(q, slot, setn, idx):
        j, hf = idx >> 1, idx & 1
        d = WF(setn, j) + 2 * hf
        if j < 3: q.issue('W', f'ds_read_b64_tr_b16 v[{d}:{d+1}], v224 offset:{slot*QWS + j*5120 + hf*1280}')
        else: q.issue('W', f'ds_read_b64_tr_b16 v[{d}:{d+1}], v225 offset:{slot*QWS + hf*1280}')
    mainloop(a, 'cq', 11, 4, ACC, WF, XB, wread, 8, 0, QXS, swapj=2)
    ST = lambda t: 176 + 2 * t
    CS = lambda j: 198 + 4 * (j if j < 2 else 2)
    VS = lambda t: (212, 220, 238)[t % 3]
    VR = lambda t: (216, 224, 250)[t % 3]
    Vp = lambda t: 88 + 2 * t
    Vl = lambda t: 110 + 2 * t
    P = Pk
    q = Q(a, 'lgkmcnt', 15)
    seg(a, 'cq', 0)
    for t in range(11): q.issue('S', f'ds_read_b64 v[{ST(t)}:{ST(t)+1}], v248 offset:{t*256}')
    def rdVS(t):
        q.issue(('VS', t), f'ds_read_b128 v[{VS(t)}:{VS(t)+3}], v230 offset:{t*64}')
        q.issue(('VS', t), f'ds_read_b128 v[{VR(t)}:{VR(t)+3}], v230 offset:{t*64+768}')
    rdVS(0); rdVS(1)
    for j in (0, 1, 3):
        for rr in range(4):
            a(f'v_mov_b32_dpp v{CS(j)+rr}, v{ACC(j,0)+rr} row_newbcast:0 row_mask:0xf bank_mask:0xf')
    a(f'v_mov_b32 v210, v{ACC(2,0)}'); a(f'v_mov_b32 v211, v{ACC(2,0)}'); a('v_permlane16_swap_b32 v210, v211')
    a('v_mov_b32 v211, v210'); a('v_permlane32_swap_b32 v210, v211')
    for t in range(11):
        if t == 5: seg(a, 'cq', 1)
        q.wait(('VS', t))
        if t < 9: rdVS(t + 2)
        s01 = P(ST(t))
        js = (1, 3) if t == 0 else (0, 1, 3)
        prs = [(j, hp) for j in js for hp in range(2)]
        G = lambda j, hp: ACC(j, t) + 2 * hp
        for j, hp in prs: a(f'v_pk_fma_f32 {P(G(j,hp))}, {P(CS(j)+2*hp)}, {s01}, {P(G(j,hp))} op_sel:[0,0,0] op_sel_hi:[1,0,1]')
        for hp in range(2): a(f'v_pk_fma_f32 {P(G(2,hp))}, {P(VS(t)+2*hp)}, v[210:211], {P(G(2,hp))} op_sel:[0,0,0] op_sel_hi:[1,0,1]')
        for j, hp in prs: a(f'v_pk_mul_f32 {P(G(j,hp))}, {P(G(j,hp))}, {s01} op_sel:[0,1] op_sel_hi:[1,1]')
        for hp in range(2): a(f'v_pk_mul_f32 {P(G(2,hp))}, {P(G(2,hp))}, {P(VR(t)+2*hp)}')
        for j in js[:-1]:
            for hp in range(2): a(f'v_cvt_pk_bf16_f32 v{ACC(j,t)+hp}, v{G(j,hp)}, v{G(j,hp)+1}')
        for j in (0, 1):
            for hp in range(2): a(f'v_cvt_pk_bf16_f32 v{ACC(j,t)+2+hp}, v{G(3,hp)}, v{G(3,hp)+1}')
        for hp in range(2): a(f'v_cvt_pk_bf16_f32 v{Vp(t)+hp}, v{G(2,hp)}, v{G(2,hp)+1}')
        q.issue('w', f'ds_write_b64 v228, v[{ACC(1,t)+2}:{ACC(1,t)+3}] offset:{t*128}')
    seg(a, 'cq', 2)
    if SPROF == 3: stamp(a, 1)
    SC = lambda u: 132 + 8 * u; SP = lambda u: 136 + 8 * u
    Qf = lambda u: ACC(0, u + 1); Kf = lambda t: ACC(1, t)
    for t in range(11):
        for hp in range(2): a(f'v_permlane16_swap_b32 v{ACC(0,t)+2+hp}, v{ACC(1,t)+2+hp}')
    q.wait('w')
    for t in range(11): q.issue('V', f'ds_read_b64_tr_b16 v[{Vl(t)}:{Vl(t)+1}], v229 offset:{t*128}')
    a('s_mov_b64 exec, s[26:27]')
    for u in range(10): a(f'v_mov_b64 v[{Qf(u)+2}:{Qf(u)+3}], 0')
    a('s_mov_b64 exec, s[24:25]')
    def sel1(u):
        a(f'v_cndmask_b32 v{SC(u)}, v{SC(u)}, v{SC(u)+1}, s[74:75]'); a(f'v_cndmask_b32 v{SC(u)+2}, v{SC(u)+2}, v{SC(u)+3}, s[74:75]')
        a(f'v_cndmask_b32 v{SP(u)}, v{SP(u)}, v{SP(u)+1}, s[74:75]'); a(f'v_cndmask_b32 v{SP(u)+2}, v{SP(u)+2}, v{SP(u)+3}, s[74:75]')
    for u in range(10):
        a(f'v_mfma_f32_16x16x32_bf16 v[{SC(u)}:{SC(u)+3}], v[{Kf(u+1)}:{Kf(u+1)+3}], v[{Qf(u)}:{Qf(u)+3}], 0')
        a(f'v_mfma_f32_16x16x32_bf16 v[{SP(u)}:{SP(u)+3}], v[{Kf(u)}:{Kf(u)+3}], v[{Qf(u)}:{Qf(u)+3}], 0')
        if u >= 3: sel1(u - 3)
    for u in range(7, 10): sel1(u)
    a('s_cmp_lg_u32 s56, 0'); a('s_cbranch_scc1 cq_nofix')
    a(f'v_mov_b32 v{SP(0)}, {f32(-1e30)}'); a(f'v_mov_b32 v{SP(0)+2}, {f32(-1e30)}')
    a.label('cq_nofix')
    if QLATE: lds_arrive(a, LCN + 4, 'v238', 'v239')
    if SPROF == 3: stamp(a, 2)
    LA = lambda u: 44 + 2 * u; LB = lambda u: 45 + 2 * u; M = lambda u: 64 + u
    for u in range(10):
        a(f'v_cndmask_b32 v{LA(u)}, v{SP(u)}, v{SC(u)}, s[76:77]'); a(f'v_cndmask_b32 v{LB(u)}, v{SP(u)+2}, v{SC(u)+2}, s[78:79]')
    for u in range(10): a(f'v_max_f32 v{M(u)}, v{LA(u)}, v{LB(u)}')
    a('v_mov_b32 v74, 1.0'); a('v_mov_b32 v75, 1.0')
    def reduce12(op, post):
        B4 = [64, 68, 72]
        for A in B4: a(f'v_permlane16_swap_b32 v{A}, v{A+1}'); a(f'v_permlane16_swap_b32 v{A+2}, v{A+3}')
        for A in B4: a(f'{op} v{A}, v{A}, v{A+1}'); a(f'{op} v{A+2}, v{A+2}, v{A+3}')
        for A in B4: a(f'v_permlane32_swap_b32 v{A}, v{A+2}')
        for A in B4: a(f'{op} v{A}, v{A}, v{A+2}')
        for A in B4: post(A)
        for A in B4: a(f'v_mov_b32 v{A+2}, v{A}')
        for A in B4: a(f'v_permlane32_swap_b32 v{A}, v{A+2}')
        for A in B4: a(f'v_mov_b32 v{A+1}, v{A}'); a(f'v_mov_b32 v{A+3}, v{A+2}')
        for A in B4: a(f'v_permlane16_swap_b32 v{A}, v{A+1}'); a(f'v_permlane16_swap_b32 v{A+2}, v{A+3}')
    cs = 20 ** -0.5 * LOG2E
    a(f's_mov_b32 s68, {f32(cs)}'); a(f's_mov_b32 s69, {f32(cs)}')
    reduce12('v_max_f32', lambda r: a(f'v_mul_f32 v{r}, s68, v{r}'))
    for u in range(10):
        h = M(u) & 1
        a(f'v_pk_fma_f32 {P(LA(u))}, {P(LA(u))}, s[68:69], {P(M(u) & ~1)} op_sel:[0,0,{h}] op_sel_hi:[1,1,{h}] neg_lo:[0,0,1] neg_hi:[0,0,1]')
    for u in range(10):
        a(f'v_exp_f32 v{LA(u)}, v{LA(u)}'); a(f'v_exp_f32 v{LB(u)}, v{LB(u)}')
    seg(a, 'cq', 3)
    for u in range(10): a(f'v_add_f32 v{M(u)}, v{LA(u)}, v{LB(u)}')
    reduce12('v_add_f32', lambda r: a(f'v_rcp_f32 v{r}, v{r}'))
    for u in range(10):
        h = M(u) & 1
        a(f'v_pk_mul_f32 {P(LA(u))}, {P(LA(u))}, {P(M(u) & ~1)} op_sel:[0,{h}] op_sel_hi:[1,{h}]')
    for u in range(10): a(f'v_cvt_pk_bf16_f32 v{LA(u)}, v{LA(u)}, v{LB(u)}')
    a('s_waitcnt lgkmcnt(0)')
    if SPROF == 3: stamp(a, 5)
    PF = Qf
    def pv(u):
        a(f'v_mfma_f32_16x16x32_bf16 v[{SC(u)}:{SC(u)+3}], v[{Vp(u)}:{Vp(u)+3}], v[{PF(u)}:{PF(u)+3}], 0')
        a(f'v_mfma_f32_16x16x32_bf16 v[{SP(u)}:{SP(u)+3}], v[{Vl(u)}:{Vl(u)+3}], v[{PF(u)}:{PF(u)+3}], 0')
    for u in range(10):
        for z in range(4): a(f'v_perm_b32 v{PF(u)+z}, v{LA(u)}, v{LA(u)}, v{232+z}')
        if u: pv(u - 1)
    pv(9)
    OM = lambda n: 44 + 4 * n
    for n in range(5):
        for e in range(2):
            u = 2 * n + e
            a(f'v_cvt_pk_bf16_f32 v{OM(n)+2*e}, v{SC(u)}, v{SC(u)+1}'); a(f'v_cvt_pk_bf16_f32 v{OM(n)+2*e+1}, v{SC(u)+2}, v{SC(u)+3}')
        if n:
            m = n - 1
            a(f'v_permlane16_swap_b32 v{OM(m)}, v{OM(m)+2}'); a(f'v_permlane16_swap_b32 v{OM(m)+1}, v{OM(m)+3}')
            guard(a, f'buffer_store_dwordx4 v[{OM(m)}:{OM(m)+3}], v236, s[36:39], s{48+m} offen sc1')
    for z in range(4):
        a(f's_mov_b64 exec, s[{28+2*z}:{29+2*z}]')
        for m in range(3):
            u = 4 * m + z
            if u < 10:
                a(f'v_cvt_pk_bf16_f32 v{64+2*m}, v{SP(u)}, v{SP(u)+1}'); a(f'v_cvt_pk_bf16_f32 v{65+2*m}, v{SP(u)+2}, v{SP(u)+3}')
    a('s_mov_b64 exec, s[24:25]')
    a(f'v_permlane16_swap_b32 v{OM(4)}, v{OM(4)+2}'); a(f'v_permlane16_swap_b32 v{OM(4)+1}, v{OM(4)+3}')
    seg(a, 'cq', 4)
    a(f'buffer_store_dwordx4 v[{OM(4)}:{OM(4)+3}], v236, s[36:39], s52 offen sc1')
    a('buffer_store_dwordx2 v[64:65], v237, s[36:39], 0 offen sc1')
    a('buffer_store_dwordx2 v[66:67], v237, s[36:39], s58 offen sc1')
    a('buffer_store_dwordx2 v[68:69], v244, s[36:39], s53 offen sc1')
    a('s_add_u32 s62, s41, 16'); a('s_add_u32 s63, s41, 175'); a('s_movk_i32 s66, 410'); a('s_add_u32 s67, s44, 16')

def main():
    a = Asm()
    ref = open('cdna_kernels/' + NAME + '.s.ref').read().split('\n')
    for l in ref:
        if l.startswith('; @launch'): break
        a.raw(l)
    if E("LIST", 0): a.raw(f'; @launch kernel={KN} grid=(256,1,1) block=(512,1,1) lds=163840')
    else: a.raw('; @launch grid=(256,1,1) block=(512,1,1) lds=163840')
    a.raw('.amdgcn_target "amdgcn-amd-amdhsa--gfx950"')
    a.raw('.text'); a.raw(f'.globl {KN}'); a.raw(f'.type {KN},@function')
    kernel(a)
    a.raw('.section .rodata,"a"'); a.raw('.p2align 6')
    a.raw(f'''.amdhsa_kernel {KN}
  .amdhsa_next_free_vgpr 256
  .amdhsa_next_free_sgpr 100
  .amdhsa_accum_offset 256
  .amdhsa_group_segment_fixed_size 0
  .amdhsa_kernarg_size 80
  .amdhsa_user_sgpr_count 2
  .amdhsa_user_sgpr_kernarg_segment_ptr 1
  .amdhsa_system_sgpr_workgroup_id_x 1
.end_amdhsa_kernel''')
    open(sys.argv[1], 'w').write(a.text())
    print('nops inserted', a.nops)
main()
```

```python
import sys, math, os
from asmlib import *

NAME = "parallel_sum__sliding_local_dilated__glu_gated_geglu__prompt"
KN = NAME + "_kernel"
A2_RB, A2_SZ = 278528, 32 * 278528
WS_W2, W2_CB, W2_SZ = 0x900000, 348160, 8 * 348160
WS_STAT, WS_CNT = 0x1400000, 0x1410000
C_STAT, C_W2, C_WG = 0, 16, 32
XSZ = 2048 * 1280
OOB = 0x7f000000
LOG2E = 1.4426950408889634
C1 = -2.0 * LOG2E * math.sqrt(2.0 / math.pi)
C2 = C1 * 0.044715
E = lambda k, d: int(os.environ.get(k, d))
PROF = E("PROF", 0); CLK = E("CLK", 0); SPROF = E("SPROF", 0)
ORD = [int(c) for c in os.environ.get("ORD", "55")]; PRE2 = E("PRE2", 0); TA = E("TA", 0); NSTG = E("NSTG", 4); STG0 = E("STG0", -2); TW = E("TW", 1); TB = E("TB", 7); TCB = E("TCB", 2); DRY = E("DRY", 0); OSC = os.environ.get("OSC", ""); GLATE = E("GLATE", -1); EB0 = E("EB0", 1); RETOUCH = E("RETOUCH", 1); MAP2 = E("MAP2", 0); QLATE = E("QLATE", 0); OCHK = E("OCHK", 7)
WSRC = os.environ.get("WSRC", "HHHLHSLHSLHSLLSLL")
LA_A = E("LA_A", 4); LA_W = E("LA_W", 4); PACE = E("PACE", 3); PRE = E("PRE", 2)
OWN = E("OWN", 1); PPOLL = E("PPOLL", 0); PSL = E("PSL", 2)
NTP = os.environ.get("NTP", ""); NTW = os.environ.get("NTW", ""); NTX = os.environ.get("NTX", ""); NTT = os.environ.get("NTT", "")
CSTR = E('CSTR', 256); ALLM = E('ALLM', 0); SPOLL = E('SPOLL', 1); SO = E('SO', 1); SS_ = E('SS', 0)
SPIN = 30000; SLEEP = E("SLEEP", 4)
CH = [int(c) for c in os.environ.get("CH", "2222")]
WS_PROF = 0x2000000
GX, GXS, GWS = 98304, 14336, 24576
QX, QXS, QWS = 61440, 22528, 15360
LT2 = 141312
LST = LT2 + 3 * 5120
LRP = LST + 3072
LCN = LRP + 512
PB_HI = 61440
LS2 = LCN + 64
QST = 520
L = 'v243'

def srd(a, d, lo, hi, size, add=None):
    if add is None:
        a(f's_mov_b32 s{d}, s{lo}'); a(f's_mov_b32 s{d+1}, s{hi}')
    else:
        a(f's_add_u32 s{d}, s{lo}, {add}'); a(f's_addc_u32 s{d+1}, s{hi}, 0')
    a(f's_mov_b32 s{d+2}, {size}'); a(f's_mov_b32 s{d+3}, 0x20000')

MUTE = [False]
def stamp(a, n):
    if PROF and not (MUTE[0] and n < 7):
        a(f'{"s_memtime" if CLK else "s_memrealtime"} s[{80+2*n}:{81+2*n}]'); a('s_waitcnt lgkmcnt(0)')
def stamp_flush(a, waveadd=0):
    if not PROF: return
    a('s_waitcnt vmcnt(0)'); stamp(a, 7)
    if E('DBG', 0):
        a('s_load_dwordx2 s[96:97], s[0:1], 64'); a('s_waitcnt lgkmcnt(0)')
        a('s_mov_b64 exec, 1')
        sl = {0: [(0, 1, True), (0, 2, False), (2, 3, False), (3, 4, False), (5, 5, False)], 4: [(4, 6, False), (7, 7, False)]}[waveadd]
        for st, slot, inv in sl:
            a(f'v_mov_b32 v0, {4*slot}'); a(f'v_mov_b32 v1, s{80+2*st}')
            if inv: a('v_not_b32 v1, v1')
            a('global_atomic_umax v0, v1, s[96:97]')
        if waveadd == 0:
            a('s_and_b32 s98, s2, 7'); a('s_lshl_b32 s98, s98, 2'); a('s_add_u32 s98, s98, 32'); a('v_mov_b32 v0, s98'); a('v_mov_b32 v1, s80')
            a('global_atomic_umax v0, v1, s[96:97]')
        a('s_mov_b64 exec, -1')
        return
    a(f's_add_u32 s96, s22, {WS_PROF}'); a('s_addc_u32 s97, s23, 0')
    a(f's_lshl_b32 s98, s2, 3'); a(f's_add_u32 s98, s98, s40'); a(f's_add_u32 s98, s98, {waveadd}'); a('s_lshl_b32 s98, s98, 6')
    a('v_mov_b32 v0, s98')
    for n in range(8):
        a(f'v_mov_b32 v2, s{80+2*n}'); a(f'v_mov_b32 v3, s{81+2*n}')
        a(f'global_store_dwordx2 v0, v[2:3], s[96:97] offset:{8*n}')

class Q:
    def __init__(s, a, cnt, mx): s.a = a; s.q = []; s.cnt = cnt; s.mx = mx; s.n = {}
    def issue(s, tag, text):
        if len(s.q) >= s.mx:
            s.a(f's_waitcnt {s.cnt}({s.mx - 1})'); s.q = s.q[-(s.mx - 1):]
        s.a(text); s.q.append(tag); s.n[tag] = s.n.get(tag, 0) + 1; s.tot = getattr(s, 'tot', 0) + 1
    def wait(s, tag):
        if tag not in s.q: return
        idx = max(i for i, t in enumerate(s.q) if t == tag)
        n = len(s.q) - 1 - idx
        s.a(f's_waitcnt {s.cnt}({n})'); s.q = s.q[idx + 1:]
    def clear(s): s.q = []

_pl = [0]
def poll(a, va, vp, target, base='s[10:11]', preissued=False, st='s70', mask=False):
    _pl[0] += 1; n = _pl[0]
    a(f's_mov_b32 {st}, 0')
    if preissued: a(f's_branch pl{n}_chk')
    a.label(f'pl{n}_top')
    a(f'global_load_dword {vp}, {va}, {base} sc1')
    a.label(f'pl{n}_chk')
    a('s_waitcnt vmcnt(0)')
    if mask: a(f'v_and_b32 {vp}, {target}, {vp}')
    a(f'v_cmp_ne_u32 vcc, {target}, {vp}')
    a('s_nop 1')
    a(f's_cbranch_vccz pl{n}_ok')
    a(f's_sleep {SLEEP}')
    a(f's_add_u32 {st}, {st}, 1'); a(f's_cmp_lt_u32 {st}, {SPIN}'); a(f's_cbranch_scc1 pl{n}_top')
    a('s_endpgm')
    a.label(f'pl{n}_ok')

assert all((x * 607) >> 16 == x // 108 for x in range(2112))
assert all((x * 410) >> 16 == x // 160 for x in range(0, 2560, 16))
_sp = [0]
def sread(a, dst, off, base='s[10:11]', load=False):
    if SPOLL == 1 and not load: a(f's_mov_b32 {dst}, 0'); a(f's_atomic_add {dst}, {base}, {off} glc')
    else: a(f's_load_dword {dst}, {base}, {off} glc')
def spoll(a, items, base='s[10:11]', preissued=False, load=False):
    _sp[0] += 1; n = _sp[0]
    a('s_mov_b32 s70, 0')
    if preissued: a(f's_branch sq{n}_chk')
    a.label(f'sq{n}_top')
    for d, o, t, m in items: sread(a, d, o, base, load)
    a.label(f'sq{n}_chk')
    a('s_waitcnt lgkmcnt(0)')
    for k, (d, o, t, m) in enumerate(items):
        if m: a(f's_and_b32 {d}, {d}, {t}')
        a(f's_cmp_eq_u32 {d}, {t}')
        a(f's_cbranch_scc1 sq{n}_ok' if k == len(items) - 1 else f's_cbranch_scc0 sq{n}_no')
    a.label(f'sq{n}_no')
    a(f's_sleep {SLEEP}')
    a('s_add_u32 s70, s70, 1'); a(f's_cmp_lt_u32 s70, {SPIN}'); a(f's_cbranch_scc1 sq{n}_top')
    a('s_endpgm')
    a.label(f'sq{n}_ok')
def cntbase(a):
    a(f's_add_u32 s10, s22, {WS_CNT}'); a('s_addc_u32 s11, s23, 0')
def bar(a, n=1):
    for _ in range(n): a('s_barrier')

_ls = [0]
def lds_arrive(a, off, va, vb):
    a(f'v_mov_b32 {va}, {off}'); a(f'v_mov_b32 {vb}, 1')
    a('s_mov_b64 exec, 1'); a(f'ds_add_u32 {va}, {vb}'); a('s_mov_b64 exec, -1')
def lds_wait(a, off, va, vb, sleep=0, setaddr=True):
    _ls[0] += 1; n = _ls[0]
    if setaddr: a(f'v_mov_b32 {va}, {off}')
    a('s_mov_b32 s70, 0')
    a.label(f'lw{n}')
    a(f'ds_read_b32 {vb}, {va}'); a('s_waitcnt lgkmcnt(0)'); a(f'v_readfirstlane_b32 s71, {vb}')
    a('s_cmp_ge_u32 s71, 4'); a(f's_cbranch_scc1 lw{n}_ok')
    if sleep: a(f's_sleep {sleep}')
    a('s_add_u32 s70, s70, 1'); a('s_cmp_lt_u32 s70, 200000'); a(f's_cbranch_scc1 lw{n}')
    a('s_endpgm')
    a.label(f'lw{n}_ok')

_gd = [0]
def guard(a, *ins):
    _gd[0] += 1
    if DRY: a(f's_cbranch_execz gd{_gd[0]}')
    for t in ins: a(t)
    if DRY: a.label(f'gd{_gd[0]}')
def seg(a, P, n):
    if not DRY: return
    if n > 0: a(f's_cbranch_execz {P}_ret')
    if n < 4: a.label(f'{P}_seg{n}')
def dryrun(a, P):
    if not DRY: return
    a('s_mov_b64 exec, 0')
    for n in range(3):
        a(f's_cmp_eq_u32 s40, {n}'); a(f's_cbranch_scc1 {P}_seg{n}')
    a(f's_branch {P}_seg3')
    a.label(f'{P}_ret')
    a('s_mov_b64 exec, -1')
    a.fence(12)

def kernel(a):
    a.raw('.p2align 8'); a.label(KN)
    a('s_cmp_ge_u32 s2, 256'); a('s_cbranch_scc1 k_exit')
    if E('SCRAMBLE', 0) == 2: a('s_bfe_u32 s3, s2, 0x30003'); a('s_xor_b32 s2, s2, s3')
    if E('SCRAMBLE', 0) == 1: a('s_and_b32 s3, s2, 7'); a('s_lshl_b32 s3, s3, 5'); a('s_lshr_b32 s2, s2, 3'); a('s_or_b32 s2, s2, s3')
    a('s_load_dwordx4 s[4:7], s[0:1], 0'); a('s_load_dwordx4 s[12:15], s[0:1], 32'); a('s_load_dwordx4 s[20:23], s[0:1], 64')
    a('s_load_dwordx2 s[8:9], s[0:1], 16'); a('s_load_dwordx4 s[16:19], s[0:1], 48')
    a('v_lshrrev_b32 v1, 6, v0'); a('v_and_b32 v243, 63, v0')
    a('v_readfirstlane_b32 s40, v1')
    a('s_getpc_b64 s[46:47]')
    a.label('k_pc')
    a('s_cmp_ge_u32 s40, 4'); a('s_cbranch_scc1 k_nopf')
    a('v_lshlrev_b32 v2, 7, v0'); a('v_add_u32 v3, 32768, v2')
    a('v_min_u32 v2, k_end-k_pc-4, v2'); a('v_min_u32 v3, k_end-k_pc-4, v3'); a('v_and_b32 v2, -4, v2'); a('v_and_b32 v3, -4, v3')
    a('global_load_dword v255, v2, s[46:47]'); a('global_load_dword v254, v3, s[46:47]')
    a.label('k_nopf')
    stamp(a, 0)
    a('s_and_b32 s44, s2, 3'); a('s_bfe_u32 s48, s2, 0x10002'); a('s_lshr_b32 s46, s2, 3')
    a('s_sub_u32 s49, 10, s48'); a('s_lshl_b32 s50, s49, 1')
    a('s_mul_i32 s51, s48, 10')
    a('s_cmp_ge_u32 s46, s50'); a('s_cselect_b32 s43, 1, 0'); a('s_cbranch_scc0 k_d1')
    a('s_sub_u32 s46, s46, s50'); a('s_add_u32 s49, s48, 6'); a('s_mul_i32 s51, s48, 6')
    a.label('k_d1')
    a('s_cmp_ge_u32 s46, s49'); a('s_cselect_b32 s47, 1, 0'); a('s_cselect_b32 s50, s49, 0'); a('s_sub_u32 s46, s46, s50')
    a('s_lshl_b32 s44, s44, 1'); a('s_add_u32 s44, s44, s47')
    a('s_add_u32 s45, s46, s51')
    a('s_mul_i32 s41, s45, 108'); a('s_mul_i32 s50, s45, 160'); a('s_sub_u32 s50, s50, 16')
    a('s_cmp_eq_u32 s43, 1'); a('s_cselect_b32 s41, s50, s41')
    a('s_cmp_lt_u32 s40, 4'); a('s_cbranch_scc1 k_cons')
    a('s_sub_u32 s40, s40, 4')
    a('s_cmp_eq_u32 s40, 3'); a('s_cbranch_scc1 k_serv')
    if TA:
        for cls in range(3):
            if cls < 2: a(f's_cmp_lg_u32 s40, {cls}'); a(f's_cbranch_scc1 k_t{cls}')
            touch_setup(a, cls, 'v40', 'v41', 'v42')
            a('s_waitcnt lgkmcnt(0)')
            for _ in range(TA):
                touch(a, cls, 'v40', 'v43')
                if cls != 1: a('global_load_dword v43, v44, s[4:5]') if False else None
            if cls < 2: a('s_branch k_td'); a.label(f'k_t{cls}')
        a.label('k_td')
    NK = E("NK", max(ORD)); KS = E("KS", 2); KT = E("KT", 1)
    assert sum(ORD) == 10
    def order(key):
        first, rest, base = [], [], 0
        for n in ORD:
            z = key % n
            first.append(base + z); rest += [base + (z + d) % n for d in range(1, n)]; base += n
        return first + rest
    def order5(key):
        return [(2 * key + d) % 10 for d in range(10)]
    a(f's_mul_i32 s68, s47, {KS}'); a('s_add_u32 s68, s68, s46'); a(f's_mul_i32 s46, s43, {KT}'); a('s_add_u32 s68, s68, s46')
    for _ in range(2):
        a(f's_cmp_ge_u32 s68, {NK}'); a(f's_cselect_b32 s46, {NK}, 0'); a('s_sub_u32 s68, s68, s46')
    assert NK == 1 or 9 + KS + KT < 3 * NK
    for key in range(NK):
        o = order5(key) if ORD == [5, 5] else order(key)
        v = sum(x << (4 * n) for n, x in enumerate(o))
        if key == 0: a(f's_mov_b32 s64, {v & 0xffffffff}'); a(f's_mov_b32 s65, {v >> 32}')
        else: a(f's_cmp_eq_u32 s68, {key}'); a(f's_cselect_b32 s64, {v & 0xffffffff}, s64'); a(f's_cselect_b32 s65, {v >> 32}, s65')
    a('s_mov_b64 s[66:67], s[64:65]'); a('s_and_b32 s68, s64, 15'); a('s_mov_b32 s69, 0')
    a(f'v_lshrrev_b32 v2, 3, {L}'); a(f'v_and_b32 v3, 7, {L}')
    a('s_movk_i32 s53, 1280'); a('s_lshl_b32 s58, s68, 7'); a('s_lshl_b32 s54, s40, 10'); a('s_mov_b32 s61, 0')
    a(f'v_mov_b32 v9, {OOB}')
    a('s_cmp_eq_u32 s43, 1'); a('s_cbranch_scc1 k_ldq')
    loader(a, False)
    a('s_branch k_gemm2')
    a.label('k_ldq'); loader(a, True)
    a.label('k_gemm2'); gemm2(a)
    a.label('k_serv'); service(a)
    a.label('k_cons')
    a('s_cmp_eq_u32 s43, 1'); a('s_cbranch_scc1 k_consq')
    consumerG(a)
    a.label('k_consq'); consumerQ(a)
    a.label('k_pub'); publish(a)
    a.label('k_exit'); a('s_endpgm')
    a.label('k_end')

def touch_setup(a, cls, v, t1, t2):
    a('s_lshr_b32 s72, s2, 3'); a('s_and_b32 s73, s2, 3')
    if cls == 0:
        a('s_bfe_u32 s74, s2, 0x10002'); a('s_mul_i32 s74, s74, 944'); a('s_mul_i32 s72, s72, 35'); a('s_add_u32 s72, s72, s74')
        a(f'v_min_u32 {v}, 34, {L}'); a(f'v_add_u32 {v}, s72, {v}'); a(f'v_min_u32 {v}, 2047, {v}'); a(f'v_mul_u32_u24 {v}, 1280, {v}')
    elif cls == 1:
        a(f's_mul_i32 s72, s72, {2*3072}'); a('s_mul_i32 s73, s73, 768'); a('s_add_u32 s72, s72, s73')
        a(f'v_min_u32 {v}, 11, {L}'); a(f'v_cmp_lt_u32 vcc, 5, {v}'); a(f'v_mov_b32 {t1}, {3072-768}'); a(f'v_cndmask_b32 {t1}, 0, {t1}, vcc')
        a(f'v_lshl_add_u32 {v}, {v}, 7, {t1}'); a(f'v_add_u32 {v}, s72, {v}')
    else:
        a(f's_mul_i32 s72, s72, {2*3840}'); a('s_mul_i32 s73, s73, 320'); a('s_and_b32 s73, s73, -128'); a('s_add_u32 s72, s72, s73')
        a(f'v_min_u32 {v}, 17, {L}'); a(f'v_mul_u32_u24 {t1}, 86, {v}'); a(f'v_lshrrev_b32 {t1}, 8, {t1}')
        a(f'v_mul_u32_u24 {t1}, {1280-384}, {t1}'); a(f'v_lshl_add_u32 {v}, {v}, 7, {t1}'); a(f'v_add_u32 {v}, s72, {v}')
def touch(a, cls, v, dst):
    if cls == 0: a(f'global_load_dword {dst}, {v}, s[4:5]'); a(f'v_add_u32 {v}, 128, {v}')
    elif cls == 1: a(f'global_load_dword {dst}, {v}, s[12:13]'); a(f'global_load_dword {dst}, {v}, s[14:15]'); a(f'v_add_u32 {v}, {64*3072}, {v}')
    else: a(f'global_load_dword {dst}, {v}, s[6:7]'); a(f'v_add_u32 {v}, {64*3840}, {v}')

def pre_setup(a):
    assert WSRC[:PRE] == 'H' * PRE and MAP2 == 0 and PRE <= 3
    srd(a, 36, 22, 23, W2_SZ, WS_W2)
    a(f'v_lshlrev_b32 v248, 4, {L}')
    a('s_lshr_b32 s47, s2, 6'); a('s_bfe_u32 s48, s2, 0x30003')
    a(f's_mul_i32 s49, s48, {W2_CB}'); a(f's_mul_i32 s50, s40, {17*5120}'); a('s_add_u32 s49, s49, s50')
    a('s_mul_i32 s48, s48, 3'); a('s_lshr_b32 s48, s48, 1'); a('s_mul_i32 s47, s47, 3'); a('s_add_u32 s48, s48, s47')
    a('s_cmp_ge_u32 s48, 12'); a('s_cselect_b32 s47, 12, 0'); a('s_sub_u32 s48, s48, s47')
    for n in range(PRE):
        d = f's{74+2*n}'
        a(f's_add_u32 {d}, s48, {n}'); a(f's_cmp_ge_u32 {d}, 12'); a('s_cselect_b32 s47, 12, 0'); a(f's_sub_u32 {d}, {d}, s47')
        a(f's_mul_i32 {d}, {d}, 5120'); a(f's_add_u32 {d}, {d}, s49'); a(f's_add_u32 s{75+2*n}, {d}, 4096')
def pre_issue(a, wait=True):
    if SPROF == 5: stamp(a, 1)
    if wait: a('s_waitcnt vmcnt(0)')
    if SPROF == 5: stamp(a, 2)
    for n in range(PRE):
        for t in range(5):
            d = 80 + 20 * n + 4 * t
            if t < 4: a(f'buffer_load_dwordx4 v[{d}:{d+3}], v248, s[36:39], s{74+2*n} offen offset:{t*1024} sc1')
            else: a(f'buffer_load_dwordx4 v[{d}:{d+3}], v248, s[36:39], s{75+2*n} offen sc1')
    if SPROF == 5: stamp(a, 3)
    bar(a)
    if SPROF == 5: stamp(a, 4)

def loader(a, isq):
    P = 'lq' if isq else 'lg'
    NXM = 8 if isq else 5; NQ = 22 if isq else 14
    XO, XS, WS = (QX, QXS, QWS) if isq else (GX, GXS, GWS)
    RS = 3840 if isq else 3072
    XV = 12
    a('v_lshrrev_b32 v4, 1, v2'); a('v_xor_b32 v4, v4, v3'); a('s_and_b32 s51, s40, 1'); a('s_lshl_b32 s51, s51, 2'); a('v_xor_b32 v4, s51, v4')
    a('v_lshlrev_b32 v4, 4, v4')
    a('s_lshl_b32 s52, s40, 3'); a('s_add_u32 s52, s52, s41'); a('v_add_u32 v5, s52, v2')
    a('v_mul_lo_u32 v6, v5, s53'); a(f'v_add_u32 v{XV}, v6, v4')
    for m in range(1, NXM):
        if m == 1: a(f'v_xor_b32 v7, 64, v{XV}')
        a(f'v_add_u32 v{XV+m}, {m*24*1280}, v{XV if m % 2 == 0 else 7}')
    if isq:
        a('v_cmp_gt_i32 vcc, 0, v5'); a(f'v_cndmask_b32 v{XV}, v{XV}, v9, vcc')
    else:
        a('v_subrev_u32 v5, s41, v5'); a('v_cmp_gt_u32 vcc, 12, v5'); a(f'v_cndmask_b32 v{XV+4}, v9, v{XV+4}, vcc')
    a(f's_add_u32 s59, s54, {XO}')
    a('s_waitcnt lgkmcnt(0)')
    srd(a, 24, 4, 5, XSZ)
    cnt = [0]
    def Xl(m):
        last = m == NXM - 1
        if last:
            cnt[0] += 1
            a(f's_cmp_ge_u32 s40, {NQ - 3*(NXM-1)}'); a(f's_cbranch_scc1 {P}_sk{cnt[0]}')
        a(f's_add_u32 m0, s59, {m*3072}')
        a(f'buffer_load_dwordx4 v{XV+m}, s[24:27], s58 offen {NTX} lds')
        if last: a.label(f'{P}_sk{cnt[0]}')
    def Xadv():
        a('s_lshr_b64 s[66:67], s[66:67], 4'); a('s_and_b32 s58, s66, 15'); a('s_lshl_b32 s58, s58, 7')
        a(f's_add_u32 s59, s59, {XS}')
        a(f's_cmp_ge_u32 s59, {XO+3*XS}'); a(f's_cselect_b32 s60, {3*XS}, 0'); a('s_sub_u32 s59, s59, s60')
    def issueX():
        for m in range(NXM): Xl(m)
        Xadv()
    if TA: a(f's_waitcnt vmcnt({TA - TW})')
    if SPROF == 4: stamp(a, 1)
    issueX()
    WV = 20
    a(f's_movk_i32 s42, {RS}')
    if isq:
        NW = 5
        srd(a, 28, 6, 7, 640 * 3840)
        a('s_mul_i32 s46, s40, 1280'); a('s_mul_i32 s47, s44, 160'); a('s_add_u32 s46, s46, s47')
        for n in range(5):
            a(f'v_add_u32 v4, {64*n}, {L}'); a('v_mul_u32_u24 v5, 205, v4'); a('v_lshrrev_b32 v5, 11, v5')
            a('v_mul_u32_u24 v6, 10, v5'); a('v_sub_u32 v4, v4, v6'); a('v_lshl_add_u32 v4, v4, 4, s46')
            a('v_lshrrev_b32 v6, 1, v5'); a('v_xor_b32 v6, v6, v5'); a('v_and_b32 v6, 4, v6'); a('v_mul_u32_u24 v6, 3, v6'); a('v_xor_b32 v5, v5, v6')
            a(f'v_mad_u32_u24 v{WV+n}, v5, s42, v4')
        a('s_mul_i32 s57, s40, 5120')
        def Wl(n):
            a(f's_add_u32 m0, s57, {n*1024}')
            a(f'buffer_load_dwordx4 v{WV+n}, s[28:31], s56 offen {NTW} lds')
    else:
        NW = 8
        srd(a, 28, 12, 13, 640 * 3072); srd(a, 32, 14, 15, 640 * 3072)
        a(f'v_bfe_u32 v4, {L}, 4, 1'); a('v_lshlrev_b32 v4, 2, v4'); a('v_xor_b32 v4, v4, v3'); a('v_lshlrev_b32 v4, 4, v4')
        a('s_mul_i32 s46, s44, 384'); a('s_lshl_b32 s47, s40, 7'); a('s_add_u32 s46, s46, s47')
        a('v_mad_u32_u24 v4, v2, s42, v4'); a(f'v_add_u32 v{WV}, s46, v4'); a(f'v_xor_b32 v4, 16, v{WV}')
        a(f'v_add_u32 v{WV+1}, {8*3072}, v4'); a(f'v_add_u32 v{WV+2}, {16*3072}, v{WV}'); a(f'v_add_u32 v{WV+3}, {24*3072}, v4')
        a('s_lshl_b32 s57, s40, 12')
        def Wl(n):
            half, g = n >> 2, n & 3
            a(f's_add_u32 m0, s57, {half*12288 + g*1024}')
            a(f'buffer_load_dwordx4 v{WV+g}, s[{28+4*half}:{31+4*half}], s56 offen {NTW} lds')
    a(f's_mul_i32 s56, s68, {64*RS}')
    wpar = [0]
    def Wadv():
        if wpar[0] == 0: a(f's_add_u32 s56, s56, {32*RS}')
        else: a('s_lshr_b64 s[64:65], s[64:65], 4'); a('s_and_b32 s56, s64, 15'); a(f's_mul_i32 s56, s56, {64*RS}')
        wpar[0] ^= 1
        a(f's_add_u32 s57, s57, {WS}')
        a(f's_cmp_ge_u32 s57, {4*WS}'); a(f's_cselect_b32 s60, {4*WS}, 0'); a('s_sub_u32 s57, s57, s60')
    def issueW():
        for n in range(NW): Wl(n)
        Wadv()
    issueW(); issueW()
    if SPROF == 4: stamp(a, 2)
    cntbase(a); pre_setup(a)
    XA = (NXM + 1) // 2; XB_ = NXM - XA
    a(f's_waitcnt vmcnt({NW})')
    if SPROF == 4: stamp(a, 3)
    bar(a)
    if SPROF == 4: stamp(a, 4)
    if EB0:
        issueW(); a(f's_waitcnt vmcnt({NW})'); bar(a); issueX()
    else:
        issueW(); issueX()
        a(f's_waitcnt vmcnt({NW + NXM - 1})'); bar(a)
    if SPROF == 4: stamp(a, 5)
    issueW()
    if SPROF == 4: stamp(a, 6)
    if PROF:
        a('s_memtime s[72:73]'); a('s_waitcnt lgkmcnt(0)'); a('v_mov_b32 v60, s72')
    a.label(f'{P}_loop')
    for n in range(NW): Wl(n)
    for m in range(XA): Xl(m)
    Wadv()
    a(f's_waitcnt vmcnt({2*NW + XA})'); bar(a)
    for m in range(XA, NXM): Xl(m)
    for n in range(NW): Wl(n)
    Wadv(); Xadv()
    a('s_add_u32 s61, s61, 1'); a('s_cmp_lt_u32 s61, 8')
    a(f's_waitcnt vmcnt({2*NW + NXM - 1})'); bar(a)
    if PROF:
        a('s_memtime s[72:73]'); a('s_waitcnt lgkmcnt(0)')
        for r in range(69, 60, -1): a(f'v_mov_b32 v{r}, v{r-1}')
        a('v_mov_b32 v60, s72')
    a(f's_cbranch_scc1 {P}_loop')
    pre_issue(a)
    if PROF:
        a(f's_add_u32 s96, s22, {WS_PROF + 0x20000}'); a('s_addc_u32 s97, s23, 0')
        a('s_lshl_b32 s98, s2, 3'); a('s_add_u32 s98, s98, s40'); a('s_lshl_b32 s98, s98, 6'); a('v_mov_b32 v59, s98')
        for r in range(9): a(f'global_store_dword v59, v{68-r}, s[96:97] offset:{4*r}')

def service(a):
    a('s_and_b32 s50, s2, 7'); a('s_lshl_b32 s51, s50, 5'); a('s_lshr_b32 s46, s2, 3'); a('s_add_u32 s51, s51, s46'); a('s_lshl_b32 s52, s51, 3')
    a(f'v_lshrrev_b32 v1, 4, {L}'); a(f'v_and_b32 v2, 15, {L}'); a('v_add_u32 v1, s52, v1')
    a('s_movk_i32 s53, 1280'); a('v_lshlrev_b32 v3, 4, v2'); a('v_mad_u32_u24 v3, v1, s53, v3')
    a('v_mov_b32 v30, 0')
    a('s_waitcnt lgkmcnt(0)')
    srd(a, 24, 4, 5, XSZ); cntbase(a)
    a('s_movk_i32 s54, 5120')
    for s in range(2):
        for j in range(5):
            d = 140 + 20 * s + 4 * j
            a(f'buffer_load_dwordx4 v[{d}:{d+3}], v3, s[24:27], {"s54" if s else "0"} offen offset:{j*256}')
    a('s_cmp_lg_u32 s2, 0'); a('s_cbranch_scc1 sv_ni')
    a(f'v_mul_u32_u24 v4, {CSTR}, {L}')
    for n in range(5):
        a('global_store_dword v4, v30, s[10:11] sc1'); a(f'v_add_u32 v4, {64*CSTR}, v4')
    a.label('sv_ni')
    if SPROF == 4: stamp(a, 1)
    a('s_mul_i32 s55, s50, 160')
    for n in range(5):
        a(f'v_add_u32 v4, {64*n}, {L}'); a('v_mul_u32_u24 v5, 205, v4'); a('v_lshrrev_b32 v5, 11, v5')
        a('v_mul_u32_u24 v6, 10, v5'); a('v_sub_u32 v4, v4, v6'); a('v_lshl_add_u32 v4, v4, 4, s55')
        a(f'v_lshrrev_b32 v{100+n}, 3, v5'); a(f'v_bfe_u32 v{105+n}, v5, 2, 1'); a('v_and_b32 v5, 3, v5'); a(f'v_mad_u32_u24 v{110+n}, v5, s53, v4')
    for un in range(3):
        sb = 28 + 4 * un
        a(f's_add_u32 s56, s46, {32*un}'); a('s_mul_i32 s57, s56, 241'); a('s_lshr_b32 s57, s57, 12'); a('s_mul_i32 s58, s57, 17'); a('s_sub_u32 s58, s56, s58')
        a('s_cmp_ge_u32 s58, 12'); a(f's_cbranch_scc1 sv_o{un}')
        srd(a, sb, 16, 17, 1536 * 1280)
        a('s_mul_i32 s59, s57, 12'); a('s_add_u32 s59, s59, s58'); a('s_lshl_b32 s59, s59, 5')
        a(f's_movk_i32 s60, {8*1280}'); a(f's_movk_i32 s61, {4*1280}'); a('s_mov_b32 s62, 1'); a('s_mov_b32 s67, 0')
        a(f's_branch sv_c{un}')
        a.label(f'sv_o{un}')
        srd(a, sb, 8, 9, 640 * 1280)
        a('s_sub_u32 s58, s58, 12'); a('s_mul_i32 s59, s57, 160'); a('s_mul_i32 s63, s58, 40')
        a(f's_movk_i32 s60, {8*1280}')
        a('s_cmp_eq_u32 s58, 4'); a('s_cselect_b32 s63, 16, s63'); a(f's_cselect_b32 s60, {40*1280}, s60'); a(f's_cselect_b32 s61, {20*1280}, s54'); a('s_cselect_b32 s67, 0, s54')
        a('s_add_u32 s59, s59, s63'); a('s_mov_b32 s62, 0')
        a.label(f'sv_c{un}')
        a(f's_mul_i32 s{64+un}, s59, 1280')
        for n in range(5):
            a(f'v_and_b32 v4, s62, v{100+n}'); a(f'v_xor_b32 v4, v4, v{105+n}')
            a(f'v_mad_u32_u24 v4, v4, s61, v{110+n}'); a(f'v_mad_u32_u24 v4, v{100+n}, s60, v4')
            a(f'v_lshrrev_b32 v5, 1, v{100+n}'); a(f'v_mad_u32_u24 v{120+5*un+n}, v5, s67, v4')
    if SPROF == 4: stamp(a, 2)
    a(f'v_lshrrev_b32 v4, 4, {L}'); a(f'v_bfe_u32 v5, {L}, 2, 2'); a('v_lshl_add_u32 v4, v4, 3, v5'); a('v_mul_u32_u24 v4, 160, v4')
    a(f'v_add_u32 v4, {LT2}, v4'); a(f'v_and_b32 v5, 3, {L}'); a('v_lshl_add_u32 v26, v5, 4, v4'); a('v_lshl_add_u32 v27, v5, 3, v4')
    a(f'v_lshlrev_b32 v28, 4, {L}'); a('v_add_u32 v29, 4096, v28')
    a(f'v_add_u32 v5, s41, {L}'); a('v_lshlrev_b32 v20, 4, v5'); a('v_add_u32 v21, 1024, v20')
    a(f's_mov_b32 s56, {A2_RB}'); a('s_movk_i32 s57, 2048'); a(f'v_mov_b32 v9, {OOB}')
    a(f'v_lshlrev_b32 v8, 2, {L}'); a(f'v_add_u32 v8, {LRP}, v8')
    for n in range(2):
        if n: a('v_add_u32 v5, 64, v5')
        a('v_lshrrev_b32 v6, 6, v5'); a('v_mul_lo_u32 v6, v6, s56'); a('v_bfe_u32 v7, v5, 4, 2'); a('v_lshl_add_u32 v6, v7, 10, v6')
        a('v_and_b32 v7, 15, v5'); a('v_lshl_add_u32 v6, v7, 4, v6')
        if n:
            a(f'v_cmp_gt_u32 vcc, 44, {L}'); a('v_cmp_gt_u32 s[58:59], s57, v5'); a('s_and_b64 vcc, vcc, s[58:59]'); a('v_cndmask_b32 v6, v9, v6, vcc')
        a(f'ds_write_b32 v8, v6 offset:{256*n}')
    a('s_max_i32 s56, s41, 0'); a('s_lshr_b32 s56, s56, 7'); a('s_add_u32 s57, s41, 175'); a('s_lshr_b32 s57, s57, 7'); a('s_min_u32 s57, s57, 15')
    a(f'v_add_u32 v18, s56, {L}'); a('v_min_u32 v18, s57, v18')
    if MAP2 == 0: a('s_and_b32 s56, s46, 7')
    else: a('s_and_b32 s56, s2, 1'); a('s_lshl_b32 s56, s56, 2'); a('s_and_b32 s57, s46, 3'); a('s_add_u32 s56, s56, s57')
    a(f's_add_u32 s56, s56, {C_W2}'); a('v_mov_b32 v4, s56')
    a(f'v_cmp_gt_u32 vcc, 3, {L}'); a('v_cndmask_b32 v18, v4, v18, vcc'); a(f'v_mul_u32_u24 v18, {CSTR}, v18')
    a('v_mov_b32 v4, 68'); a('v_cndmask_b32 v19, v4, 16, vcc')
    a(f's_add_u32 s56, s50, {C_W2}'); a(f's_mul_i32 s56, s56, {CSTR}'); a('v_mov_b32 v22, s56')
    a('s_cmp_lt_u32 s46, 4'); a('s_cselect_b32 s56, 3, 2'); a('v_mov_b32 v23, s56')
    a('s_lshr_b32 s56, s51, 4'); a(f's_mul_i32 s56, s56, {CSTR}'); a('v_writelane_b32 v22, s56, 0'); a('v_writelane_b32 v23, 1, 0')
    a('v_lshlrev_b32 v24, 4, v1'); a('v_cmp_eq_u32 vcc, 0, v2'); a('v_cndmask_b32 v24, v9, v24, vcc')
    a(f'v_add_u32 v25, {LST}, v28')
    a(f'v_lshlrev_b32 v17, 7, {L}'); a(f'v_lshlrev_b32 v16, 2, {L}'); a(f'v_add_u32 v16, {LS2}, v16')
    srd(a, 76, 22, 23, 32768, WS_STAT)
    for n in range(4): a(f'v_mov_b32 v{8+n}, 0')
    srd(a, 24, 22, 23, W2_SZ, WS_W2)
    a('v_mov_b32 v4, 0x3f803f80')
    def tbatch(n):
        for _ in range(n):
            for cls in range(3): touch(a, cls, f'v{12+cls}', 'v15')
    def t2dma():
        for un in range(3):
            if un == 2: a('s_cmp_ge_u32 s46, 4'); a('s_cbranch_scc1 sv_d3')
            for n in range(5):
                a(f's_mov_b32 m0, {LT2 + un*5120 + n*1024}'); a(f'buffer_load_dwordx4 v{120+5*un+n}, s[{28+4*un}:{31+4*un}], s{64+un} offen {NTT} lds')
        a.label('sv_d3')
    def stload():
        for s in range(2):
            for j in range(5):
                d = 140 + 20 * s + 4 * j
                a(f'buffer_load_dwordx4 v[{d}:{d+3}], v3, s[24:27], {"s54" if s else "0"} offen offset:{j*256}')
        srd(a, 24, 22, 23, W2_SZ, WS_W2)
    def stdot(s):
        for n in range(20):
            d = 140 + 20 * s + n
            a(f'v_dot2c_f32_bf16 v{8+s}, v{d}, v4'); a(f'v_dot2c_f32_bf16 v{10+s}, v{d}, v{d}')
    def stfin():
        a.fence(4)
        for ro in (8, 4, 2, 1):
            for n in range(4): a(f'v_add_f32_dpp v{8+n}, v{8+n}, v{8+n} row_ror:{ro} row_mask:0xf bank_mask:0xf')
        a(f's_mov_b32 s57, {f32(1.0/640)}')
        for s in range(2):
            b = 32 + 4 * s
            a(f'v_mul_f32 v{b}, s57, v{8+s}'); a(f'v_mul_f32 v{b+2}, s57, v{10+s}')
            a(f'v_fma_f32 v{b+2}, -v{b}, v{b}, v{b+2}'); a(f'v_max_f32 v{b+2}, 0, v{b+2}'); a(f'v_add_f32 v{b+2}, {f32(1e-5)}, v{b+2}')
            a(f'v_rsq_f32 v{b+1}, v{b+2}'); a(f'v_sub_f32 v{b}, 0, v{b}'); a(f'v_mov_b32 v{b+3}, 0')
            a(f'buffer_store_dwordx4 v[{b}:{b+3}], v24, s[76:79], 0 offen offset:{s*64} sc1')
    def trst(un):
        if un == 2: a('s_cmp_ge_u32 s46, 4'); a('s_cbranch_scc1 sv_s3')
        for t in range(5):
            d = 40 + 20 * un + 4 * t; ad = 26 if t < 4 else 27; off = un * 5120 + (64 * (t >> 1) + 8 * (t & 1) if t < 4 else 128)
            a(f'ds_read_b64_tr_b16 v[{d}:{d+1}], v{ad} offset:{off}'); a(f'ds_read_b64_tr_b16 v[{d+2}:{d+3}], v{ad} offset:{off+640}')
        a('s_waitcnt lgkmcnt(0)')
        for t in range(5):
            d = 40 + 20 * un + 4 * t
            if t < 4: a(f'buffer_store_dwordx4 v[{d}:{d+3}], v28, s[24:27], s56 offen offset:{t*1024} sc1')
            else: a(f'buffer_store_dwordx4 v[{d}:{d+3}], v29, s[24:27], s56 offen sc1')
        a(f's_add_u32 s56, s56, {32*5120}')
        if un == 2: a.label('sv_s3')
    a(f's_mul_i32 s56, s50, {W2_CB}'); a('s_mul_i32 s57, s46, 5120'); a('s_add_u32 s56, s56, s57')
    if STG0 == -1: t2dma()
    if SPROF == 4: stamp(a, 3)
    bar(a, 2)
    if SPROF == 4: stamp(a, 4)
    assert STG0 == -2
    a('s_cmp_lg_u32 s2, 0'); a('s_cbranch_scc1 sv_n2')
    a('s_waitcnt vmcnt(0)')
    a('v_mov_b32 v5, 1'); a('s_mov_b64 exec, 1'); a('global_store_dword v30, v5, s[20:21] sc1'); a('s_mov_b64 exec, -1')
    a.label('sv_n2')
    t2dma()
    a(f's_waitcnt vmcnt(10)'); stdot(0); stdot(1); stfin()
    if SPROF == 4: stamp(a, 5)
    if STG0 < 0: a('s_mov_b32 s68, 1')
    else:
        a(f's_mul_i32 s68, s46, {(65536 + NSTG - 1) // NSTG}'); a('s_lshr_b32 s68, s68, 16'); a(f's_mul_i32 s68, s68, {NSTG}'); a('s_sub_u32 s68, s68, s46')
        a(f's_sub_u32 s68, s68, {STG0}')
    a('s_mov_b32 s69, 0')
    a.label('sv_lp')
    bar(a)
    a('s_add_u32 s68, s68, 1')
    if STG0 >= 0: a('s_cmp_eq_u32 s68, 0'); a('s_cbranch_scc1 sv_e0')
    E1 = E('E1', 4)
    a(f's_cmp_eq_u32 s68, {E1}'); a('s_cbranch_scc1 sv_e1')
    a(f's_cmp_eq_u32 s68, {E1+1}'); a('s_cbranch_scc1 sv_e2')
    a(f's_cmp_eq_u32 s68, {E1+3}'); a('s_cbranch_scc1 sv_e3')
    a.label('sv_er')
    a('s_add_u32 s69, s69, 1'); a(f's_cmp_lt_u32 s69, {E("NLP", 11)}'); a('s_cbranch_scc1 sv_lp')
    a('s_branch sv_go')
    if STG0 >= 0:
        a.label('sv_e0'); t2dma(); a('s_branch sv_er')
    a.label('sv_e1'); a('s_waitcnt vmcnt(0)'); trst(0); a('s_branch sv_er')
    a.label('sv_e2'); trst(1); trst(2)
    if SS_: sread(a, 's72', 0, 's[20:21]', True)
    else: a('global_load_dword v31, v30, s[20:21] sc1')
    a('s_branch sv_er')
    a.label('sv_e3')
    if SS_: spoll(a, [('s72', 0, 1, False)], 's[20:21]', True, True); a('s_waitcnt vmcnt(0)')
    else: poll(a, 'v30', 'v31', 1, base='s[20:21]', preissued=True)
    a('s_mov_b64 exec, 3'); a('global_atomic_add v22, v23, s[10:11]'); a('s_mov_b64 exec, -1')
    a('s_branch sv_er')
    a.label('sv_go')
    assert STG0 + NSTG - 1 + 5 <= 11
    its = [('s72', 's60', 16, False), ('s73', 's61', 16, False), ('s74', 's62', 16, False), ('s75', 's63', 68, False)]
    if SS_:
        for n in range(4): a(f'v_readlane_b32 s{60+n}, v18, {n}')
        a('s_nop 3')
        for d, o, t, m in its: sread(a, d, o)
    else: a('global_load_dword v31, v18, s[10:11] sc1')
    bar(a, 2)
    if SS_: spoll(a, its, preissued=True)
    else: poll(a, 'v18', 'v31', 'v19', preissued=True)
    a('buffer_load_dwordx4 v[32:35], v20, s[76:79], 0 offen sc1')
    for n in range(1, 3): a(f'buffer_load_dwordx4 v[{32+4*n}:{35+4*n}], v21, s[76:79], 0 offen offset:{(n-1)*1024} sc1')
    bar(a, 2)
    a(f's_mov_b32 s56, {f32(C2)}'); a('s_cmp_eq_u32 s43, 1'); a(f's_cselect_b32 s57, 1.0, {f32(C1)}')
    a('s_waitcnt vmcnt(0)')
    if RETOUCH:
        a('s_getpc_b64 s[58:59]')
        a.label('sv_pc')
        a('s_sub_u32 s58, s58, sv_pc-k_gemm2'); a('s_subb_u32 s59, s59, 0')
        for n in range(4):
            a(f'v_min_u32 v{48+n}, k_end-k_gemm2-4, v17'); a(f'v_and_b32 v{48+n}, -4, v{48+n}')
            a(f'global_load_dword v{48+n}, v{48+n}, s[58:59]')
            if n < 3: a('v_add_u32 v17, 8192, v17')
    for n in range(3):
        b = 32 + 4 * n
        a(f'v_mov_b32 v{b+3}, v{b+2}')
        a(f'v_mul_f32 v{b+2}, v{b+1}, v{b+1}'); a(f'v_mul_f32 v{b+2}, v{b+2}, v{b+1}'); a(f'v_mul_f32 v{b+2}, s56, v{b+2}'); a(f'v_mul_f32 v{b+1}, s57, v{b+1}')
        a(f'ds_write_b128 v25, v[{b}:{b+3}] offset:{n*1024}')
        a(f'ds_write2st64_b32 v16, v{b}, v{b+1} offset0:{n} offset1:{3+n}')
    a('s_waitcnt lgkmcnt(0)')
    pre_setup(a)
    bar(a, 12 - E('NLP', 11))
    pre_issue(a, False)
    a('s_branch k_gemm2')

WREG = 35840
def gemm2(a):
    MUTE[0] = SPROF in (4, 5)
    if MAP2 == 0:
        a('s_and_b32 s41, s2, 7'); a('s_lshl_b32 s41, s41, 2'); a('s_lshr_b32 s47, s2, 6'); a('s_add_u32 s41, s41, s47')
        a('s_bfe_u32 s42, s2, 0x30003'); a('s_mov_b32 s48, s42')
    else:
        a('s_and_b32 s41, s2, 6'); a('s_lshl_b32 s41, s41, 2'); a('s_lshr_b32 s48, s2, 5'); a('s_add_u32 s41, s41, s48')
        a('s_and_b32 s42, s2, 1'); a('s_lshl_b32 s42, s42, 2'); a('s_bfe_u32 s47, s2, 0x20003'); a('s_add_u32 s42, s42, s47')
    a(f'v_lshlrev_b32 v248, 4, {L}')
    srd(a, 28, 22, 23, W2_SZ, WS_W2)
    a(f's_mul_i32 s52, s42, {W2_CB}'); a(f's_mul_i32 s46, s40, {17*5120}'); a('s_add_u32 s52, s52, s46')
    a('s_mul_i32 s56, s48, 3'); a('s_lshr_b32 s56, s56, 1'); a('s_mul_i32 s46, s47, 3'); a('s_add_u32 s56, s56, s46')
    a('s_cmp_ge_u32 s56, 12'); a('s_cselect_b32 s46, 12, 0'); a('s_sub_u32 s56, s56, s46'); a('s_add_u32 s57, s48, s47')
    a(f's_mul_i32 s62, s40, {WREG}')
    q = Q(a, 'vmcnt', 63)
    def soff(s, dst, base, stride):
        if s == 16: a(f's_add_u32 {dst}, {base}, {16*stride}'); return
        if s < 12:
            a(f's_add_u32 {dst}, s56, {s}'); a(f's_cmp_ge_u32 {dst}, 12'); a('s_cselect_b32 s60, 12, 0'); a(f's_sub_u32 {dst}, {dst}, s60')
        else:
            a(f's_add_u32 {dst}, s57, {s}'); a(f's_and_b32 {dst}, {dst}, 3'); a(f's_add_u32 {dst}, {dst}, 12')
        a(f's_mul_i32 {dst}, {dst}, {stride}'); a(f's_add_u32 {dst}, {dst}, {base}')
    free = list(range(80, 248, 4))
    WRg, ARg = {}, {}
    HS = [s for s in range(17) if WSRC[s] == 'H']; LS = [s for s in range(17) if WSRC[s] == 'L']; SS = [s for s in range(17) if WSRC[s] == 'S']
    assert len(WSRC) == 17 and len(LS) <= 7 and len(SS) <= 8 and WSRC[0] == 'H'
    def alloc(n):
        r = free[:n]; del free[:n]; assert len(r) == n; return r
    def wload(s, t, s0, s1):
        d = WRg[s][t]
        if t < 4: q.issue(('W', s), f'buffer_load_dwordx4 v[{d}:{d+3}], v248, s[28:31], {s0} offen offset:{t*1024} sc1')
        else: q.issue(('W', s), f'buffer_load_dwordx4 v[{d}:{d+3}], v248, s[28:31], {s1} offen sc1')
    def ldW(s):
        WRg[s] = alloc(5); soff(s, 's55', 's52', 5120); a('s_add_u32 s54, s55, 4096')
        for t in range(5): wload(s, t, 's55', 's54')
    def dmaW(s):
        po = LS.index(s) * 5120
        soff(s, 's55', 's52', 5120); a('s_add_u32 s54, s55, 4096')
        a(f's_add_u32 m0, s62, {po}')
        for t in range(4): q.issue(('W', s), f'buffer_load_dwordx4 v248, s[28:31], s55 offen offset:{t*1024} sc1 {NTP} lds')
        a(f's_add_u32 m0, s62, {po+4096}')
        q.issue(('W', s), f'buffer_load_dwordx4 v248, s[28:31], s54 offen sc1 {NTP} lds')
    for s in HS[:PRE]:
        WRg[s] = alloc(5); q.n[('W', s)] = 5; q.q += [('W', s)] * 5
    for s in HS[PRE:]: ldW(s)
    a('v_add_u32 v249, s62, v248')
    for t in range(4):
        a(f's_add_u32 s47, s40, {t}'); a('s_and_b32 s47, s47, 3'); a('s_lshl_b32 s47, s47, 10'); a(f'v_add_u32 v{250+t}, s47, v248')
    srd(a, 24, 22, 23, A2_SZ); srd(a, 32, 4, 5, XSZ); srd(a, 36, 18, 19, XSZ)
    a(f's_mul_i32 s50, s41, {A2_RB}'); a(f's_mul_i32 s46, s40, {17*4096}'); a('s_add_u32 s50, s50, s46')
    a(f'v_and_b32 v2, 15, {L}'); a(f'v_lshrrev_b32 v3, 4, {L}')
    a('s_lshl_b32 s47, s41, 6'); a('s_lshl_b32 s58, s40, 4'); a('s_add_u32 s58, s47, s58'); a('v_add_u32 v2, s58, v2')
    a('s_movk_i32 s58, 1280'); a('s_mul_i32 s59, s42, 160'); a('v_mul_lo_u32 v2, v2, s58'); a('v_add_u32 v2, s59, v2')
    a('v_lshl_add_u32 v254, v3, 4, v2'); a('v_lshl_add_u32 v255, v3, 3, v2')
    a('s_lshl_b32 s61, s40, 1'); a('s_lshl_b32 s61, 3, s61'); a('s_add_u32 s48, s47, 63')
    a('s_mul_i32 s58, s47, 607'); a('s_lshr_b32 s58, s58, 16'); a('s_mul_i32 s59, s48, 607'); a('s_lshr_b32 s59, s59, 16')
    a('s_cmp_lg_u32 s58, s59'); a('s_cselect_b32 s64, 0x101, 1')
    a('s_add_u32 s48, s47, 48')
    a('s_mul_i32 s58, s47, 410'); a('s_lshr_b32 s58, s58, 16'); a('s_mul_i32 s59, s48, 410'); a('s_lshr_b32 s59, s59, 16')
    a('s_cmp_lg_u32 s58, s59'); a('s_mov_b32 s65, 0x10000'); a('s_cselect_b32 s65, 0x1010000, s65')
    a(f's_mul_i32 s64, s64, {"255" if ALLM else "s61"}'); a('s_mul_i32 s66, s65, s61')
    a('s_lshl_b32 s65, s41, 3'); a('s_add_u32 s65, s65, s42'); a(f's_add_u32 s65, s65, {C_WG}'); a(f's_mul_i32 s65, s65, {CSTR}')
    a('v_mov_b32 v4, s65')
    SA = [3, 4, 5, 6, 7, 8, 9, 12, 13, 14, 15, 16, 17, 18, 19, 20, 21]
    for s in range(17): soff(s, f's{SA[s]}', 's50', 4096)
    SW = [72, 73, 74, 75, 76, 77, 78, 79, 63, 44, 45, 46, 48, 49, 51, 53]
    for n, s in enumerate(SS): soff(s, f's{SW[2*n]}', 's52', 5120); a(f's_add_u32 s{SW[2*n+1]}, s{SW[2*n]}, 4096')
    a(f'v_and_b32 v2, 1, {L}'); a('v_cmp_eq_u32 s[68:69], 1, v2')
    lds_wait(a, LCN + 4, 'v0', 'v1', sleep=1)
    stamp(a, 3)
    for s in LS: dmaW(s)
    if PROF: a('s_waitcnt vmcnt(0)'); stamp(a, 1)
    if OWN:
        if OWN == 1: a('s_cmp_eq_u32 s43, 1'); a('s_cbranch_scc1 g_own')
        lds_wait(a, LCN, 'v0', 'v1', sleep=2)
        a.label('g_own')
    if PPOLL:
        a('s_waitcnt vmcnt(0)'); a('s_mov_b32 s70, 0')
        for n in range(PPOLL - 1):
            a(f'global_load_dword v{8+n}, v4, s[10:11] sc1'); a(f's_sleep {PSL}')
        a.label('pp_top')
        for n in range(PPOLL):
            a(f'global_load_dword v{8+(n+PPOLL-1) % PPOLL}, v4, s[10:11] sc1')
            a(f's_waitcnt vmcnt({PPOLL-1})')
            a(f'v_and_b32 v1, s64, v{8+n}'); a('v_cmp_ne_u32 vcc, s64, v1'); a('s_nop 1'); a('s_cbranch_vccz pp_ok')
            a(f's_sleep {PSL}')
        a('s_add_u32 s70, s70, 1'); a(f's_cmp_lt_u32 s70, {SPIN}'); a('s_cbranch_scc1 pp_top')
        a('s_endpgm')
        a.label('pp_ok')
    elif SPOLL:
        a('s_waitcnt vmcnt(0)'); a('s_mov_b32 s70, 0')
        a.label('sp_top')
        if SPOLL == 1: a('s_mov_b32 s71, 0'); a('s_atomic_add s71, s[10:11], s65 glc')
        else: a('s_load_dword s71, s[10:11], s65 glc')
        a('s_waitcnt lgkmcnt(0)')
        a('s_and_b32 s71, s71, s64'); a('s_cmp_eq_u32 s71, s64'); a('s_cbranch_scc1 sp_ok')
        a(f's_sleep {SLEEP}')
        a('s_add_u32 s70, s70, 1'); a(f's_cmp_lt_u32 s70, {SPIN}'); a('s_cbranch_scc1 sp_top')
        a('s_endpgm')
        a.label('sp_ok')
    else: poll(a, 'v4', 'v1', 's64', mask=True)
    q.clear()
    stamp(a, 4)
    pend = []
    for s in range(17):
        if s in SS: pend.append(('W', s))
        pend.append(('A', s))
    pend.append(('X', 17))
    ogate = [False]; XR = []
    dq = []
    def refill(cur, resv):
        while pend:
            k, s = pend[0]
            n = {'W': 5, 'A': 4, 'X': 3}[k]
            if (k, s) == ('A', 16): n = 8
            if len(free) - resv < n or s > cur + (LA_W if k == 'W' else LA_A): break
            if k == 'A' and s >= 12 and not ogate[0]: break
            pend.pop(0); regs = alloc(n)
            if k == 'W':
                WRg[s] = regs; z = SS.index(s)
                for t in range(5): dq.append((s, lambda s=s, t=t, z=z: wload(s, t, f's{SW[2*z]}', f's{SW[2*z+1]}')))
            elif k == 'X':
                XR.extend(regs)
                dq.append((s, lambda: q.issue('X', f'buffer_load_dwordx4 v[{XR[0]}:{XR[0]+3}], v254, s[32:35], 0 offen')))
                dq.append((s, lambda: q.issue('X', f'buffer_load_dwordx4 v[{XR[1]}:{XR[1]+3}], v254, s[32:35], 0 offen offset:64')))
                dq.append((s, lambda: q.issue('X', f'buffer_load_dwordx2 v[{XR[2]}:{XR[2]+1}], v255, s[32:35], 0 offen offset:128')))
            else:
                ARg[s] = regs
                for t in range(4):
                    d = regs[t]
                    if s < 16: dq.append((s, lambda d=d, t=t, s=s: q.issue(('A', s), f'buffer_load_dwordx4 v[{d}:{d+3}], v{250+t}, s[24:27], s{SA[s]} offen sc1')))
                    else:
                        e = regs[4 + t]
                        dq.append((s, lambda d=d, t=t, s=s: (a(f'v_bfe_u32 v{d}, v{250+t}, 1, 9'), a(f'v_sub_u32 v{250+t}, v{250+t}, v{d}'), a(f'v_and_b32 v{250+t}, -16, v{250+t}'),
                                   q.issue(('A', s), f'buffer_load_dwordx4 v[{d}:{d+3}], v{250+t}, s[24:27], s{SA[s]} offen sc1'))))
                        dq.append((s, lambda e=e, t=t, s=s: q.issue(('A', s), f'buffer_load_dwordx4 v[{e}:{e+3}], v{250+t}, s[24:27], s{SA[s]} offen offset:512 sc1')))
    refill(0, 0)
    while dq: dq.pop(0)[1]()
    AC = lambda tr, tc: (tr * 5 + tc) * 4
    for s in range(17):
        while dq and dq[0][0] <= s + 1: dq.pop(0)[1]()
        assert q.n.get(('A', s)) == (4 if s < 16 else 8) and q.n.get(('W', s), 0) == 5, s
        q.wait(('W', s)); q.wait(('A', s))
        if SPROF == 1 and s in (0, 4, 8, 12): stamp(a, {0: 0, 4: 2, 8: 3, 12: 5}[s])
        if s == 16:
            for t in (1, 2, 3, 0):
                d, e = ARg[s][t], ARg[s][4 + t]
                a(f'v_cndmask_b32 v{d}, v{d}, v{d+2}, s[68:69]'); a(f'v_cndmask_b32 v{d+1}, v{d+1}, v{d+3}, s[68:69]')
                a(f'v_cndmask_b32 v{d+2}, v{e}, v{e+2}, s[68:69]'); a(f'v_cndmask_b32 v{d+3}, v{e+1}, v{e+3}, s[68:69]')
            free.extend(ARg[s][4:])
        if s in LS: a('s_waitcnt lgkmcnt(0)')
        if SO and s == OCHK - 1:
            assert OCHK not in LS
            sread(a, 's71', 's65')
        lq = []
        if s + 1 in LS:
            WRg[s + 1] = alloc(5)
            lq = [f'ds_read_b128 v[{d}:{d+3}], v249 offset:{LS.index(s+1)*5120 + t*1024}' for t, d in enumerate(WRg[s + 1])]
        n = 0
        if s == 16:
            while dq: dq.pop(0)[1]()
            wq = []
        for tr in (range(4) if s < 16 else (1, 2, 3, 0)):
            for tc in range(5):
                c = AC(tr, tc); w = WRg[s][tc]; x = ARg[s][tr]
                if s == 16:
                    if n >= 7: a(wq.pop(0))
                    if tr: wq.append(f'ds_write_b128 v249, v[{c}:{c+3}] offset:{(tr-1)*5120 + tc*1024}')
                src = '0' if s == 0 else f'v[{c}:{c+3}]'
                a(f'v_mfma_f32_16x16x32_bf16 v[{c}:{c+3}], v[{w}:{w+3}], v[{x}:{x+3}], {src}')
                pace = PACE if len(dq) <= 8 else 2
                if dq and n % pace == 0: dq.pop(0)[1]()
                elif lq: a(lq.pop(0))
                n += 1
            free.append(ARg[s][tr])
            if tr < 3: refill(s, 0)
        assert not lq
        free.extend(WRg[s])
        if SO:
            if s == OCHK:
                spoll(a, [('s71', 's65', 's66', True)], preissued=True)
                if not SPROF: stamp(a, 2)
                ogate[0] = True
        else:
            if s == OCHK - 2:
                PR = alloc(1)[0]
                dq.insert(0, (s + 1, lambda: (a(f'v_mov_b32 v{PR}, s65'), q.issue('P', f'global_load_dword v{PR+1}, v{PR}, s[10:11] sc1'))))
            if s == OCHK:
                q.wait('P')
                a(f'v_and_b32 v{PR+1}, s66, v{PR+1}'); a(f'v_cmp_ne_u32 vcc, s66, v{PR+1}'); a('s_nop 1'); a('s_cbranch_vccz g_ook')
                poll(a, f'v{PR}', f'v{PR+1}', 's66', mask=True)
                a.label('g_ook')
                if not SPROF: stamp(a, 2)
                free.append(PR); ogate[0] = True
        refill(s + 1, 5 if s + 2 in LS else 0)
    while dq: dq.pop(0)[1]()
    assert not pend
    if not SPROF: stamp(a, 5)
    for o in wq: a(o)
    for tp in range(1, 4):
        a(f's_sub_u32 s47, s40, {tp}'); a('s_and_b32 s47, s47, 3'); a(f's_mul_i32 s47, s47, {WREG}'); a(f'v_add_u32 v{249+tp}, s47, v248')
    q.wait('X')
    U = alloc(5); RD = alloc(15)
    xs = [XR[0] + n for n in range(4)] + [XR[1] + n for n in range(4)] + [XR[2], XR[2] + 1]
    P = lambda r: f'v[{r}:{r+1}]'
    for n in range(10):
        u = U[n >> 1] + 2 * (n & 1)
        a(f'v_lshlrev_b32 v{u}, 16, v{xs[n]}'); a(f'v_and_b32 v{u+1}, 0xffff0000, v{xs[n]}')
    for n in range(10): a(f'v_pk_add_f32 {P(2*n)}, {P(2*n)}, {P(U[n >> 1] + 2 * (n & 1))}')
    a('s_waitcnt lgkmcnt(0)'); bar(a); stamp(a, 6)
    for tp in range(1, 4):
        for tc in range(5):
            d = RD[5 * (tp - 1) + tc]
            a(f'ds_read_b128 v[{d}:{d+3}], v{249+tp} offset:{(tp-1)*5120 + tc*1024}')
    for sl in range(3):
        a(f's_waitcnt lgkmcnt({10-5*sl})')
        for n in range(10): a(f'v_pk_add_f32 {P(2*n)}, {P(2*n)}, {P(RD[5*sl + (n >> 1)] + 2 * (n & 1))}')
    for n in range(10): a(f'v_cvt_pk_bf16_f32 v{40+n}, v{2*n}, v{2*n+1}')
    a(f'buffer_store_dwordx4 v[40:43], v254, s[36:39], 0 offen {OSC}')
    a(f'buffer_store_dwordx4 v[44:47], v254, s[36:39], 0 offen offset:64 {OSC}')
    a(f'buffer_store_dwordx2 v[48:49], v255, s[36:39], 0 offen offset:128 {OSC}')
    stamp_flush(a, 4); MUTE[0] = False
    a('s_endpgm')

def mainloop(a, P, NT, NJ, ACC, WF, XB, wread, nw, onest, XS, swapj=-1):
    q = Q(a, 'lgkmcnt', 15)
    def xread(step, t):
        b = XB((NT * step + t) % 4)
        q.issue(('X', step % 4, t), f'ds_read_b128 v[{b}:{b+3}], v{238 + (step & 1)} offset:{t*2048}')
    def fix(step, h):
        b = XB((NT * step + onest) % 4) + 2 * h
        a(f'v_cndmask_b32 v{b}, v{b}, v242, s[64:65]'); a(f'v_cndmask_b32 v{b+1}, v{b+1}, v242, s[64:65]')
    a('s_mov_b32 s60, 0'); a('s_mov_b32 s61, 0')
    if E('CPRIO', 0): a(f's_setprio {E("CPRIO", 0)}')
    stamp(a, 1); bar(a); stamp(a, 2)
    for idx in range(nw): wread(q, 0, 0, idx)
    for t in range(3): xread(0, t)
    if onest == 0:
        q.wait(('X', 0, 0)); fix(0, 0); fix(0, 1)
    a.label(f'{P}_loop')
    wper = 3 if NJ == 6 else 1
    for k in range(4):
        cur, nxt = k & 1, (k + 1) & 1
        widx = 0
        for t in range(NT):
            q.wait(('X', k, t))
            fill = []
            tt = t + 3
            fill.append(lambda tt=tt: xread(k if tt < NT else k + 1, tt if tt < NT else tt - NT))
            if t == 0:
                if k < 2: fill.append(lambda: bar(a))
                else: fill.append(lambda: (a('s_cmp_eq_u32 s61, 4'), a(f's_cbranch_scc1 {P}_nb{k}'), bar(a), a.label(f'{P}_nb{k}')))
            for _ in range(wper + (1 if (NJ == 4 and t in (1, 2)) else 0)):
                if widx < nw:
                    fill.append(lambda w=widx: wread(q, (k + 1) % 4, nxt, w)); widx += 1
            if t == NT - 3:
                if k & 1 == 0:
                    fill.append(lambda: (a(f's_add_u32 s60, s60, {XS}'), a(f's_cmp_ge_u32 s60, {3*XS}')))
                    fill.append(lambda: (a('s_cselect_b32 s60, 0, s60'), a('v_add_u32 v238, s60, v240')))
                else:
                    fill.append(lambda: a('v_add_u32 v239, s60, v241'))
            if t == (onest - 1) % NT:
                st = k if onest > 0 else k + 1
                fill.append(lambda st=st: (q.wait(('X', st % 4, onest)), fix(st, 0)))
                fill.append(lambda st=st: fix(st, 1))
            if t == NT - 2 and k == 3:
                fill.append(lambda: (a('s_add_u32 s61, s61, 1'), a('s_cmp_lt_u32 s61, 5')))
            xb = XB((NT * k + t) % 4)
            for j in (range(NJ) if not (E('SNAKE', 0) and t & 1) else range(NJ - 1, -1, -1)):
                cc = ACC(j, t)
                oa, ob = (xb, WF(cur, j)) if j == swapj else (WF(cur, j), xb)
                a(f'v_mfma_f32_16x16x32_bf16 v[{cc}:{cc+3}], v[{oa}:{oa+3}], v[{ob}:{ob+3}], v[{cc}:{cc+3}]')
                if fill: fill.pop(0)()
            assert not fill, (t, len(fill))
        assert widx == nw
    a(f's_cbranch_scc1 {P}_loop')
    a('s_waitcnt lgkmcnt(0)')
    stamp(a, 3)
    if not ((QLATE and swapj >= 0) or (GLATE >= 0 and swapj < 0)): lds_arrive(a, LCN + 4, 'v246', 'v247')

def cons_common(a, T0, nacc, XO, onelane, P):
    if P == 'cq':
        for n in range(24, 36, 2): a(f's_mov_b64 s[{n}:{n+1}], 0')
        a('s_mov_b32 s56, 1')
    dryrun(a, P)
    g, i, r, c, t5 = [f'v{T0+8+n}' for n in range(5)]
    for n in range(4): a(f'v_mov_b32 v{T0+n}, 0')
    a(f'v_lshrrev_b32 {g}, 4, {L}'); a(f'v_and_b32 {i}, 15, {L}'); a(f'v_bfe_u32 {r}, {L}, 2, 2'); a(f'v_and_b32 {c}, 3, {L}')
    for n in range(nacc // 16): a(f'v_mfma_f32_32x32x16_bf16 v[{16*n}:{16*n+15}], v[{T0}:{T0+3}], v[{T0}:{T0+3}], 0')
    for n in range(nacc // 16 * 16, nacc, 4): a(f'v_mfma_f32_16x16x32_bf16 v[{n}:{n+3}], v[{T0}:{T0+3}], v[{T0}:{T0+3}], 0')
    a(f'v_lshrrev_b32 {t5}, 1, {i}'); a(f'v_xor_b32 {t5}, {t5}, {g}'); a(f'v_lshlrev_b32 {t5}, 4, {t5}'); a(f'v_lshl_or_b32 {t5}, {i}, 7, {t5}')
    a(f'v_add_u32 v240, {XO}, {t5}'); a('v_xor_b32 v241, 64, v240')
    a('v_mov_b32 v238, v240'); a('v_mov_b32 v239, v241')
    a('v_mov_b32 v242, 0x3f803f80'); a(f'v_cmp_eq_u32 s[64:65], {onelane}, {i}')
    a(f'v_mov_b32 {t5}, {LCN}'); a(f'ds_write_b128 {t5}, v[{T0}:{T0+3}]')
    a(f'v_lshlrev_b32 v248, 4, {i}'); a(f'v_add_u32 v248, {LST}, v248')

Pk = lambda r: f'v[{r}:{r+1}]'
def consumerG(a):
    ACC = lambda j, t: (j * 7 + t) * 4
    WF = lambda s, j: 168 + s * 24 + j * 4
    XB = lambda b: 216 + 4 * b
    WA = lambda hi, j: 232 + 3 * hi + j
    T0 = 168
    g, i, r, c, t5, t6, t7, t8 = [f'v{T0+8+n}' for n in range(8)]
    cons_common(a, T0, 168, GX, 15, 'cg')
    a(f'v_lshrrev_b32 {t5}, 1, {r}'); a(f'v_lshlrev_b32 {t5}, 2, {t5}'); a(f'v_and_b32 {t6}, 1, {g}'); a(f'v_or_b32 {t5}, {t5}, {t6}')
    a(f'v_lshlrev_b32 {t5}, 4, {t5}'); a(f'v_lshl_or_b32 {t5}, {r}, 7, {t5}'); a(f'v_lshl_or_b32 {t5}, {g}, 10, {t5}')
    a('s_lshr_b32 s51, s40, 1'); a('s_mul_i32 s51, s51, 3'); a('s_add_u32 s52, s51, 1')
    a('s_and_b32 s53, s40, 1'); a('s_lshl_b32 s54, s53, 1'); a('s_add_u32 s51, s51, s54')
    a(f'v_and_b32 {t6}, 1, {c}'); a(f'v_lshlrev_b32 {t7}, 4, {c}'); a(f'v_lshl_or_b32 {t7}, {t6}, 3, {t7}'); a(f'v_xor_b32 {t7}, {t7}, {t5}')
    a('s_and_b32 s54, s51, 1'); a('s_lshl_b32 s54, s54, 6'); a('s_lshr_b32 s55, s51, 1'); a('s_lshl_b32 s55, s55, 12')
    a(f'v_xor_b32 {t7}, s54, {t7}'); a(f'v_add_u32 v{WA(0,0)}, s55, {t7}'); a(f'v_xor_b32 v{WA(0,1)}, 8, v{WA(0,0)}')
    a(f'v_lshrrev_b32 {t7}, 1, {c}'); a(f'v_xor_b32 {t6}, {t6}, {t7}'); a(f'v_lshlrev_b32 {t7}, 4, {t7}'); a(f'v_lshl_or_b32 {t7}, {t6}, 3, {t7}')
    a(f'v_xor_b32 {t7}, {t7}, {t5}')
    a('s_and_b32 s54, s52, 1'); a('s_lshl_b32 s54, s54, 6'); a('s_lshl_b32 s56, s53, 5'); a('s_or_b32 s54, s54, s56')
    a('s_lshr_b32 s55, s52, 1'); a('s_lshl_b32 s55, s55, 12')
    a(f'v_xor_b32 {t7}, s54, {t7}'); a(f'v_add_u32 v{WA(0,2)}, s55, {t7}')
    for j in range(3): a(f'v_add_u32 v{WA(1,j)}, 49152, v{WA(0,j)}')
    a(f'v_lshrrev_b32 {t8}, 1, {g}'); a('s_lshl_b32 s56, s53, 1'); a(f'v_add_u32 {t8}, s56, {t8}')
    a('s_lshr_b32 s54, s44, 1'); a('s_mul_i32 s54, s54, 17'); a('s_and_b32 s55, s44, 1'); a('s_mul_i32 s55, s55, 6'); a('s_add_u32 s54, s54, s55')
    a('s_add_u32 s55, s54, s51'); a('s_lshl_b32 s55, s55, 12'); a(f'v_lshl_add_u32 v251, {g}, 8, s55')
    a('s_add_u32 s55, s54, s52'); a('s_lshl_b32 s55, s55, 12'); a(f'v_lshl_add_u32 v252, {t8}, 8, s55')
    a(f'v_lshlrev_b32 v249, 2, {i}'); a(f'v_add_u32 v249, {LRP}, v249')
    a(f'v_and_b32 {t5}, 1, {g}'); a(f'v_lshl_add_u32 v250, {t5}, 6, v249')
    a('s_waitcnt lgkmcnt(0)')
    cntbase(a); srd(a, 36, 22, 23, A2_SZ)
    def wread(q, slot, setn, idx):
        j, hf = idx >> 1, idx & 1
        off = (slot & 1) * 24576 + (j // 3) * 12288 + hf * 512
        d = WF(setn, j) + 2 * hf
        q.issue('W', f'ds_read_b64_tr_b16 v[{d}:{d+1}], v{WA(slot >> 1, j % 3)} offset:{off}')
    mainloop(a, 'cg', 7, 6, ACC, WF, XB, wread, 12, 6, GXS)
    ST = lambda t: 168 + 4 * t
    CS = lambda j: 196 + 4 * j
    RP = lambda t: 232 + t
    RS = lambda p: 244 + p
    seg(a, 'cg', 0)
    for p in range(4): a(f'ds_read2_b32 v[{RP(2*p)}:{RP(2*p)+1}], v249 offset0:{32*p} offset1:{32*p+16}')
    for p in range(2): a(f'ds_read2_b32 v[{RS(2*p)}:{RS(2*p)+1}], v250 offset0:{64*p} offset1:{64*p+32}')
    for t in range(7): a(f'ds_read_b128 v[{ST(t)}:{ST(t)+3}], v248 offset:{t*256}')
    for j in range(6):
        for rr in range(4):
            a(f'v_mov_b32_dpp v{CS(j)+rr}, v{ACC(j,6)+rr} row_newbcast:15 row_mask:0xf bank_mask:0xf')
    P = Pk
    for t in range(7):
        if t in (2, 4, 6): seg(a, 'cg', t // 2)
        a(f's_waitcnt lgkmcnt({6-t})')
        s01, s23 = P(ST(t)), P(ST(t) + 2)
        prs = [(j, hp) for j in range(3) for hp in range(2)]
        T = lambda n: 220 + 2 * n
        G = lambda j, hp: ACC(j, t) + 2 * hp
        U = lambda j, hp: ACC(j + 3, t) + 2 * hp
        for j, hp in prs: a(f'v_pk_fma_f32 {P(G(j,hp))}, {P(CS(j)+2*hp)}, {s01}, {P(G(j,hp))} op_sel:[0,0,0] op_sel_hi:[1,0,1]')
        for n, (j, hp) in enumerate(prs): a(f'v_pk_mul_f32 {P(T(n))}, {P(G(j,hp))}, {P(G(j,hp))}')
        for n, (j, hp) in enumerate(prs): a(f'v_pk_fma_f32 {P(T(n))}, {P(T(n))}, {s23}, {s01} op_sel:[0,0,1] op_sel_hi:[1,0,1]')
        for n, (j, hp) in enumerate(prs): a(f'v_pk_mul_f32 {P(T(n))}, {P(T(n))}, {P(G(j,hp))}')
        for n, (j, hp) in enumerate(prs):
            a(f'v_exp_f32 v{T(n)}, v{T(n)}'); a(f'v_exp_f32 v{T(n)+1}, v{T(n)+1}')
            a(f'v_pk_fma_f32 {P(U(j,hp))}, {P(CS(j+3)+2*hp)}, {s01}, {P(U(j,hp))} op_sel:[0,0,0] op_sel_hi:[1,0,1]')
        for n, (j, hp) in enumerate(prs): a(f'v_pk_fma_f32 {P(T(n))}, {P(T(n))}, {s23}, {s23} op_sel:[0,1,1] op_sel_hi:[1,1,1]')
        for n, (j, hp) in enumerate(prs):
            a(f'v_rcp_f32 v{T(n)}, v{T(n)}'); a(f'v_rcp_f32 v{T(n)+1}, v{T(n)+1}')
            a(f'v_pk_mul_f32 {P(U(j,hp))}, {P(U(j,hp))}, {P(G(j,hp))}')
        for n, (j, hp) in enumerate(prs): a(f'v_pk_mul_f32 {P(U(j,hp))}, {P(U(j,hp))}, {P(T(n))}')
        o4, Ep = ACC(0, t), ACC(1, t & ~1)
        for n, (j, hp) in enumerate(prs):
            d = o4 + n if n < 4 else Ep + 2 * (t & 1) + n - 4
            a(f'v_cvt_pk_bf16_f32 v{d}, v{U(j,hp)}, v{U(j,hp)+1}')
        a(f'v_add_u32 v{ACC(2,t)}, v{RP(t)}, v251')
        guard(a, f'buffer_store_dwordx4 v[{o4}:{o4+3}], v{ACC(2,t)}, s[36:39], 0 offen sc1')
        if t == GLATE: a('s_waitcnt lgkmcnt(0)'); lds_arrive(a, LCN + 4, 'v240', 'v241')
        if t & 1 or t == 6:
            ad = ACC(2, t) + 1
            a(f'v_add_u32 v{ad}, v{RS(t >> 1)}, v252')
            a(f'v_permlane16_swap_b32 v{Ep}, v{Ep+2}'); a(f'v_permlane16_swap_b32 v{Ep+1}, v{Ep+3}')
            guard(a, f'buffer_store_dwordx4 v[{Ep}:{Ep+3}], v{ad}, s[36:39], 0 offen sc1')
    seg(a, 'cg', 4)
    a('s_mov_b32 s62, s41'); a('s_add_u32 s63, s41, 107'); a('s_movk_i32 s66, 607'); a('s_mov_b32 s67, s44')
    a('s_branch k_pub')

def publish(a):
    stamp(a, 4)
    a('s_lshr_b32 s62, s62, 6'); a(f'v_lshrrev_b32 v250, 3, {L}'); a('v_add_u32 v250, s62, v250')
    a('v_lshlrev_b32 v251, 6, v250'); a('s_min_u32 s63, s63, 2047'); a('v_cmp_ge_u32 s[68:69], s63, v251')
    a('v_mul_u32_u24 v251, s66, v251'); a('v_lshrrev_b32 v251, 16, v251')
    a('v_sub_u32 v251, s45, v251'); a('v_lshl_add_u32 v251, v251, 3, s67')
    a('v_mov_b32 v252, 1'); a('v_lshlrev_b32 v251, v251, v252')
    a('s_lshl_b32 s62, s62, 3'); a(f's_add_u32 s62, s62, {C_WG}'); a(f'v_add_u32 v250, s62, {L}'); a(f'v_mul_u32_u24 v250, {CSTR}, v250')
    a(f'v_mov_b32 v253, {LCN}')
    a('s_waitcnt vmcnt(0)')
    if SPROF != 3: stamp(a, 5)
    a('s_mov_b64 exec, 1')
    a('ds_add_rtn_u32 v252, v253, v252')
    a('s_waitcnt lgkmcnt(0)')
    a('v_readfirstlane_b32 s71, v252')
    a('s_cmp_lg_u32 s71, 3'); a('s_cbranch_scc1 pub_x')
    a('s_mov_b64 exec, s[68:69]')
    a('global_atomic_add v250, v251, s[10:11]')
    a.label('pub_x')
    a('s_mov_b64 exec, -1')
    stamp_flush(a, 0)

def consumerQ(a):
    ACC = lambda j, t: (j * 11 + t) * 4
    WF = lambda s, j: 176 + s * 16 + j * 4
    XB = lambda b: 208 + 4 * b
    T0 = 176
    g, i, r, c, t5, t6, t7 = [f'v{T0+8+n}' for n in range(7)]
    cons_common(a, T0, 176, QX, 0, 'cq')
    a('s_mov_b64 s[24:25], -1'); a('s_mov_b32 s26, 0xffff0000'); a('s_mov_b32 s27, -1')
    a('s_mov_b32 s28, 0xffff'); a('s_mov_b32 s30, 0xffff0000'); a('s_mov_b32 s33, 0xffff'); a('s_mov_b32 s35, 0xffff0000')
    a(f'v_lshrrev_b32 {t5}, 1, {g}'); a(f'v_lshlrev_b32 {t5}, 4, {t5}'); a(f'v_and_b32 {t6}, 1, {g}'); a(f'v_lshl_add_u32 {t5}, {t6}, 2, {t5}'); a(f'v_add_u32 {t5}, {t5}, {r}')
    a(f'v_mul_u32_u24 {t5}, 160, {t5}'); a('s_mul_i32 s51, s40, 40'); a(f'v_add_u32 {t5}, s51, {t5}')
    a(f'v_lshl_add_u32 v224, {c}, 3, {t5}')
    a(f'v_min_u32 {t6}, 2, {c}'); a(f'v_mul_u32_u24 {t6}, 5120, {t6}'); a(f'v_add3_u32 v225, {t5}, {t6}, 32')
    if E('ZQ', 0): a(f'v_cmp_eq_u32 vcc, 3, {c}'); a(f'v_mov_b32 {t6}, 0x30000'); a(f'v_cndmask_b32 v225, v225, {t6}, vcc')
    a('s_mul_i32 s51, s40, 1408'); a(f's_add_u32 s51, s51, {4*WREG}')
    a(f'v_lshl_add_u32 v228, {i}, 3, s51'); a(f'v_add_u32 {t5}, 5632, v228'); a(f'v_cmp_eq_u32 vcc, 2, {g}'); a(f'v_cndmask_b32 v228, {t5}, v228, vcc')
    a(f'v_lshrrev_b32 {t5}, 2, {L}'); a(f'v_lshl_add_u32 v229, {t5}, 3, s51')
    a(f'v_lshlrev_b32 v230, 4, {g}'); a(f'v_add_u32 v230, {LS2}, v230')
    a(f'v_and_b32 {t5}, 1, {i}'); a(f'v_cmp_eq_u32 s[74:75], 1, {t5}')
    a(f'v_lshl_add_u32 {t6}, {g}, 2, {t5}'); a(f'v_cmp_le_u32 s[76:77], {t6}, {i}')
    a(f'v_add_u32 {t6}, 2, {t6}'); a(f'v_cmp_le_u32 s[78:79], {t6}, {i}')
    a(f'v_mov_b32 {t7}, 0x0c0c0c0c')
    a(f'v_mov_b32 {t5}, 0x0c0c0100'); a(f'v_mov_b32 {t6}, 0x01000c0c'); a(f'v_cndmask_b32 {t5}, {t5}, {t6}, s[74:75]')
    a(f'v_cndmask_b32 v232, {t5}, {t7}, s[76:77]'); a(f'v_cndmask_b32 v234, {t7}, {t5}, s[76:77]')
    a(f'v_mov_b32 {t5}, 0x0c0c0302'); a(f'v_mov_b32 {t6}, 0x03020c0c'); a(f'v_cndmask_b32 {t5}, {t5}, {t6}, s[74:75]')
    a(f'v_cndmask_b32 v233, {t5}, {t7}, s[78:79]'); a(f'v_cndmask_b32 v235, {t7}, {t5}, s[78:79]')
    a('s_mul_i32 s56, s45, 10')
    a('s_lshr_b32 s57, s44, 1'); a('s_mul_i32 s57, s57, 17'); a('s_add_u32 s57, s57, 12'); a('s_and_b32 s58, s44, 1'); a('s_lshl_b32 s58, s58, 1')
    a('s_lshr_b32 s52, s40, 1'); a('s_add_u32 s58, s58, s52'); a('s_and_b32 s53, s40, 1')
    a('s_add_u32 s59, s57, s58'); a('s_lshl_b32 s59, s59, 12'); a('s_lshl_b32 s52, s53, 9'); a('s_add_u32 s59, s59, s52')
    a(f'v_lshrrev_b32 {t5}, 1, {g}'); a(f'v_lshlrev_b32 {t5}, 8, {t5}'); a(f'v_and_b32 {t6}, 1, {g}'); a(f'v_lshl_add_u32 {t5}, {t6}, 10, {t5}')
    a(f'v_lshl_add_u32 {t5}, {i}, 4, {t5}'); a(f'v_add_u32 v236, s59, {t5}')
    a('s_add_u32 s57, s57, 4'); a('s_lshl_b32 s57, s57, 12'); a('s_add_u32 s57, s57, s52'); a('s_lshl_b32 s58, s58, 7'); a('s_add_u32 s57, s57, s58')
    a(f'v_add_u32 {t5}, s56, {g}'); a(f'v_lshrrev_b32 {t6}, 2, {t5}'); a(f's_mov_b32 s58, {A2_RB}'); a(f'v_mul_lo_u32 {t6}, {t6}, s58')
    a(f'v_and_b32 {t5}, 3, {t5}'); a(f'v_lshl_add_u32 {t6}, {t5}, 10, {t6}'); a(f'v_lshl_add_u32 {t6}, {i}, 3, {t6}'); a(f'v_add_u32 v237, s57, {t6}')
    a(f'v_mov_b32 {t5}, {OOB}'); a(f'v_cmp_gt_u32 vcc, 2, {g}'); a(f'v_cndmask_b32 v244, {t5}, v237, vcc')
    for n in range(5):
        a(f's_add_u32 s57, s56, {2*n}'); a('s_lshr_b32 s59, s57, 2'); a('s_mul_i32 s59, s59, s58'); a('s_and_b32 s57, s57, 3'); a('s_lshl_b32 s57, s57, 10'); a(f's_add_u32 s{48+n}, s59, s57')
    a('s_lshl_b32 s53, s58, 1')
    a('s_waitcnt lgkmcnt(0)')
    cntbase(a); srd(a, 36, 22, 23, A2_SZ)
    def wread(q, slot, setn, idx):
        j, hf = idx >> 1, idx & 1
        d = WF(setn, j) + 2 * hf
        if j < 3: q.issue('W', f'ds_read_b64_tr_b16 v[{d}:{d+1}], v224 offset:{slot*QWS + j*5120 + hf*1280}')
        else: q.issue('W', f'ds_read_b64_tr_b16 v[{d}:{d+1}], v225 offset:{slot*QWS + hf*1280}')
    mainloop(a, 'cq', 11, 4, ACC, WF, XB, wread, 8, 0, QXS, swapj=2)
    ST = lambda t: 176 + 2 * t
    CS = lambda j: 198 + 4 * (j if j < 2 else 2)
    VS = lambda t: (212, 220, 238)[t % 3]
    VR = lambda t: (216, 224, 250)[t % 3]
    Vp = lambda t: 88 + 2 * t
    Vl = lambda t: 110 + 2 * t
    P = Pk
    q = Q(a, 'lgkmcnt', 15)
    seg(a, 'cq', 0)
    for t in range(11): q.issue('S', f'ds_read_b64 v[{ST(t)}:{ST(t)+1}], v248 offset:{t*256}')
    def rdVS(t):
        q.issue(('VS', t), f'ds_read_b128 v[{VS(t)}:{VS(t)+3}], v230 offset:{t*64}')
        q.issue(('VS', t), f'ds_read_b128 v[{VR(t)}:{VR(t)+3}], v230 offset:{t*64+768}')
    rdVS(0); rdVS(1)
    for j in (0, 1, 3):
        for rr in range(4):
            a(f'v_mov_b32_dpp v{CS(j)+rr}, v{ACC(j,0)+rr} row_newbcast:0 row_mask:0xf bank_mask:0xf')
    a(f'v_mov_b32 v210, v{ACC(2,0)}'); a(f'v_mov_b32 v211, v{ACC(2,0)}'); a('v_permlane16_swap_b32 v210, v211')
    a('v_mov_b32 v211, v210'); a('v_permlane32_swap_b32 v210, v211')
    for t in range(11):
        if t == 5: seg(a, 'cq', 1)
        q.wait(('VS', t))
        if t < 9: rdVS(t + 2)
        s01 = P(ST(t))
        js = (1, 3) if t == 0 else (0, 1, 3)
        prs = [(j, hp) for j in js for hp in range(2)]
        G = lambda j, hp: ACC(j, t) + 2 * hp
        for j, hp in prs: a(f'v_pk_fma_f32 {P(G(j,hp))}, {P(CS(j)+2*hp)}, {s01}, {P(G(j,hp))} op_sel:[0,0,0] op_sel_hi:[1,0,1]')
        for hp in range(2): a(f'v_pk_fma_f32 {P(G(2,hp))}, {P(VS(t)+2*hp)}, v[210:211], {P(G(2,hp))} op_sel:[0,0,0] op_sel_hi:[1,0,1]')
        for j, hp in prs: a(f'v_pk_mul_f32 {P(G(j,hp))}, {P(G(j,hp))}, {s01} op_sel:[0,1] op_sel_hi:[1,1]')
        for hp in range(2): a(f'v_pk_mul_f32 {P(G(2,hp))}, {P(G(2,hp))}, {P(VR(t)+2*hp)}')
        for j in js[:-1]:
            for hp in range(2): a(f'v_cvt_pk_bf16_f32 v{ACC(j,t)+hp}, v{G(j,hp)}, v{G(j,hp)+1}')
        for j in (0, 1):
            for hp in range(2): a(f'v_cvt_pk_bf16_f32 v{ACC(j,t)+2+hp}, v{G(3,hp)}, v{G(3,hp)+1}')
        for hp in range(2): a(f'v_cvt_pk_bf16_f32 v{Vp(t)+hp}, v{G(2,hp)}, v{G(2,hp)+1}')
        q.issue('w', f'ds_write_b64 v228, v[{ACC(1,t)+2}:{ACC(1,t)+3}] offset:{t*128}')
    seg(a, 'cq', 2)
    if SPROF == 3: stamp(a, 1)
    SC = lambda u: 132 + 8 * u; SP = lambda u: 136 + 8 * u
    Qf = lambda u: ACC(0, u + 1); Kf = lambda t: ACC(1, t)
    for t in range(11):
        for hp in range(2): a(f'v_permlane16_swap_b32 v{ACC(0,t)+2+hp}, v{ACC(1,t)+2+hp}')
    q.wait('w')
    for t in range(11): q.issue('V', f'ds_read_b64_tr_b16 v[{Vl(t)}:{Vl(t)+1}], v229 offset:{t*128}')
    a('s_mov_b64 exec, s[26:27]')
    for u in range(10): a(f'v_mov_b64 v[{Qf(u)+2}:{Qf(u)+3}], 0')
    a('s_mov_b64 exec, s[24:25]')
    def sel1(u):
        a(f'v_cndmask_b32 v{SC(u)}, v{SC(u)}, v{SC(u)+1}, s[74:75]'); a(f'v_cndmask_b32 v{SC(u)+2}, v{SC(u)+2}, v{SC(u)+3}, s[74:75]')
        a(f'v_cndmask_b32 v{SP(u)}, v{SP(u)}, v{SP(u)+1}, s[74:75]'); a(f'v_cndmask_b32 v{SP(u)+2}, v{SP(u)+2}, v{SP(u)+3}, s[74:75]')
    for u in range(10):
        a(f'v_mfma_f32_16x16x32_bf16 v[{SC(u)}:{SC(u)+3}], v[{Kf(u+1)}:{Kf(u+1)+3}], v[{Qf(u)}:{Qf(u)+3}], 0')
        a(f'v_mfma_f32_16x16x32_bf16 v[{SP(u)}:{SP(u)+3}], v[{Kf(u)}:{Kf(u)+3}], v[{Qf(u)}:{Qf(u)+3}], 0')
        if u >= 3: sel1(u - 3)
    for u in range(7, 10): sel1(u)
    a('s_cmp_lg_u32 s56, 0'); a('s_cbranch_scc1 cq_nofix')
    a(f'v_mov_b32 v{SP(0)}, {f32(-1e30)}'); a(f'v_mov_b32 v{SP(0)+2}, {f32(-1e30)}')
    a.label('cq_nofix')
    if QLATE: lds_arrive(a, LCN + 4, 'v238', 'v239')
    if SPROF == 3: stamp(a, 2)
    LA = lambda u: 44 + 2 * u; LB = lambda u: 45 + 2 * u; M = lambda u: 64 + u
    for u in range(10):
        a(f'v_cndmask_b32 v{LA(u)}, v{SP(u)}, v{SC(u)}, s[76:77]'); a(f'v_cndmask_b32 v{LB(u)}, v{SP(u)+2}, v{SC(u)+2}, s[78:79]')
    for u in range(10): a(f'v_max_f32 v{M(u)}, v{LA(u)}, v{LB(u)}')
    a('v_mov_b32 v74, 1.0'); a('v_mov_b32 v75, 1.0')
    def reduce12(op, post):
        B4 = [64, 68, 72]
        for A in B4: a(f'v_permlane16_swap_b32 v{A}, v{A+1}'); a(f'v_permlane16_swap_b32 v{A+2}, v{A+3}')
        for A in B4: a(f'{op} v{A}, v{A}, v{A+1}'); a(f'{op} v{A+2}, v{A+2}, v{A+3}')
        for A in B4: a(f'v_permlane32_swap_b32 v{A}, v{A+2}')
        for A in B4: a(f'{op} v{A}, v{A}, v{A+2}')
        for A in B4: post(A)
        for A in B4: a(f'v_mov_b32 v{A+2}, v{A}')
        for A in B4: a(f'v_permlane32_swap_b32 v{A}, v{A+2}')
        for A in B4: a(f'v_mov_b32 v{A+1}, v{A}'); a(f'v_mov_b32 v{A+3}, v{A+2}')
        for A in B4: a(f'v_permlane16_swap_b32 v{A}, v{A+1}'); a(f'v_permlane16_swap_b32 v{A+2}, v{A+3}')
    cs = 20 ** -0.5 * LOG2E
    a(f's_mov_b32 s68, {f32(cs)}'); a(f's_mov_b32 s69, {f32(cs)}')
    reduce12('v_max_f32', lambda r: a(f'v_mul_f32 v{r}, s68, v{r}'))
    for u in range(10):
        h = M(u) & 1
        a(f'v_pk_fma_f32 {P(LA(u))}, {P(LA(u))}, s[68:69], {P(M(u) & ~1)} op_sel:[0,0,{h}] op_sel_hi:[1,1,{h}] neg_lo:[0,0,1] neg_hi:[0,0,1]')
    for u in range(10):
        a(f'v_exp_f32 v{LA(u)}, v{LA(u)}'); a(f'v_exp_f32 v{LB(u)}, v{LB(u)}')
    seg(a, 'cq', 3)
    for u in range(10): a(f'v_add_f32 v{M(u)}, v{LA(u)}, v{LB(u)}')
    reduce12('v_add_f32', lambda r: a(f'v_rcp_f32 v{r}, v{r}'))
    for u in range(10):
        h = M(u) & 1
        a(f'v_pk_mul_f32 {P(LA(u))}, {P(LA(u))}, {P(M(u) & ~1)} op_sel:[0,{h}] op_sel_hi:[1,{h}]')
    for u in range(10): a(f'v_cvt_pk_bf16_f32 v{LA(u)}, v{LA(u)}, v{LB(u)}')
    a('s_waitcnt lgkmcnt(0)')
    if SPROF == 3: stamp(a, 5)
    PF = Qf
    def pv(u):
        a(f'v_mfma_f32_16x16x32_bf16 v[{SC(u)}:{SC(u)+3}], v[{Vp(u)}:{Vp(u)+3}], v[{PF(u)}:{PF(u)+3}], 0')
        a(f'v_mfma_f32_16x16x32_bf16 v[{SP(u)}:{SP(u)+3}], v[{Vl(u)}:{Vl(u)+3}], v[{PF(u)}:{PF(u)+3}], 0')
    for u in range(10):
        for z in range(4): a(f'v_perm_b32 v{PF(u)+z}, v{LA(u)}, v{LA(u)}, v{232+z}')
        if u: pv(u - 1)
    pv(9)
    OM = lambda n: 44 + 4 * n
    for n in range(5):
        for e in range(2):
            u = 2 * n + e
            a(f'v_cvt_pk_bf16_f32 v{OM(n)+2*e}, v{SC(u)}, v{SC(u)+1}'); a(f'v_cvt_pk_bf16_f32 v{OM(n)+2*e+1}, v{SC(u)+2}, v{SC(u)+3}')
        if n:
            m = n - 1
            a(f'v_permlane16_swap_b32 v{OM(m)}, v{OM(m)+2}'); a(f'v_permlane16_swap_b32 v{OM(m)+1}, v{OM(m)+3}')
            guard(a, f'buffer_store_dwordx4 v[{OM(m)}:{OM(m)+3}], v236, s[36:39], s{48+m} offen sc1')
    for z in range(4):
        a(f's_mov_b64 exec, s[{28+2*z}:{29+2*z}]')
        for m in range(3):
            u = 4 * m + z
            if u < 10:
                a(f'v_cvt_pk_bf16_f32 v{64+2*m}, v{SP(u)}, v{SP(u)+1}'); a(f'v_cvt_pk_bf16_f32 v{65+2*m}, v{SP(u)+2}, v{SP(u)+3}')
    a('s_mov_b64 exec, s[24:25]')
    a(f'v_permlane16_swap_b32 v{OM(4)}, v{OM(4)+2}'); a(f'v_permlane16_swap_b32 v{OM(4)+1}, v{OM(4)+3}')
    seg(a, 'cq', 4)
    a(f'buffer_store_dwordx4 v[{OM(4)}:{OM(4)+3}], v236, s[36:39], s52 offen sc1')
    a('buffer_store_dwordx2 v[64:65], v237, s[36:39], 0 offen sc1')
    a('buffer_store_dwordx2 v[66:67], v237, s[36:39], s58 offen sc1')
    a('buffer_store_dwordx2 v[68:69], v244, s[36:39], s53 offen sc1')
    a('s_add_u32 s62, s41, 16'); a('s_add_u32 s63, s41, 175'); a('s_movk_i32 s66, 410'); a('s_add_u32 s67, s44, 16')

def main():
    a = Asm()
    ref = open('cdna_kernels/' + NAME + '.s.ref').read().split('\n')
    for l in ref:
        if l.startswith('; @launch'): break
        a.raw(l)
    if E("LIST", 0): a.raw(f'; @launch kernel={KN} grid=(256,1,1) block=(512,1,1) lds=163840')
    else: a.raw('; @launch grid=(256,1,1) block=(512,1,1) lds=163840')
    a.raw('.amdgcn_target "amdgcn-amd-amdhsa--gfx950"')
    a.raw('.text'); a.raw(f'.globl {KN}'); a.raw(f'.type {KN},@function')
    kernel(a)
    a.raw('.section .rodata,"a"'); a.raw('.p2align 6')
    a.raw(f'''.amdhsa_kernel {KN}
  .amdhsa_next_free_vgpr 256
  .amdhsa_next_free_sgpr 100
  .amdhsa_accum_offset 256
  .amdhsa_group_segment_fixed_size 0
  .amdhsa_kernarg_size 80
  .amdhsa_user_sgpr_count 2
  .amdhsa_user_sgpr_kernarg_segment_ptr 1
  .amdhsa_system_sgpr_workgroup_id_x 1
.end_amdhsa_kernel''')
    open(sys.argv[1], 'w').write(a.text())
    print('nops inserted', a.nops)
main()
```

```python
import sys, math, os
from asmlib import *

NAME = "parallel_sum__sliding_local_dilated__glu_gated_geglu__prompt"
KN = NAME + "_kernel"
A2_RB, A2_SZ = 278528, 32 * 278528
WS_W2, W2_CB, W2_SZ = 0x900000, 348160, 8 * 348160
WS_STAT, WS_CNT = 0x1400000, 0x1410000
C_STAT, C_W2, C_WG = 0, 16, 32
XSZ = 2048 * 1280
OOB = 0x7f000000
LOG2E = 1.4426950408889634
C1 = -2.0 * LOG2E * math.sqrt(2.0 / math.pi)
C2 = C1 * 0.044715
E = lambda k, d: int(os.environ.get(k, d))
PROF = E("PROF", 0); CLK = E("CLK", 0); SPROF = E("SPROF", 0)
ORD = [int(c) for c in os.environ.get("ORD", "55")]; PRE2 = E("PRE2", 0); TA = E("TA", 0); NSTG = E("NSTG", 4); STG0 = E("STG0", -2); TW = E("TW", 1); TB = E("TB", 7); TCB = E("TCB", 2); DRY = E("DRY", 0); OSC = os.environ.get("OSC", ""); GLATE = E("GLATE", -1); EB0 = E("EB0", 1); RETOUCH = E("RETOUCH", 1); MAP2 = E("MAP2", 0); QLATE = E("QLATE", 0); OCHK = E("OCHK", 8)
WSRC = os.environ.get("WSRC", "HHHLHSLHSLHSLLSLL")
LA_A = E("LA_A", 4); LA_W = E("LA_W", 4); PACE = E("PACE", 3); PRE = E("PRE", 2)
OWN = E("OWN", 1); PPOLL = E("PPOLL", 0); PSL = E("PSL", 2)
NTP = os.environ.get("NTP", ""); NTW = os.environ.get("NTW", ""); NTX = os.environ.get("NTX", ""); NTT = os.environ.get("NTT", "")
CSTR = E('CSTR', 256); ALLM = E('ALLM', 0); SPOLL = E('SPOLL', 1); SO = E('SO', 1); SS_ = E('SS', 0)
GCHK = E('GCHK', 4); TWO = E('TWO', 1)
T2G = E('T2G', 1); NOV0 = E('NOV0', 0)
SPIN = 30000; SLEEP = E("SLEEP", 4)
CH = [int(c) for c in os.environ.get("CH", "2222")]
WS_PROF = 0x2000000
GX, GXS, GWS = 98304, 14336, 24576
QX, QXS, QWS = 61440, 22528, 15360
LT2 = 141312
LST = LT2 + 3 * 5120
LRP = LST + 3072
LCN = LRP + 512
PB_HI = 61440
LS2 = LCN + 64
QST = 520
L = 'v243'

def srd(a, d, lo, hi, size, add=None):
    if add is None:
        a(f's_mov_b32 s{d}, s{lo}'); a(f's_mov_b32 s{d+1}, s{hi}')
    else:
        a(f's_add_u32 s{d}, s{lo}, {add}'); a(f's_addc_u32 s{d+1}, s{hi}, 0')
    a(f's_mov_b32 s{d+2}, {size}'); a(f's_mov_b32 s{d+3}, 0x20000')

MUTE = [False]
def stamp(a, n):
    if PROF and not (MUTE[0] and n < 7):
        a(f'{"s_memtime" if CLK else "s_memrealtime"} s[{80+2*n}:{81+2*n}]'); a('s_waitcnt lgkmcnt(0)')
def stamp_flush(a, waveadd=0):
    if not PROF: return
    a('s_waitcnt vmcnt(0)'); stamp(a, 7)
    a(f's_add_u32 s96, s22, {WS_PROF}'); a('s_addc_u32 s97, s23, 0')
    a(f's_lshl_b32 s98, s2, 3'); a(f's_add_u32 s98, s98, s40'); a(f's_add_u32 s98, s98, {waveadd}'); a('s_lshl_b32 s98, s98, 6')
    a('v_mov_b32 v0, s98')
    for n in range(8):
        a(f'v_mov_b32 v2, s{80+2*n}'); a(f'v_mov_b32 v3, s{81+2*n}')
        a(f'global_store_dwordx2 v0, v[2:3], s[96:97] offset:{8*n}')

class Q:
    def __init__(s, a, cnt, mx): s.a = a; s.q = []; s.cnt = cnt; s.mx = mx; s.n = {}
    def issue(s, tag, text):
        if len(s.q) >= s.mx:
            s.a(f's_waitcnt {s.cnt}({s.mx - 1})'); s.q = s.q[-(s.mx - 1):]
        s.a(text); s.q.append(tag); s.n[tag] = s.n.get(tag, 0) + 1; s.tot = getattr(s, 'tot', 0) + 1
    def wait(s, tag):
        if tag not in s.q: return
        idx = max(i for i, t in enumerate(s.q) if t == tag)
        n = len(s.q) - 1 - idx
        s.a(f's_waitcnt {s.cnt}({n})'); s.q = s.q[idx + 1:]
    def clear(s): s.q = []

_pl = [0]
def poll(a, va, vp, target, base='s[10:11]', preissued=False, st='s70', mask=False):
    _pl[0] += 1; n = _pl[0]
    a(f's_mov_b32 {st}, 0')
    if preissued: a(f's_branch pl{n}_chk')
    a.label(f'pl{n}_top')
    a(f'global_load_dword {vp}, {va}, {base} sc1')
    a.label(f'pl{n}_chk')
    a('s_waitcnt vmcnt(0)')
    if mask: a(f'v_and_b32 {vp}, {target}, {vp}')
    a(f'v_cmp_ne_u32 vcc, {target}, {vp}')
    a('s_nop 1')
    a(f's_cbranch_vccz pl{n}_ok')
    a(f's_sleep {SLEEP}')
    a(f's_add_u32 {st}, {st}, 1'); a(f's_cmp_lt_u32 {st}, {SPIN}'); a(f's_cbranch_scc1 pl{n}_top')
    a('s_endpgm')
    a.label(f'pl{n}_ok')

assert all((x * 607) >> 16 == x // 108 for x in range(2112))
assert all((x * 410) >> 16 == x // 160 for x in range(0, 2560, 16))
_sp = [0]
def sread(a, dst, off, base='s[10:11]', load=False):
    if SPOLL == 1 and not load: a(f's_mov_b32 {dst}, 0'); a(f's_atomic_add {dst}, {base}, {off} glc')
    else: a(f's_load_dword {dst}, {base}, {off} glc')
def spoll(a, items, base='s[10:11]', preissued=False, load=False):
    _sp[0] += 1; n = _sp[0]
    a('s_mov_b32 s70, 0')
    if preissued: a(f's_branch sq{n}_chk')
    a.label(f'sq{n}_top')
    for d, o, t, m in items: sread(a, d, o, base, load)
    a.label(f'sq{n}_chk')
    a('s_waitcnt lgkmcnt(0)')
    for k, (d, o, t, m) in enumerate(items):
        if m: a(f's_and_b32 {d}, {d}, {t}')
        a(f's_cmp_eq_u32 {d}, {t}')
        a(f's_cbranch_scc1 sq{n}_ok' if k == len(items) - 1 else f's_cbranch_scc0 sq{n}_no')
    a.label(f'sq{n}_no')
    a(f's_sleep {SLEEP}')
    a('s_add_u32 s70, s70, 1'); a(f's_cmp_lt_u32 s70, {SPIN}'); a(f's_cbranch_scc1 sq{n}_top')
    a('s_endpgm')
    a.label(f'sq{n}_ok')
def cntbase(a):
    a(f's_add_u32 s10, s22, {WS_CNT}'); a('s_addc_u32 s11, s23, 0')
def bar(a, n=1):
    for _ in range(n): a('s_barrier')

_ls = [0]
def lds_arrive(a, off, va, vb):
    a(f'v_mov_b32 {va}, {off}'); a(f'v_mov_b32 {vb}, 1')
    a('s_mov_b64 exec, 1'); a(f'ds_add_u32 {va}, {vb}'); a('s_mov_b64 exec, -1')
def lds_wait(a, off, va, vb, sleep=0, setaddr=True):
    _ls[0] += 1; n = _ls[0]
    if setaddr: a(f'v_mov_b32 {va}, {off}')
    a('s_mov_b32 s70, 0')
    a.label(f'lw{n}')
    a(f'ds_read_b32 {vb}, {va}'); a('s_waitcnt lgkmcnt(0)'); a(f'v_readfirstlane_b32 s71, {vb}')
    a('s_cmp_ge_u32 s71, 4'); a(f's_cbranch_scc1 lw{n}_ok')
    if sleep: a(f's_sleep {sleep}')
    a('s_add_u32 s70, s70, 1'); a('s_cmp_lt_u32 s70, 200000'); a(f's_cbranch_scc1 lw{n}')
    a('s_endpgm')
    a.label(f'lw{n}_ok')

_gd = [0]
def guard(a, *ins):
    _gd[0] += 1
    if DRY: a(f's_cbranch_execz gd{_gd[0]}')
    for t in ins: a(t)
    if DRY: a.label(f'gd{_gd[0]}')
def seg(a, P, n):
    if not DRY: return
    if n > 0: a(f's_cbranch_execz {P}_ret')
    if n < 4: a.label(f'{P}_seg{n}')
def dryrun(a, P):
    if not DRY: return
    a('s_mov_b64 exec, 0')
    for n in range(3):
        a(f's_cmp_eq_u32 s40, {n}'); a(f's_cbranch_scc1 {P}_seg{n}')
    a(f's_branch {P}_seg3')
    a.label(f'{P}_ret')
    a('s_mov_b64 exec, -1')
    a.fence(12)

def kernel(a):
    a.raw('.p2align 8'); a.label(KN)
    a('s_cmp_ge_u32 s2, 256'); a('s_cbranch_scc1 k_exit')
    if E('SCRAMBLE', 0) == 2: a('s_bfe_u32 s3, s2, 0x30003'); a('s_xor_b32 s2, s2, s3')
    if E('SCRAMBLE', 0) == 1: a('s_and_b32 s3, s2, 7'); a('s_lshl_b32 s3, s3, 5'); a('s_lshr_b32 s2, s2, 3'); a('s_or_b32 s2, s2, s3')
    a('s_load_dwordx4 s[4:7], s[0:1], 0'); a('s_load_dwordx4 s[12:15], s[0:1], 32'); a('s_load_dwordx4 s[20:23], s[0:1], 64')
    a('s_load_dwordx2 s[8:9], s[0:1], 16'); a('s_load_dwordx4 s[16:19], s[0:1], 48')
    a('v_lshrrev_b32 v1, 6, v0'); a('v_and_b32 v243, 63, v0')
    a('v_readfirstlane_b32 s40, v1')
    a('s_getpc_b64 s[46:47]')
    a.label('k_pc')
    a('s_cmp_ge_u32 s40, 4'); a('s_cbranch_scc1 k_nopf')
    a('v_lshlrev_b32 v2, 7, v0'); a('v_add_u32 v3, 32768, v2')
    a('v_min_u32 v2, k_end-k_pc-4, v2'); a('v_min_u32 v3, k_end-k_pc-4, v3'); a('v_and_b32 v2, -4, v2'); a('v_and_b32 v3, -4, v3')
    a('global_load_dword v255, v2, s[46:47]'); a('global_load_dword v254, v3, s[46:47]')
    a.label('k_nopf')
    stamp(a, 0)
    a('s_and_b32 s44, s2, 3'); a('s_bfe_u32 s48, s2, 0x10002'); a('s_lshr_b32 s46, s2, 3')
    a('s_sub_u32 s49, 10, s48'); a('s_lshl_b32 s50, s49, 1')
    a('s_mul_i32 s51, s48, 10')
    a('s_cmp_ge_u32 s46, s50'); a('s_cselect_b32 s43, 1, 0'); a('s_cbranch_scc0 k_d1')
    a('s_sub_u32 s46, s46, s50'); a('s_add_u32 s49, s48, 6'); a('s_mul_i32 s51, s48, 6')
    a.label('k_d1')
    a('s_cmp_ge_u32 s46, s49'); a('s_cselect_b32 s47, 1, 0'); a('s_cselect_b32 s50, s49, 0'); a('s_sub_u32 s46, s46, s50')
    a('s_lshl_b32 s44, s44, 1'); a('s_add_u32 s44, s44, s47')
    a('s_add_u32 s45, s46, s51')
    a('s_mul_i32 s41, s45, 108'); a('s_mul_i32 s50, s45, 160'); a('s_sub_u32 s50, s50, 16')
    a('s_cmp_eq_u32 s43, 1'); a('s_cselect_b32 s41, s50, s41')
    a('s_cmp_lt_u32 s40, 4'); a('s_cbranch_scc1 k_cons')
    a('s_sub_u32 s40, s40, 4')
    a('s_cmp_eq_u32 s40, 3'); a('s_cbranch_scc1 k_serv')
    if TA:
        for cls in range(3):
            if cls < 2: a(f's_cmp_lg_u32 s40, {cls}'); a(f's_cbranch_scc1 k_t{cls}')
            touch_setup(a, cls, 'v40', 'v41', 'v42')
            a('s_waitcnt lgkmcnt(0)')
            for _ in range(TA):
                touch(a, cls, 'v40', 'v43')
                if cls != 1: a('global_load_dword v43, v44, s[4:5]') if False else None
            if cls < 2: a('s_branch k_td'); a.label(f'k_t{cls}')
        a.label('k_td')
    NK = E("NK", max(ORD)); KS = E("KS", 2); KT = E("KT", 1)
    assert sum(ORD) == 10
    def order(key):
        first, rest, base = [], [], 0
        for n in ORD:
            z = key % n
            first.append(base + z); rest += [base + (z + d) % n for d in range(1, n)]; base += n
        return first + rest
    def order5(key):
        return [(2 * key + d) % 10 for d in range(10)]
    a(f's_mul_i32 s68, s47, {KS}'); a('s_add_u32 s68, s68, s46'); a(f's_mul_i32 s46, s43, {KT}'); a('s_add_u32 s68, s68, s46')
    for _ in range(2):
        a(f's_cmp_ge_u32 s68, {NK}'); a(f's_cselect_b32 s46, {NK}, 0'); a('s_sub_u32 s68, s68, s46')
    assert NK == 1 or 9 + KS + KT < 3 * NK
    for key in range(NK):
        o = order5(key) if ORD == [5, 5] else order(key)
        v = sum(x << (4 * n) for n, x in enumerate(o))
        if key == 0: a(f's_mov_b32 s64, {v & 0xffffffff}'); a(f's_mov_b32 s65, {v >> 32}')
        else: a(f's_cmp_eq_u32 s68, {key}'); a(f's_cselect_b32 s64, {v & 0xffffffff}, s64'); a(f's_cselect_b32 s65, {v >> 32}, s65')
    a('s_mov_b64 s[66:67], s[64:65]'); a('s_and_b32 s68, s64, 15'); a('s_mov_b32 s69, 0')
    a(f'v_lshrrev_b32 v2, 3, {L}'); a(f'v_and_b32 v3, 7, {L}')
    a('s_movk_i32 s53, 1280'); a('s_lshl_b32 s58, s68, 7'); a('s_lshl_b32 s54, s40, 10'); a('s_mov_b32 s61, 0')
    a(f'v_mov_b32 v9, {OOB}')
    a('s_cmp_eq_u32 s43, 1'); a('s_cbranch_scc1 k_ldq')
    loader(a, False)
    a('s_branch k_gemm2')
    a.label('k_ldq'); loader(a, True)
    a.label('k_gemm2'); gemm2(a)
    a.label('k_serv'); service(a)
    a.label('k_cons')
    a('s_cmp_eq_u32 s43, 1'); a('s_cbranch_scc1 k_consq')
    consumerG(a)
    a.label('k_consq'); consumerQ(a)
    a.label('k_pub'); publish(a)
    a.label('k_exit'); a('s_endpgm')
    a.label('k_end')

def touch_setup(a, cls, v, t1, t2):
    a('s_lshr_b32 s72, s2, 3'); a('s_and_b32 s73, s2, 3')
    if cls == 0:
        a('s_bfe_u32 s74, s2, 0x10002'); a('s_mul_i32 s74, s74, 944'); a('s_mul_i32 s72, s72, 35'); a('s_add_u32 s72, s72, s74')
        a(f'v_min_u32 {v}, 34, {L}'); a(f'v_add_u32 {v}, s72, {v}'); a(f'v_min_u32 {v}, 2047, {v}'); a(f'v_mul_u32_u24 {v}, 1280, {v}')
    elif cls == 1:
        a(f's_mul_i32 s72, s72, {2*3072}'); a('s_mul_i32 s73, s73, 768'); a('s_add_u32 s72, s72, s73')
        a(f'v_min_u32 {v}, 11, {L}'); a(f'v_cmp_lt_u32 vcc, 5, {v}'); a(f'v_mov_b32 {t1}, {3072-768}'); a(f'v_cndmask_b32 {t1}, 0, {t1}, vcc')
        a(f'v_lshl_add_u32 {v}, {v}, 7, {t1}'); a(f'v_add_u32 {v}, s72, {v}')
    else:
        a(f's_mul_i32 s72, s72, {2*3840}'); a('s_mul_i32 s73, s73, 320'); a('s_and_b32 s73, s73, -128'); a('s_add_u32 s72, s72, s73')
        a(f'v_min_u32 {v}, 17, {L}'); a(f'v_mul_u32_u24 {t1}, 86, {v}'); a(f'v_lshrrev_b32 {t1}, 8, {t1}')
        a(f'v_mul_u32_u24 {t1}, {1280-384}, {t1}'); a(f'v_lshl_add_u32 {v}, {v}, 7, {t1}'); a(f'v_add_u32 {v}, s72, {v}')
def touch(a, cls, v, dst):
    if cls == 0: a(f'global_load_dword {dst}, {v}, s[4:5]'); a(f'v_add_u32 {v}, 128, {v}')
    elif cls == 1: a(f'global_load_dword {dst}, {v}, s[12:13]'); a(f'global_load_dword {dst}, {v}, s[14:15]'); a(f'v_add_u32 {v}, {64*3072}, {v}')
    else: a(f'global_load_dword {dst}, {v}, s[6:7]'); a(f'v_add_u32 {v}, {64*3840}, {v}')

def pre_setup(a):
    assert WSRC[:PRE] == 'H' * PRE and MAP2 == 0 and PRE <= 3
    srd(a, 36, 22, 23, W2_SZ, WS_W2)
    a(f'v_lshlrev_b32 v248, 4, {L}')
    a('s_lshr_b32 s47, s2, 6'); a('s_bfe_u32 s48, s2, 0x30003')
    a(f's_mul_i32 s49, s48, {W2_CB}'); a(f's_mul_i32 s50, s40, {17*5120}'); a('s_add_u32 s49, s49, s50')
    a('s_lshl_b32 s47, s47, 1'); a('s_add_u32 s48, s48, s47')
    for n in range(PRE):
        d = f's{74+2*n}'
        a(f's_add_u32 {d}, s48, {n}'); a(f's_and_b32 {d}, {d}, 7')
        a(f's_mul_i32 {d}, {d}, 5120'); a(f's_add_u32 {d}, {d}, s49'); a(f's_add_u32 s{75+2*n}, {d}, 4096')
def pre_issue(a, wait=True):
    if SPROF == 5: stamp(a, 1)
    if wait: a('s_waitcnt vmcnt(0)')
    if SPROF == 5: stamp(a, 2)
    for n in range(PRE):
        for t in range(5):
            d = 80 + 20 * n + 4 * t
            if t < 4: a(f'buffer_load_dwordx4 v[{d}:{d+3}], v248, s[36:39], s{74+2*n} offen offset:{t*1024} sc1')
            else: a(f'buffer_load_dwordx4 v[{d}:{d+3}], v248, s[36:39], s{75+2*n} offen sc1')
    if SPROF == 5: stamp(a, 3)
    bar(a)
    if SPROF == 5: stamp(a, 4)

def loader(a, isq):
    P = 'lq' if isq else 'lg'
    NXM = 8 if isq else 5; NQ = 22 if isq else 14
    XO, XS, WS = (QX, QXS, QWS) if isq else (GX, GXS, GWS)
    RS = 3840 if isq else 3072
    XV = 12
    a('v_lshrrev_b32 v4, 1, v2'); a('v_xor_b32 v4, v4, v3'); a('s_and_b32 s51, s40, 1'); a('s_lshl_b32 s51, s51, 2'); a('v_xor_b32 v4, s51, v4')
    a('v_lshlrev_b32 v4, 4, v4')
    a('s_lshl_b32 s52, s40, 3'); a('s_add_u32 s52, s52, s41'); a('v_add_u32 v5, s52, v2')
    a('v_mul_lo_u32 v6, v5, s53'); a(f'v_add_u32 v{XV}, v6, v4')
    for m in range(1, NXM):
        if m == 1: a(f'v_xor_b32 v7, 64, v{XV}')
        a(f'v_add_u32 v{XV+m}, {m*24*1280}, v{XV if m % 2 == 0 else 7}')
    if isq:
        a('v_cmp_gt_i32 vcc, 0, v5'); a(f'v_cndmask_b32 v{XV}, v{XV}, v9, vcc')
    else:
        a('v_subrev_u32 v5, s41, v5'); a('v_cmp_gt_u32 vcc, 12, v5'); a(f'v_cndmask_b32 v{XV+4}, v9, v{XV+4}, vcc')
    a(f's_add_u32 s59, s54, {XO}')
    a('s_waitcnt lgkmcnt(0)')
    srd(a, 24, 4, 5, XSZ)
    cnt = [0]
    def Xl(m):
        last = m == NXM - 1
        if last:
            cnt[0] += 1
            a(f's_cmp_ge_u32 s40, {NQ - 3*(NXM-1)}'); a(f's_cbranch_scc1 {P}_sk{cnt[0]}')
        a(f's_add_u32 m0, s59, {m*3072}')
        a(f'buffer_load_dwordx4 v{XV+m}, s[24:27], s58 offen {NTX} lds')
        if last: a.label(f'{P}_sk{cnt[0]}')
    def Xadv():
        a('s_lshr_b64 s[66:67], s[66:67], 4'); a('s_and_b32 s58, s66, 15'); a('s_lshl_b32 s58, s58, 7')
        a(f's_add_u32 s59, s59, {XS}')
        a(f's_cmp_ge_u32 s59, {XO+3*XS}'); a(f's_cselect_b32 s60, {3*XS}, 0'); a('s_sub_u32 s59, s59, s60')
    def issueX():
        for m in range(NXM): Xl(m)
        Xadv()
    if TA: a(f's_waitcnt vmcnt({TA - TW})')
    if SPROF == 4: stamp(a, 1)
    issueX()
    WV = 20
    a(f's_movk_i32 s42, {RS}')
    if isq:
        NW = 5
        srd(a, 28, 6, 7, 640 * 3840)
        a('s_mul_i32 s46, s40, 1280'); a('s_mul_i32 s47, s44, 160'); a('s_add_u32 s46, s46, s47')
        for n in range(5):
            a(f'v_add_u32 v4, {64*n}, {L}'); a('v_mul_u32_u24 v5, 205, v4'); a('v_lshrrev_b32 v5, 11, v5')
            a('v_mul_u32_u24 v6, 10, v5'); a('v_sub_u32 v4, v4, v6'); a('v_lshl_add_u32 v4, v4, 4, s46')
            a('v_lshrrev_b32 v6, 1, v5'); a('v_xor_b32 v6, v6, v5'); a('v_and_b32 v6, 4, v6'); a('v_mul_u32_u24 v6, 3, v6'); a('v_xor_b32 v5, v5, v6')
            a(f'v_mad_u32_u24 v{WV+n}, v5, s42, v4')
        a('s_mul_i32 s57, s40, 5120')
        def Wl(n):
            a(f's_add_u32 m0, s57, {n*1024}')
            a(f'buffer_load_dwordx4 v{WV+n}, s[28:31], s56 offen {NTW} lds')
    else:
        NW = 8
        srd(a, 28, 12, 13, 640 * 3072); srd(a, 32, 14, 15, 640 * 3072)
        a(f'v_bfe_u32 v4, {L}, 4, 1'); a('v_lshlrev_b32 v4, 2, v4'); a('v_xor_b32 v4, v4, v3'); a('v_lshlrev_b32 v4, 4, v4')
        a('s_mul_i32 s46, s44, 384'); a('s_lshl_b32 s47, s40, 7'); a('s_add_u32 s46, s46, s47')
        a('v_mad_u32_u24 v4, v2, s42, v4'); a(f'v_add_u32 v{WV}, s46, v4'); a(f'v_xor_b32 v4, 16, v{WV}')
        a(f'v_add_u32 v{WV+1}, {8*3072}, v4'); a(f'v_add_u32 v{WV+2}, {16*3072}, v{WV}'); a(f'v_add_u32 v{WV+3}, {24*3072}, v4')
        a('s_lshl_b32 s57, s40, 12')
        def Wl(n):
            half, g = n >> 2, n & 3
            a(f's_add_u32 m0, s57, {half*12288 + g*1024}')
            a(f'buffer_load_dwordx4 v{WV+g}, s[{28+4*half}:{31+4*half}], s56 offen {NTW} lds')
    a(f's_mul_i32 s56, s68, {64*RS}')
    wpar = [0]
    def Wadv():
        if wpar[0] == 0: a(f's_add_u32 s56, s56, {32*RS}')
        else: a('s_lshr_b64 s[64:65], s[64:65], 4'); a('s_and_b32 s56, s64, 15'); a(f's_mul_i32 s56, s56, {64*RS}')
        wpar[0] ^= 1
        a(f's_add_u32 s57, s57, {WS}')
        a(f's_cmp_ge_u32 s57, {4*WS}'); a(f's_cselect_b32 s60, {4*WS}, 0'); a('s_sub_u32 s57, s57, s60')
    def issueW():
        for n in range(NW): Wl(n)
        Wadv()
    issueW(); issueW()
    if SPROF == 4: stamp(a, 2)
    cntbase(a); pre_setup(a)
    XA = (NXM + 1) // 2; XB_ = NXM - XA
    a(f's_waitcnt vmcnt({NW})')
    if SPROF == 4: stamp(a, 3)
    bar(a)
    if SPROF == 4: stamp(a, 4)
    if EB0:
        issueW(); a(f's_waitcnt vmcnt({NW})'); bar(a); issueX()
    else:
        issueW(); issueX()
        a(f's_waitcnt vmcnt({NW + NXM - 1})'); bar(a)
    if SPROF == 4: stamp(a, 5)
    issueW()
    if SPROF == 4: stamp(a, 6)
    if PROF:
        a('s_memtime s[72:73]'); a('s_waitcnt lgkmcnt(0)'); a('v_mov_b32 v60, s72')
    a.label(f'{P}_loop')
    for n in range(NW): Wl(n)
    for m in range(XA): Xl(m)
    Wadv()
    a(f's_waitcnt vmcnt({2*NW + XA})'); bar(a)
    for m in range(XA, NXM): Xl(m)
    for n in range(NW): Wl(n)
    Wadv(); Xadv()
    a('s_add_u32 s61, s61, 1'); a('s_cmp_lt_u32 s61, 8')
    a(f's_waitcnt vmcnt({2*NW + NXM - 1})'); bar(a)
    if PROF:
        a('s_memtime s[72:73]'); a('s_waitcnt lgkmcnt(0)')
        for r in range(69, 60, -1): a(f'v_mov_b32 v{r}, v{r-1}')
        a('v_mov_b32 v60, s72')
    a(f's_cbranch_scc1 {P}_loop')
    pre_issue(a)
    if PROF:
        a(f's_add_u32 s96, s22, {WS_PROF + 0x20000}'); a('s_addc_u32 s97, s23, 0')
        a('s_lshl_b32 s98, s2, 3'); a('s_add_u32 s98, s98, s40'); a('s_lshl_b32 s98, s98, 6'); a('v_mov_b32 v59, s98')
        for r in range(9): a(f'global_store_dword v59, v{68-r}, s[96:97] offset:{4*r}')

def service(a):
    a('s_and_b32 s50, s2, 7'); a('s_lshl_b32 s51, s50, 5'); a('s_lshr_b32 s46, s2, 3'); a('s_add_u32 s51, s51, s46'); a('s_lshl_b32 s52, s51, 3')
    a(f'v_lshrrev_b32 v1, 4, {L}'); a(f'v_and_b32 v2, 15, {L}'); a('v_add_u32 v1, s52, v1')
    a('s_movk_i32 s53, 1280'); a('v_lshlrev_b32 v3, 4, v2'); a('v_mad_u32_u24 v3, v1, s53, v3')
    a('v_mov_b32 v30, 0')
    a('s_waitcnt lgkmcnt(0)')
    srd(a, 24, 4, 5, XSZ); cntbase(a)
    a('s_movk_i32 s54, 5120')
    for s in range(2):
        for j in range(5):
            d = 140 + 20 * s + 4 * j
            a(f'buffer_load_dwordx4 v[{d}:{d+3}], v3, s[24:27], {"s54" if s else "0"} offen offset:{j*256}')
    a('s_cmp_lg_u32 s2, 0'); a('s_cbranch_scc1 sv_ni')
    a(f'v_mul_u32_u24 v4, {CSTR}, {L}')
    for n in range(3):
        a('global_store_dword v4, v30, s[10:11] sc1'); a('global_store_dword v4, v30, s[10:11] offset:128 sc1'); a(f'v_add_u32 v4, {64*CSTR}, v4')
    a.label('sv_ni')
    if SPROF == 4: stamp(a, 1)
    a('s_mul_i32 s55, s50, 160')
    for n in range(5):
        a(f'v_add_u32 v4, {64*n}, {L}'); a('v_mul_u32_u24 v5, 205, v4'); a('v_lshrrev_b32 v5, 11, v5')
        a('v_mul_u32_u24 v6, 10, v5'); a('v_sub_u32 v4, v4, v6'); a('v_lshl_add_u32 v4, v4, 4, s55')
        a(f'v_lshrrev_b32 v{100+n}, 3, v5'); a(f'v_bfe_u32 v{105+n}, v5, 2, 1'); a('v_and_b32 v5, 3, v5'); a(f'v_mad_u32_u24 v{110+n}, v5, s53, v4')
    if T2G:
        a('s_lshl_b32 s44, s48, 1'); a('s_sub_u32 s44, 20, s44')
        a('s_lshl_b32 s42, s44, 1'); a('s_add_u32 s42, s42, s46')
        a('s_cmp_lt_u32 s42, 68'); a('s_cselect_b32 s45, 1, 0')
        a('s_cmp_eq_u32 s43, 0'); a('s_cselect_b32 s42, s46, s42'); a('s_cselect_b32 s45, 3, s45')
    else:
        a('s_mov_b32 s42, s46'); a('s_mov_b32 s44, 32'); a('s_cmp_lt_u32 s46, 4'); a('s_cselect_b32 s45, 3, 2')
    for un in range(3):
        sb = 28 + 4 * un
        a(f's_mul_i32 s56, s44, {un}'); a('s_add_u32 s56, s56, s42'); a('s_mul_i32 s57, s56, 241'); a('s_lshr_b32 s57, s57, 12'); a('s_mul_i32 s58, s57, 17'); a('s_sub_u32 s58, s56, s58')
        a('s_cmp_ge_u32 s58, 12'); a(f's_cbranch_scc1 sv_o{un}')
        srd(a, sb, 16, 17, 1536 * 1280)
        a('s_lshr_b32 s59, s58, 1'); a('s_mul_i32 s59, s59, 3'); a('s_and_b32 s63, s58, 1'); a('s_lshl_b32 s63, s63, 1'); a('s_add_u32 s59, s59, s63')
        a('s_mul_i32 s63, s58, 3'); a('s_sub_u32 s63, s63, 23'); a('s_cmp_ge_u32 s58, 8'); a('s_cselect_b32 s58, s63, s59')
        a('s_mul_i32 s59, s57, 12'); a('s_add_u32 s59, s59, s58'); a('s_lshl_b32 s59, s59, 5')
        a(f's_movk_i32 s60, {8*1280}'); a(f's_movk_i32 s61, {4*1280}'); a('s_mov_b32 s62, 1'); a('s_mov_b32 s67, 0')
        a(f's_branch sv_c{un}')
        a.label(f'sv_o{un}')
        srd(a, sb, 8, 9, 640 * 1280)
        a('s_sub_u32 s58, s58, 12'); a('s_mul_i32 s59, s57, 160'); a('s_mul_i32 s63, s58, 40')
        a(f's_movk_i32 s60, {8*1280}')
        a('s_cmp_eq_u32 s58, 4'); a('s_cselect_b32 s63, 16, s63'); a(f's_cselect_b32 s60, {40*1280}, s60'); a(f's_cselect_b32 s61, {20*1280}, s54'); a('s_cselect_b32 s67, 0, s54')
        a('s_add_u32 s59, s59, s63'); a('s_mov_b32 s62, 0')
        a.label(f'sv_c{un}')
        a(f's_mul_i32 s{64+un}, s59, 1280')
        for n in range(5):
            a(f'v_and_b32 v4, s62, v{100+n}'); a(f'v_xor_b32 v4, v4, v{105+n}')
            a(f'v_mad_u32_u24 v4, v4, s61, v{110+n}'); a(f'v_mad_u32_u24 v4, v{100+n}, s60, v4')
            a(f'v_lshrrev_b32 v5, 1, v{100+n}'); a(f'v_mad_u32_u24 v{120+5*un+n}, v5, s67, v4')
    if SPROF == 4: stamp(a, 2)
    a(f'v_lshrrev_b32 v4, 4, {L}'); a(f'v_bfe_u32 v5, {L}, 2, 2'); a('v_lshl_add_u32 v4, v4, 3, v5'); a('v_mul_u32_u24 v4, 160, v4')
    a(f'v_add_u32 v4, {LT2}, v4'); a(f'v_and_b32 v5, 3, {L}'); a('v_lshl_add_u32 v26, v5, 4, v4'); a('v_lshl_add_u32 v27, v5, 3, v4')
    a(f'v_lshlrev_b32 v28, 4, {L}'); a('v_add_u32 v29, 4096, v28')
    a(f'v_add_u32 v5, s41, {L}'); a('v_lshlrev_b32 v20, 4, v5'); a('v_add_u32 v21, 1024, v20')
    a(f's_mov_b32 s56, {A2_RB}'); a('s_movk_i32 s57, 2048'); a(f'v_mov_b32 v9, {OOB}')
    a(f'v_lshlrev_b32 v8, 2, {L}'); a(f'v_add_u32 v8, {LRP}, v8')
    for n in range(2):
        if n: a('v_add_u32 v5, 64, v5')
        a('v_lshrrev_b32 v6, 6, v5'); a('v_mul_lo_u32 v6, v6, s56'); a('v_bfe_u32 v7, v5, 4, 2'); a('v_lshl_add_u32 v6, v7, 10, v6')
        a('v_and_b32 v7, 15, v5'); a('v_lshl_add_u32 v6, v7, 4, v6')
        if n:
            a(f'v_cmp_gt_u32 vcc, 44, {L}'); a('v_cmp_gt_u32 s[58:59], s57, v5'); a('s_and_b64 vcc, vcc, s[58:59]'); a('v_cndmask_b32 v6, v9, v6, vcc')
        a(f'ds_write_b32 v8, v6 offset:{256*n}')
    a('s_max_i32 s56, s41, 0'); a('s_lshr_b32 s56, s56, 7'); a('s_add_u32 s57, s41, 175'); a('s_lshr_b32 s57, s57, 7'); a('s_min_u32 s57, s57, 15')
    a(f'v_add_u32 v18, s56, {L}'); a('v_min_u32 v18, s57, v18')
    if MAP2 == 0: a('s_and_b32 s56, s46, 7')
    else: a('s_and_b32 s56, s2, 1'); a('s_lshl_b32 s56, s56, 2'); a('s_and_b32 s57, s46, 3'); a('s_add_u32 s56, s56, s57')
    a(f's_add_u32 s56, s56, {C_W2}'); a('v_mov_b32 v4, s56')
    a(f'v_cmp_gt_u32 vcc, 3, {L}'); a('v_cndmask_b32 v18, v4, v18, vcc'); a(f'v_mul_u32_u24 v18, {CSTR}, v18')
    a('v_mov_b32 v4, 68'); a('v_cndmask_b32 v19, v4, 16, vcc')
    a(f's_add_u32 s56, s50, {C_W2}'); a(f's_mul_i32 s56, s56, {CSTR}'); a('v_mov_b32 v22, s56')
    a('v_mov_b32 v23, s45')
    a('s_lshr_b32 s56, s51, 4'); a(f's_mul_i32 s56, s56, {CSTR}'); a('v_writelane_b32 v22, s56, 0'); a('v_writelane_b32 v23, 1, 0')
    a('v_lshlrev_b32 v24, 4, v1'); a('v_cmp_eq_u32 vcc, 0, v2'); a('v_cndmask_b32 v24, v9, v24, vcc')
    a(f'v_add_u32 v25, {LST}, v28')
    a(f'v_lshlrev_b32 v17, 7, {L}'); a(f'v_lshlrev_b32 v16, 2, {L}'); a(f'v_add_u32 v16, {LS2}, v16')
    srd(a, 76, 22, 23, 32768, WS_STAT)
    for n in range(4): a(f'v_mov_b32 v{8+n}, 0')
    srd(a, 24, 22, 23, W2_SZ, WS_W2)
    a('v_mov_b32 v4, 0x3f803f80')
    def tbatch(n):
        for _ in range(n):
            for cls in range(3): touch(a, cls, f'v{12+cls}', 'v15')
    def t2dma():
        for un in range(3):
            a(f's_cmp_le_u32 s45, {un}'); a('s_cbranch_scc1 sv_d3')
            for n in range(5):
                a(f's_mov_b32 m0, {LT2 + un*5120 + n*1024}'); a(f'buffer_load_dwordx4 v{120+5*un+n}, s[{28+4*un}:{31+4*un}], s{64+un} offen {NTT} lds')
        a.label('sv_d3')
    def stload():
        for s in range(2):
            for j in range(5):
                d = 140 + 20 * s + 4 * j
                a(f'buffer_load_dwordx4 v[{d}:{d+3}], v3, s[24:27], {"s54" if s else "0"} offen offset:{j*256}')
        srd(a, 24, 22, 23, W2_SZ, WS_W2)
    def stdot(s):
        for n in range(20):
            d = 140 + 20 * s + n
            a(f'v_dot2c_f32_bf16 v{8+s}, v{d}, v4'); a(f'v_dot2c_f32_bf16 v{10+s}, v{d}, v{d}')
    def stfin():
        a.fence(4)
        for ro in (8, 4, 2, 1):
            for n in range(4): a(f'v_add_f32_dpp v{8+n}, v{8+n}, v{8+n} row_ror:{ro} row_mask:0xf bank_mask:0xf')
        a(f's_mov_b32 s57, {f32(1.0/640)}')
        for s in range(2):
            b = 32 + 4 * s
            a(f'v_mul_f32 v{b}, s57, v{8+s}'); a(f'v_mul_f32 v{b+2}, s57, v{10+s}')
            a(f'v_fma_f32 v{b+2}, -v{b}, v{b}, v{b+2}'); a(f'v_max_f32 v{b+2}, 0, v{b+2}'); a(f'v_add_f32 v{b+2}, {f32(1e-5)}, v{b+2}')
            a(f'v_rsq_f32 v{b+1}, v{b+2}'); a(f'v_sub_f32 v{b}, 0, v{b}'); a(f'v_mov_b32 v{b+3}, 0')
            a(f'buffer_store_dwordx4 v[{b}:{b+3}], v24, s[76:79], 0 offen offset:{s*64} sc1')
    def trst(un):
        a(f's_cmp_le_u32 s45, {un}'); a(f's_cbranch_scc1 sv_s{un}')
        for t in range(5):
            d = 40 + 20 * un + 4 * t; ad = 26 if t < 4 else 27; off = un * 5120 + (64 * (t >> 1) + 8 * (t & 1) if t < 4 else 128)
            a(f'ds_read_b64_tr_b16 v[{d}:{d+1}], v{ad} offset:{off}'); a(f'ds_read_b64_tr_b16 v[{d+2}:{d+3}], v{ad} offset:{off+640}')
        a('s_waitcnt lgkmcnt(0)')
        for t in range(5):
            d = 40 + 20 * un + 4 * t
            if t < 4: a(f'buffer_store_dwordx4 v[{d}:{d+3}], v28, s[24:27], s56 offen offset:{t*1024} sc1')
            else: a(f'buffer_store_dwordx4 v[{d}:{d+3}], v29, s[24:27], s56 offen sc1')
        a('s_add_u32 s56, s56, s47')
        a.label(f'sv_s{un}')
    a(f's_mul_i32 s56, s50, {W2_CB}'); a('s_mul_i32 s57, s42, 5120'); a('s_add_u32 s56, s56, s57'); a('s_mul_i32 s47, s44, 5120')
    if STG0 == -1: t2dma()
    if SPROF == 4: stamp(a, 3)
    bar(a, 2)
    if SPROF == 4: stamp(a, 4)
    assert STG0 == -2
    a('s_cmp_lg_u32 s2, 0'); a('s_cbranch_scc1 sv_n2')
    a('s_waitcnt vmcnt(0)')
    a('v_mov_b32 v5, 1'); a('s_mov_b64 exec, 1'); a('global_store_dword v30, v5, s[20:21] sc1'); a('s_mov_b64 exec, -1')
    a.label('sv_n2')
    if T2G: a('s_waitcnt vmcnt(0)')
    t2dma()
    if not T2G: a('s_waitcnt vmcnt(10)')
    stdot(0); stdot(1); stfin()
    if SPROF == 4: stamp(a, 5)
    if STG0 < 0: a('s_mov_b32 s68, 1')
    else:
        a(f's_mul_i32 s68, s46, {(65536 + NSTG - 1) // NSTG}'); a('s_lshr_b32 s68, s68, 16'); a(f's_mul_i32 s68, s68, {NSTG}'); a('s_sub_u32 s68, s68, s46')
        a(f's_sub_u32 s68, s68, {STG0}')
    a('s_mov_b32 s69, 0')
    a.label('sv_lp')
    bar(a)
    a('s_add_u32 s68, s68, 1')
    if STG0 >= 0: a('s_cmp_eq_u32 s68, 0'); a('s_cbranch_scc1 sv_e0')
    E1 = E('E1', 4)
    a(f's_cmp_eq_u32 s68, {E1}'); a('s_cbranch_scc1 sv_e1')
    a(f's_cmp_eq_u32 s68, {E1+1}'); a('s_cbranch_scc1 sv_e2')
    a(f's_cmp_eq_u32 s68, {E1+3}'); a('s_cbranch_scc1 sv_e3')
    a.label('sv_er')
    a('s_add_u32 s69, s69, 1'); a(f's_cmp_lt_u32 s69, {E("NLP", 11)}'); a('s_cbranch_scc1 sv_lp')
    a('s_branch sv_go')
    if STG0 >= 0:
        a.label('sv_e0'); t2dma(); a('s_branch sv_er')
    a.label('sv_e1'); a('s_waitcnt vmcnt(0)'); trst(0); a('s_branch sv_er')
    a.label('sv_e2'); trst(1); trst(2)
    if SS_: sread(a, 's72', 0, 's[20:21]', True)
    else: a('global_load_dword v31, v30, s[20:21] sc1')
    a('s_branch sv_er')
    a.label('sv_e3')
    if SS_: spoll(a, [('s72', 0, 1, False)], 's[20:21]', True, True); a('s_waitcnt vmcnt(0)')
    else: poll(a, 'v30', 'v31', 1, base='s[20:21]', preissued=True)
    a('s_mov_b64 exec, 3'); a('global_atomic_add v22, v23, s[10:11]'); a('s_mov_b64 exec, -1')
    a('s_branch sv_er')
    a.label('sv_go')
    assert STG0 + NSTG - 1 + 5 <= 11
    its = [('s72', 's60', 16, False), ('s73', 's61', 16, False), ('s74', 's62', 16, False), ('s75', 's63', 68, False)]
    if SS_:
        for n in range(4): a(f'v_readlane_b32 s{60+n}, v18, {n}')
        a('s_nop 3')
        for d, o, t, m in its: sread(a, d, o)
    else: a('global_load_dword v31, v18, s[10:11] sc1')
    bar(a, 2)
    if SS_: spoll(a, its, preissued=True)
    else: poll(a, 'v18', 'v31', 'v19', preissued=True)
    a('buffer_load_dwordx4 v[32:35], v20, s[76:79], 0 offen sc1')
    for n in range(1, 3): a(f'buffer_load_dwordx4 v[{32+4*n}:{35+4*n}], v21, s[76:79], 0 offen offset:{(n-1)*1024} sc1')
    bar(a, 2)
    a(f's_mov_b32 s56, {f32(C2)}'); a('s_cmp_eq_u32 s43, 1'); a(f's_cselect_b32 s57, 1.0, {f32(C1)}')
    a('s_waitcnt vmcnt(0)')
    if RETOUCH:
        a('s_getpc_b64 s[58:59]')
        a.label('sv_pc')
        a('s_sub_u32 s58, s58, sv_pc-k_gemm2'); a('s_subb_u32 s59, s59, 0')
        for n in range(4):
            a(f'v_min_u32 v{48+n}, k_end-k_gemm2-4, v17'); a(f'v_and_b32 v{48+n}, -4, v{48+n}')
            a(f'global_load_dword v{48+n}, v{48+n}, s[58:59]')
            if n < 3: a('v_add_u32 v17, 8192, v17')
    for n in range(3):
        b = 32 + 4 * n
        a(f'v_mov_b32 v{b+3}, v{b+2}')
        a(f'v_mul_f32 v{b+2}, v{b+1}, v{b+1}'); a(f'v_mul_f32 v{b+2}, v{b+2}, v{b+1}'); a(f'v_mul_f32 v{b+2}, s56, v{b+2}'); a(f'v_mul_f32 v{b+1}, s57, v{b+1}')
        a(f'ds_write_b128 v25, v[{b}:{b+3}] offset:{n*1024}')
        a(f'ds_write2st64_b32 v16, v{b}, v{b+1} offset0:{n} offset1:{3+n}')
    a('s_waitcnt lgkmcnt(0)')
    pre_setup(a)
    bar(a, 12 - E('NLP', 11))
    pre_issue(a, False)
    a('s_branch k_gemm2')

WREG = 35840
def gemm2(a):
    MUTE[0] = SPROF in (4, 5)
    if MAP2 == 0:
        a('s_and_b32 s41, s2, 7'); a('s_lshl_b32 s41, s41, 2'); a('s_lshr_b32 s47, s2, 6'); a('s_add_u32 s41, s41, s47')
        a('s_bfe_u32 s42, s2, 0x30003'); a('s_mov_b32 s48, s42')
    else:
        a('s_and_b32 s41, s2, 6'); a('s_lshl_b32 s41, s41, 2'); a('s_lshr_b32 s48, s2, 5'); a('s_add_u32 s41, s41, s48')
        a('s_and_b32 s42, s2, 1'); a('s_lshl_b32 s42, s42, 2'); a('s_bfe_u32 s47, s2, 0x20003'); a('s_add_u32 s42, s42, s47')
    a(f'v_lshlrev_b32 v248, 4, {L}')
    srd(a, 28, 22, 23, W2_SZ, WS_W2)
    a(f's_mul_i32 s52, s42, {W2_CB}'); a(f's_mul_i32 s46, s40, {17*5120}'); a('s_add_u32 s52, s52, s46')
    a('s_lshl_b32 s56, s47, 1'); a('s_add_u32 s56, s56, s48'); a('s_add_u32 s57, s48, s47')
    a(f's_mul_i32 s62, s40, {WREG}')
    q = Q(a, 'vmcnt', 63)
    def soff(s, dst, base, stride):
        if s == 16: a(f's_add_u32 {dst}, {base}, {16*stride}'); return
        if s < 8:
            a(f's_add_u32 {dst}, s56, {s}'); a(f's_and_b32 {dst}, {dst}, 7')
        else:
            a(f's_add_u32 {dst}, s57, {s}'); a(f's_and_b32 {dst}, {dst}, 3'); a(f's_add_u32 {dst}, {dst}, {s & ~3}')
        a(f's_mul_i32 {dst}, {dst}, {stride}'); a(f's_add_u32 {dst}, {dst}, {base}')
    free = list(range(80, 248, 4))
    WRg, ARg = {}, {}
    HS = [s for s in range(17) if WSRC[s] == 'H']; LS = [s for s in range(17) if WSRC[s] == 'L']; SS = [s for s in range(17) if WSRC[s] == 'S']
    assert len(WSRC) == 17 and len(LS) <= 7 and len(SS) <= 8 and WSRC[0] == 'H'
    def alloc(n):
        r = free[:n]; del free[:n]; assert len(r) == n; return r
    def wload(s, t, s0, s1):
        d = WRg[s][t]
        if t < 4: q.issue(('W', s), f'buffer_load_dwordx4 v[{d}:{d+3}], v248, s[28:31], {s0} offen offset:{t*1024} sc1')
        else: q.issue(('W', s), f'buffer_load_dwordx4 v[{d}:{d+3}], v248, s[28:31], {s1} offen sc1')
    def ldW(s):
        WRg[s] = alloc(5); soff(s, 's55', 's52', 5120); a('s_add_u32 s54, s55, 4096')
        for t in range(5): wload(s, t, 's55', 's54')
    def dmaW(s):
        po = LS.index(s) * 5120
        soff(s, 's55', 's52', 5120); a('s_add_u32 s54, s55, 4096')
        a(f's_add_u32 m0, s62, {po}')
        for t in range(4): q.issue(('W', s), f'buffer_load_dwordx4 v248, s[28:31], s55 offen offset:{t*1024} sc1 {NTP} lds')
        a(f's_add_u32 m0, s62, {po+4096}')
        q.issue(('W', s), f'buffer_load_dwordx4 v248, s[28:31], s54 offen sc1 {NTP} lds')
    for s in HS[:PRE]:
        WRg[s] = alloc(5); q.n[('W', s)] = 5; q.q += [('W', s)] * 5
    for s in HS[PRE:]: ldW(s)
    a('v_add_u32 v249, s62, v248')
    for t in range(4):
        a(f's_add_u32 s47, s40, {t}'); a('s_and_b32 s47, s47, 3'); a('s_lshl_b32 s47, s47, 10'); a(f'v_add_u32 v{250+t}, s47, v248')
    srd(a, 24, 22, 23, A2_SZ); srd(a, 32, 4, 5, XSZ); srd(a, 36, 18, 19, XSZ)
    a(f's_mul_i32 s50, s41, {A2_RB}'); a(f's_mul_i32 s46, s40, {17*4096}'); a('s_add_u32 s50, s50, s46')
    a(f'v_and_b32 v2, 15, {L}'); a(f'v_lshrrev_b32 v3, 4, {L}')
    a('s_lshl_b32 s47, s41, 6'); a('s_lshl_b32 s58, s40, 4'); a('s_add_u32 s58, s47, s58'); a('v_add_u32 v2, s58, v2')
    a('s_movk_i32 s58, 1280'); a('s_mul_i32 s59, s42, 160'); a('v_mul_lo_u32 v2, v2, s58'); a('v_add_u32 v2, s59, v2')
    a('v_lshl_add_u32 v254, v3, 4, v2'); a('v_lshl_add_u32 v255, v3, 3, v2')
    a('s_lshl_b32 s61, s40, 1'); a('s_lshl_b32 s61, 3, s61'); a('s_add_u32 s48, s47, 63')
    a('s_mul_i32 s58, s47, 607'); a('s_lshr_b32 s58, s58, 16'); a('s_mul_i32 s59, s48, 607'); a('s_lshr_b32 s59, s59, 16')
    a('s_cmp_lg_u32 s58, s59'); a('s_movk_i32 s64, 0x44'); a('s_cselect_b32 s64, 0x4444, s64')
    a('s_add_u32 s48, s47, 48')
    a('s_mul_i32 s58, s47, 410'); a('s_lshr_b32 s58, s58, 16'); a('s_mul_i32 s59, s48, 410'); a('s_lshr_b32 s59, s59, 16')
    a('s_cmp_lg_u32 s58, s59'); a('s_movk_i32 s66, 0x44'); a('s_cselect_b32 s66, 0x4444, s66'); a('s_lshl_b32 s67, s64, 16')
    a('s_lshl_b32 s65, s41, 2'); a('s_add_u32 s65, s65, s40'); a(f's_add_u32 s65, s65, {C_WG}'); a(f's_mul_i32 s65, s65, {CSTR}')
    a('s_add_u32 s61, s65, 128')
    SA = [3, 4, 5, 6, 7, 8, 9, 12, 13, 14, 15, 16, 17, 18, 19, 20, 21]
    for s in range(17): soff(s, f's{SA[s]}', 's50', 4096)
    SW = [72, 73, 74, 75, 76, 77, 78, 79, 63, 44, 45, 46, 48, 49, 51, 53]
    for n, s in enumerate(SS): soff(s, f's{SW[2*n]}', 's52', 5120); a(f's_add_u32 s{SW[2*n+1]}, s{SW[2*n]}, 4096')
    a(f'v_and_b32 v2, 1, {L}'); a('v_cmp_eq_u32 s[68:69], 1, v2')
    lds_wait(a, LCN + 4, 'v0', 'v1', sleep=1)
    stamp(a, 3)
    for s in LS: dmaW(s)
    if PROF: a('s_waitcnt vmcnt(0)'); stamp(a, 1)
    if OWN:
        if OWN == 1: a('s_cmp_eq_u32 s43, 1'); a('s_cbranch_scc1 g_own')
        lds_wait(a, LCN, 'v0', 'v1', sleep=2)
        a.label('g_own')
    if PPOLL:
        a('s_waitcnt vmcnt(0)'); a('s_mov_b32 s70, 0')
        for n in range(PPOLL - 1):
            a(f'global_load_dword v{8+n}, v4, s[10:11] sc1'); a(f's_sleep {PSL}')
        a.label('pp_top')
        for n in range(PPOLL):
            a(f'global_load_dword v{8+(n+PPOLL-1) % PPOLL}, v4, s[10:11] sc1')
            a(f's_waitcnt vmcnt({PPOLL-1})')
            a(f'v_and_b32 v1, s64, v{8+n}'); a('v_cmp_ne_u32 vcc, s64, v1'); a('s_nop 1'); a('s_cbranch_vccz pp_ok')
            a(f's_sleep {PSL}')
        a('s_add_u32 s70, s70, 1'); a(f's_cmp_lt_u32 s70, {SPIN}'); a('s_cbranch_scc1 pp_top')
        a('s_endpgm')
        a.label('pp_ok')
    elif SPOLL:
        if not NOV0: a('s_waitcnt vmcnt(0)')
        a('s_mov_b32 s70, 0')
        a.label('sp_top')
        if SPOLL == 1: a('s_mov_b32 s71, 0'); a('s_atomic_add s71, s[10:11], s65 glc')
        else: a('s_load_dword s71, s[10:11], s65 glc')
        a('s_waitcnt lgkmcnt(0)')
        a('s_and_b32 s71, s71, s64'); a('s_cmp_eq_u32 s71, s64'); a('s_cbranch_scc1 sp_ok')
        a(f's_sleep {SLEEP}')
        a('s_add_u32 s70, s70, 1'); a(f's_cmp_lt_u32 s70, {SPIN}'); a('s_cbranch_scc1 sp_top')
        a('s_endpgm')
        a.label('sp_ok')
    else: poll(a, 'v4', 'v1', 's64', mask=True)
    if not (NOV0 and SPOLL): q.clear()
    stamp(a, 4)
    pend = []
    for s in range(17):
        if s in SS: pend.append(('W', s))
        pend.append(('A', s))
    pend.append(('X', 17))
    ogate = [8]; XR = []
    dq = []
    def refill(cur, resv):
        while pend:
            k, s = pend[0]
            n = {'W': 5, 'A': 4, 'X': 3}[k]
            if (k, s) == ('A', 16): n = 8
            if len(free) - resv < n or s > cur + (LA_W if k == 'W' else LA_A): break
            if k == 'A' and s >= ogate[0]: break
            pend.pop(0); regs = alloc(n)
            if k == 'W':
                WRg[s] = regs; z = SS.index(s)
                for t in range(5): dq.append((s, lambda s=s, t=t, z=z: wload(s, t, f's{SW[2*z]}', f's{SW[2*z+1]}')))
            elif k == 'X':
                XR.extend(regs)
                dq.append((s, lambda: q.issue('X', f'buffer_load_dwordx4 v[{XR[0]}:{XR[0]+3}], v254, s[32:35], 0 offen')))
                dq.append((s, lambda: q.issue('X', f'buffer_load_dwordx4 v[{XR[1]}:{XR[1]+3}], v254, s[32:35], 0 offen offset:64')))
                dq.append((s, lambda: q.issue('X', f'buffer_load_dwordx2 v[{XR[2]}:{XR[2]+1}], v255, s[32:35], 0 offen offset:128')))
            else:
                ARg[s] = regs
                for t in range(4):
                    d = regs[t]
                    if s < 16: dq.append((s, lambda d=d, t=t, s=s: q.issue(('A', s), f'buffer_load_dwordx4 v[{d}:{d+3}], v{250+t}, s[24:27], s{SA[s]} offen sc1')))
                    else:
                        e = regs[4 + t]
                        dq.append((s, lambda d=d, t=t, s=s: (a(f'v_bfe_u32 v{d}, v{250+t}, 1, 9'), a(f'v_sub_u32 v{250+t}, v{250+t}, v{d}'), a(f'v_and_b32 v{250+t}, -16, v{250+t}'),
                                   q.issue(('A', s), f'buffer_load_dwordx4 v[{d}:{d+3}], v{250+t}, s[24:27], s{SA[s]} offen sc1'))))
                        dq.append((s, lambda e=e, t=t, s=s: q.issue(('A', s), f'buffer_load_dwordx4 v[{e}:{e+3}], v{250+t}, s[24:27], s{SA[s]} offen offset:512 sc1')))
    refill(0, 0)
    while dq: dq.pop(0)[1]()
    AC = lambda tr, tc: (tr * 5 + tc) * 4
    for s in range(17):
        while dq and dq[0][0] <= s + 1: dq.pop(0)[1]()
        assert q.n.get(('A', s)) == (4 if s < 16 else 8) and q.n.get(('W', s), 0) == 5, s
        q.wait(('W', s)); q.wait(('A', s))
        if SPROF == 1 and s in (0, 4, 8, 12): stamp(a, {0: 0, 4: 2, 8: 3, 12: 5}[s])
        if s == 16:
            for t in (1, 2, 3, 0):
                d, e = ARg[s][t], ARg[s][4 + t]
                a(f'v_cndmask_b32 v{d}, v{d}, v{d+2}, s[68:69]'); a(f'v_cndmask_b32 v{d+1}, v{d+1}, v{d+3}, s[68:69]')
                a(f'v_cndmask_b32 v{d+2}, v{e}, v{e+2}, s[68:69]'); a(f'v_cndmask_b32 v{d+3}, v{e+1}, v{e+3}, s[68:69]')
            free.extend(ARg[s][4:])
        if s in LS: a('s_waitcnt lgkmcnt(0)')
        assert OCHK not in LS and GCHK not in LS
        if s == OCHK - 1: sread(a, 's71', 's61')
        if s == GCHK - 1: sread(a, 's71', 's65')
        lq = []
        if s + 1 in LS:
            WRg[s + 1] = alloc(5)
            lq = [f'ds_read_b128 v[{d}:{d+3}], v249 offset:{LS.index(s+1)*5120 + t*1024}' for t, d in enumerate(WRg[s + 1])]
        n = 0
        if s == 16:
            while dq: dq.pop(0)[1]()
            wq = []
        for tr in (range(4) if s < 16 else (1, 2, 3, 0)):
            for tc in range(5):
                c = AC(tr, tc); w = WRg[s][tc]; x = ARg[s][tr]
                if s == 16:
                    if n >= 7: a(wq.pop(0))
                    if tr: wq.append(f'ds_write_b128 v249, v[{c}:{c+3}] offset:{(tr-1)*5120 + tc*1024}')
                src = '0' if s == 0 else f'v[{c}:{c+3}]'
                a(f'v_mfma_f32_16x16x32_bf16 v[{c}:{c+3}], v[{w}:{w+3}], v[{x}:{x+3}], {src}')
                pace = PACE if len(dq) <= 8 else 2
                if dq and n % pace == 0: dq.pop(0)[1]()
                elif lq: a(lq.pop(0))
                n += 1
            free.append(ARg[s][tr])
            if tr < 3: refill(s, 0)
        assert not lq
        free.extend(WRg[s])
        if s == GCHK:
            spoll(a, [('s71', 's65', 's67', True)], preissued=True); ogate[0] = 12
        if s == OCHK:
            spoll(a, [('s71', 's61', 's66', True)], preissued=True); ogate[0] = 17
            if not SPROF: stamp(a, 2)
        refill(s + 1, 5 if s + 2 in LS else 0)
    while dq: dq.pop(0)[1]()
    assert not pend
    if not SPROF: stamp(a, 5)
    for o in wq: a(o)
    for tp in range(1, 4):
        a(f's_sub_u32 s47, s40, {tp}'); a('s_and_b32 s47, s47, 3'); a(f's_mul_i32 s47, s47, {WREG}'); a(f'v_add_u32 v{249+tp}, s47, v248')
    q.wait('X')
    U = alloc(5); RD = alloc(15)
    xs = [XR[0] + n for n in range(4)] + [XR[1] + n for n in range(4)] + [XR[2], XR[2] + 1]
    P = lambda r: f'v[{r}:{r+1}]'
    for n in range(10):
        u = U[n >> 1] + 2 * (n & 1)
        a(f'v_lshlrev_b32 v{u}, 16, v{xs[n]}'); a(f'v_and_b32 v{u+1}, 0xffff0000, v{xs[n]}')
    for n in range(10): a(f'v_pk_add_f32 {P(2*n)}, {P(2*n)}, {P(U[n >> 1] + 2 * (n & 1))}')
    a('s_waitcnt lgkmcnt(0)'); bar(a); stamp(a, 6)
    for tp in range(1, 4):
        for tc in range(5):
            d = RD[5 * (tp - 1) + tc]
            a(f'ds_read_b128 v[{d}:{d+3}], v{249+tp} offset:{(tp-1)*5120 + tc*1024}')
    for sl in range(3):
        a(f's_waitcnt lgkmcnt({10-5*sl})')
        for n in range(10): a(f'v_pk_add_f32 {P(2*n)}, {P(2*n)}, {P(RD[5*sl + (n >> 1)] + 2 * (n & 1))}')
    for n in range(10): a(f'v_cvt_pk_bf16_f32 v{40+n}, v{2*n}, v{2*n+1}')
    a(f'buffer_store_dwordx4 v[40:43], v254, s[36:39], 0 offen {OSC}')
    a(f'buffer_store_dwordx4 v[44:47], v254, s[36:39], 0 offen offset:64 {OSC}')
    a(f'buffer_store_dwordx2 v[48:49], v255, s[36:39], 0 offen offset:128 {OSC}')
    stamp_flush(a, 4); MUTE[0] = False
    a('s_endpgm')

def mainloop(a, P, NT, NJ, ACC, WF, XB, wread, nw, onest, XS, swapj=-1):
    q = Q(a, 'lgkmcnt', 15)
    def xread(step, t):
        b = XB((NT * step + t) % 4)
        q.issue(('X', step % 4, t), f'ds_read_b128 v[{b}:{b+3}], v{238 + (step & 1)} offset:{t*2048}')
    def fix(step, h):
        b = XB((NT * step + onest) % 4) + 2 * h
        a(f'v_cndmask_b32 v{b}, v{b}, v242, s[64:65]'); a(f'v_cndmask_b32 v{b+1}, v{b+1}, v242, s[64:65]')
    a('s_mov_b32 s60, 0'); a('s_mov_b32 s61, 0')
    if E('CPRIO', 0): a(f's_setprio {E("CPRIO", 0)}')
    stamp(a, 1); bar(a); stamp(a, 2)
    for idx in range(nw): wread(q, 0, 0, idx)
    for t in range(3): xread(0, t)
    if onest == 0:
        q.wait(('X', 0, 0)); fix(0, 0); fix(0, 1)
    a.label(f'{P}_loop')
    wper = 3 if NJ == 6 else 1
    for k in range(4):
        cur, nxt = k & 1, (k + 1) & 1
        widx = 0
        for t in range(NT):
            q.wait(('X', k, t))
            fill = []
            tt = t + 3
            fill.append(lambda tt=tt: xread(k if tt < NT else k + 1, tt if tt < NT else tt - NT))
            if t == 0:
                if k < 2: fill.append(lambda: bar(a))
                else: fill.append(lambda: (a('s_cmp_eq_u32 s61, 4'), a(f's_cbranch_scc1 {P}_nb{k}'), bar(a), a.label(f'{P}_nb{k}')))
            for _ in range(wper + (1 if (NJ == 4 and t in (1, 2)) else 0)):
                if widx < nw:
                    fill.append(lambda w=widx: wread(q, (k + 1) % 4, nxt, w)); widx += 1
            if t == NT - 3:
                if k & 1 == 0:
                    fill.append(lambda: (a(f's_add_u32 s60, s60, {XS}'), a(f's_cmp_ge_u32 s60, {3*XS}')))
                    fill.append(lambda: (a('s_cselect_b32 s60, 0, s60'), a('v_add_u32 v238, s60, v240')))
                else:
                    fill.append(lambda: a('v_add_u32 v239, s60, v241'))
            if t == (onest - 1) % NT:
                st = k if onest > 0 else k + 1
                fill.append(lambda st=st: (q.wait(('X', st % 4, onest)), fix(st, 0)))
                fill.append(lambda st=st: fix(st, 1))
            if t == NT - 2 and k == 3:
                fill.append(lambda: (a('s_add_u32 s61, s61, 1'), a('s_cmp_lt_u32 s61, 5')))
            xb = XB((NT * k + t) % 4)
            for j in (range(NJ) if not (E('SNAKE', 0) and t & 1) else range(NJ - 1, -1, -1)):
                cc = ACC(j, t)
                oa, ob = (xb, WF(cur, j)) if j == swapj else (WF(cur, j), xb)
                a(f'v_mfma_f32_16x16x32_bf16 v[{cc}:{cc+3}], v[{oa}:{oa+3}], v[{ob}:{ob+3}], v[{cc}:{cc+3}]')
                if fill: fill.pop(0)()
            assert not fill, (t, len(fill))
        assert widx == nw
    a(f's_cbranch_scc1 {P}_loop')
    a('s_waitcnt lgkmcnt(0)')
    stamp(a, 3)
    if not ((QLATE and swapj >= 0) or (GLATE >= 0 and swapj < 0)): lds_arrive(a, LCN + 4, 'v246', 'v247')

def cons_common(a, T0, nacc, XO, onelane, P):
    if P == 'cq':
        for n in range(24, 36, 2): a(f's_mov_b64 s[{n}:{n+1}], 0')
        a('s_mov_b32 s56, 1')
    dryrun(a, P)
    g, i, r, c, t5 = [f'v{T0+8+n}' for n in range(5)]
    for n in range(4): a(f'v_mov_b32 v{T0+n}, 0')
    a(f'v_lshrrev_b32 {g}, 4, {L}'); a(f'v_and_b32 {i}, 15, {L}'); a(f'v_bfe_u32 {r}, {L}, 2, 2'); a(f'v_and_b32 {c}, 3, {L}')
    for n in range(nacc // 16): a(f'v_mfma_f32_32x32x16_bf16 v[{16*n}:{16*n+15}], v[{T0}:{T0+3}], v[{T0}:{T0+3}], 0')
    for n in range(nacc // 16 * 16, nacc, 4): a(f'v_mfma_f32_16x16x32_bf16 v[{n}:{n+3}], v[{T0}:{T0+3}], v[{T0}:{T0+3}], 0')
    a(f'v_lshrrev_b32 {t5}, 1, {i}'); a(f'v_xor_b32 {t5}, {t5}, {g}'); a(f'v_lshlrev_b32 {t5}, 4, {t5}'); a(f'v_lshl_or_b32 {t5}, {i}, 7, {t5}')
    a(f'v_add_u32 v240, {XO}, {t5}'); a('v_xor_b32 v241, 64, v240')
    a('v_mov_b32 v238, v240'); a('v_mov_b32 v239, v241')
    a('v_mov_b32 v242, 0x3f803f80'); a(f'v_cmp_eq_u32 s[64:65], {onelane}, {i}')
    a(f'v_mov_b32 {t5}, {LCN}'); a(f'ds_write_b128 {t5}, v[{T0}:{T0+3}]')
    a(f'v_lshlrev_b32 v248, 4, {i}'); a(f'v_add_u32 v248, {LST}, v248')

Pk = lambda r: f'v[{r}:{r+1}]'
def consumerG(a):
    ACC = lambda j, t: (j * 7 + t) * 4
    WF = lambda s, j: 168 + s * 24 + j * 4
    XB = lambda b: 216 + 4 * b
    WA = lambda hi, j: 232 + 3 * hi + j
    T0 = 168
    g, i, r, c, t5, t6, t7, t8 = [f'v{T0+8+n}' for n in range(8)]
    cons_common(a, T0, 168, GX, 15, 'cg')
    a(f'v_lshrrev_b32 {t5}, 1, {r}'); a(f'v_lshlrev_b32 {t5}, 2, {t5}'); a(f'v_and_b32 {t6}, 1, {g}'); a(f'v_or_b32 {t5}, {t5}, {t6}')
    a(f'v_lshlrev_b32 {t5}, 4, {t5}'); a(f'v_lshl_or_b32 {t5}, {r}, 7, {t5}'); a(f'v_lshl_or_b32 {t5}, {g}, 10, {t5}')
    a('s_lshr_b32 s51, s40, 1'); a('s_mul_i32 s51, s51, 3'); a('s_add_u32 s52, s51, 1')
    a('s_and_b32 s53, s40, 1'); a('s_lshl_b32 s54, s53, 1'); a('s_add_u32 s51, s51, s54')
    a(f'v_and_b32 {t6}, 1, {c}'); a(f'v_lshlrev_b32 {t7}, 4, {c}'); a(f'v_lshl_or_b32 {t7}, {t6}, 3, {t7}'); a(f'v_xor_b32 {t7}, {t7}, {t5}')
    a('s_and_b32 s54, s51, 1'); a('s_lshl_b32 s54, s54, 6'); a('s_lshr_b32 s55, s51, 1'); a('s_lshl_b32 s55, s55, 12')
    a(f'v_xor_b32 {t7}, s54, {t7}'); a(f'v_add_u32 v{WA(0,0)}, s55, {t7}'); a(f'v_xor_b32 v{WA(0,1)}, 8, v{WA(0,0)}')
    a(f'v_lshrrev_b32 {t7}, 1, {c}'); a(f'v_xor_b32 {t6}, {t6}, {t7}'); a(f'v_lshlrev_b32 {t7}, 4, {t7}'); a(f'v_lshl_or_b32 {t7}, {t6}, 3, {t7}')
    a(f'v_xor_b32 {t7}, {t7}, {t5}')
    a('s_and_b32 s54, s52, 1'); a('s_lshl_b32 s54, s54, 6'); a('s_lshl_b32 s56, s53, 5'); a('s_or_b32 s54, s54, s56')
    a('s_lshr_b32 s55, s52, 1'); a('s_lshl_b32 s55, s55, 12')
    a(f'v_xor_b32 {t7}, s54, {t7}'); a(f'v_add_u32 v{WA(0,2)}, s55, {t7}')
    for j in range(3): a(f'v_add_u32 v{WA(1,j)}, 49152, v{WA(0,j)}')
    a(f'v_lshrrev_b32 {t8}, 1, {g}'); a('s_lshl_b32 s56, s53, 1'); a(f'v_add_u32 {t8}, s56, {t8}')
    a('s_lshr_b32 s54, s44, 1'); a('s_mul_i32 s54, s54, 17'); a('s_and_b32 s57, s44, 1'); a('s_lshl_b32 s57, s57, 2'); a('s_add_u32 s57, s57, s40')
    a('s_add_u32 s55, s54, s57'); a('s_lshl_b32 s55, s55, 12'); a(f'v_lshl_add_u32 v251, {g}, 8, s55')
    a('s_lshr_b32 s57, s57, 1'); a('s_add_u32 s55, s54, s57'); a('s_add_u32 s55, s55, 8'); a('s_lshl_b32 s55, s55, 12'); a(f'v_lshl_add_u32 v252, {t8}, 8, s55')
    a('s_mov_b32 s62, s41'); a('s_add_u32 s63, s41, 107'); a('s_movk_i32 s66, 607'); a('s_mov_b32 s67, 0')
    sigprep(a)
    a(f'v_lshlrev_b32 v249, 2, {i}'); a(f'v_add_u32 v249, {LRP}, v249')
    a(f'v_and_b32 {t5}, 1, {g}'); a(f'v_lshl_add_u32 v250, {t5}, 6, v249')
    a('s_waitcnt lgkmcnt(0)')
    cntbase(a); srd(a, 36, 22, 23, A2_SZ)
    def wread(q, slot, setn, idx):
        j, hf = idx >> 1, idx & 1
        off = (slot & 1) * 24576 + (j // 3) * 12288 + hf * 512
        d = WF(setn, j) + 2 * hf
        q.issue('W', f'ds_read_b64_tr_b16 v[{d}:{d+1}], v{WA(slot >> 1, j % 3)} offset:{off}')
    mainloop(a, 'cg', 7, 6, ACC, WF, XB, wread, 12, 6, GXS)
    ST = lambda t: 168 + 4 * t
    CS = lambda j: 196 + 4 * j
    RP = lambda t: 232 + t
    RS = lambda p: 244 + p
    seg(a, 'cg', 0)
    for p in range(4): a(f'ds_read2_b32 v[{RP(2*p)}:{RP(2*p)+1}], v249 offset0:{32*p} offset1:{32*p+16}')
    for p in range(2): a(f'ds_read2_b32 v[{RS(2*p)}:{RS(2*p)+1}], v250 offset0:{64*p} offset1:{64*p+32}')
    for t in range(7): a(f'ds_read_b128 v[{ST(t)}:{ST(t)+3}], v248 offset:{t*256}')
    for j in range(6):
        for rr in range(4):
            a(f'v_mov_b32_dpp v{CS(j)+rr}, v{ACC(j,6)+rr} row_newbcast:15 row_mask:0xf bank_mask:0xf')
    P = Pk
    T = lambda n: 220 + 2 * n
    def geglu(items):
        G = lambda t, j, hp: ACC(j, t) + 2 * hp
        U = lambda t, j, hp: ACC(j + 3, t) + 2 * hp
        s01 = lambda t: P(ST(t)); s23 = lambda t: P(ST(t) + 2)
        en = list(enumerate(items))
        for n, (t, j, hp, d) in en: a(f'v_pk_fma_f32 {P(G(t,j,hp))}, {P(CS(j)+2*hp)}, {s01(t)}, {P(G(t,j,hp))} op_sel:[0,0,0] op_sel_hi:[1,0,1]')
        for n, (t, j, hp, d) in en: a(f'v_pk_mul_f32 {P(T(n))}, {P(G(t,j,hp))}, {P(G(t,j,hp))}')
        for n, (t, j, hp, d) in en: a(f'v_pk_fma_f32 {P(T(n))}, {P(T(n))}, {s23(t)}, {s01(t)} op_sel:[0,0,1] op_sel_hi:[1,0,1]')
        for n, (t, j, hp, d) in en: a(f'v_pk_mul_f32 {P(T(n))}, {P(T(n))}, {P(G(t,j,hp))}')
        for n, (t, j, hp, d) in en:
            a(f'v_exp_f32 v{T(n)}, v{T(n)}'); a(f'v_exp_f32 v{T(n)+1}, v{T(n)+1}')
            a(f'v_pk_fma_f32 {P(U(t,j,hp))}, {P(CS(j+3)+2*hp)}, {s01(t)}, {P(U(t,j,hp))} op_sel:[0,0,0] op_sel_hi:[1,0,1]')
        for n, (t, j, hp, d) in en: a(f'v_pk_fma_f32 {P(T(n))}, {P(T(n))}, {s23(t)}, {s23(t)} op_sel:[0,1,1] op_sel_hi:[1,1,1]')
        for n, (t, j, hp, d) in en:
            a(f'v_rcp_f32 v{T(n)}, v{T(n)}'); a(f'v_rcp_f32 v{T(n)+1}, v{T(n)+1}')
            a(f'v_pk_mul_f32 {P(U(t,j,hp))}, {P(U(t,j,hp))}, {P(G(t,j,hp))}')
        for n, (t, j, hp, d) in en: a(f'v_pk_mul_f32 {P(U(t,j,hp))}, {P(U(t,j,hp))}, {P(T(n))}')
        for n, (t, j, hp, d) in en: a(f'v_cvt_pk_bf16_f32 v{d}, v{U(t,j,hp)}, v{U(t,j,hp)+1}')
    for t in range(7):
        if t in (2, 5): seg(a, 'cg', 1 if t == 2 else 2)
        a(f's_waitcnt lgkmcnt({6-t})')
        o4 = ACC(0, t)
        geglu([(t, j, hp, o4 + 2 * j + hp) for j in range(2) for hp in range(2)])
        a(f'v_add_u32 v{ACC(1,t)}, v{RP(t)}, v251')
        guard(a, f'buffer_store_dwordx4 v[{o4}:{o4+3}], v{ACC(1,t)}, s[36:39], 0 offen sc1')
    if SPROF == 0: stamp(a, 6)
    pst = []
    for p in range(4):
        if p == 1: seg(a, 'cg', 3)
        Ep = ACC(3, 2 * p)
        geglu([(t, 2, hp, Ep + 2 * (t & 1) + hp) for t in (2 * p, 2 * p + 1) if t < 7 for hp in range(2)])
        ad = ACC(4, 2 * p)
        a(f'v_add_u32 v{ad}, v{RS(p)}, v252')
        a(f'v_permlane16_swap_b32 v{Ep}, v{Ep+2}'); a(f'v_permlane16_swap_b32 v{Ep+1}, v{Ep+3}')
        pst.append(f'buffer_store_dwordx4 v[{Ep}:{Ep+3}], v{ad}, s[36:39], 0 offen sc1')
        if TWO and p == E('SIG1', 1):
            if DRY: a('s_cbranch_execz cg_s1x')
            a('s_waitcnt vmcnt(0)')
            signal(a, 'cg_s1')
            lds_arrive(a, LCN, 'v240', 'v241')
            a('s_waitcnt lgkmcnt(0)') if False else None
            if DRY: a.label('cg_s1x')
        if not TWO or p >= E('SIG1', 1):
            guard(a, *pst); pst = []
    seg(a, 'cg', 4)
    a('s_waitcnt lgkmcnt(0)')
    for n in range(4):
        if TWO: a(f's_lshl_b32 s{25+2*n}, s{25+2*n}, 16')
        else: a(f's_mul_i32 s{25+2*n}, s{25+2*n}, 0x10001')
    a('s_branch k_pub2')

def sigprep(a):
    a('s_lshr_b32 s62, s62, 6'); a('s_min_u32 s63, s63, 2047'); a('s_lshr_b32 s63, s63, 6')
    a('s_lshr_b32 s32, s44, 1'); a(f's_add_u32 s32, s32, {C_WG}'); a('s_and_b32 s33, s44, 1'); a('s_lshl_b32 s33, s33, 2')
    for n in range(4):
        o, v = f's{24+2*n}', f's{25+2*n}'
        a(f's_add_u32 {o}, s62, {n}')
        a(f's_lshl_b32 {v}, {o}, 6'); a(f's_mul_i32 {v}, {v}, s66'); a(f's_lshr_b32 {v}, {v}, 16'); a(f's_sub_u32 {v}, s45, {v}')
        a(f's_lshl_b32 {v}, {v}, 3'); a(f's_add_u32 {v}, {v}, s33'); a(f's_lshl_b32 {v}, 1, {v}')
        a(f's_lshl_b32 {o}, {o}, 2'); a(f's_add_u32 {o}, {o}, s32'); a(f's_mul_i32 {o}, {o}, {CSTR}'); a(f's_add_u32 {o}, {o}, s67')
    a('s_sub_u32 s63, s63, s62')
def signal(a, lbl):
    for n in range(4):
        if n >= 2: a(f's_cmp_lt_u32 s63, {n}'); a(f's_cbranch_scc1 {lbl}')
        a(f's_atomic_add s{25+2*n}, s[10:11], s{24+2*n}')
    a.label(lbl)

def publish(a):
    sigprep(a)
    a.label('k_pub2')
    stamp(a, 4)
    a('s_waitcnt vmcnt(0)')
    if SPROF != 3: stamp(a, 5)
    signal(a, 'pub_x')
    lds_arrive(a, LCN, 'v252', 'v253')
    a('s_waitcnt lgkmcnt(0)')
    stamp_flush(a, 0)

def consumerQ(a):
    ACC = lambda j, t: (j * 11 + t) * 4
    WF = lambda s, j: 176 + s * 16 + j * 4
    XB = lambda b: 208 + 4 * b
    T0 = 176
    g, i, r, c, t5, t6, t7 = [f'v{T0+8+n}' for n in range(7)]
    cons_common(a, T0, 176, QX, 0, 'cq')
    a('s_mov_b64 s[24:25], -1'); a('s_mov_b32 s26, 0xffff0000'); a('s_mov_b32 s27, -1')
    a('s_mov_b32 s28, 0xffff'); a('s_mov_b32 s30, 0xffff0000'); a('s_mov_b32 s33, 0xffff'); a('s_mov_b32 s35, 0xffff0000')
    a(f'v_lshrrev_b32 {t5}, 1, {g}'); a(f'v_lshlrev_b32 {t5}, 4, {t5}'); a(f'v_and_b32 {t6}, 1, {g}'); a(f'v_lshl_add_u32 {t5}, {t6}, 2, {t5}'); a(f'v_add_u32 {t5}, {t5}, {r}')
    a(f'v_mul_u32_u24 {t5}, 160, {t5}'); a('s_mul_i32 s51, s40, 40'); a(f'v_add_u32 {t5}, s51, {t5}')
    a(f'v_lshl_add_u32 v224, {c}, 3, {t5}')
    a(f'v_min_u32 {t6}, 2, {c}'); a(f'v_mul_u32_u24 {t6}, 5120, {t6}'); a(f'v_add3_u32 v225, {t5}, {t6}, 32')
    if E('ZQ', 0): a(f'v_cmp_eq_u32 vcc, 3, {c}'); a(f'v_mov_b32 {t6}, 0x30000'); a(f'v_cndmask_b32 v225, v225, {t6}, vcc')
    a('s_mul_i32 s51, s40, 1408'); a(f's_add_u32 s51, s51, {4*WREG}')
    a(f'v_lshl_add_u32 v228, {i}, 3, s51'); a(f'v_add_u32 {t5}, 5632, v228'); a(f'v_cmp_eq_u32 vcc, 2, {g}'); a(f'v_cndmask_b32 v228, {t5}, v228, vcc')
    a(f'v_lshrrev_b32 {t5}, 2, {L}'); a(f'v_lshl_add_u32 v229, {t5}, 3, s51')
    a(f'v_lshlrev_b32 v230, 4, {g}'); a(f'v_add_u32 v230, {LS2}, v230')
    a(f'v_and_b32 {t5}, 1, {i}'); a(f'v_cmp_eq_u32 s[74:75], 1, {t5}')
    a(f'v_lshl_add_u32 {t6}, {g}, 2, {t5}'); a(f'v_cmp_le_u32 s[76:77], {t6}, {i}')
    a(f'v_add_u32 {t6}, 2, {t6}'); a(f'v_cmp_le_u32 s[78:79], {t6}, {i}')
    a(f'v_mov_b32 {t7}, 0x0c0c0c0c')
    a(f'v_mov_b32 {t5}, 0x0c0c0100'); a(f'v_mov_b32 {t6}, 0x01000c0c'); a(f'v_cndmask_b32 {t5}, {t5}, {t6}, s[74:75]')
    a(f'v_cndmask_b32 v232, {t5}, {t7}, s[76:77]'); a(f'v_cndmask_b32 v234, {t7}, {t5}, s[76:77]')
    a(f'v_mov_b32 {t5}, 0x0c0c0302'); a(f'v_mov_b32 {t6}, 0x03020c0c'); a(f'v_cndmask_b32 {t5}, {t5}, {t6}, s[74:75]')
    a(f'v_cndmask_b32 v233, {t5}, {t7}, s[78:79]'); a(f'v_cndmask_b32 v235, {t7}, {t5}, s[78:79]')
    a('s_mul_i32 s56, s45, 10')
    a('s_lshr_b32 s57, s44, 1'); a('s_mul_i32 s57, s57, 17'); a('s_add_u32 s57, s57, 12'); a('s_and_b32 s58, s44, 1'); a('s_lshl_b32 s58, s58, 1')
    a('s_lshr_b32 s52, s40, 1'); a('s_add_u32 s58, s58, s52'); a('s_and_b32 s53, s40, 1')
    a('s_add_u32 s59, s57, s58'); a('s_lshl_b32 s59, s59, 12'); a('s_lshl_b32 s52, s53, 9'); a('s_add_u32 s59, s59, s52')
    a(f'v_lshrrev_b32 {t5}, 1, {g}'); a(f'v_lshlrev_b32 {t5}, 8, {t5}'); a(f'v_and_b32 {t6}, 1, {g}'); a(f'v_lshl_add_u32 {t5}, {t6}, 10, {t5}')
    a(f'v_lshl_add_u32 {t5}, {i}, 4, {t5}'); a(f'v_add_u32 v236, s59, {t5}')
    a('s_add_u32 s57, s57, 4'); a('s_lshl_b32 s57, s57, 12'); a('s_add_u32 s57, s57, s52'); a('s_lshl_b32 s58, s58, 7'); a('s_add_u32 s57, s57, s58')
    a(f'v_add_u32 {t5}, s56, {g}'); a(f'v_lshrrev_b32 {t6}, 2, {t5}'); a(f's_mov_b32 s58, {A2_RB}'); a(f'v_mul_lo_u32 {t6}, {t6}, s58')
    a(f'v_and_b32 {t5}, 3, {t5}'); a(f'v_lshl_add_u32 {t6}, {t5}, 10, {t6}'); a(f'v_lshl_add_u32 {t6}, {i}, 3, {t6}'); a(f'v_add_u32 v237, s57, {t6}')
    a(f'v_mov_b32 {t5}, {OOB}'); a(f'v_cmp_gt_u32 vcc, 2, {g}'); a(f'v_cndmask_b32 v244, {t5}, v237, vcc')
    for n in range(5):
        a(f's_add_u32 s57, s56, {2*n}'); a('s_lshr_b32 s59, s57, 2'); a('s_mul_i32 s59, s59, s58'); a('s_and_b32 s57, s57, 3'); a('s_lshl_b32 s57, s57, 10'); a(f's_add_u32 s{48+n}, s59, s57')
    a('s_lshl_b32 s53, s58, 1')
    a('s_waitcnt lgkmcnt(0)')
    cntbase(a); srd(a, 36, 22, 23, A2_SZ)
    def wread(q, slot, setn, idx):
        j, hf = idx >> 1, idx & 1
        d = WF(setn, j) + 2 * hf
        if j < 3: q.issue('W', f'ds_read_b64_tr_b16 v[{d}:{d+1}], v224 offset:{slot*QWS + j*5120 + hf*1280}')
        else: q.issue('W', f'ds_read_b64_tr_b16 v[{d}:{d+1}], v225 offset:{slot*QWS + hf*1280}')
    mainloop(a, 'cq', 11, 4, ACC, WF, XB, wread, 8, 0, QXS, swapj=2)
    ST = lambda t: 176 + 2 * t
    CS = lambda j: 198 + 4 * (j if j < 2 else 2)
    VS = lambda t: (212, 220, 238)[t % 3]
    VR = lambda t: (216, 224, 250)[t % 3]
    Vp = lambda t: 88 + 2 * t
    Vl = lambda t: 110 + 2 * t
    P = Pk
    q = Q(a, 'lgkmcnt', 15)
    seg(a, 'cq', 0)
    for t in range(11): q.issue('S', f'ds_read_b64 v[{ST(t)}:{ST(t)+1}], v248 offset:{t*256}')
    def rdVS(t):
        q.issue(('VS', t), f'ds_read_b128 v[{VS(t)}:{VS(t)+3}], v230 offset:{t*64}')
        q.issue(('VS', t), f'ds_read_b128 v[{VR(t)}:{VR(t)+3}], v230 offset:{t*64+768}')
    rdVS(0); rdVS(1)
    for j in (0, 1, 3):
        for rr in range(4):
            a(f'v_mov_b32_dpp v{CS(j)+rr}, v{ACC(j,0)+rr} row_newbcast:0 row_mask:0xf bank_mask:0xf')
    a(f'v_mov_b32 v210, v{ACC(2,0)}'); a(f'v_mov_b32 v211, v{ACC(2,0)}'); a('v_permlane16_swap_b32 v210, v211')
    a('v_mov_b32 v211, v210'); a('v_permlane32_swap_b32 v210, v211')
    for t in range(11):
        if t == 5: seg(a, 'cq', 1)
        q.wait(('VS', t))
        if t < 9: rdVS(t + 2)
        s01 = P(ST(t))
        js = (1, 3) if t == 0 else (0, 1, 3)
        prs = [(j, hp) for j in js for hp in range(2)]
        G = lambda j, hp: ACC(j, t) + 2 * hp
        for j, hp in prs: a(f'v_pk_fma_f32 {P(G(j,hp))}, {P(CS(j)+2*hp)}, {s01}, {P(G(j,hp))} op_sel:[0,0,0] op_sel_hi:[1,0,1]')
        for hp in range(2): a(f'v_pk_fma_f32 {P(G(2,hp))}, {P(VS(t)+2*hp)}, v[210:211], {P(G(2,hp))} op_sel:[0,0,0] op_sel_hi:[1,0,1]')
        for j, hp in prs: a(f'v_pk_mul_f32 {P(G(j,hp))}, {P(G(j,hp))}, {s01} op_sel:[0,1] op_sel_hi:[1,1]')
        for hp in range(2): a(f'v_pk_mul_f32 {P(G(2,hp))}, {P(G(2,hp))}, {P(VR(t)+2*hp)}')
        for j in js[:-1]:
            for hp in range(2): a(f'v_cvt_pk_bf16_f32 v{ACC(j,t)+hp}, v{G(j,hp)}, v{G(j,hp)+1}')
        for j in (0, 1):
            for hp in range(2): a(f'v_cvt_pk_bf16_f32 v{ACC(j,t)+2+hp}, v{G(3,hp)}, v{G(3,hp)+1}')
        for hp in range(2): a(f'v_cvt_pk_bf16_f32 v{Vp(t)+hp}, v{G(2,hp)}, v{G(2,hp)+1}')
        q.issue('w', f'ds_write_b64 v228, v[{ACC(1,t)+2}:{ACC(1,t)+3}] offset:{t*128}')
    seg(a, 'cq', 2)
    if SPROF == 3: stamp(a, 1)
    SC = lambda u: 132 + 8 * u; SP = lambda u: 136 + 8 * u
    Qf = lambda u: ACC(0, u + 1); Kf = lambda t: ACC(1, t)
    for t in range(11):
        for hp in range(2): a(f'v_permlane16_swap_b32 v{ACC(0,t)+2+hp}, v{ACC(1,t)+2+hp}')
    q.wait('w')
    for t in range(11): q.issue('V', f'ds_read_b64_tr_b16 v[{Vl(t)}:{Vl(t)+1}], v229 offset:{t*128}')
    a('s_mov_b64 exec, s[26:27]')
    for u in range(10): a(f'v_mov_b64 v[{Qf(u)+2}:{Qf(u)+3}], 0')
    a('s_mov_b64 exec, s[24:25]')
    def sel1(u):
        a(f'v_cndmask_b32 v{SC(u)}, v{SC(u)}, v{SC(u)+1}, s[74:75]'); a(f'v_cndmask_b32 v{SC(u)+2}, v{SC(u)+2}, v{SC(u)+3}, s[74:75]')
        a(f'v_cndmask_b32 v{SP(u)}, v{SP(u)}, v{SP(u)+1}, s[74:75]'); a(f'v_cndmask_b32 v{SP(u)+2}, v{SP(u)+2}, v{SP(u)+3}, s[74:75]')
    for u in range(10):
        a(f'v_mfma_f32_16x16x32_bf16 v[{SC(u)}:{SC(u)+3}], v[{Kf(u+1)}:{Kf(u+1)+3}], v[{Qf(u)}:{Qf(u)+3}], 0')
        a(f'v_mfma_f32_16x16x32_bf16 v[{SP(u)}:{SP(u)+3}], v[{Kf(u)}:{Kf(u)+3}], v[{Qf(u)}:{Qf(u)+3}], 0')
        if u >= 3: sel1(u - 3)
    for u in range(7, 10): sel1(u)
    a('s_cmp_lg_u32 s56, 0'); a('s_cbranch_scc1 cq_nofix')
    a(f'v_mov_b32 v{SP(0)}, {f32(-1e30)}'); a(f'v_mov_b32 v{SP(0)+2}, {f32(-1e30)}')
    a.label('cq_nofix')
    if QLATE: lds_arrive(a, LCN + 4, 'v238', 'v239')
    if SPROF == 3: stamp(a, 2)
    LA = lambda u: 44 + 2 * u; LB = lambda u: 45 + 2 * u; M = lambda u: 64 + u
    for u in range(10):
        a(f'v_cndmask_b32 v{LA(u)}, v{SP(u)}, v{SC(u)}, s[76:77]'); a(f'v_cndmask_b32 v{LB(u)}, v{SP(u)+2}, v{SC(u)+2}, s[78:79]')
    for u in range(10): a(f'v_max_f32 v{M(u)}, v{LA(u)}, v{LB(u)}')
    a('v_mov_b32 v74, 1.0'); a('v_mov_b32 v75, 1.0')
    def reduce12(op, post):
        B4 = [64, 68, 72]
        for A in B4: a(f'v_permlane16_swap_b32 v{A}, v{A+1}'); a(f'v_permlane16_swap_b32 v{A+2}, v{A+3}')
        for A in B4: a(f'{op} v{A}, v{A}, v{A+1}'); a(f'{op} v{A+2}, v{A+2}, v{A+3}')
        for A in B4: a(f'v_permlane32_swap_b32 v{A}, v{A+2}')
        for A in B4: a(f'{op} v{A}, v{A}, v{A+2}')
        for A in B4: post(A)
        for A in B4: a(f'v_mov_b32 v{A+2}, v{A}')
        for A in B4: a(f'v_permlane32_swap_b32 v{A}, v{A+2}')
        for A in B4: a(f'v_mov_b32 v{A+1}, v{A}'); a(f'v_mov_b32 v{A+3}, v{A+2}')
        for A in B4: a(f'v_permlane16_swap_b32 v{A}, v{A+1}'); a(f'v_permlane16_swap_b32 v{A+2}, v{A+3}')
    cs = 20 ** -0.5 * LOG2E
    a(f's_mov_b32 s68, {f32(cs)}'); a(f's_mov_b32 s69, {f32(cs)}')
    reduce12('v_max_f32', lambda r: a(f'v_mul_f32 v{r}, s68, v{r}'))
    for u in range(10):
        h = M(u) & 1
        a(f'v_pk_fma_f32 {P(LA(u))}, {P(LA(u))}, s[68:69], {P(M(u) & ~1)} op_sel:[0,0,{h}] op_sel_hi:[1,1,{h}] neg_lo:[0,0,1] neg_hi:[0,0,1]')
    for u in range(10):
        a(f'v_exp_f32 v{LA(u)}, v{LA(u)}'); a(f'v_exp_f32 v{LB(u)}, v{LB(u)}')
    seg(a, 'cq', 3)
    for u in range(10): a(f'v_add_f32 v{M(u)}, v{LA(u)}, v{LB(u)}')
    reduce12('v_add_f32', lambda r: a(f'v_rcp_f32 v{r}, v{r}'))
    for u in range(10):
        h = M(u) & 1
        a(f'v_pk_mul_f32 {P(LA(u))}, {P(LA(u))}, {P(M(u) & ~1)} op_sel:[0,{h}] op_sel_hi:[1,{h}]')
    for u in range(10): a(f'v_cvt_pk_bf16_f32 v{LA(u)}, v{LA(u)}, v{LB(u)}')
    a('s_waitcnt lgkmcnt(0)')
    if SPROF == 3: stamp(a, 5)
    PF = Qf
    def pv(u):
        a(f'v_mfma_f32_16x16x32_bf16 v[{SC(u)}:{SC(u)+3}], v[{Vp(u)}:{Vp(u)+3}], v[{PF(u)}:{PF(u)+3}], 0')
        a(f'v_mfma_f32_16x16x32_bf16 v[{SP(u)}:{SP(u)+3}], v[{Vl(u)}:{Vl(u)+3}], v[{PF(u)}:{PF(u)+3}], 0')
    for u in range(10):
        for z in range(4): a(f'v_perm_b32 v{PF(u)+z}, v{LA(u)}, v{LA(u)}, v{232+z}')
        if u: pv(u - 1)
    pv(9)
    OM = lambda n: 44 + 4 * n
    for n in range(5):
        for e in range(2):
            u = 2 * n + e
            a(f'v_cvt_pk_bf16_f32 v{OM(n)+2*e}, v{SC(u)}, v{SC(u)+1}'); a(f'v_cvt_pk_bf16_f32 v{OM(n)+2*e+1}, v{SC(u)+2}, v{SC(u)+3}')
        if n:
            m = n - 1
            a(f'v_permlane16_swap_b32 v{OM(m)}, v{OM(m)+2}'); a(f'v_permlane16_swap_b32 v{OM(m)+1}, v{OM(m)+3}')
            guard(a, f'buffer_store_dwordx4 v[{OM(m)}:{OM(m)+3}], v236, s[36:39], s{48+m} offen sc1')
    for z in range(4):
        a(f's_mov_b64 exec, s[{28+2*z}:{29+2*z}]')
        for m in range(3):
            u = 4 * m + z
            if u < 10:
                a(f'v_cvt_pk_bf16_f32 v{64+2*m}, v{SP(u)}, v{SP(u)+1}'); a(f'v_cvt_pk_bf16_f32 v{65+2*m}, v{SP(u)+2}, v{SP(u)+3}')
    a('s_mov_b64 exec, s[24:25]')
    a(f'v_permlane16_swap_b32 v{OM(4)}, v{OM(4)+2}'); a(f'v_permlane16_swap_b32 v{OM(4)+1}, v{OM(4)+3}')
    seg(a, 'cq', 4)
    a(f'buffer_store_dwordx4 v[{OM(4)}:{OM(4)+3}], v236, s[36:39], s52 offen sc1')
    a('buffer_store_dwordx2 v[64:65], v237, s[36:39], 0 offen sc1')
    a('buffer_store_dwordx2 v[66:67], v237, s[36:39], s58 offen sc1')
    a('buffer_store_dwordx2 v[68:69], v244, s[36:39], s53 offen sc1')
    a('s_add_u32 s62, s41, 16'); a('s_add_u32 s63, s41, 175'); a('s_movk_i32 s66, 410'); a('s_movk_i32 s67, 128')

def main():
    a = Asm()
    ref = open('cdna_kernels/' + NAME + '.s.ref').read().split('\n')
    for l in ref:
        if l.startswith('; @launch'): break
        a.raw(l)
    if E("LIST", 0): a.raw(f'; @launch kernel={KN} grid=(256,1,1) block=(512,1,1) lds=163840')
    else: a.raw('; @launch grid=(256,1,1) block=(512,1,1) lds=163840')
    a.raw('.amdgcn_target "amdgcn-amd-amdhsa--gfx950"')
    a.raw('.text'); a.raw(f'.globl {KN}'); a.raw(f'.type {KN},@function')
    kernel(a)
    a.raw('.section .rodata,"a"'); a.raw('.p2align 6')
    a.raw(f'''.amdhsa_kernel {KN}
  .amdhsa_next_free_vgpr 256
  .amdhsa_next_free_sgpr 100
  .amdhsa_accum_offset 256
  .amdhsa_group_segment_fixed_size 0
  .amdhsa_kernarg_size 80
  .amdhsa_user_sgpr_count 2
  .amdhsa_user_sgpr_kernarg_segment_ptr 1
  .amdhsa_system_sgpr_workgroup_id_x 1
.end_amdhsa_kernel''')
    open(sys.argv[1], 'w').write(a.text())
    print('nops inserted', a.nops)
main()
```

```python
import sys, math, os
from asmlib import *

NAME = "parallel_sum__sliding_local_dilated__glu_gated_geglu__prompt"
KN = NAME + "_kernel"
A2_RB, A2_SZ = 278528, 32 * 278528
WS_W2, W2_CB, W2_SZ = 0x900000, 348160, 8 * 348160
WS_STAT, WS_CNT = 0x1400000, 0x1410000
C_STAT, C_W2, C_WG = 0, 16, 32
XSZ = 2048 * 1280
OOB = 0x7f000000
LOG2E = 1.4426950408889634
C1 = -2.0 * LOG2E * math.sqrt(2.0 / math.pi)
C2 = C1 * 0.044715
E = lambda k, d: int(os.environ.get(k, d))
PROF = E("PROF", 0); CLK = E("CLK", 0); SPROF = E("SPROF", 0)
ORD = [int(c, 16) for c in os.environ.get("ORD", "55")]; PRE2 = E("PRE2", 0); TA = E("TA", 0); NSTG = E("NSTG", 4); STG0 = E("STG0", -2); TW = E("TW", 1); TB = E("TB", 7); TCB = E("TCB", 2); DRY = E("DRY", 0); OSC = os.environ.get("OSC", ""); GLATE = E("GLATE", -1); EB0 = E("EB0", 1); RETOUCH = E("RETOUCH", 1); MAP2 = E("MAP2", 0); QLATE = E("QLATE", 0); OCHK = E("OCHK", 8)
WSRC = os.environ.get("WSRC", "HHHLHSLHSLHSLLSLL")
LA_A = E("LA_A", 4); LA_W = E("LA_W", 4); PACE = E("PACE", 3); PRE = E("PRE", 2)
OWN = E("OWN", 0); PPOLL = E("PPOLL", 0); PSL = E("PSL", 2)
NTP = os.environ.get("NTP", ""); NTW = os.environ.get("NTW", ""); NTX = os.environ.get("NTX", ""); NTT = os.environ.get("NTT", "")
CSTR = E('CSTR', 256); ALLM = E('ALLM', 0); SPOLL = E('SPOLL', 1); SO = E('SO', 1); SS_ = E('SS', 0)
GCHK = E('GCHK', 4); TWO = E('TWO', 1)
T2G = E('T2G', 1); NOV0 = E("NOV0", 1)
SPIN = 30000; SLEEP = E("SLEEP", 2)
CH = [int(c) for c in os.environ.get("CH", "2222")]
WS_PROF = 0x2000000
GX, GXS, GWS = 98304, 14336, 24576
QX, QXS, QWS = 61440, 22528, 15360
LT2 = 141312
LST = LT2 + 3 * 5120
LRP = LST + 3072
LCN = LRP + 512
PB_HI = 61440
LS2 = LCN + 64
QST = 520
L = 'v243'

def srd(a, d, lo, hi, size, add=None):
    if add is None:
        a(f's_mov_b32 s{d}, s{lo}'); a(f's_mov_b32 s{d+1}, s{hi}')
    else:
        a(f's_add_u32 s{d}, s{lo}, {add}'); a(f's_addc_u32 s{d+1}, s{hi}, 0')
    a(f's_mov_b32 s{d+2}, {size}'); a(f's_mov_b32 s{d+3}, 0x20000')

MUTE = [False]
def stamp(a, n):
    if PROF and not (MUTE[0] and n < 7):
        a(f'{"s_memtime" if CLK else "s_memrealtime"} s[{80+2*n}:{81+2*n}]'); a('s_waitcnt lgkmcnt(0)')
def stamp_flush(a, waveadd=0):
    if not PROF: return
    a('s_waitcnt vmcnt(0)'); stamp(a, 7)
    a(f's_add_u32 s96, s22, {WS_PROF}'); a('s_addc_u32 s97, s23, 0')
    a(f's_lshl_b32 s98, s2, 3'); a(f's_add_u32 s98, s98, s40'); a(f's_add_u32 s98, s98, {waveadd}'); a('s_lshl_b32 s98, s98, 6')
    a('v_mov_b32 v0, s98')
    for n in range(8):
        a(f'v_mov_b32 v2, s{80+2*n}'); a(f'v_mov_b32 v3, s{81+2*n}')
        a(f'global_store_dwordx2 v0, v[2:3], s[96:97] offset:{8*n}')

class Q:
    def __init__(s, a, cnt, mx): s.a = a; s.q = []; s.cnt = cnt; s.mx = mx; s.n = {}
    def issue(s, tag, text):
        if len(s.q) >= s.mx:
            s.a(f's_waitcnt {s.cnt}({s.mx - 1})'); s.q = s.q[-(s.mx - 1):]
        s.a(text); s.q.append(tag); s.n[tag] = s.n.get(tag, 0) + 1; s.tot = getattr(s, 'tot', 0) + 1
    def wait(s, tag):
        if tag not in s.q: return
        idx = max(i for i, t in enumerate(s.q) if t == tag)
        n = len(s.q) - 1 - idx
        s.a(f's_waitcnt {s.cnt}({n})'); s.q = s.q[idx + 1:]
    def clear(s): s.q = []

_pl = [0]
def poll(a, va, vp, target, base='s[10:11]', preissued=False, st='s70', mask=False):
    _pl[0] += 1; n = _pl[0]
    a(f's_mov_b32 {st}, 0')
    if preissued: a(f's_branch pl{n}_chk')
    a.label(f'pl{n}_top')
    a(f'global_load_dword {vp}, {va}, {base} sc1')
    a.label(f'pl{n}_chk')
    a('s_waitcnt vmcnt(0)')
    if mask: a(f'v_and_b32 {vp}, {target}, {vp}')
    a(f'v_cmp_ne_u32 vcc, {target}, {vp}')
    a('s_nop 1')
    a(f's_cbranch_vccz pl{n}_ok')
    a(f's_sleep {SLEEP}')
    a(f's_add_u32 {st}, {st}, 1'); a(f's_cmp_lt_u32 {st}, {SPIN}'); a(f's_cbranch_scc1 pl{n}_top')
    a('s_endpgm')
    a.label(f'pl{n}_ok')

assert all((x * 607) >> 16 == x // 108 for x in range(2112))
assert all((x * 410) >> 16 == x // 160 for x in range(0, 2560, 16))
_sp = [0]
def sread(a, dst, off, base='s[10:11]', load=False):
    if SPOLL == 1 and not load: a(f's_mov_b32 {dst}, 0'); a(f's_atomic_add {dst}, {base}, {off} glc')
    else: a(f's_load_dword {dst}, {base}, {off} glc')
def spoll(a, items, base='s[10:11]', preissued=False, load=False):
    _sp[0] += 1; n = _sp[0]
    a('s_mov_b32 s70, 0')
    if preissued: a(f's_branch sq{n}_chk')
    a.label(f'sq{n}_top')
    for d, o, t, m in items: sread(a, d, o, base, load)
    a.label(f'sq{n}_chk')
    a('s_waitcnt lgkmcnt(0)')
    for k, (d, o, t, m) in enumerate(items):
        if m: a(f's_and_b32 {d}, {d}, {t}')
        a(f's_cmp_eq_u32 {d}, {t}')
        a(f's_cbranch_scc1 sq{n}_ok' if k == len(items) - 1 else f's_cbranch_scc0 sq{n}_no')
    a.label(f'sq{n}_no')
    a(f's_sleep {SLEEP}')
    a('s_add_u32 s70, s70, 1'); a(f's_cmp_lt_u32 s70, {SPIN}'); a(f's_cbranch_scc1 sq{n}_top')
    a('s_endpgm')
    a.label(f'sq{n}_ok')
def cntbase(a):
    a(f's_add_u32 s10, s22, {WS_CNT}'); a('s_addc_u32 s11, s23, 0')
def bar(a, n=1):
    for _ in range(n): a('s_barrier')

_ls = [0]
def lds_arrive(a, off, va, vb):
    a(f'v_mov_b32 {va}, {off}'); a(f'v_mov_b32 {vb}, 1')
    a('s_mov_b64 exec, 1'); a(f'ds_add_u32 {va}, {vb}'); a('s_mov_b64 exec, -1')
def lds_wait(a, off, va, vb, sleep=0, setaddr=True):
    _ls[0] += 1; n = _ls[0]
    if setaddr: a(f'v_mov_b32 {va}, {off}')
    a('s_mov_b32 s70, 0')
    a.label(f'lw{n}')
    a(f'ds_read_b32 {vb}, {va}'); a('s_waitcnt lgkmcnt(0)'); a(f'v_readfirstlane_b32 s71, {vb}')
    a('s_cmp_ge_u32 s71, 4'); a(f's_cbranch_scc1 lw{n}_ok')
    if sleep: a(f's_sleep {sleep}')
    a('s_add_u32 s70, s70, 1'); a('s_cmp_lt_u32 s70, 200000'); a(f's_cbranch_scc1 lw{n}')
    a('s_endpgm')
    a.label(f'lw{n}_ok')

_gd = [0]
def guard(a, *ins):
    _gd[0] += 1
    if DRY: a(f's_cbranch_execz gd{_gd[0]}')
    for t in ins: a(t)
    if DRY: a.label(f'gd{_gd[0]}')
def seg(a, P, n):
    if not DRY: return
    if n > 0: a(f's_cbranch_execz {P}_ret')
    if n < 4: a.label(f'{P}_seg{n}')
def dryrun(a, P):
    if not DRY: return
    if DRY == 2 and P == 'cg':
        a.label(f'{P}_ret'); return
    a('s_mov_b64 exec, 0')
    for n in range(3):
        a(f's_cmp_eq_u32 s40, {n}'); a(f's_cbranch_scc1 {P}_seg{n}')
    a(f's_branch {P}_seg3')
    a.label(f'{P}_ret')
    a('s_mov_b64 exec, -1')
    a.fence(12)

def kernel(a):
    a.raw('.p2align 8'); a.label(KN)
    a('s_cmp_ge_u32 s2, 256'); a('s_cbranch_scc1 k_exit')
    if E('QFIRST', 0) == 1: a('s_xor_b32 s2, s2, 0xf8')
    if E('QFIRST', 0) == 2:
        a('s_bfe_u32 s3, s2, 0x10003'); a('s_lshl_b32 s3, s3, 7'); a('s_and_b32 s4, s2, 7'); a('s_lshr_b32 s2, s2, 4'); a('s_lshl_b32 s2, s2, 3'); a('s_or_b32 s2, s2, s3'); a('s_or_b32 s2, s2, s4')
    if E('SCRAMBLE', 0) == 2: a('s_bfe_u32 s3, s2, 0x30003'); a('s_xor_b32 s2, s2, s3')
    if E('SCRAMBLE', 0) == 1: a('s_and_b32 s3, s2, 7'); a('s_lshl_b32 s3, s3, 5'); a('s_lshr_b32 s2, s2, 3'); a('s_or_b32 s2, s2, s3')
    a('s_load_dwordx4 s[4:7], s[0:1], 0'); a('s_load_dwordx4 s[12:15], s[0:1], 32'); a('s_load_dwordx4 s[20:23], s[0:1], 64')
    a('s_load_dwordx2 s[8:9], s[0:1], 16'); a('s_load_dwordx4 s[16:19], s[0:1], 48')
    a('v_lshrrev_b32 v1, 6, v0'); a('v_and_b32 v243, 63, v0')
    a('v_readfirstlane_b32 s40, v1')
    a('s_getpc_b64 s[46:47]')
    a.label('k_pc')
    a('s_cmp_ge_u32 s40, 4'); a('s_cbranch_scc1 k_nopf')
    a('v_lshlrev_b32 v2, 7, v0'); a('v_add_u32 v3, 32768, v2')
    a('v_min_u32 v2, k_end-k_pc-4, v2'); a('v_min_u32 v3, k_end-k_pc-4, v3'); a('v_and_b32 v2, -4, v2'); a('v_and_b32 v3, -4, v3')
    a('global_load_dword v255, v2, s[46:47]'); a('global_load_dword v254, v3, s[46:47]')
    a.label('k_nopf')
    stamp(a, 0)
    a('s_and_b32 s44, s2, 3'); a('s_bfe_u32 s48, s2, 0x10002'); a('s_lshr_b32 s46, s2, 3')
    a('s_sub_u32 s49, 10, s48'); a('s_lshl_b32 s50, s49, 1')
    a('s_mul_i32 s51, s48, 10')
    a('s_cmp_ge_u32 s46, s50'); a('s_cselect_b32 s43, 1, 0'); a('s_cbranch_scc0 k_d1')
    a('s_sub_u32 s46, s46, s50'); a('s_add_u32 s49, s48, 6'); a('s_mul_i32 s51, s48, 6')
    a.label('k_d1')
    a('s_cmp_ge_u32 s46, s49'); a('s_cselect_b32 s47, 1, 0'); a('s_cselect_b32 s50, s49, 0'); a('s_sub_u32 s46, s46, s50')
    a('s_lshl_b32 s44, s44, 1'); a('s_add_u32 s44, s44, s47')
    a('s_add_u32 s45, s46, s51')
    a('s_mul_i32 s41, s45, 108'); a('s_mul_i32 s50, s45, 160'); a('s_sub_u32 s50, s50, 16')
    a('s_cmp_eq_u32 s43, 1'); a('s_cselect_b32 s41, s50, s41')
    a('s_cmp_lt_u32 s40, 4'); a('s_cbranch_scc1 k_cons')
    a('s_sub_u32 s40, s40, 4')
    a('s_cmp_eq_u32 s40, 3'); a('s_cbranch_scc1 k_serv')
    if TA:
        for cls in range(3):
            if cls < 2: a(f's_cmp_lg_u32 s40, {cls}'); a(f's_cbranch_scc1 k_t{cls}')
            touch_setup(a, cls, 'v40', 'v41', 'v42')
            a('s_waitcnt lgkmcnt(0)')
            for _ in range(TA):
                touch(a, cls, 'v40', 'v43')
                if cls != 1: a('global_load_dword v43, v44, s[4:5]') if False else None
            if cls < 2: a('s_branch k_td'); a.label(f'k_t{cls}')
        a.label('k_td')
    NK = E("NK", max(ORD)); KS = E("KS", 2); KT = E("KT", 1)
    assert sum(ORD) == 10
    def order(key):
        first, rest, base = [], [], 0
        for n in ORD:
            z = key % n
            first.append(base + z); rest += [base + (z + d) % n for d in range(1, n)]; base += n
        return first + rest
    def order5(key):
        return [(2 * key + d) % 10 for d in range(10)]
    a(f's_mul_i32 s68, s47, {KS}'); a('s_add_u32 s68, s68, s46'); a(f's_mul_i32 s46, s43, {KT}'); a('s_add_u32 s68, s68, s46')
    for _ in range(2):
        a(f's_cmp_ge_u32 s68, {NK}'); a(f's_cselect_b32 s46, {NK}, 0'); a('s_sub_u32 s68, s68, s46')
    assert NK == 1 or 9 + KS + KT < 3 * NK
    for key in range(NK):
        o = order5(key) if (ORD == [5, 5] and not E('GEN', 0)) else order(key)
        v = sum(x << (4 * n) for n, x in enumerate(o))
        if key == 0: a(f's_mov_b32 s64, {v & 0xffffffff}'); a(f's_mov_b32 s65, {v >> 32}')
        else: a(f's_cmp_eq_u32 s68, {key}'); a(f's_cselect_b32 s64, {v & 0xffffffff}, s64'); a(f's_cselect_b32 s65, {v >> 32}, s65')
    a('s_mov_b64 s[66:67], s[64:65]'); a('s_and_b32 s68, s64, 15'); a('s_mov_b32 s69, 0')
    a(f'v_lshrrev_b32 v2, 3, {L}'); a(f'v_and_b32 v3, 7, {L}')
    a('s_movk_i32 s53, 1280'); a('s_lshl_b32 s58, s68, 7'); a('s_lshl_b32 s54, s40, 10'); a('s_mov_b32 s61, 0')
    a(f'v_mov_b32 v9, {OOB}')
    a('s_cmp_eq_u32 s43, 1'); a('s_cbranch_scc1 k_ldq')
    loader(a, False)
    a('s_branch k_gemm2')
    a.label('k_ldq'); loader(a, True)
    a.label('k_gemm2'); gemm2(a)
    a.label('k_serv'); service(a)
    a.label('k_cons')
    a('s_cmp_eq_u32 s43, 1'); a('s_cbranch_scc1 k_consq')
    consumerG(a)
    a.label('k_consq'); consumerQ(a)
    a.label('k_pub'); publish(a)
    a.label('k_exit'); a('s_endpgm')
    a.label('k_end')

def touch_setup(a, cls, v, t1, t2):
    a('s_lshr_b32 s72, s2, 3'); a('s_and_b32 s73, s2, 3')
    if cls == 0:
        a('s_bfe_u32 s74, s2, 0x10002'); a('s_mul_i32 s74, s74, 944'); a('s_mul_i32 s72, s72, 35'); a('s_add_u32 s72, s72, s74')
        a(f'v_min_u32 {v}, 34, {L}'); a(f'v_add_u32 {v}, s72, {v}'); a(f'v_min_u32 {v}, 2047, {v}'); a(f'v_mul_u32_u24 {v}, 1280, {v}')
    elif cls == 1:
        a(f's_mul_i32 s72, s72, {2*3072}'); a('s_mul_i32 s73, s73, 768'); a('s_add_u32 s72, s72, s73')
        a(f'v_min_u32 {v}, 11, {L}'); a(f'v_cmp_lt_u32 vcc, 5, {v}'); a(f'v_mov_b32 {t1}, {3072-768}'); a(f'v_cndmask_b32 {t1}, 0, {t1}, vcc')
        a(f'v_lshl_add_u32 {v}, {v}, 7, {t1}'); a(f'v_add_u32 {v}, s72, {v}')
    else:
        a(f's_mul_i32 s72, s72, {2*3840}'); a('s_mul_i32 s73, s73, 320'); a('s_and_b32 s73, s73, -128'); a('s_add_u32 s72, s72, s73')
        a(f'v_min_u32 {v}, 17, {L}'); a(f'v_mul_u32_u24 {t1}, 86, {v}'); a(f'v_lshrrev_b32 {t1}, 8, {t1}')
        a(f'v_mul_u32_u24 {t1}, {1280-384}, {t1}'); a(f'v_lshl_add_u32 {v}, {v}, 7, {t1}'); a(f'v_add_u32 {v}, s72, {v}')
def touch(a, cls, v, dst):
    if cls == 0: a(f'global_load_dword {dst}, {v}, s[4:5]'); a(f'v_add_u32 {v}, 128, {v}')
    elif cls == 1: a(f'global_load_dword {dst}, {v}, s[12:13]'); a(f'global_load_dword {dst}, {v}, s[14:15]'); a(f'v_add_u32 {v}, {64*3072}, {v}')
    else: a(f'global_load_dword {dst}, {v}, s[6:7]'); a(f'v_add_u32 {v}, {64*3840}, {v}')

def pre_setup(a):
    assert WSRC[:PRE] == 'H' * PRE and MAP2 == 0 and PRE <= 3
    srd(a, 36, 22, 23, W2_SZ, WS_W2)
    a(f'v_lshlrev_b32 v248, 4, {L}')
    a('s_lshr_b32 s47, s2, 6'); a('s_bfe_u32 s48, s2, 0x30003')
    a(f's_mul_i32 s49, s48, {W2_CB}'); a(f's_mul_i32 s50, s40, {17*5120}'); a('s_add_u32 s49, s49, s50')
    a('s_lshl_b32 s47, s47, 1'); a('s_add_u32 s48, s48, s47')
    for n in range(PRE):
        d = f's{74+2*n}'
        a(f's_add_u32 {d}, s48, {n}'); a(f's_and_b32 {d}, {d}, 7')
        a(f's_mul_i32 {d}, {d}, 5120'); a(f's_add_u32 {d}, {d}, s49'); a(f's_add_u32 s{75+2*n}, {d}, 4096')
def pre_issue(a, wait=True):
    if SPROF == 5: stamp(a, 1)
    if wait: a('s_waitcnt vmcnt(0)')
    if SPROF == 5: stamp(a, 2)
    for n in range(PRE):
        for t in range(5):
            d = 80 + 20 * n + 4 * t
            if t < 4: a(f'buffer_load_dwordx4 v[{d}:{d+3}], v248, s[36:39], s{74+2*n} offen offset:{t*1024} sc1')
            else: a(f'buffer_load_dwordx4 v[{d}:{d+3}], v248, s[36:39], s{75+2*n} offen sc1')
    if SPROF == 5: stamp(a, 3)
    bar(a)
    if SPROF == 5: stamp(a, 4)

def loader(a, isq):
    P = 'lq' if isq else 'lg'
    NXM = 8 if isq else 5; NQ = 22 if isq else 14
    XO, XS, WS = (QX, QXS, QWS) if isq else (GX, GXS, GWS)
    RS = 3840 if isq else 3072
    XV = 12
    a('v_lshrrev_b32 v4, 1, v2'); a('v_xor_b32 v4, v4, v3'); a('s_and_b32 s51, s40, 1'); a('s_lshl_b32 s51, s51, 2'); a('v_xor_b32 v4, s51, v4')
    a('v_lshlrev_b32 v4, 4, v4')
    a('s_lshl_b32 s52, s40, 3'); a('s_add_u32 s52, s52, s41'); a('v_add_u32 v5, s52, v2')
    a('v_mul_lo_u32 v6, v5, s53'); a(f'v_add_u32 v{XV}, v6, v4')
    for m in range(1, NXM):
        if m == 1: a(f'v_xor_b32 v7, 64, v{XV}')
        a(f'v_add_u32 v{XV+m}, {m*24*1280}, v{XV if m % 2 == 0 else 7}')
    if isq:
        a('v_cmp_gt_i32 vcc, 0, v5'); a(f'v_cndmask_b32 v{XV}, v{XV}, v9, vcc')
    else:
        a('v_subrev_u32 v5, s41, v5'); a('v_cmp_gt_u32 vcc, 12, v5'); a(f'v_cndmask_b32 v{XV+4}, v9, v{XV+4}, vcc')
    a(f's_add_u32 s59, s54, {XO}')
    a('s_waitcnt lgkmcnt(0)')
    srd(a, 24, 4, 5, XSZ)
    cnt = [0]
    def Xl(m):
        last = m == NXM - 1
        if last:
            cnt[0] += 1
            a(f's_cmp_ge_u32 s40, {NQ - 3*(NXM-1)}'); a(f's_cbranch_scc1 {P}_sk{cnt[0]}')
        a(f's_add_u32 m0, s59, {m*3072}')
        a(f'buffer_load_dwordx4 v{XV+m}, s[24:27], s58 offen {NTX} lds')
        if last: a.label(f'{P}_sk{cnt[0]}')
    def Xadv():
        a('s_lshr_b64 s[66:67], s[66:67], 4'); a('s_and_b32 s58, s66, 15'); a('s_lshl_b32 s58, s58, 7')
        a(f's_add_u32 s59, s59, {XS}')
        a(f's_cmp_ge_u32 s59, {XO+3*XS}'); a(f's_cselect_b32 s60, {3*XS}, 0'); a('s_sub_u32 s59, s59, s60')
    def issueX():
        for m in range(NXM): Xl(m)
        Xadv()
    if TA: a(f's_waitcnt vmcnt({TA - TW})')
    if SPROF == 4: stamp(a, 1)
    issueX()
    WV = 20
    a(f's_movk_i32 s42, {RS}')
    if isq:
        NW = 5
        srd(a, 28, 6, 7, 640 * 3840)
        a('s_mul_i32 s46, s40, 1280'); a('s_mul_i32 s47, s44, 160'); a('s_add_u32 s46, s46, s47')
        for n in range(5):
            a(f'v_add_u32 v4, {64*n}, {L}'); a('v_mul_u32_u24 v5, 205, v4'); a('v_lshrrev_b32 v5, 11, v5')
            a('v_mul_u32_u24 v6, 10, v5'); a('v_sub_u32 v4, v4, v6'); a('v_lshl_add_u32 v4, v4, 4, s46')
            a('v_lshrrev_b32 v6, 1, v5'); a('v_xor_b32 v6, v6, v5'); a('v_and_b32 v6, 4, v6'); a('v_mul_u32_u24 v6, 3, v6'); a('v_xor_b32 v5, v5, v6')
            a(f'v_mad_u32_u24 v{WV+n}, v5, s42, v4')
        a('s_mul_i32 s57, s40, 5120')
        def Wl(n):
            a(f's_add_u32 m0, s57, {n*1024}')
            a(f'buffer_load_dwordx4 v{WV+n}, s[28:31], s56 offen {NTW} lds')
    else:
        NW = 8
        srd(a, 28, 12, 13, 640 * 3072); srd(a, 32, 14, 15, 640 * 3072)
        a(f'v_bfe_u32 v4, {L}, 4, 1'); a('v_lshlrev_b32 v4, 2, v4'); a('v_xor_b32 v4, v4, v3'); a('v_lshlrev_b32 v4, 4, v4')
        a('s_mul_i32 s46, s44, 384'); a('s_lshl_b32 s47, s40, 7'); a('s_add_u32 s46, s46, s47')
        a('v_mad_u32_u24 v4, v2, s42, v4'); a(f'v_add_u32 v{WV}, s46, v4'); a(f'v_xor_b32 v4, 16, v{WV}')
        a(f'v_add_u32 v{WV+1}, {8*3072}, v4'); a(f'v_add_u32 v{WV+2}, {16*3072}, v{WV}'); a(f'v_add_u32 v{WV+3}, {24*3072}, v4')
        a('s_lshl_b32 s57, s40, 12')
        def Wl(n):
            half, g = n >> 2, n & 3
            a(f's_add_u32 m0, s57, {half*12288 + g*1024}')
            a(f'buffer_load_dwordx4 v{WV+g}, s[{28+4*half}:{31+4*half}], s56 offen {NTW} lds')
    a(f's_mul_i32 s56, s68, {64*RS}')
    wpar = [0]
    def Wadv():
        if wpar[0] == 0: a(f's_add_u32 s56, s56, {32*RS}')
        else: a('s_lshr_b64 s[64:65], s[64:65], 4'); a('s_and_b32 s56, s64, 15'); a(f's_mul_i32 s56, s56, {64*RS}')
        wpar[0] ^= 1
        a(f's_add_u32 s57, s57, {WS}')
        a(f's_cmp_ge_u32 s57, {4*WS}'); a(f's_cselect_b32 s60, {4*WS}, 0'); a('s_sub_u32 s57, s57, s60')
    def issueW():
        for n in range(NW): Wl(n)
        Wadv()
    issueW(); issueW()
    if SPROF == 4: stamp(a, 2)
    cntbase(a); pre_setup(a)
    XA = (NXM + 1) // 2; XB_ = NXM - XA
    a(f's_waitcnt vmcnt({NW})')
    if SPROF == 4: stamp(a, 3)
    bar(a)
    if SPROF == 4: stamp(a, 4)
    if EB0:
        issueW(); a(f's_waitcnt vmcnt({NW})'); bar(a); issueX()
    else:
        issueW(); issueX()
        a(f's_waitcnt vmcnt({NW + NXM - 1})'); bar(a)
    if SPROF == 4: stamp(a, 5)
    issueW()
    if SPROF == 4: stamp(a, 6)
    if PROF:
        a('s_memtime s[72:73]'); a('s_waitcnt lgkmcnt(0)'); a('v_mov_b32 v60, s72')
    a.label(f'{P}_loop')
    for n in range(NW): Wl(n)
    for m in range(XA): Xl(m)
    Wadv()
    a(f's_waitcnt vmcnt({2*NW + XA})'); bar(a)
    for m in range(XA, NXM): Xl(m)
    for n in range(NW): Wl(n)
    Wadv(); Xadv()
    a('s_add_u32 s61, s61, 1'); a('s_cmp_lt_u32 s61, 8')
    a(f's_waitcnt vmcnt({2*NW + NXM - 1})'); bar(a)
    if PROF:
        a('s_memtime s[72:73]'); a('s_waitcnt lgkmcnt(0)')
        for r in range(69, 60, -1): a(f'v_mov_b32 v{r}, v{r-1}')
        a('v_mov_b32 v60, s72')
    a(f's_cbranch_scc1 {P}_loop')
    pre_issue(a)
    if PROF:
        a(f's_add_u32 s96, s22, {WS_PROF + 0x20000}'); a('s_addc_u32 s97, s23, 0')
        a('s_lshl_b32 s98, s2, 3'); a('s_add_u32 s98, s98, s40'); a('s_lshl_b32 s98, s98, 6'); a('v_mov_b32 v59, s98')
        for r in range(9): a(f'global_store_dword v59, v{68-r}, s[96:97] offset:{4*r}')

def service(a):
    a('s_and_b32 s50, s2, 7'); a('s_lshl_b32 s51, s50, 5'); a('s_lshr_b32 s46, s2, 3'); a('s_add_u32 s51, s51, s46'); a('s_lshl_b32 s52, s51, 3')
    a(f'v_lshrrev_b32 v1, 4, {L}'); a(f'v_and_b32 v2, 15, {L}'); a('v_add_u32 v1, s52, v1')
    a('s_movk_i32 s53, 1280'); a('v_lshlrev_b32 v3, 4, v2'); a('v_mad_u32_u24 v3, v1, s53, v3')
    a('v_mov_b32 v30, 0')
    a('s_waitcnt lgkmcnt(0)')
    srd(a, 24, 4, 5, XSZ); cntbase(a)
    a('s_movk_i32 s54, 5120')
    for s in range(2):
        for j in range(5):
            d = 140 + 20 * s + 4 * j
            a(f'buffer_load_dwordx4 v[{d}:{d+3}], v3, s[24:27], {"s54" if s else "0"} offen offset:{j*256}')
    a('s_cmp_lg_u32 s2, 0'); a('s_cbranch_scc1 sv_ni')
    a(f'v_mul_u32_u24 v4, {CSTR}, {L}')
    for n in range(3):
        a('global_store_dword v4, v30, s[10:11] sc1'); a('global_store_dword v4, v30, s[10:11] offset:128 sc1'); a(f'v_add_u32 v4, {64*CSTR}, v4')
    a.label('sv_ni')
    if SPROF == 4: stamp(a, 1)
    a('s_mul_i32 s55, s50, 160')
    for n in range(5):
        a(f'v_add_u32 v4, {64*n}, {L}'); a('v_mul_u32_u24 v5, 205, v4'); a('v_lshrrev_b32 v5, 11, v5')
        a('v_mul_u32_u24 v6, 10, v5'); a('v_sub_u32 v4, v4, v6'); a('v_lshl_add_u32 v4, v4, 4, s55')
        a(f'v_lshrrev_b32 v{100+n}, 3, v5'); a(f'v_bfe_u32 v{105+n}, v5, 2, 1'); a('v_and_b32 v5, 3, v5'); a(f'v_mad_u32_u24 v{110+n}, v5, s53, v4')
    if T2G:
        a('s_lshl_b32 s44, s48, 1'); a('s_sub_u32 s44, 20, s44')
        a('s_lshl_b32 s42, s44, 1'); a('s_add_u32 s42, s42, s46')
        a('s_cmp_lt_u32 s42, 68'); a('s_cselect_b32 s45, 1, 0')
        a('s_cmp_eq_u32 s43, 0'); a('s_cselect_b32 s42, s46, s42'); a('s_cselect_b32 s45, 3, s45')
    else:
        a('s_mov_b32 s42, s46'); a('s_mov_b32 s44, 32'); a('s_cmp_lt_u32 s46, 4'); a('s_cselect_b32 s45, 3, 2')
    for un in range(3):
        sb = 28 + 4 * un
        a(f's_mul_i32 s56, s44, {un}'); a('s_add_u32 s56, s56, s42'); a('s_mul_i32 s57, s56, 241'); a('s_lshr_b32 s57, s57, 12'); a('s_mul_i32 s58, s57, 17'); a('s_sub_u32 s58, s56, s58')
        a('s_cmp_ge_u32 s58, 12'); a(f's_cbranch_scc1 sv_o{un}')
        srd(a, sb, 16, 17, 1536 * 1280)
        a('s_lshr_b32 s59, s58, 1'); a('s_mul_i32 s59, s59, 3'); a('s_and_b32 s63, s58, 1'); a('s_lshl_b32 s63, s63, 1'); a('s_add_u32 s59, s59, s63')
        a('s_mul_i32 s63, s58, 3'); a('s_sub_u32 s63, s63, 23'); a('s_cmp_ge_u32 s58, 8'); a('s_cselect_b32 s58, s63, s59')
        a('s_mul_i32 s59, s57, 12'); a('s_add_u32 s59, s59, s58'); a('s_lshl_b32 s59, s59, 5')
        a(f's_movk_i32 s60, {8*1280}'); a(f's_movk_i32 s61, {4*1280}'); a('s_mov_b32 s62, 1'); a('s_mov_b32 s67, 0')
        a(f's_branch sv_c{un}')
        a.label(f'sv_o{un}')
        srd(a, sb, 8, 9, 640 * 1280)
        a('s_sub_u32 s58, s58, 12'); a('s_mul_i32 s59, s57, 160'); a('s_mul_i32 s63, s58, 40')
        a(f's_movk_i32 s60, {8*1280}')
        a('s_cmp_eq_u32 s58, 4'); a('s_cselect_b32 s63, 16, s63'); a(f's_cselect_b32 s60, {40*1280}, s60'); a(f's_cselect_b32 s61, {20*1280}, s54'); a('s_cselect_b32 s67, 0, s54')
        a('s_add_u32 s59, s59, s63'); a('s_mov_b32 s62, 0')
        a.label(f'sv_c{un}')
        a(f's_mul_i32 s{64+un}, s59, 1280')
        for n in range(5):
            a(f'v_and_b32 v4, s62, v{100+n}'); a(f'v_xor_b32 v4, v4, v{105+n}')
            a(f'v_mad_u32_u24 v4, v4, s61, v{110+n}'); a(f'v_mad_u32_u24 v4, v{100+n}, s60, v4')
            a(f'v_lshrrev_b32 v5, 1, v{100+n}'); a(f'v_mad_u32_u24 v{120+5*un+n}, v5, s67, v4')
    if SPROF == 4: stamp(a, 2)
    a(f'v_lshrrev_b32 v4, 4, {L}'); a(f'v_bfe_u32 v5, {L}, 2, 2'); a('v_lshl_add_u32 v4, v4, 3, v5'); a('v_mul_u32_u24 v4, 160, v4')
    a(f'v_add_u32 v4, {LT2}, v4'); a(f'v_and_b32 v5, 3, {L}'); a('v_lshl_add_u32 v26, v5, 4, v4'); a('v_lshl_add_u32 v27, v5, 3, v4')
    a(f'v_lshlrev_b32 v28, 4, {L}'); a('v_add_u32 v29, 4096, v28')
    a(f'v_add_u32 v5, s41, {L}'); a('v_lshlrev_b32 v20, 4, v5'); a('v_add_u32 v21, 1024, v20')
    a(f's_mov_b32 s56, {A2_RB}'); a('s_movk_i32 s57, 2048'); a(f'v_mov_b32 v9, {OOB}')
    a(f'v_lshlrev_b32 v8, 2, {L}'); a(f'v_add_u32 v8, {LRP}, v8')
    for n in range(2):
        if n: a('v_add_u32 v5, 64, v5')
        a('v_lshrrev_b32 v6, 6, v5'); a('v_mul_lo_u32 v6, v6, s56'); a('v_bfe_u32 v7, v5, 2, 4'); a('v_lshl_add_u32 v6, v7, 8, v6')
        a('v_and_b32 v7, 3, v5'); a('v_lshl_add_u32 v6, v7, 4, v6')
        if n:
            a(f'v_cmp_gt_u32 vcc, 44, {L}'); a('v_cmp_gt_u32 s[58:59], s57, v5'); a('s_and_b64 vcc, vcc, s[58:59]'); a('v_cndmask_b32 v6, v9, v6, vcc')
        a(f'ds_write_b32 v8, v6 offset:{256*n}')
    a('s_max_i32 s56, s41, 0'); a('s_lshr_b32 s56, s56, 7'); a('s_add_u32 s57, s41, 175'); a('s_lshr_b32 s57, s57, 7'); a('s_min_u32 s57, s57, 15')
    a(f'v_add_u32 v18, s56, {L}'); a('v_min_u32 v18, s57, v18')
    if MAP2 == 0: a('s_and_b32 s56, s46, 7')
    else: a('s_and_b32 s56, s2, 1'); a('s_lshl_b32 s56, s56, 2'); a('s_and_b32 s57, s46, 3'); a('s_add_u32 s56, s56, s57')
    a(f's_add_u32 s56, s56, {C_W2}'); a('v_mov_b32 v4, s56')
    a(f'v_cmp_gt_u32 vcc, 3, {L}'); a('v_cndmask_b32 v18, v4, v18, vcc'); a(f'v_mul_u32_u24 v18, {CSTR}, v18')
    a('v_mov_b32 v4, 68'); a('v_cndmask_b32 v19, v4, 16, vcc')
    a(f's_add_u32 s56, s50, {C_W2}'); a(f's_mul_i32 s56, s56, {CSTR}'); a('v_mov_b32 v22, s56')
    a('v_mov_b32 v23, s45')
    a('s_lshr_b32 s56, s51, 4'); a(f's_mul_i32 s56, s56, {CSTR}'); a('v_writelane_b32 v22, s56, 0'); a('v_writelane_b32 v23, 1, 0')
    a('v_lshlrev_b32 v24, 4, v1'); a('v_cmp_eq_u32 vcc, 0, v2'); a('v_cndmask_b32 v24, v9, v24, vcc')
    a(f'v_add_u32 v25, {LST}, v28')
    a(f'v_lshlrev_b32 v17, 7, {L}'); a(f'v_lshlrev_b32 v16, 2, {L}'); a(f'v_add_u32 v16, {LS2}, v16')
    srd(a, 76, 22, 23, 32768, WS_STAT)
    for n in range(4): a(f'v_mov_b32 v{8+n}, 0')
    srd(a, 24, 22, 23, W2_SZ, WS_W2)
    a('v_mov_b32 v4, 0x3f803f80')
    def tbatch(n):
        for _ in range(n):
            for cls in range(3): touch(a, cls, f'v{12+cls}', 'v15')
    def t2dma():
        for un in range(3):
            a(f's_cmp_le_u32 s45, {un}'); a('s_cbranch_scc1 sv_d3')
            for n in range(5):
                a(f's_mov_b32 m0, {LT2 + un*5120 + n*1024}'); a(f'buffer_load_dwordx4 v{120+5*un+n}, s[{28+4*un}:{31+4*un}], s{64+un} offen {NTT} lds')
        a.label('sv_d3')
    def stload():
        for s in range(2):
            for j in range(5):
                d = 140 + 20 * s + 4 * j
                a(f'buffer_load_dwordx4 v[{d}:{d+3}], v3, s[24:27], {"s54" if s else "0"} offen offset:{j*256}')
        srd(a, 24, 22, 23, W2_SZ, WS_W2)
    def stdot(s):
        for n in range(20):
            d = 140 + 20 * s + n
            a(f'v_dot2c_f32_bf16 v{8+s}, v{d}, v4'); a(f'v_dot2c_f32_bf16 v{10+s}, v{d}, v{d}')
    def stfin():
        a.fence(4)
        for ro in (8, 4, 2, 1):
            for n in range(4): a(f'v_add_f32_dpp v{8+n}, v{8+n}, v{8+n} row_ror:{ro} row_mask:0xf bank_mask:0xf')
        a(f's_mov_b32 s57, {f32(1.0/640)}')
        for s in range(2):
            b = 32 + 4 * s
            a(f'v_mul_f32 v{b}, s57, v{8+s}'); a(f'v_mul_f32 v{b+2}, s57, v{10+s}')
            a(f'v_fma_f32 v{b+2}, -v{b}, v{b}, v{b+2}'); a(f'v_max_f32 v{b+2}, 0, v{b+2}'); a(f'v_add_f32 v{b+2}, {f32(1e-5)}, v{b+2}')
            a(f'v_rsq_f32 v{b+1}, v{b+2}'); a(f'v_sub_f32 v{b}, 0, v{b}'); a(f'v_mov_b32 v{b+3}, 0')
            a(f'buffer_store_dwordx4 v[{b}:{b+3}], v24, s[76:79], 0 offen offset:{s*64} sc1')
    def trst(un):
        a(f's_cmp_le_u32 s45, {un}'); a(f's_cbranch_scc1 sv_s{un}')
        for t in range(5):
            d = 40 + 20 * un + 4 * t; ad = 26 if t < 4 else 27; off = un * 5120 + (64 * (t >> 1) + 8 * (t & 1) if t < 4 else 128)
            a(f'ds_read_b64_tr_b16 v[{d}:{d+1}], v{ad} offset:{off}'); a(f'ds_read_b64_tr_b16 v[{d+2}:{d+3}], v{ad} offset:{off+640}')
        a('s_waitcnt lgkmcnt(0)')
        for t in range(5):
            d = 40 + 20 * un + 4 * t
            if t < 4: a(f'buffer_store_dwordx4 v[{d}:{d+3}], v28, s[24:27], s56 offen offset:{t*1024} sc1')
            else: a(f'buffer_store_dwordx4 v[{d}:{d+3}], v29, s[24:27], s56 offen sc1')
        a('s_add_u32 s56, s56, s47')
        a.label(f'sv_s{un}')
    a(f's_mul_i32 s56, s50, {W2_CB}'); a('s_mul_i32 s57, s42, 5120'); a('s_add_u32 s56, s56, s57'); a('s_mul_i32 s47, s44, 5120')
    if STG0 == -1: t2dma()
    if SPROF == 4: stamp(a, 3)
    bar(a, 2)
    if SPROF == 4: stamp(a, 4)
    a('s_cmp_lg_u32 s2, 0'); a('s_cbranch_scc1 sv_n2')
    a('s_waitcnt vmcnt(0)')
    a('v_mov_b32 v5, 1'); a('s_mov_b64 exec, 1'); a('global_store_dword v30, v5, s[20:21] sc1'); a('s_mov_b64 exec, -1')
    a.label('sv_n2')
    if T2G: a('s_waitcnt vmcnt(0)')
    if STG0 == -2: t2dma()
    if not T2G: a('s_waitcnt vmcnt(10)')
    stdot(0); stdot(1); stfin()
    if SPROF == 4: stamp(a, 5)
    if STG0 < 0: a('s_mov_b32 s68, 1')
    else:
        a(f's_mul_i32 s68, s46, {(65536 + NSTG - 1) // NSTG}'); a('s_lshr_b32 s68, s68, 16'); a(f's_mul_i32 s68, s68, {NSTG}'); a('s_sub_u32 s68, s68, s46')
        a(f's_sub_u32 s68, s68, {STG0}')
    a('s_mov_b32 s69, 0')
    a.label('sv_lp')
    bar(a)
    a('s_add_u32 s68, s68, 1')
    if STG0 >= 0: a('s_cmp_eq_u32 s68, 0'); a('s_cbranch_scc1 sv_e0')
    E1 = E('E1', 4)
    a(f's_cmp_eq_u32 s68, {E1}'); a('s_cbranch_scc1 sv_e1')
    a(f's_cmp_eq_u32 s68, {E1+1}'); a('s_cbranch_scc1 sv_e2')
    a(f's_cmp_eq_u32 s68, {E1+3}'); a('s_cbranch_scc1 sv_e3')
    a.label('sv_er')
    a('s_add_u32 s69, s69, 1'); a(f's_cmp_lt_u32 s69, {E("NLP", 11)}'); a('s_cbranch_scc1 sv_lp')
    a('s_branch sv_go')
    if STG0 >= 0:
        a.label('sv_e0'); t2dma(); a('s_branch sv_er')
    a.label('sv_e1'); a('s_waitcnt vmcnt(0)'); trst(0); a('s_branch sv_er')
    a.label('sv_e2'); trst(1); trst(2)
    if SS_: sread(a, 's72', 0, 's[20:21]', True)
    else: a('global_load_dword v31, v30, s[20:21] sc1')
    a('s_branch sv_er')
    a.label('sv_e3')
    if SS_: spoll(a, [('s72', 0, 1, False)], 's[20:21]', True, True); a('s_waitcnt vmcnt(0)')
    else: poll(a, 'v30', 'v31', 1, base='s[20:21]', preissued=True)
    a('s_mov_b64 exec, 3'); a('global_atomic_add v22, v23, s[10:11]'); a('s_mov_b64 exec, -1')
    a('s_branch sv_er')
    a.label('sv_go')
    assert STG0 + NSTG - 1 + 5 <= 11
    its = [('s72', 's60', 16, False), ('s73', 's61', 16, False), ('s74', 's62', 16, False), ('s75', 's63', 68, False)]
    if SS_:
        for n in range(4): a(f'v_readlane_b32 s{60+n}, v18, {n}')
        a('s_nop 3')
        for d, o, t, m in its: sread(a, d, o)
    else: a('global_load_dword v31, v18, s[10:11] sc1')
    bar(a, 2)
    if SS_: spoll(a, its, preissued=True)
    else: poll(a, 'v18', 'v31', 'v19', preissued=True)
    a('buffer_load_dwordx4 v[32:35], v20, s[76:79], 0 offen sc1')
    for n in range(1, 3): a(f'buffer_load_dwordx4 v[{32+4*n}:{35+4*n}], v21, s[76:79], 0 offen offset:{(n-1)*1024} sc1')
    bar(a, 2)
    a(f's_mov_b32 s56, {f32(C2)}'); a('s_cmp_eq_u32 s43, 1'); a(f's_cselect_b32 s57, 1.0, {f32(C1)}')
    a('s_waitcnt vmcnt(0)')
    if RETOUCH:
        a('s_getpc_b64 s[58:59]')
        a.label('sv_pc')
        a('s_sub_u32 s58, s58, sv_pc-k_gemm2'); a('s_subb_u32 s59, s59, 0')
        for n in range(4):
            a(f'v_min_u32 v{48+n}, k_end-k_gemm2-4, v17'); a(f'v_and_b32 v{48+n}, -4, v{48+n}')
            a(f'global_load_dword v{48+n}, v{48+n}, s[58:59]')
            if n < 3: a('v_add_u32 v17, 8192, v17')
    for n in range(3):
        b = 32 + 4 * n
        a(f'v_mov_b32 v{b+3}, v{b+2}')
        a(f'v_mul_f32 v{b+2}, v{b+1}, v{b+1}'); a(f'v_mul_f32 v{b+2}, v{b+2}, v{b+1}'); a(f'v_mul_f32 v{b+2}, s56, v{b+2}'); a(f'v_mul_f32 v{b+1}, s57, v{b+1}')
        a(f'ds_write_b128 v25, v[{b}:{b+3}] offset:{n*1024}')
        a(f'ds_write2st64_b32 v16, v{b}, v{b+1} offset0:{n} offset1:{3+n}')
    a('s_waitcnt lgkmcnt(0)')
    pre_setup(a)
    bar(a, 12 - E('NLP', 11))
    pre_issue(a, False)
    a('s_branch k_gemm2')

WREG = 35840
def gemm2(a):
    MUTE[0] = SPROF in (4, 5)
    if MAP2 == 0:
        a('s_and_b32 s41, s2, 7'); a('s_lshl_b32 s41, s41, 2'); a('s_lshr_b32 s47, s2, 6'); a('s_add_u32 s41, s41, s47')
        a('s_bfe_u32 s42, s2, 0x30003'); a('s_mov_b32 s48, s42')
    else:
        a('s_and_b32 s41, s2, 6'); a('s_lshl_b32 s41, s41, 2'); a('s_lshr_b32 s48, s2, 5'); a('s_add_u32 s41, s41, s48')
        a('s_and_b32 s42, s2, 1'); a('s_lshl_b32 s42, s42, 2'); a('s_bfe_u32 s47, s2, 0x20003'); a('s_add_u32 s42, s42, s47')
    a(f'v_lshlrev_b32 v248, 4, {L}')
    srd(a, 28, 22, 23, W2_SZ, WS_W2)
    a(f's_mul_i32 s52, s42, {W2_CB}'); a(f's_mul_i32 s46, s40, {17*5120}'); a('s_add_u32 s52, s52, s46')
    a('s_lshl_b32 s56, s47, 1'); a('s_add_u32 s56, s56, s48'); a('s_add_u32 s57, s48, s47')
    a(f's_mul_i32 s62, s40, {WREG}')
    q = Q(a, 'vmcnt', 63)
    def soff(s, dst, base, stride):
        if s == 16: a(f's_add_u32 {dst}, {base}, {16*stride}'); return
        if s < 8:
            a(f's_add_u32 {dst}, s56, {s}'); a(f's_and_b32 {dst}, {dst}, 7')
        else:
            a(f's_add_u32 {dst}, s57, {s}'); a(f's_and_b32 {dst}, {dst}, 3'); a(f's_add_u32 {dst}, {dst}, {s & ~3}')
        a(f's_mul_i32 {dst}, {dst}, {stride}'); a(f's_add_u32 {dst}, {dst}, {base}')
    free = list(range(80, 248, 4))
    WRg, ARg = {}, {}
    HS = [s for s in range(17) if WSRC[s] == 'H']; LS = [s for s in range(17) if WSRC[s] == 'L']; SS = [s for s in range(17) if WSRC[s] == 'S']
    assert len(WSRC) == 17 and len(LS) <= 7 and len(SS) <= 8 and WSRC[0] == 'H'
    def alloc(n):
        r = free[:n]; del free[:n]; assert len(r) == n; return r
    def wload(s, t, s0, s1):
        d = WRg[s][t]
        if t < 4: q.issue(('W', s), f'buffer_load_dwordx4 v[{d}:{d+3}], v248, s[28:31], {s0} offen offset:{t*1024} sc1')
        else: q.issue(('W', s), f'buffer_load_dwordx4 v[{d}:{d+3}], v248, s[28:31], {s1} offen sc1')
    def ldW(s):
        WRg[s] = alloc(5); soff(s, 's55', 's52', 5120); a('s_add_u32 s54, s55, 4096')
        for t in range(5): wload(s, t, 's55', 's54')
    def dmaW(s):
        po = LS.index(s) * 5120
        soff(s, 's55', 's52', 5120); a('s_add_u32 s54, s55, 4096')
        a(f's_add_u32 m0, s62, {po}')
        for t in range(4): q.issue(('W', s), f'buffer_load_dwordx4 v248, s[28:31], s55 offen offset:{t*1024} sc1 {NTP} lds')
        a(f's_add_u32 m0, s62, {po+4096}')
        q.issue(('W', s), f'buffer_load_dwordx4 v248, s[28:31], s54 offen sc1 {NTP} lds')
    for s in HS[:PRE]:
        WRg[s] = alloc(5); q.n[('W', s)] = 5; q.q += [('W', s)] * 5
    for s in HS[PRE:]: ldW(s)
    a('v_add_u32 v249, s62, v248')
    a(f'v_bfe_u32 v2, {L}, 2, 2'); a(f'v_lshrrev_b32 v3, 4, {L}'); a('v_lshlrev_b32 v2, 8, v2'); a('v_lshl_add_u32 v2, v3, 6, v2')
    a(f'v_and_b32 v3, 3, {L}'); a('v_lshl_add_u32 v2, v3, 4, v2')
    for t in range(4):
        a(f's_add_u32 s47, s40, {t}'); a('s_and_b32 s47, s47, 3'); a('s_lshl_b32 s47, s47, 10'); a(f'v_add_u32 v{250+t}, s47, v2')
    srd(a, 24, 22, 23, A2_SZ); srd(a, 32, 4, 5, XSZ); srd(a, 36, 18, 19, XSZ)
    a(f's_mul_i32 s50, s41, {A2_RB}'); a(f's_mul_i32 s46, s40, {17*4096}'); a('s_add_u32 s50, s50, s46')
    a(f'v_and_b32 v2, 15, {L}'); a(f'v_lshrrev_b32 v3, 4, {L}')
    a('s_lshl_b32 s47, s41, 6'); a('s_lshl_b32 s58, s40, 4'); a('s_add_u32 s58, s47, s58'); a('v_add_u32 v2, s58, v2')
    a('s_movk_i32 s58, 1280'); a('s_mul_i32 s59, s42, 160'); a('v_mul_lo_u32 v2, v2, s58'); a('v_add_u32 v2, s59, v2')
    a('v_lshl_add_u32 v254, v3, 4, v2'); a('v_lshl_add_u32 v255, v3, 3, v2')
    a('s_lshl_b32 s61, s40, 1'); a('s_lshl_b32 s61, 3, s61'); a('s_add_u32 s48, s47, 63')
    a('s_mul_i32 s58, s47, 607'); a('s_lshr_b32 s58, s58, 16'); a('s_mul_i32 s59, s48, 607'); a('s_lshr_b32 s59, s59, 16')
    a('s_cmp_lg_u32 s58, s59'); a('s_movk_i32 s64, 0x44'); a('s_cselect_b32 s64, 0x4444, s64')
    a('s_add_u32 s48, s47, 48')
    a('s_mul_i32 s58, s47, 410'); a('s_lshr_b32 s58, s58, 16'); a('s_mul_i32 s59, s48, 410'); a('s_lshr_b32 s59, s59, 16')
    a('s_cmp_lg_u32 s58, s59'); a('s_movk_i32 s66, 0x44'); a('s_cselect_b32 s66, 0x4444, s66'); a('s_lshl_b32 s67, s64, 16')
    a('s_lshl_b32 s65, s41, 2'); a('s_add_u32 s65, s65, s40'); a(f's_add_u32 s65, s65, {C_WG}'); a(f's_mul_i32 s65, s65, {CSTR}')
    a('s_add_u32 s61, s65, 128')
    SA = [3, 4, 5, 6, 7, 8, 9, 12, 13, 14, 15, 16, 17, 18, 19, 20, 21]
    for s in range(17): soff(s, f's{SA[s]}', 's50', 4096)
    SW = [72, 73, 74, 75, 76, 77, 78, 79, 63, 44, 45, 46, 48, 49, 51, 53]
    for n, s in enumerate(SS): soff(s, f's{SW[2*n]}', 's52', 5120); a(f's_add_u32 s{SW[2*n+1]}, s{SW[2*n]}, 4096')
    a(f'v_and_b32 v2, 1, {L}'); a('v_cmp_eq_u32 s[68:69], 1, v2')
    lds_wait(a, LCN + 4, 'v0', 'v1', sleep=1)
    stamp(a, 3)
    for s in LS: dmaW(s)
    if PROF and not NOV0: a('s_waitcnt vmcnt(0)'); stamp(a, 1)
    if OWN:
        if OWN == 1: a('s_cmp_eq_u32 s43, 1'); a('s_cbranch_scc1 g_own')
        lds_wait(a, LCN, 'v0', 'v1', sleep=2)
        a.label('g_own')
    if PPOLL:
        a('s_waitcnt vmcnt(0)'); a('s_mov_b32 s70, 0')
        for n in range(PPOLL - 1):
            a(f'global_load_dword v{8+n}, v4, s[10:11] sc1'); a(f's_sleep {PSL}')
        a.label('pp_top')
        for n in range(PPOLL):
            a(f'global_load_dword v{8+(n+PPOLL-1) % PPOLL}, v4, s[10:11] sc1')
            a(f's_waitcnt vmcnt({PPOLL-1})')
            a(f'v_and_b32 v1, s64, v{8+n}'); a('v_cmp_ne_u32 vcc, s64, v1'); a('s_nop 1'); a('s_cbranch_vccz pp_ok')
            a(f's_sleep {PSL}')
        a('s_add_u32 s70, s70, 1'); a(f's_cmp_lt_u32 s70, {SPIN}'); a('s_cbranch_scc1 pp_top')
        a('s_endpgm')
        a.label('pp_ok')
    elif SPOLL:
        if not NOV0: a('s_waitcnt vmcnt(0)')
        a('s_mov_b32 s70, 0')
        a.label('sp_top')
        if SPOLL == 1: a('s_mov_b32 s71, 0'); a('s_atomic_add s71, s[10:11], s65 glc')
        else: a('s_load_dword s71, s[10:11], s65 glc')
        a('s_waitcnt lgkmcnt(0)')
        a('s_and_b32 s71, s71, s64'); a('s_cmp_eq_u32 s71, s64'); a('s_cbranch_scc1 sp_ok')
        a(f's_sleep {SLEEP}')
        a('s_add_u32 s70, s70, 1'); a(f's_cmp_lt_u32 s70, {SPIN}'); a('s_cbranch_scc1 sp_top')
        a('s_endpgm')
        a.label('sp_ok')
    else: poll(a, 'v4', 'v1', 's64', mask=True)
    if not (NOV0 and SPOLL): q.clear()
    stamp(a, 4)
    pend = []
    for s in range(17):
        if s in SS: pend.append(('W', s))
        pend.append(('A', s))
        if s == 13: pend.append(('X', 14))
    ogate = [8]; XR = []
    dq = []
    def refill(cur, resv):
        while pend:
            k, s = pend[0]
            n = {'W': 5, 'A': 4, 'X': 3}[k]
            if (k, s) == ('A', 16): n = 8
            if len(free) - resv < n or s > cur + (LA_W if k == 'W' else LA_A): break
            if k == 'A' and s >= ogate[0]: break
            pend.pop(0); regs = alloc(n)
            if k == 'W':
                WRg[s] = regs; z = SS.index(s)
                for t in range(5): dq.append((s, lambda s=s, t=t, z=z: wload(s, t, f's{SW[2*z]}', f's{SW[2*z+1]}')))
            elif k == 'X':
                XR.extend(regs)
                dq.append((s, lambda: q.issue('X', f'buffer_load_dwordx4 v[{XR[0]}:{XR[0]+3}], v254, s[32:35], 0 offen')))
                dq.append((s, lambda: q.issue('X', f'buffer_load_dwordx4 v[{XR[1]}:{XR[1]+3}], v254, s[32:35], 0 offen offset:64')))
                dq.append((s, lambda: q.issue('X', f'buffer_load_dwordx2 v[{XR[2]}:{XR[2]+1}], v255, s[32:35], 0 offen offset:128')))
            else:
                ARg[s] = regs
                for t in range(4):
                    d = regs[t]
                    if s < 16: dq.append((s, lambda d=d, t=t, s=s: q.issue(('A', s), f'buffer_load_dwordx4 v[{d}:{d+3}], v{250+t}, s[24:27], s{SA[s]} offen sc1')))
                    else:
                        e = regs[4 + t]
                        dq.append((s, lambda d=d, t=t, s=s: (a(f'v_lshrrev_b32 v{d}, 5, v248'), a(f'v_and_b32 v{250+t}, 0xc00, v{250+t}'), a(f'v_lshl_add_u32 v{250+t}, v{d}, 4, v{250+t}'),
                                   q.issue(('A', s), f'buffer_load_dwordx4 v[{d}:{d+3}], v{250+t}, s[24:27], s{SA[s]} offen sc1'))))
                        dq.append((s, lambda e=e, t=t, s=s: q.issue(('A', s), f'buffer_load_dwordx4 v[{e}:{e+3}], v{250+t}, s[24:27], s{SA[s]} offen offset:512 sc1')))
    refill(0, 0)
    while dq: dq.pop(0)[1]()
    AC = lambda tr, tc: (tr * 5 + tc) * 4
    for s in range(17):
        while dq and dq[0][0] <= s + 1: dq.pop(0)[1]()
        assert q.n.get(('A', s)) == (4 if s < 16 else 8) and q.n.get(('W', s), 0) == 5, s
        q.wait(('W', s)); q.wait(('A', s))
        if SPROF == 1 and s in (0, 4, 8, 12): stamp(a, {0: 0, 4: 2, 8: 3, 12: 5}[s])
        vq = []
        if s == 15:
            q.wait('X'); U = alloc(5)
            xs = [XR[0] + n for n in range(4)] + [XR[1] + n for n in range(4)] + [XR[2], XR[2] + 1]
            for n in range(10):
                u = U[n >> 1] + 2 * (n & 1)
                vq += [f'v_lshlrev_b32 v{u}, 16, v{xs[n]}', f'v_and_b32 v{u+1}, 0xffff0000, v{xs[n]}']
        if s == 16:
            for t in (1, 2, 3, 0):
                d, e = ARg[s][t], ARg[s][4 + t]
                vq += [f'v_cndmask_b32 v{d}, v{d}, v{d+2}, s[68:69]\nv_cndmask_b32 v{d+1}, v{d+1}, v{d+3}, s[68:69]',
                       f'v_cndmask_b32 v{d+2}, v{e}, v{e+2}, s[68:69]\nv_cndmask_b32 v{d+3}, v{e+1}, v{e+3}, s[68:69]']
            a(vq.pop(0)); a(vq.pop(0))
            for tp in range(1, 4):
                a(f's_sub_u32 s{57+tp}, s40, {tp}'); a(f's_and_b32 s{57+tp}, s{57+tp}, 3'); a(f's_mul_i32 s{57+tp}, s{57+tp}, {WREG}')
            vq.append('v_add_u32 v250, s58, v248\nv_add_u32 v251, s59, v248\nv_add_u32 v252, s60, v248')
        if s in LS: a('s_waitcnt lgkmcnt(0)')
        assert OCHK not in LS and GCHK not in LS
        if s == OCHK - 1: sread(a, 's71', 's61')
        if s == GCHK - 1: sread(a, 's71', 's65')
        lq = []
        if s + 1 in LS:
            WRg[s + 1] = alloc(5)
            lq = [f'ds_read_b128 v[{d}:{d+3}], v249 offset:{LS.index(s+1)*5120 + t*1024}' for t, d in enumerate(WRg[s + 1])]
        n = 0
        if s == 16:
            while dq: dq.pop(0)[1]()
            wq = []
        for tr in (range(4) if s < 16 else (1, 2, 3, 0)):
            for tc in range(5):
                c = AC(tr, tc); w = WRg[s][tc]; x = ARg[s][tr]
                if s == 16:
                    if n >= 7: a(wq.pop(0))
                    if tr: wq.append(f'ds_write_b128 v249, v[{c}:{c+3}] offset:{(tr-1)*5120 + tc*1024}')
                src = '0' if s == 0 else f'v[{c}:{c+3}]'
                a(f'v_mfma_f32_16x16x32_bf16 v[{c}:{c+3}], v[{w}:{w+3}], v[{x}:{x+3}], {src}')
                pace = PACE if len(dq) <= 8 else 2
                if dq and n % pace == 0: dq.pop(0)[1]()
                elif lq: a(lq.pop(0))
                if vq: a(vq.pop(0))
                n += 1
            free.append(ARg[s][tr])
            if tr < 3: refill(s, 0)
        assert not lq
        free.extend(WRg[s])
        if s == GCHK:
            spoll(a, [('s71', 's65', 's67', True)], preissued=True); ogate[0] = 12
        if s == OCHK:
            spoll(a, [('s71', 's61', 's66', True)], preissued=True); ogate[0] = 17
            if not SPROF: stamp(a, 2)
        refill(s + 1, 5 if s + 2 in LS else 0)
    while dq: dq.pop(0)[1]()
    assert not pend
    if not SPROF: stamp(a, 5)
    for o in wq: a(o)
    free.extend(ARg[16][4:])
    RD = alloc(15)
    P = lambda r: f'v[{r}:{r+1}]'
    a('s_waitcnt lgkmcnt(0)'); bar(a); stamp(a, 6)
    order = [(tp, tc) for grp in ((0, 1), (2, 3), (4,)) for tp in range(1, 4) for tc in grp]
    for tp, tc in order:
        d = RD[5 * (tp - 1) + tc]
        a(f'ds_read_b128 v[{d}:{d+3}], v{249+tp} offset:{(tp-1)*5120 + tc*1024}')
    for n in range(10): a(f'v_pk_add_f32 {P(2*n)}, {P(2*n)}, {P(U[n >> 1] + 2 * (n & 1))}')
    left = 15
    for gi, grp in enumerate(((0, 1), (2, 3), (4,))):
        for tp in range(1, 4):
            left -= len(grp); a(f's_waitcnt lgkmcnt({left})')
            for tc in grp:
                for h in range(2): a(f'v_pk_add_f32 {P(4*tc+2*h)}, {P(4*tc+2*h)}, {P(RD[5*(tp-1)+tc] + 2*h)}')
        for tc in grp:
            for h in range(2): a(f'v_cvt_pk_bf16_f32 v{40+2*tc+h}, v{4*tc+2*h}, v{4*tc+2*h+1}')
        if gi < 2: a(f'buffer_store_dwordx4 v[{40+4*gi}:{43+4*gi}], v254, s[36:39], 0 offen offset:{64*gi} {OSC}')
        else: a(f'buffer_store_dwordx2 v[48:49], v255, s[36:39], 0 offen offset:128 {OSC}')
    stamp_flush(a, 4); MUTE[0] = False
    a('s_endpgm')

def mainloop(a, P, NT, NJ, ACC, WF, XB, wread, nw, onest, XS, swapj=-1):
    q = Q(a, 'lgkmcnt', 15)
    def xread(step, t):
        b = XB((NT * step + t) % 4)
        q.issue(('X', step % 4, t), f'ds_read_b128 v[{b}:{b+3}], v{238 + (step & 1)} offset:{t*2048}')
    def fix(step, h):
        b = XB((NT * step + onest) % 4) + 2 * h
        a(f'v_cndmask_b32 v{b}, v{b}, v242, s[64:65]'); a(f'v_cndmask_b32 v{b+1}, v{b+1}, v242, s[64:65]')
    a('s_mov_b32 s60, 0'); a('s_mov_b32 s61, 0')
    if E('CPRIO', 0): a(f's_setprio {E("CPRIO", 0)}')
    stamp(a, 1); bar(a); stamp(a, 2)
    for idx in range(nw): wread(q, 0, 0, idx)
    for t in range(3): xread(0, t)
    if onest == 0:
        q.wait(('X', 0, 0)); fix(0, 0); fix(0, 1)
    a.label(f'{P}_loop')
    wper = 3 if NJ == 6 else 1
    for k in range(4):
        cur, nxt = k & 1, (k + 1) & 1
        widx = 0
        for t in range(NT):
            q.wait(('X', k, t))
            fill = []
            tt = t + 3
            fill.append(lambda tt=tt: xread(k if tt < NT else k + 1, tt if tt < NT else tt - NT))
            if t == 0:
                if k < 2: fill.append(lambda: bar(a))
                else: fill.append(lambda: (a('s_cmp_eq_u32 s61, 4'), a(f's_cbranch_scc1 {P}_nb{k}'), bar(a), a.label(f'{P}_nb{k}')))
            for _ in range(wper + (1 if (NJ == 4 and t in (1, 2)) else 0)):
                if widx < nw:
                    fill.append(lambda w=widx: wread(q, (k + 1) % 4, nxt, w)); widx += 1
            if t == NT - 3:
                if k & 1 == 0:
                    fill.append(lambda: (a(f's_add_u32 s60, s60, {XS}'), a(f's_cmp_ge_u32 s60, {3*XS}')))
                    fill.append(lambda: (a('s_cselect_b32 s60, 0, s60'), a('v_add_u32 v238, s60, v240')))
                else:
                    fill.append(lambda: a('v_add_u32 v239, s60, v241'))
            if t == (onest - 1) % NT:
                st = k if onest > 0 else k + 1
                fill.append(lambda st=st: (q.wait(('X', st % 4, onest)), fix(st, 0)))
                fill.append(lambda st=st: fix(st, 1))
            if t == NT - 2 and k == 3:
                fill.append(lambda: (a('s_add_u32 s61, s61, 1'), a('s_cmp_lt_u32 s61, 5')))
            xb = XB((NT * k + t) % 4)
            for j in (range(NJ) if not (E('SNAKE', 0) and t & 1) else range(NJ - 1, -1, -1)):
                cc = ACC(j, t)
                oa, ob = (xb, WF(cur, j)) if j == swapj else (WF(cur, j), xb)
                a(f'v_mfma_f32_16x16x32_bf16 v[{cc}:{cc+3}], v[{oa}:{oa+3}], v[{ob}:{ob+3}], v[{cc}:{cc+3}]')
                if fill: fill.pop(0)()
            assert not fill, (t, len(fill))
        assert widx == nw
    a(f's_cbranch_scc1 {P}_loop')
    a('s_waitcnt lgkmcnt(0)')
    stamp(a, 3)
    if not ((QLATE and swapj >= 0) or (GLATE >= 0 and swapj < 0)): lds_arrive(a, LCN + 4, 'v246', 'v247')

def cons_common(a, T0, nacc, XO, onelane, P):
    if P == 'cq':
        for n in range(24, 36, 2): a(f's_mov_b64 s[{n}:{n+1}], 0')
        a('s_mov_b32 s56, 1')
    dryrun(a, P)
    g, i, r, c, t5 = [f'v{T0+8+n}' for n in range(5)]
    for n in range(4): a(f'v_mov_b32 v{T0+n}, 0')
    a(f'v_lshrrev_b32 {g}, 4, {L}'); a(f'v_and_b32 {i}, 15, {L}'); a(f'v_bfe_u32 {r}, {L}, 2, 2'); a(f'v_and_b32 {c}, 3, {L}')
    for n in range(nacc // 16): a(f'v_mfma_f32_32x32x16_bf16 v[{16*n}:{16*n+15}], v[{T0}:{T0+3}], v[{T0}:{T0+3}], 0')
    for n in range(nacc // 16 * 16, nacc, 4): a(f'v_mfma_f32_16x16x32_bf16 v[{n}:{n+3}], v[{T0}:{T0+3}], v[{T0}:{T0+3}], 0')
    a(f'v_lshrrev_b32 {t5}, 1, {i}'); a(f'v_xor_b32 {t5}, {t5}, {g}'); a(f'v_lshlrev_b32 {t5}, 4, {t5}'); a(f'v_lshl_or_b32 {t5}, {i}, 7, {t5}')
    a(f'v_add_u32 v240, {XO}, {t5}'); a('v_xor_b32 v241, 64, v240')
    a('v_mov_b32 v238, v240'); a('v_mov_b32 v239, v241')
    a('v_mov_b32 v242, 0x3f803f80'); a(f'v_cmp_eq_u32 s[64:65], {onelane}, {i}')
    a(f'v_mov_b32 {t5}, {LCN}'); a(f'ds_write_b128 {t5}, v[{T0}:{T0+3}]')
    a(f'v_lshlrev_b32 v248, 4, {i}'); a(f'v_add_u32 v248, {LST}, v248')

Pk = lambda r: f'v[{r}:{r+1}]'
def consumerG(a):
    ACC = lambda j, t: (j * 7 + t) * 4
    WF = lambda s, j: 168 + s * 24 + j * 4
    XB = lambda b: 216 + 4 * b
    WA = lambda hi, j: 232 + 3 * hi + j
    T0 = 168
    g, i, r, c, t5, t6, t7, t8 = [f'v{T0+8+n}' for n in range(8)]
    cons_common(a, T0, 168, GX, 15, 'cg')
    a(f'v_lshrrev_b32 {t5}, 1, {r}'); a(f'v_lshlrev_b32 {t5}, 2, {t5}'); a(f'v_and_b32 {t6}, 1, {g}'); a(f'v_or_b32 {t5}, {t5}, {t6}')
    a(f'v_lshlrev_b32 {t5}, 4, {t5}'); a(f'v_lshl_or_b32 {t5}, {r}, 7, {t5}'); a(f'v_lshl_or_b32 {t5}, {g}, 10, {t5}')
    a('s_lshr_b32 s51, s40, 1'); a('s_mul_i32 s51, s51, 3'); a('s_add_u32 s52, s51, 1')
    a('s_and_b32 s53, s40, 1'); a('s_lshl_b32 s54, s53, 1'); a('s_add_u32 s51, s51, s54')
    a(f'v_and_b32 {t6}, 1, {c}'); a(f'v_lshlrev_b32 {t7}, 4, {c}'); a(f'v_lshl_or_b32 {t7}, {t6}, 3, {t7}'); a(f'v_xor_b32 {t7}, {t7}, {t5}')
    a('s_and_b32 s54, s51, 1'); a('s_lshl_b32 s54, s54, 6'); a('s_lshr_b32 s55, s51, 1'); a('s_lshl_b32 s55, s55, 12')
    a(f'v_xor_b32 {t7}, s54, {t7}'); a(f'v_add_u32 v{WA(0,0)}, s55, {t7}'); a(f'v_xor_b32 v{WA(0,1)}, 8, v{WA(0,0)}')
    a(f'v_lshrrev_b32 {t7}, 1, {c}'); a(f'v_xor_b32 {t6}, {t6}, {t7}'); a(f'v_lshlrev_b32 {t7}, 4, {t7}'); a(f'v_lshl_or_b32 {t7}, {t6}, 3, {t7}')
    a(f'v_xor_b32 {t7}, {t7}, {t5}')
    a('s_and_b32 s54, s52, 1'); a('s_lshl_b32 s54, s54, 6'); a('s_lshl_b32 s56, s53, 5'); a('s_or_b32 s54, s54, s56')
    a('s_lshr_b32 s55, s52, 1'); a('s_lshl_b32 s55, s55, 12')
    a(f'v_xor_b32 {t7}, s54, {t7}'); a(f'v_add_u32 v{WA(0,2)}, s55, {t7}')
    for j in range(3): a(f'v_add_u32 v{WA(1,j)}, 49152, v{WA(0,j)}')
    a(f'v_lshrrev_b32 {t8}, 1, {g}'); a('s_lshl_b32 s56, s53, 1'); a(f'v_add_u32 {t8}, s56, {t8}')
    a('s_lshr_b32 s54, s44, 1'); a('s_mul_i32 s54, s54, 17'); a('s_and_b32 s57, s44, 1'); a('s_lshl_b32 s57, s57, 2'); a('s_add_u32 s57, s57, s40')
    a('s_add_u32 s55, s54, s57'); a('s_lshl_b32 s55, s55, 12'); a(f'v_lshl_add_u32 v251, {g}, 6, s55')
    a('s_lshr_b32 s57, s57, 1'); a('s_add_u32 s55, s54, s57'); a('s_add_u32 s55, s55, 8'); a('s_lshl_b32 s55, s55, 12'); a(f'v_lshl_add_u32 v252, {t8}, 6, s55')
    a('s_mov_b32 s62, s41'); a('s_add_u32 s63, s41, 107'); a('s_movk_i32 s66, 607'); a('s_mov_b32 s67, 0')
    a('s_waitcnt lgkmcnt(0)')
    sigprep(a)
    a(f'v_lshlrev_b32 v249, 2, {i}'); a(f'v_add_u32 v249, {LRP}, v249')
    a(f'v_and_b32 {t5}, 1, {g}'); a(f'v_lshl_add_u32 v250, {t5}, 6, v249')
    a('s_waitcnt lgkmcnt(0)')
    cntbase(a); srd(a, 36, 22, 23, A2_SZ)
    def wread(q, slot, setn, idx):
        j, hf = idx >> 1, idx & 1
        off = (slot & 1) * 24576 + (j // 3) * 12288 + hf * 512
        d = WF(setn, j) + 2 * hf
        q.issue('W', f'ds_read_b64_tr_b16 v[{d}:{d+1}], v{WA(slot >> 1, j % 3)} offset:{off}')
    mainloop(a, 'cg', 7, 6, ACC, WF, XB, wread, 12, 6, GXS)
    ST = lambda t: 168 + 4 * t
    CS = lambda j: 196 + 4 * j
    RP = lambda t: 232 + t
    RS = lambda p: 244 + p
    seg(a, 'cg', 0)
    for p in range(4): a(f'ds_read2_b32 v[{RP(2*p)}:{RP(2*p)+1}], v249 offset0:{32*p} offset1:{32*p+16}')
    for p in range(2): a(f'ds_read2_b32 v[{RS(2*p)}:{RS(2*p)+1}], v250 offset0:{64*p} offset1:{64*p+32}')
    for t in range(7): a(f'ds_read_b128 v[{ST(t)}:{ST(t)+3}], v248 offset:{t*256}')
    for j in range(6):
        for rr in range(4):
            a(f'v_mov_b32_dpp v{CS(j)+rr}, v{ACC(j,6)+rr} row_newbcast:15 row_mask:0xf bank_mask:0xf')
    P = Pk
    T = lambda n: 220 + 2 * n
    def geglu(items):
        G = lambda t, j, hp: ACC(j, t) + 2 * hp
        U = lambda t, j, hp: ACC(j + 3, t) + 2 * hp
        s01 = lambda t: P(ST(t)); s23 = lambda t: P(ST(t) + 2)
        en = list(enumerate(items))
        for n, (t, j, hp, d) in en: a(f'v_pk_fma_f32 {P(G(t,j,hp))}, {P(CS(j)+2*hp)}, {s01(t)}, {P(G(t,j,hp))} op_sel:[0,0,0] op_sel_hi:[1,0,1]')
        for n, (t, j, hp, d) in en: a(f'v_pk_mul_f32 {P(T(n))}, {P(G(t,j,hp))}, {P(G(t,j,hp))}')
        for n, (t, j, hp, d) in en: a(f'v_pk_fma_f32 {P(T(n))}, {P(T(n))}, {s23(t)}, {s01(t)} op_sel:[0,0,1] op_sel_hi:[1,0,1]')
        for n, (t, j, hp, d) in en: a(f'v_pk_mul_f32 {P(T(n))}, {P(T(n))}, {P(G(t,j,hp))}')
        for n, (t, j, hp, d) in en:
            a(f'v_exp_f32 v{T(n)}, v{T(n)}'); a(f'v_exp_f32 v{T(n)+1}, v{T(n)+1}')
            a(f'v_pk_fma_f32 {P(U(t,j,hp))}, {P(CS(j+3)+2*hp)}, {s01(t)}, {P(U(t,j,hp))} op_sel:[0,0,0] op_sel_hi:[1,0,1]')
        for n, (t, j, hp, d) in en: a(f'v_pk_fma_f32 {P(T(n))}, {P(T(n))}, {s23(t)}, {s23(t)} op_sel:[0,1,1] op_sel_hi:[1,1,1]')
        for n, (t, j, hp, d) in en:
            a(f'v_rcp_f32 v{T(n)}, v{T(n)}'); a(f'v_rcp_f32 v{T(n)+1}, v{T(n)+1}')
            a(f'v_pk_mul_f32 {P(U(t,j,hp))}, {P(U(t,j,hp))}, {P(G(t,j,hp))}')
        for n, (t, j, hp, d) in en: a(f'v_pk_mul_f32 {P(U(t,j,hp))}, {P(U(t,j,hp))}, {P(T(n))}')
        for n, (t, j, hp, d) in en: a(f'v_cvt_pk_bf16_f32 v{d}, v{U(t,j,hp)}, v{U(t,j,hp)+1}')
    for t in range(7):
        if t in (2, 5): seg(a, 'cg', 1 if t == 2 else 2)
        a(f's_waitcnt lgkmcnt({6-t})')
        o4 = ACC(0, t)
        geglu([(t, j, hp, o4 + 2 * j + hp) for j in range(2) for hp in range(2)])
        a(f'v_add_u32 v{ACC(1,t)}, v{RP(t)}, v251')
        guard(a, f'buffer_store_dwordx4 v[{o4}:{o4+3}], v{ACC(1,t)}, s[36:39], 0 offen sc1')
    if SPROF == 0: stamp(a, 6)
    pst = []
    for p in range(4):
        if p == 1: seg(a, 'cg', 3)
        Ep = ACC(3, 2 * p)
        geglu([(t, 2, hp, Ep + 2 * (t & 1) + hp) for t in (2 * p, 2 * p + 1) if t < 7 for hp in range(2)])
        ad = ACC(4, 2 * p)
        a(f'v_add_u32 v{ad}, v{RS(p)}, v252')
        a(f'v_permlane16_swap_b32 v{Ep}, v{Ep+2}'); a(f'v_permlane16_swap_b32 v{Ep+1}, v{Ep+3}')
        pst.append(f'buffer_store_dwordx4 v[{Ep}:{Ep+3}], v{ad}, s[36:39], 0 offen sc1')
        if TWO and p == E('SIG1', 0):
            if DRY: a('s_cbranch_execz cg_s1x')
            a('s_waitcnt vmcnt(0)')
            signal(a, 'cg_s1')
            lds_arrive(a, LCN, 'v240', 'v241')
            a('s_waitcnt lgkmcnt(0)') if False else None
            if DRY: a.label('cg_s1x')
        if not TWO or p >= E('SIG1', 0):
            guard(a, *pst); pst = []
    seg(a, 'cg', 4)
    a('s_waitcnt lgkmcnt(0)')
    for n in range(4):
        if TWO: a(f's_lshl_b32 s{13+2*n}, s{13+2*n}, 16')
        else: a(f's_mul_i32 s{13+2*n}, s{13+2*n}, 0x10001')
    a('s_branch k_pub2')

def sigprep(a):
    a('s_lshr_b32 s62, s62, 6'); a('s_min_u32 s63, s63, 2047'); a('s_lshr_b32 s63, s63, 6')
    a('s_lshr_b32 s20, s44, 1'); a(f's_add_u32 s20, s20, {C_WG}'); a('s_and_b32 s21, s44, 1'); a('s_lshl_b32 s21, s21, 2')
    for n in range(4):
        o, v = f's{12+2*n}', f's{13+2*n}'
        a(f's_add_u32 {o}, s62, {n}')
        a(f's_lshl_b32 {v}, {o}, 6'); a(f's_mul_i32 {v}, {v}, s66'); a(f's_lshr_b32 {v}, {v}, 16'); a(f's_sub_u32 {v}, s45, {v}')
        a(f's_lshl_b32 {v}, {v}, 3'); a(f's_add_u32 {v}, {v}, s21'); a(f's_lshl_b32 {v}, 1, {v}')
        a(f's_lshl_b32 {o}, {o}, 2'); a(f's_add_u32 {o}, {o}, s20'); a(f's_mul_i32 {o}, {o}, {CSTR}'); a(f's_add_u32 {o}, {o}, s67')
    a('s_sub_u32 s63, s63, s62')
def signal(a, lbl):
    for n in range(4):
        if n >= 2: a(f's_cmp_lt_u32 s63, {n}'); a(f's_cbranch_scc1 {lbl}')
        a(f's_atomic_add s{13+2*n}, s[10:11], s{12+2*n}')
    a.label(lbl)

def publish(a):
    a.label('k_pub2')
    stamp(a, 4)
    a('s_waitcnt vmcnt(0)')
    if SPROF != 3: stamp(a, 5)
    signal(a, 'pub_x')
    lds_arrive(a, LCN, 'v252', 'v253')
    a('s_waitcnt lgkmcnt(0)')
    stamp_flush(a, 0)

def consumerQ(a):
    ACC = lambda j, t: (j * 11 + t) * 4
    WF = lambda s, j: 176 + s * 16 + j * 4
    XB = lambda b: 208 + 4 * b
    T0 = 176
    g, i, r, c, t5, t6, t7 = [f'v{T0+8+n}' for n in range(7)]
    cons_common(a, T0, 176, QX, 0, 'cq')
    a('s_mov_b64 s[24:25], -1'); a('s_mov_b32 s26, 0xffff0000'); a('s_mov_b32 s27, -1')
    a('s_mov_b32 s28, 0xffff'); a('s_mov_b32 s30, 0xffff0000'); a('s_mov_b32 s33, 0xffff'); a('s_mov_b32 s35, 0xffff0000')
    a(f'v_lshrrev_b32 {t5}, 1, {g}'); a(f'v_lshlrev_b32 {t5}, 4, {t5}'); a(f'v_and_b32 {t6}, 1, {g}'); a(f'v_lshl_add_u32 {t5}, {t6}, 2, {t5}'); a(f'v_add_u32 {t5}, {t5}, {r}')
    a(f'v_mul_u32_u24 {t5}, 160, {t5}'); a('s_mul_i32 s51, s40, 40'); a(f'v_add_u32 {t5}, s51, {t5}')
    a(f'v_lshl_add_u32 v224, {c}, 3, {t5}')
    a(f'v_min_u32 {t6}, 2, {c}'); a(f'v_mul_u32_u24 {t6}, 5120, {t6}'); a(f'v_add3_u32 v225, {t5}, {t6}, 32')
    if E('ZQ', 0): a(f'v_cmp_eq_u32 vcc, 3, {c}'); a(f'v_mov_b32 {t6}, 0x30000'); a(f'v_cndmask_b32 v225, v225, {t6}, vcc')
    a('s_mul_i32 s51, s40, 1408'); a(f's_add_u32 s51, s51, {4*WREG}')
    a(f'v_lshl_add_u32 v228, {i}, 3, s51'); a(f'v_add_u32 {t5}, 5632, v228'); a(f'v_cmp_eq_u32 vcc, 2, {g}'); a(f'v_cndmask_b32 v228, {t5}, v228, vcc')
    a(f'v_lshrrev_b32 {t5}, 2, {L}'); a(f'v_lshl_add_u32 v229, {t5}, 3, s51')
    a(f'v_lshlrev_b32 v230, 4, {g}'); a(f'v_add_u32 v230, {LS2}, v230')
    a(f'v_and_b32 {t5}, 1, {i}'); a(f'v_cmp_eq_u32 s[74:75], 1, {t5}')
    a(f'v_lshl_add_u32 {t6}, {g}, 2, {t5}'); a(f'v_cmp_le_u32 s[76:77], {t6}, {i}')
    a(f'v_add_u32 {t6}, 2, {t6}'); a(f'v_cmp_le_u32 s[78:79], {t6}, {i}')
    a(f'v_mov_b32 {t7}, 0x0c0c0c0c')
    a(f'v_mov_b32 {t5}, 0x0c0c0100'); a(f'v_mov_b32 {t6}, 0x01000c0c'); a(f'v_cndmask_b32 {t5}, {t5}, {t6}, s[74:75]')
    a(f'v_cndmask_b32 v232, {t5}, {t7}, s[76:77]'); a(f'v_cndmask_b32 v234, {t7}, {t5}, s[76:77]')
    a(f'v_mov_b32 {t5}, 0x0c0c0302'); a(f'v_mov_b32 {t6}, 0x03020c0c'); a(f'v_cndmask_b32 {t5}, {t5}, {t6}, s[74:75]')
    a(f'v_cndmask_b32 v233, {t5}, {t7}, s[78:79]'); a(f'v_cndmask_b32 v235, {t7}, {t5}, s[78:79]')
    a('s_mul_i32 s56, s45, 10')
    a('s_lshr_b32 s57, s44, 1'); a('s_mul_i32 s57, s57, 17'); a('s_add_u32 s57, s57, 12'); a('s_and_b32 s58, s44, 1'); a('s_lshl_b32 s58, s58, 1')
    a('s_lshr_b32 s52, s40, 1'); a('s_add_u32 s58, s58, s52'); a('s_and_b32 s53, s40, 1')
    a('s_add_u32 s59, s57, s58'); a('s_lshl_b32 s59, s59, 12'); a('s_lshl_b32 s52, s53, 7'); a('s_add_u32 s59, s59, s52'); a('s_lshl_b32 s52, s53, 9')
    a(f'v_lshrrev_b32 {t5}, 1, {g}'); a(f'v_lshlrev_b32 {t5}, 6, {t5}'); a(f'v_and_b32 {t6}, 1, {g}'); a(f'v_lshl_add_u32 {t5}, {t6}, 10, {t5}')
    a(f'v_lshl_add_u32 {t5}, {r}, 8, {t5}'); a(f'v_lshl_add_u32 {t5}, {c}, 4, {t5}'); a(f'v_add_u32 v236, s59, {t5}')
    a('s_add_u32 s57, s57, 4'); a('s_lshl_b32 s57, s57, 12'); a('s_add_u32 s57, s57, s52'); a('s_lshl_b32 s58, s58, 7'); a('s_add_u32 s57, s57, s58')
    a(f'v_add_u32 {t5}, s56, {g}'); a(f'v_lshrrev_b32 {t6}, 2, {t5}'); a(f's_mov_b32 s58, {A2_RB}'); a(f'v_mul_lo_u32 {t6}, {t6}, s58')
    a(f'v_and_b32 {t5}, 3, {t5}'); a(f'v_lshl_add_u32 {t6}, {t5}, 10, {t6}'); a(f'v_lshl_add_u32 {t6}, {i}, 3, {t6}'); a(f'v_add_u32 v237, s57, {t6}')
    a(f'v_mov_b32 {t5}, {OOB}'); a(f'v_cmp_gt_u32 vcc, 2, {g}'); a(f'v_cndmask_b32 v244, {t5}, v237, vcc')
    for n in range(5):
        a(f's_add_u32 s57, s56, {2*n}'); a('s_lshr_b32 s59, s57, 2'); a('s_mul_i32 s59, s59, s58'); a('s_and_b32 s57, s57, 3'); a('s_lshl_b32 s57, s57, 10'); a(f's_add_u32 s{48+n}, s59, s57')
    a('s_lshl_b32 s53, s58, 1')
    a('s_waitcnt lgkmcnt(0)')
    a('s_add_u32 s62, s41, 16'); a('s_add_u32 s63, s41, 175'); a('s_movk_i32 s66, 410'); a('s_movk_i32 s67, 128')
    sigprep(a)
    cntbase(a); srd(a, 36, 22, 23, A2_SZ)
    def wread(q, slot, setn, idx):
        j, hf = idx >> 1, idx & 1
        d = WF(setn, j) + 2 * hf
        if j < 3: q.issue('W', f'ds_read_b64_tr_b16 v[{d}:{d+1}], v224 offset:{slot*QWS + j*5120 + hf*1280}')
        else: q.issue('W', f'ds_read_b64_tr_b16 v[{d}:{d+1}], v225 offset:{slot*QWS + hf*1280}')
    mainloop(a, 'cq', 11, 4, ACC, WF, XB, wread, 8, 0, QXS, swapj=2)
    ST = lambda t: 176 + 2 * t
    CS = lambda j: 198 + 4 * (j if j < 2 else 2)
    VS = lambda t: (212, 220, 238)[t % 3]
    VR = lambda t: (216, 224, 250)[t % 3]
    Vp = lambda t: 88 + 2 * t
    Vl = lambda t: 110 + 2 * t
    P = Pk
    q = Q(a, 'lgkmcnt', 15)
    seg(a, 'cq', 0)
    for t in range(11): q.issue('S', f'ds_read_b64 v[{ST(t)}:{ST(t)+1}], v248 offset:{t*256}')
    def rdVS(t):
        q.issue(('VS', t), f'ds_read_b128 v[{VS(t)}:{VS(t)+3}], v230 offset:{t*64}')
        q.issue(('VS', t), f'ds_read_b128 v[{VR(t)}:{VR(t)+3}], v230 offset:{t*64+768}')
    rdVS(0); rdVS(1)
    for j in (0, 1, 3):
        for rr in range(4):
            a(f'v_mov_b32_dpp v{CS(j)+rr}, v{ACC(j,0)+rr} row_newbcast:0 row_mask:0xf bank_mask:0xf')
    a(f'v_mov_b32 v210, v{ACC(2,0)}'); a(f'v_mov_b32 v211, v{ACC(2,0)}'); a('v_permlane16_swap_b32 v210, v211')
    a('v_mov_b32 v211, v210'); a('v_permlane32_swap_b32 v210, v211')
    for t in range(11):
        if t == 5: seg(a, 'cq', 1)
        q.wait(('VS', t))
        if t < 9: rdVS(t + 2)
        s01 = P(ST(t))
        js = (1, 3) if t == 0 else (0, 1, 3)
        prs = [(j, hp) for j in js for hp in range(2)]
        G = lambda j, hp: ACC(j, t) + 2 * hp
        for j, hp in prs: a(f'v_pk_fma_f32 {P(G(j,hp))}, {P(CS(j)+2*hp)}, {s01}, {P(G(j,hp))} op_sel:[0,0,0] op_sel_hi:[1,0,1]')
        for hp in range(2): a(f'v_pk_fma_f32 {P(G(2,hp))}, {P(VS(t)+2*hp)}, v[210:211], {P(G(2,hp))} op_sel:[0,0,0] op_sel_hi:[1,0,1]')
        for j, hp in prs: a(f'v_pk_mul_f32 {P(G(j,hp))}, {P(G(j,hp))}, {s01} op_sel:[0,1] op_sel_hi:[1,1]')
        for hp in range(2): a(f'v_pk_mul_f32 {P(G(2,hp))}, {P(G(2,hp))}, {P(VR(t)+2*hp)}')
        for j in js[:-1]:
            for hp in range(2): a(f'v_cvt_pk_bf16_f32 v{ACC(j,t)+hp}, v{G(j,hp)}, v{G(j,hp)+1}')
        for j in (0, 1):
            for hp in range(2): a(f'v_cvt_pk_bf16_f32 v{ACC(j,t)+2+hp}, v{G(3,hp)}, v{G(3,hp)+1}')
        for hp in range(2): a(f'v_cvt_pk_bf16_f32 v{Vp(t)+hp}, v{G(2,hp)}, v{G(2,hp)+1}')
        q.issue('w', f'ds_write_b64 v228, v[{ACC(1,t)+2}:{ACC(1,t)+3}] offset:{t*128}')
    seg(a, 'cq', 2)
    if SPROF == 3: stamp(a, 1)
    SC = lambda u: 132 + 8 * u; SP = lambda u: 136 + 8 * u
    Qf = lambda u: ACC(0, u + 1); Kf = lambda t: ACC(1, t)
    for t in range(11):
        for hp in range(2): a(f'v_permlane16_swap_b32 v{ACC(0,t)+2+hp}, v{ACC(1,t)+2+hp}')
    q.wait('w')
    for t in range(11): q.issue('V', f'ds_read_b64_tr_b16 v[{Vl(t)}:{Vl(t)+1}], v229 offset:{t*128}')
    a('s_mov_b64 exec, s[26:27]')
    for u in range(10): a(f'v_mov_b64 v[{Qf(u)+2}:{Qf(u)+3}], 0')
    a('s_mov_b64 exec, s[24:25]')
    def sel1(u):
        a(f'v_cndmask_b32 v{SC(u)}, v{SC(u)}, v{SC(u)+1}, s[74:75]'); a(f'v_cndmask_b32 v{SC(u)+2}, v{SC(u)+2}, v{SC(u)+3}, s[74:75]')
        a(f'v_cndmask_b32 v{SP(u)}, v{SP(u)}, v{SP(u)+1}, s[74:75]'); a(f'v_cndmask_b32 v{SP(u)+2}, v{SP(u)+2}, v{SP(u)+3}, s[74:75]')
    for u in range(10):
        a(f'v_mfma_f32_16x16x32_bf16 v[{SC(u)}:{SC(u)+3}], v[{Kf(u+1)}:{Kf(u+1)+3}], v[{Qf(u)}:{Qf(u)+3}], 0')
        a(f'v_mfma_f32_16x16x32_bf16 v[{SP(u)}:{SP(u)+3}], v[{Kf(u)}:{Kf(u)+3}], v[{Qf(u)}:{Qf(u)+3}], 0')
        if u >= 3: sel1(u - 3)
    for u in range(7, 10): sel1(u)
    a('s_cmp_lg_u32 s56, 0'); a('s_cbranch_scc1 cq_nofix')
    a(f'v_mov_b32 v{SP(0)}, {f32(-1e30)}'); a(f'v_mov_b32 v{SP(0)+2}, {f32(-1e30)}')
    a.label('cq_nofix')
    if QLATE: lds_arrive(a, LCN + 4, 'v238', 'v239')
    if SPROF == 3: stamp(a, 2)
    LA = lambda u: 44 + 2 * u; LB = lambda u: 45 + 2 * u; M = lambda u: 64 + u
    for u in range(10):
        a(f'v_cndmask_b32 v{LA(u)}, v{SP(u)}, v{SC(u)}, s[76:77]'); a(f'v_cndmask_b32 v{LB(u)}, v{SP(u)+2}, v{SC(u)+2}, s[78:79]')
    for u in range(10): a(f'v_max_f32 v{M(u)}, v{LA(u)}, v{LB(u)}')
    a('v_mov_b32 v74, 1.0'); a('v_mov_b32 v75, 1.0')
    def reduce12(op, post):
        B4 = [64, 68, 72]
        for A in B4: a(f'v_permlane16_swap_b32 v{A}, v{A+1}'); a(f'v_permlane16_swap_b32 v{A+2}, v{A+3}')
        for A in B4: a(f'{op} v{A}, v{A}, v{A+1}'); a(f'{op} v{A+2}, v{A+2}, v{A+3}')
        for A in B4: a(f'v_permlane32_swap_b32 v{A}, v{A+2}')
        for A in B4: a(f'{op} v{A}, v{A}, v{A+2}')
        for A in B4: post(A)
        for A in B4: a(f'v_mov_b32 v{A+2}, v{A}')
        for A in B4: a(f'v_permlane32_swap_b32 v{A}, v{A+2}')
        for A in B4: a(f'v_mov_b32 v{A+1}, v{A}'); a(f'v_mov_b32 v{A+3}, v{A+2}')
        for A in B4: a(f'v_permlane16_swap_b32 v{A}, v{A+1}'); a(f'v_permlane16_swap_b32 v{A+2}, v{A+3}')
    cs = 20 ** -0.5 * LOG2E
    a(f's_mov_b32 s68, {f32(cs)}'); a(f's_mov_b32 s69, {f32(cs)}')
    reduce12('v_max_f32', lambda r: a(f'v_mul_f32 v{r}, s68, v{r}'))
    for u in range(10):
        h = M(u) & 1
        a(f'v_pk_fma_f32 {P(LA(u))}, {P(LA(u))}, s[68:69], {P(M(u) & ~1)} op_sel:[0,0,{h}] op_sel_hi:[1,1,{h}] neg_lo:[0,0,1] neg_hi:[0,0,1]')
    for u in range(10):
        a(f'v_exp_f32 v{LA(u)}, v{LA(u)}'); a(f'v_exp_f32 v{LB(u)}, v{LB(u)}')
    seg(a, 'cq', 3)
    for u in range(10): a(f'v_add_f32 v{M(u)}, v{LA(u)}, v{LB(u)}')
    reduce12('v_add_f32', lambda r: a(f'v_rcp_f32 v{r}, v{r}'))
    for u in range(10):
        h = M(u) & 1
        a(f'v_pk_mul_f32 {P(LA(u))}, {P(LA(u))}, {P(M(u) & ~1)} op_sel:[0,{h}] op_sel_hi:[1,{h}]')
    for u in range(10): a(f'v_cvt_pk_bf16_f32 v{LA(u)}, v{LA(u)}, v{LB(u)}')
    a('s_waitcnt lgkmcnt(0)')
    if SPROF == 3: stamp(a, 5)
    PF = Qf
    def pv(u):
        a(f'v_mfma_f32_16x16x32_bf16 v[{SC(u)}:{SC(u)+3}], v[{Vp(u)}:{Vp(u)+3}], v[{PF(u)}:{PF(u)+3}], 0')
        a(f'v_mfma_f32_16x16x32_bf16 v[{SP(u)}:{SP(u)+3}], v[{Vl(u)}:{Vl(u)+3}], v[{PF(u)}:{PF(u)+3}], 0')
    for u in range(10):
        for z in range(4): a(f'v_perm_b32 v{PF(u)+z}, v{LA(u)}, v{LA(u)}, v{232+z}')
        if u: pv(u - 1)
    pv(9)
    OM = lambda n: 44 + 4 * n
    for n in range(5):
        for e in range(2):
            u = 2 * n + e
            a(f'v_cvt_pk_bf16_f32 v{OM(n)+2*e}, v{SC(u)}, v{SC(u)+1}'); a(f'v_cvt_pk_bf16_f32 v{OM(n)+2*e+1}, v{SC(u)+2}, v{SC(u)+3}')
        if n:
            m = n - 1
            a(f'v_permlane16_swap_b32 v{OM(m)}, v{OM(m)+2}'); a(f'v_permlane16_swap_b32 v{OM(m)+1}, v{OM(m)+3}')
            guard(a, f'buffer_store_dwordx4 v[{OM(m)}:{OM(m)+3}], v236, s[36:39], s{48+m} offen sc1')
    for z in range(4):
        a(f's_mov_b64 exec, s[{28+2*z}:{29+2*z}]')
        for m in range(3):
            u = 4 * m + z
            if u < 10:
                a(f'v_cvt_pk_bf16_f32 v{64+2*m}, v{SP(u)}, v{SP(u)+1}'); a(f'v_cvt_pk_bf16_f32 v{65+2*m}, v{SP(u)+2}, v{SP(u)+3}')
    a('s_mov_b64 exec, s[24:25]')
    a(f'v_permlane16_swap_b32 v{OM(4)}, v{OM(4)+2}'); a(f'v_permlane16_swap_b32 v{OM(4)+1}, v{OM(4)+3}')
    seg(a, 'cq', 4)
    a(f'buffer_store_dwordx4 v[{OM(4)}:{OM(4)+3}], v236, s[36:39], s52 offen sc1')
    a('buffer_store_dwordx2 v[64:65], v237, s[36:39], 0 offen sc1')
    a('buffer_store_dwordx2 v[66:67], v237, s[36:39], s58 offen sc1')
    a('buffer_store_dwordx2 v[68:69], v244, s[36:39], s53 offen sc1')

def main():
    a = Asm()
    ref = open('cdna_kernels/' + NAME + '.s.ref').read().split('\n')
    for l in ref:
        if l.startswith('; @launch'): break
        a.raw(l)
    if E("LIST", 0): a.raw(f'; @launch kernel={KN} grid=(256,1,1) block=(512,1,1) lds=163840')
    else: a.raw('; @launch grid=(256,1,1) block=(512,1,1) lds=163840')
    a.raw('.amdgcn_target "amdgcn-amd-amdhsa--gfx950"')
    a.raw('.text'); a.raw(f'.globl {KN}'); a.raw(f'.type {KN},@function')
    kernel(a)
    a.raw('.section .rodata,"a"'); a.raw('.p2align 6')
    a.raw(f'''.amdhsa_kernel {KN}
  .amdhsa_next_free_vgpr 256
  .amdhsa_next_free_sgpr 100
  .amdhsa_accum_offset 256
  .amdhsa_group_segment_fixed_size 0
  .amdhsa_kernarg_size 80
  .amdhsa_user_sgpr_count 2
  .amdhsa_user_sgpr_kernarg_segment_ptr 1
  .amdhsa_system_sgpr_workgroup_id_x 1
.end_amdhsa_kernel''')
    open(sys.argv[1], 'w').write(a.text())
    print('nops inserted', a.nops)
main()
```

```python
import sys, math, os
from asmlib import *

NAME = "parallel_sum__sliding_local_dilated__glu_gated_geglu__prompt"
KN = NAME + "_kernel"
A2_RB, A2_SZ = 278528, 32 * 278528
WS_W2, W2_CB, W2_SZ = 0x900000, 348160, 8 * 348160
WS_STAT, WS_CNT = 0x1400000, 0x1410000
C_STAT, C_W2, C_WG = 0, 16, 32
XSZ = 2048 * 1280
OOB = 0x7f000000
LOG2E = 1.4426950408889634
C1 = -2.0 * LOG2E * math.sqrt(2.0 / math.pi)
C2 = C1 * 0.044715
E = lambda k, d: int(os.environ.get(k, d))
PROF = E("PROF", 0); CLK = E("CLK", 0); SPROF = E("SPROF", 0)
ORD = [int(c, 16) for c in os.environ.get("ORD", "55")]; PRE2 = E("PRE2", 0); TA = E("TA", 0); NSTG = E("NSTG", 4); STG0 = E("STG0", -2); TW = E("TW", 1); TB = E("TB", 7); TCB = E("TCB", 2); DRY = E("DRY", 0); OSC = os.environ.get("OSC", ""); GLATE = E("GLATE", -1); EB0 = E("EB0", 1); RETOUCH = E("RETOUCH", 1); MAP2 = E("MAP2", 0); QLATE = E("QLATE", 0); OCHK = E("OCHK", 8)
WSRC = os.environ.get("WSRC", "HHHLHSLHSLHSLLSLL")
LA_A = E("LA_A", 4); LA_W = E("LA_W", 4); PACE = E("PACE", 3); PRE = E("PRE", 2)
OWN = E("OWN", 0); PPOLL = E("PPOLL", 0); PSL = E("PSL", 2)
NTP = os.environ.get("NTP", ""); NTW = os.environ.get("NTW", ""); NTX = os.environ.get("NTX", ""); NTT = os.environ.get("NTT", "")
CSTR = E('CSTR', 256); ALLM = E('ALLM', 0); SPOLL = E('SPOLL', 1); SO = E('SO', 1); SS_ = E('SS', 0)
GCHK = E('GCHK', 4); TWO = E('TWO', 1)
T2G = E('T2G', 1); NOV0 = E("NOV0", 1)
SPIN = 30000; SLEEP = E("SLEEP", 2)
CH = [int(c) for c in os.environ.get("CH", "2222")]
WS_PROF = 0x2000000
GX, GXS, GWS = 98304, 14336, 24576
QX, QXS, QWS = 61440, 22528, 15360
LT2 = 141312
LST = LT2 + 3 * 5120
LRP = LST + 3072
LCN = LRP + 512
PB_HI = 61440
LS2 = LCN + 64
QST = 520
L = 'v243'

def srd(a, d, lo, hi, size, add=None):
    if add is None:
        a(f's_mov_b32 s{d}, s{lo}'); a(f's_mov_b32 s{d+1}, s{hi}')
    else:
        a(f's_add_u32 s{d}, s{lo}, {add}'); a(f's_addc_u32 s{d+1}, s{hi}, 0')
    a(f's_mov_b32 s{d+2}, {size}'); a(f's_mov_b32 s{d+3}, 0x20000')

MUTE = [False]
def stamp(a, n):
    if PROF and not (MUTE[0] and n < 7):
        a(f'{"s_memtime" if CLK else "s_memrealtime"} s[{80+2*n}:{81+2*n}]'); a('s_waitcnt lgkmcnt(0)')
def stamp_flush(a, waveadd=0):
    if not PROF: return
    a('s_waitcnt vmcnt(0)'); stamp(a, 7)
    if os.environ.get('AMP'):
        i, j = int(os.environ['AMP'][0]), int(os.environ['AMP'][1])
        if waveadd == 4:
            a('s_cmp_lg_u32 s40, 0'); a('s_cbranch_scc1 amp_x')
            a(f's_sub_u32 s96, s{80+2*j}, s{80+2*i}'); a('s_lshl_b32 s96, s96, 1'); a('s_min_u32 s96, s96, 20000')
            a.label('amp_l')
            a('s_memrealtime s[98:99]'); a('s_waitcnt lgkmcnt(0)'); a('s_sub_u32 s98, s98, s94'); a('s_cmp_lt_u32 s98, s96'); a('s_cbranch_scc1 amp_l')
            a.label('amp_x')
        return
    a(f's_add_u32 s96, s22, {WS_PROF}'); a('s_addc_u32 s97, s23, 0')
    a(f's_lshl_b32 s98, s2, 3'); a(f's_add_u32 s98, s98, s40'); a(f's_add_u32 s98, s98, {waveadd}'); a('s_lshl_b32 s98, s98, 6')
    a('v_mov_b32 v0, s98')
    for n in range(8):
        a(f'v_mov_b32 v2, s{80+2*n}'); a(f'v_mov_b32 v3, s{81+2*n}')
        a(f'global_store_dwordx2 v0, v[2:3], s[96:97] offset:{8*n}')

class Q:
    def __init__(s, a, cnt, mx): s.a = a; s.q = []; s.cnt = cnt; s.mx = mx; s.n = {}
    def issue(s, tag, text):
        if len(s.q) >= s.mx:
            s.a(f's_waitcnt {s.cnt}({s.mx - 1})'); s.q = s.q[-(s.mx - 1):]
        s.a(text); s.q.append(tag); s.n[tag] = s.n.get(tag, 0) + 1; s.tot = getattr(s, 'tot', 0) + 1
    def wait(s, tag):
        if tag not in s.q: return
        idx = max(i for i, t in enumerate(s.q) if t == tag)
        n = len(s.q) - 1 - idx
        s.a(f's_waitcnt {s.cnt}({n})'); s.q = s.q[idx + 1:]
    def clear(s): s.q = []

_pl = [0]
def poll(a, va, vp, target, base='s[10:11]', preissued=False, st='s70', mask=False):
    _pl[0] += 1; n = _pl[0]
    a(f's_mov_b32 {st}, 0')
    if preissued: a(f's_branch pl{n}_chk')
    a.label(f'pl{n}_top')
    a(f'global_load_dword {vp}, {va}, {base} sc1')
    a.label(f'pl{n}_chk')
    a('s_waitcnt vmcnt(0)')
    if mask: a(f'v_and_b32 {vp}, {target}, {vp}')
    a(f'v_cmp_ne_u32 vcc, {target}, {vp}')
    a('s_nop 1')
    a(f's_cbranch_vccz pl{n}_ok')
    a(f's_sleep {SLEEP}')
    a(f's_add_u32 {st}, {st}, 1'); a(f's_cmp_lt_u32 {st}, {SPIN}'); a(f's_cbranch_scc1 pl{n}_top')
    a('s_endpgm')
    a.label(f'pl{n}_ok')

assert all((x * 607) >> 16 == x // 108 for x in range(2112))
assert all((x * 410) >> 16 == x // 160 for x in range(0, 2560, 16))
_sp = [0]
def sread(a, dst, off, base='s[10:11]', load=False):
    if SPOLL == 1 and not load: a(f's_mov_b32 {dst}, 0'); a(f's_atomic_add {dst}, {base}, {off} glc')
    else: a(f's_load_dword {dst}, {base}, {off} glc')
def spoll(a, items, base='s[10:11]', preissued=False, load=False):
    _sp[0] += 1; n = _sp[0]
    a('s_mov_b32 s70, 0')
    if preissued: a(f's_branch sq{n}_chk')
    a.label(f'sq{n}_top')
    for d, o, t, m in items: sread(a, d, o, base, load)
    a.label(f'sq{n}_chk')
    a('s_waitcnt lgkmcnt(0)')
    for k, (d, o, t, m) in enumerate(items):
        if m: a(f's_and_b32 {d}, {d}, {t}')
        a(f's_cmp_eq_u32 {d}, {t}')
        a(f's_cbranch_scc1 sq{n}_ok' if k == len(items) - 1 else f's_cbranch_scc0 sq{n}_no')
    a.label(f'sq{n}_no')
    a(f's_sleep {SLEEP}')
    a('s_add_u32 s70, s70, 1'); a(f's_cmp_lt_u32 s70, {SPIN}'); a(f's_cbranch_scc1 sq{n}_top')
    a('s_endpgm')
    a.label(f'sq{n}_ok')
def cntbase(a):
    a(f's_add_u32 s10, s22, {WS_CNT}'); a('s_addc_u32 s11, s23, 0')
def bar(a, n=1):
    for _ in range(n): a('s_barrier')

_ls = [0]
def lds_arrive(a, off, va, vb):
    a(f'v_mov_b32 {va}, {off}'); a(f'v_mov_b32 {vb}, 1')
    a('s_mov_b64 exec, 1'); a(f'ds_add_u32 {va}, {vb}'); a('s_mov_b64 exec, -1')
def lds_wait(a, off, va, vb, sleep=0, setaddr=True):
    _ls[0] += 1; n = _ls[0]
    if setaddr: a(f'v_mov_b32 {va}, {off}')
    a('s_mov_b32 s70, 0')
    a.label(f'lw{n}')
    a(f'ds_read_b32 {vb}, {va}'); a('s_waitcnt lgkmcnt(0)'); a(f'v_readfirstlane_b32 s71, {vb}')
    a('s_cmp_ge_u32 s71, 4'); a(f's_cbranch_scc1 lw{n}_ok')
    if sleep: a(f's_sleep {sleep}')
    a('s_add_u32 s70, s70, 1'); a('s_cmp_lt_u32 s70, 200000'); a(f's_cbranch_scc1 lw{n}')
    a('s_endpgm')
    a.label(f'lw{n}_ok')

_gd = [0]
def guard(a, *ins):
    _gd[0] += 1
    if DRY: a(f's_cbranch_execz gd{_gd[0]}')
    for t in ins: a(t)
    if DRY: a.label(f'gd{_gd[0]}')
def seg(a, P, n):
    if not DRY: return
    if n > 0: a(f's_cbranch_execz {P}_ret')
    if n < 4: a.label(f'{P}_seg{n}')
def dryrun(a, P):
    if not DRY: return
    if DRY == 2 and P == 'cg':
        a.label(f'{P}_ret'); return
    a('s_mov_b64 exec, 0')
    for n in range(3):
        a(f's_cmp_eq_u32 s40, {n}'); a(f's_cbranch_scc1 {P}_seg{n}')
    a(f's_branch {P}_seg3')
    a.label(f'{P}_ret')
    a('s_mov_b64 exec, -1')
    a.fence(12)

def kernel(a):
    a.raw('.p2align 8'); a.label(KN)
    a('s_cmp_ge_u32 s2, 256'); a('s_cbranch_scc1 k_exit')
    if E('QFIRST', 0) == 1: a('s_xor_b32 s2, s2, 0xf8')
    if E('QFIRST', 0) == 2:
        a('s_bfe_u32 s3, s2, 0x10003'); a('s_lshl_b32 s3, s3, 7'); a('s_and_b32 s4, s2, 7'); a('s_lshr_b32 s2, s2, 4'); a('s_lshl_b32 s2, s2, 3'); a('s_or_b32 s2, s2, s3'); a('s_or_b32 s2, s2, s4')
    if E('SCRAMBLE', 0) == 2: a('s_bfe_u32 s3, s2, 0x30003'); a('s_xor_b32 s2, s2, s3')
    if E('SCRAMBLE', 0) == 1: a('s_and_b32 s3, s2, 7'); a('s_lshl_b32 s3, s3, 5'); a('s_lshr_b32 s2, s2, 3'); a('s_or_b32 s2, s2, s3')
    a('s_load_dwordx4 s[4:7], s[0:1], 0'); a('s_load_dwordx4 s[12:15], s[0:1], 32'); a('s_load_dwordx4 s[20:23], s[0:1], 64')
    a('s_load_dwordx2 s[8:9], s[0:1], 16'); a('s_load_dwordx4 s[16:19], s[0:1], 48')
    a('v_lshrrev_b32 v1, 6, v0'); a('v_and_b32 v243, 63, v0')
    a('v_readfirstlane_b32 s40, v1')
    a('s_getpc_b64 s[46:47]')
    a.label('k_pc')
    a('s_cmp_ge_u32 s40, 4'); a('s_cbranch_scc1 k_nopf')
    a('v_lshlrev_b32 v2, 7, v0'); a('v_add_u32 v3, 32768, v2')
    a('v_min_u32 v2, k_end-k_pc-4, v2'); a('v_min_u32 v3, k_end-k_pc-4, v3'); a('v_and_b32 v2, -4, v2'); a('v_and_b32 v3, -4, v3')
    a('global_load_dword v255, v2, s[46:47]'); a('global_load_dword v254, v3, s[46:47]')
    a.label('k_nopf')
    stamp(a, 0)
    a('s_and_b32 s44, s2, 3'); a('s_bfe_u32 s48, s2, 0x10002'); a('s_lshr_b32 s46, s2, 3')
    a('s_sub_u32 s49, 10, s48'); a('s_lshl_b32 s50, s49, 1')
    a('s_mul_i32 s51, s48, 10')
    a('s_cmp_ge_u32 s46, s50'); a('s_cselect_b32 s43, 1, 0'); a('s_cbranch_scc0 k_d1')
    a('s_sub_u32 s46, s46, s50'); a('s_add_u32 s49, s48, 6'); a('s_mul_i32 s51, s48, 6')
    a.label('k_d1')
    a('s_cmp_ge_u32 s46, s49'); a('s_cselect_b32 s47, 1, 0'); a('s_cselect_b32 s50, s49, 0'); a('s_sub_u32 s46, s46, s50')
    a('s_lshl_b32 s44, s44, 1'); a('s_add_u32 s44, s44, s47')
    a('s_add_u32 s45, s46, s51')
    a('s_mul_i32 s41, s45, 108'); a('s_mul_i32 s50, s45, 160'); a('s_sub_u32 s50, s50, 16')
    a('s_cmp_eq_u32 s43, 1'); a('s_cselect_b32 s41, s50, s41')
    a('s_cmp_lt_u32 s40, 4'); a('s_cbranch_scc1 k_cons')
    a('s_sub_u32 s40, s40, 4')
    a('s_cmp_eq_u32 s40, 3'); a('s_cbranch_scc1 k_serv')
    if TA:
        for cls in range(3):
            if cls < 2: a(f's_cmp_lg_u32 s40, {cls}'); a(f's_cbranch_scc1 k_t{cls}')
            touch_setup(a, cls, 'v40', 'v41', 'v42')
            a('s_waitcnt lgkmcnt(0)')
            for _ in range(TA):
                touch(a, cls, 'v40', 'v43')
                if cls != 1: a('global_load_dword v43, v44, s[4:5]') if False else None
            if cls < 2: a('s_branch k_td'); a.label(f'k_t{cls}')
        a.label('k_td')
    NK = E("NK", max(ORD)); KS = E("KS", 2); KT = E("KT", 1)
    assert sum(ORD) == 10
    def order(key):
        first, rest, base = [], [], 0
        for n in ORD:
            z = key % n
            first.append(base + z); rest += [base + (z + d) % n for d in range(1, n)]; base += n
        return first + rest
    def order5(key):
        return [(2 * key + d) % 10 for d in range(10)]
    a(f's_mul_i32 s68, s47, {KS}'); a('s_add_u32 s68, s68, s46'); a(f's_mul_i32 s46, s43, {KT}'); a('s_add_u32 s68, s68, s46')
    for _ in range(2):
        a(f's_cmp_ge_u32 s68, {NK}'); a(f's_cselect_b32 s46, {NK}, 0'); a('s_sub_u32 s68, s68, s46')
    assert NK == 1 or 9 + KS + KT < 3 * NK
    for key in range(NK):
        o = order5(key) if (ORD == [5, 5] and not E('GEN', 0)) else order(key)
        v = sum(x << (4 * n) for n, x in enumerate(o))
        if key == 0: a(f's_mov_b32 s64, {v & 0xffffffff}'); a(f's_mov_b32 s65, {v >> 32}')
        else: a(f's_cmp_eq_u32 s68, {key}'); a(f's_cselect_b32 s64, {v & 0xffffffff}, s64'); a(f's_cselect_b32 s65, {v >> 32}, s65')
    a('s_mov_b64 s[66:67], s[64:65]'); a('s_and_b32 s68, s64, 15'); a('s_mov_b32 s69, 0')
    a(f'v_lshrrev_b32 v2, 3, {L}'); a(f'v_and_b32 v3, 7, {L}')
    a('s_movk_i32 s53, 1280'); a('s_lshl_b32 s58, s68, 7'); a('s_lshl_b32 s54, s40, 10'); a('s_mov_b32 s61, 0')
    a(f'v_mov_b32 v9, {OOB}')
    a('s_cmp_eq_u32 s43, 1'); a('s_cbranch_scc1 k_ldq')
    loader(a, False)
    a('s_branch k_gemm2')
    a.label('k_ldq'); loader(a, True)
    a.label('k_gemm2'); gemm2(a)
    a.label('k_serv'); service(a)
    a.label('k_cons')
    a('s_cmp_eq_u32 s43, 1'); a('s_cbranch_scc1 k_consq')
    consumerG(a)
    a.label('k_consq'); consumerQ(a)
    a.label('k_pub'); publish(a)
    a.label('k_exit'); a('s_endpgm')
    a.label('k_end')

def touch_setup(a, cls, v, t1, t2):
    a('s_lshr_b32 s72, s2, 3'); a('s_and_b32 s73, s2, 3')
    if cls == 0:
        a('s_bfe_u32 s74, s2, 0x10002'); a('s_mul_i32 s74, s74, 944'); a('s_mul_i32 s72, s72, 35'); a('s_add_u32 s72, s72, s74')
        a(f'v_min_u32 {v}, 34, {L}'); a(f'v_add_u32 {v}, s72, {v}'); a(f'v_min_u32 {v}, 2047, {v}'); a(f'v_mul_u32_u24 {v}, 1280, {v}')
    elif cls == 1:
        a(f's_mul_i32 s72, s72, {2*3072}'); a('s_mul_i32 s73, s73, 768'); a('s_add_u32 s72, s72, s73')
        a(f'v_min_u32 {v}, 11, {L}'); a(f'v_cmp_lt_u32 vcc, 5, {v}'); a(f'v_mov_b32 {t1}, {3072-768}'); a(f'v_cndmask_b32 {t1}, 0, {t1}, vcc')
        a(f'v_lshl_add_u32 {v}, {v}, 7, {t1}'); a(f'v_add_u32 {v}, s72, {v}')
    else:
        a(f's_mul_i32 s72, s72, {2*3840}'); a('s_mul_i32 s73, s73, 320'); a('s_and_b32 s73, s73, -128'); a('s_add_u32 s72, s72, s73')
        a(f'v_min_u32 {v}, 17, {L}'); a(f'v_mul_u32_u24 {t1}, 86, {v}'); a(f'v_lshrrev_b32 {t1}, 8, {t1}')
        a(f'v_mul_u32_u24 {t1}, {1280-384}, {t1}'); a(f'v_lshl_add_u32 {v}, {v}, 7, {t1}'); a(f'v_add_u32 {v}, s72, {v}')
def touch(a, cls, v, dst):
    if cls == 0: a(f'global_load_dword {dst}, {v}, s[4:5]'); a(f'v_add_u32 {v}, 128, {v}')
    elif cls == 1: a(f'global_load_dword {dst}, {v}, s[12:13]'); a(f'global_load_dword {dst}, {v}, s[14:15]'); a(f'v_add_u32 {v}, {64*3072}, {v}')
    else: a(f'global_load_dword {dst}, {v}, s[6:7]'); a(f'v_add_u32 {v}, {64*3840}, {v}')

def pre_setup(a):
    assert WSRC[:PRE] == 'H' * PRE and MAP2 == 0 and PRE <= 3
    srd(a, 36, 22, 23, W2_SZ, WS_W2)
    a(f'v_lshlrev_b32 v248, 4, {L}')
    a('s_lshr_b32 s47, s2, 6'); a('s_bfe_u32 s48, s2, 0x30003')
    a(f's_mul_i32 s49, s48, {W2_CB}'); a(f's_mul_i32 s50, s40, {17*5120}'); a('s_add_u32 s49, s49, s50')
    a('s_lshl_b32 s47, s47, 1'); a('s_add_u32 s48, s48, s47')
    for n in range(PRE):
        d = f's{74+2*n}'
        a(f's_add_u32 {d}, s48, {n}'); a(f's_and_b32 {d}, {d}, 7')
        a(f's_mul_i32 {d}, {d}, 5120'); a(f's_add_u32 {d}, {d}, s49'); a(f's_add_u32 s{75+2*n}, {d}, 4096')
def pre_issue(a, wait=True):
    if SPROF == 5: stamp(a, 1)
    if wait: a('s_waitcnt vmcnt(0)')
    if SPROF == 5: stamp(a, 2)
    for n in range(PRE):
        for t in range(5):
            d = 80 + 20 * n + 4 * t
            if t < 4: a(f'buffer_load_dwordx4 v[{d}:{d+3}], v248, s[36:39], s{74+2*n} offen offset:{t*1024} sc1')
            else: a(f'buffer_load_dwordx4 v[{d}:{d+3}], v248, s[36:39], s{75+2*n} offen sc1')
    if SPROF == 5: stamp(a, 3)
    bar(a)
    if SPROF == 5: stamp(a, 4)

def loader(a, isq):
    P = 'lq' if isq else 'lg'
    NXM = 8 if isq else 5; NQ = 22 if isq else 14
    XO, XS, WS = (QX, QXS, QWS) if isq else (GX, GXS, GWS)
    RS = 3840 if isq else 3072
    XV = 12
    a('v_lshrrev_b32 v4, 1, v2'); a('v_xor_b32 v4, v4, v3'); a('s_and_b32 s51, s40, 1'); a('s_lshl_b32 s51, s51, 2'); a('v_xor_b32 v4, s51, v4')
    a('v_lshlrev_b32 v4, 4, v4')
    a('s_lshl_b32 s52, s40, 3'); a('s_add_u32 s52, s52, s41'); a('v_add_u32 v5, s52, v2')
    a('v_mul_lo_u32 v6, v5, s53'); a(f'v_add_u32 v{XV}, v6, v4')
    for m in range(1, NXM):
        if m == 1: a(f'v_xor_b32 v7, 64, v{XV}')
        a(f'v_add_u32 v{XV+m}, {m*24*1280}, v{XV if m % 2 == 0 else 7}')
    if isq:
        a('v_cmp_gt_i32 vcc, 0, v5'); a(f'v_cndmask_b32 v{XV}, v{XV}, v9, vcc')
    else:
        a('v_subrev_u32 v5, s41, v5'); a('v_cmp_gt_u32 vcc, 12, v5'); a(f'v_cndmask_b32 v{XV+4}, v9, v{XV+4}, vcc')
    a(f's_add_u32 s59, s54, {XO}')
    a('s_waitcnt lgkmcnt(0)')
    srd(a, 24, 4, 5, XSZ)
    cnt = [0]
    def Xl(m):
        last = m == NXM - 1
        if last:
            cnt[0] += 1
            a(f's_cmp_ge_u32 s40, {NQ - 3*(NXM-1)}'); a(f's_cbranch_scc1 {P}_sk{cnt[0]}')
        a(f's_add_u32 m0, s59, {m*3072}')
        a(f'buffer_load_dwordx4 v{XV+m}, s[24:27], s58 offen {NTX} lds')
        if last: a.label(f'{P}_sk{cnt[0]}')
    def Xadv():
        a('s_lshr_b64 s[66:67], s[66:67], 4'); a('s_and_b32 s58, s66, 15'); a('s_lshl_b32 s58, s58, 7')
        a(f's_add_u32 s59, s59, {XS}')
        a(f's_cmp_ge_u32 s59, {XO+3*XS}'); a(f's_cselect_b32 s60, {3*XS}, 0'); a('s_sub_u32 s59, s59, s60')
    def issueX():
        for m in range(NXM): Xl(m)
        Xadv()
    if TA: a(f's_waitcnt vmcnt({TA - TW})')
    if SPROF == 4: stamp(a, 1)
    issueX()
    WV = 20
    a(f's_movk_i32 s42, {RS}')
    if isq:
        NW = 5
        srd(a, 28, 6, 7, 640 * 3840)
        a('s_mul_i32 s46, s40, 1280'); a('s_mul_i32 s47, s44, 160'); a('s_add_u32 s46, s46, s47')
        for n in range(5):
            a(f'v_add_u32 v4, {64*n}, {L}'); a('v_mul_u32_u24 v5, 205, v4'); a('v_lshrrev_b32 v5, 11, v5')
            a('v_mul_u32_u24 v6, 10, v5'); a('v_sub_u32 v4, v4, v6'); a('v_lshl_add_u32 v4, v4, 4, s46')
            a('v_lshrrev_b32 v6, 1, v5'); a('v_xor_b32 v6, v6, v5'); a('v_and_b32 v6, 4, v6'); a('v_mul_u32_u24 v6, 3, v6'); a('v_xor_b32 v5, v5, v6')
            a(f'v_mad_u32_u24 v{WV+n}, v5, s42, v4')
        a('s_mul_i32 s57, s40, 5120')
        def Wl(n):
            a(f's_add_u32 m0, s57, {n*1024}')
            a(f'buffer_load_dwordx4 v{WV+n}, s[28:31], s56 offen {NTW} lds')
    else:
        NW = 8
        srd(a, 28, 12, 13, 640 * 3072); srd(a, 32, 14, 15, 640 * 3072)
        a(f'v_bfe_u32 v4, {L}, 4, 1'); a('v_lshlrev_b32 v4, 2, v4'); a('v_xor_b32 v4, v4, v3'); a('v_lshlrev_b32 v4, 4, v4')
        a('s_mul_i32 s46, s44, 384'); a('s_lshl_b32 s47, s40, 7'); a('s_add_u32 s46, s46, s47')
        a('v_mad_u32_u24 v4, v2, s42, v4'); a(f'v_add_u32 v{WV}, s46, v4'); a(f'v_xor_b32 v4, 16, v{WV}')
        a(f'v_add_u32 v{WV+1}, {8*3072}, v4'); a(f'v_add_u32 v{WV+2}, {16*3072}, v{WV}'); a(f'v_add_u32 v{WV+3}, {24*3072}, v4')
        a('s_lshl_b32 s57, s40, 12')
        def Wl(n):
            half, g = n >> 2, n & 3
            a(f's_add_u32 m0, s57, {half*12288 + g*1024}')
            a(f'buffer_load_dwordx4 v{WV+g}, s[{28+4*half}:{31+4*half}], s56 offen {NTW} lds')
    a(f's_mul_i32 s56, s68, {64*RS}')
    wpar = [0]
    def Wadv():
        if wpar[0] == 0: a(f's_add_u32 s56, s56, {32*RS}')
        else: a('s_lshr_b64 s[64:65], s[64:65], 4'); a('s_and_b32 s56, s64, 15'); a(f's_mul_i32 s56, s56, {64*RS}')
        wpar[0] ^= 1
        a(f's_add_u32 s57, s57, {WS}')
        a(f's_cmp_ge_u32 s57, {4*WS}'); a(f's_cselect_b32 s60, {4*WS}, 0'); a('s_sub_u32 s57, s57, s60')
    def issueW():
        for n in range(NW): Wl(n)
        Wadv()
    issueW(); issueW()
    if SPROF == 4: stamp(a, 2)
    cntbase(a); pre_setup(a)
    XA = (NXM + 1) // 2; XB_ = NXM - XA
    a(f's_waitcnt vmcnt({NW})')
    if SPROF == 4: stamp(a, 3)
    bar(a)
    if SPROF == 4: stamp(a, 4)
    if EB0:
        issueW(); a(f's_waitcnt vmcnt({NW})'); bar(a); issueX()
    else:
        issueW(); issueX()
        a(f's_waitcnt vmcnt({NW + NXM - 1})'); bar(a)
    if SPROF == 4: stamp(a, 5)
    issueW()
    if SPROF == 4: stamp(a, 6)
    if PROF:
        a('s_memtime s[72:73]'); a('s_waitcnt lgkmcnt(0)'); a('v_mov_b32 v60, s72')
    a.label(f'{P}_loop')
    for n in range(NW): Wl(n)
    for m in range(XA): Xl(m)
    Wadv()
    a(f's_waitcnt vmcnt({2*NW + XA})'); bar(a)
    for m in range(XA, NXM): Xl(m)
    for n in range(NW): Wl(n)
    Wadv(); Xadv()
    a('s_add_u32 s61, s61, 1'); a('s_cmp_lt_u32 s61, 8')
    a(f's_waitcnt vmcnt({2*NW + NXM - 1})'); bar(a)
    if PROF:
        a('s_memtime s[72:73]'); a('s_waitcnt lgkmcnt(0)')
        for r in range(69, 60, -1): a(f'v_mov_b32 v{r}, v{r-1}')
        a('v_mov_b32 v60, s72')
    a(f's_cbranch_scc1 {P}_loop')
    pre_issue(a)
    if PROF and not os.environ.get('AMP'):
        a(f's_add_u32 s96, s22, {WS_PROF + 0x20000}'); a('s_addc_u32 s97, s23, 0')
        a('s_lshl_b32 s98, s2, 3'); a('s_add_u32 s98, s98, s40'); a('s_lshl_b32 s98, s98, 6'); a('v_mov_b32 v59, s98')
        for r in range(9): a(f'global_store_dword v59, v{68-r}, s[96:97] offset:{4*r}')

def service(a):
    a('s_and_b32 s50, s2, 7'); a('s_lshl_b32 s51, s50, 5'); a('s_lshr_b32 s46, s2, 3'); a('s_add_u32 s51, s51, s46'); a('s_lshl_b32 s52, s51, 3')
    a(f'v_lshrrev_b32 v1, 4, {L}'); a(f'v_and_b32 v2, 15, {L}'); a('v_add_u32 v1, s52, v1')
    a('s_movk_i32 s53, 1280'); a('v_lshlrev_b32 v3, 4, v2'); a('v_mad_u32_u24 v3, v1, s53, v3')
    a('v_mov_b32 v30, 0')
    a('s_waitcnt lgkmcnt(0)')
    srd(a, 24, 4, 5, XSZ); cntbase(a)
    a('s_movk_i32 s54, 5120')
    for s in range(2):
        for j in range(5):
            d = 140 + 20 * s + 4 * j
            a(f'buffer_load_dwordx4 v[{d}:{d+3}], v3, s[24:27], {"s54" if s else "0"} offen offset:{j*256}')
    a('s_cmp_lg_u32 s2, 0'); a('s_cbranch_scc1 sv_ni')
    a(f'v_mul_u32_u24 v4, {CSTR}, {L}')
    for n in range(3):
        a('global_store_dword v4, v30, s[10:11] sc1'); a('global_store_dword v4, v30, s[10:11] offset:128 sc1'); a(f'v_add_u32 v4, {64*CSTR}, v4')
    a.label('sv_ni')
    if SPROF == 4: stamp(a, 1)
    a('s_mul_i32 s55, s50, 160')
    for n in range(5):
        a(f'v_add_u32 v4, {64*n}, {L}'); a('v_mul_u32_u24 v5, 205, v4'); a('v_lshrrev_b32 v5, 11, v5')
        a('v_mul_u32_u24 v6, 10, v5'); a('v_sub_u32 v4, v4, v6'); a('v_lshl_add_u32 v4, v4, 4, s55')
        a(f'v_lshrrev_b32 v{100+n}, 3, v5'); a(f'v_bfe_u32 v{105+n}, v5, 2, 1'); a('v_and_b32 v5, 3, v5'); a(f'v_mad_u32_u24 v{110+n}, v5, s53, v4')
    if T2G:
        a('s_lshl_b32 s44, s48, 1'); a('s_sub_u32 s44, 20, s44')
        a('s_lshl_b32 s42, s44, 1'); a('s_add_u32 s42, s42, s46')
        a('s_cmp_lt_u32 s42, 68'); a('s_cselect_b32 s45, 1, 0')
        a('s_cmp_eq_u32 s43, 0'); a('s_cselect_b32 s42, s46, s42'); a('s_cselect_b32 s45, 3, s45')
    else:
        a('s_mov_b32 s42, s46'); a('s_mov_b32 s44, 32'); a('s_cmp_lt_u32 s46, 4'); a('s_cselect_b32 s45, 3, 2')
    for un in range(3):
        sb = 28 + 4 * un
        a(f's_mul_i32 s56, s44, {un}'); a('s_add_u32 s56, s56, s42'); a('s_mul_i32 s57, s56, 241'); a('s_lshr_b32 s57, s57, 12'); a('s_mul_i32 s58, s57, 17'); a('s_sub_u32 s58, s56, s58')
        a('s_cmp_ge_u32 s58, 12'); a(f's_cbranch_scc1 sv_o{un}')
        srd(a, sb, 16, 17, 1536 * 1280)
        a('s_lshr_b32 s59, s58, 1'); a('s_mul_i32 s59, s59, 3'); a('s_and_b32 s63, s58, 1'); a('s_lshl_b32 s63, s63, 1'); a('s_add_u32 s59, s59, s63')
        a('s_mul_i32 s63, s58, 3'); a('s_sub_u32 s63, s63, 23'); a('s_cmp_ge_u32 s58, 8'); a('s_cselect_b32 s58, s63, s59')
        a('s_mul_i32 s59, s57, 12'); a('s_add_u32 s59, s59, s58'); a('s_lshl_b32 s59, s59, 5')
        a(f's_movk_i32 s60, {8*1280}'); a(f's_movk_i32 s61, {4*1280}'); a('s_mov_b32 s62, 1'); a('s_mov_b32 s67, 0')
        a(f's_branch sv_c{un}')
        a.label(f'sv_o{un}')
        srd(a, sb, 8, 9, 640 * 1280)
        a('s_sub_u32 s58, s58, 12'); a('s_mul_i32 s59, s57, 160'); a('s_mul_i32 s63, s58, 40')
        a(f's_movk_i32 s60, {8*1280}')
        a('s_cmp_eq_u32 s58, 4'); a('s_cselect_b32 s63, 16, s63'); a(f's_cselect_b32 s60, {40*1280}, s60'); a(f's_cselect_b32 s61, {20*1280}, s54'); a('s_cselect_b32 s67, 0, s54')
        a('s_add_u32 s59, s59, s63'); a('s_mov_b32 s62, 0')
        a.label(f'sv_c{un}')
        a(f's_mul_i32 s{64+un}, s59, 1280')
        for n in range(5):
            a(f'v_and_b32 v4, s62, v{100+n}'); a(f'v_xor_b32 v4, v4, v{105+n}')
            a(f'v_mad_u32_u24 v4, v4, s61, v{110+n}'); a(f'v_mad_u32_u24 v4, v{100+n}, s60, v4')
            a(f'v_lshrrev_b32 v5, 1, v{100+n}'); a(f'v_mad_u32_u24 v{120+5*un+n}, v5, s67, v4')
    if SPROF == 4: stamp(a, 2)
    a(f'v_lshrrev_b32 v4, 4, {L}'); a(f'v_bfe_u32 v5, {L}, 2, 2'); a('v_lshl_add_u32 v4, v4, 3, v5'); a('v_mul_u32_u24 v4, 160, v4')
    a(f'v_add_u32 v4, {LT2}, v4'); a(f'v_and_b32 v5, 3, {L}'); a('v_lshl_add_u32 v26, v5, 4, v4'); a('v_lshl_add_u32 v27, v5, 3, v4')
    a(f'v_lshlrev_b32 v28, 4, {L}'); a('v_add_u32 v29, 4096, v28')
    a(f'v_add_u32 v5, s41, {L}'); a('v_lshlrev_b32 v20, 4, v5'); a('v_add_u32 v21, 1024, v20')
    a(f's_mov_b32 s56, {A2_RB}'); a('s_movk_i32 s57, 2048'); a(f'v_mov_b32 v9, {OOB}')
    a(f'v_lshlrev_b32 v8, 2, {L}'); a(f'v_add_u32 v8, {LRP}, v8')
    for n in range(2):
        if n: a('v_add_u32 v5, 64, v5')
        a('v_lshrrev_b32 v6, 6, v5'); a('v_mul_lo_u32 v6, v6, s56'); a('v_bfe_u32 v7, v5, 2, 4'); a('v_lshl_add_u32 v6, v7, 8, v6')
        a('v_and_b32 v7, 3, v5'); a('v_lshl_add_u32 v6, v7, 4, v6')
        if n:
            a(f'v_cmp_gt_u32 vcc, 44, {L}'); a('v_cmp_gt_u32 s[58:59], s57, v5'); a('s_and_b64 vcc, vcc, s[58:59]'); a('v_cndmask_b32 v6, v9, v6, vcc')
        a(f'ds_write_b32 v8, v6 offset:{256*n}')
    a('s_max_i32 s56, s41, 0'); a('s_lshr_b32 s56, s56, 7'); a('s_add_u32 s57, s41, 175'); a('s_lshr_b32 s57, s57, 7'); a('s_min_u32 s57, s57, 15')
    a(f'v_add_u32 v18, s56, {L}'); a('v_min_u32 v18, s57, v18')
    if MAP2 == 0: a('s_and_b32 s56, s46, 7')
    else: a('s_and_b32 s56, s2, 1'); a('s_lshl_b32 s56, s56, 2'); a('s_and_b32 s57, s46, 3'); a('s_add_u32 s56, s56, s57')
    a(f's_add_u32 s56, s56, {C_W2}'); a('v_mov_b32 v4, s56')
    a(f'v_cmp_gt_u32 vcc, 3, {L}'); a('v_cndmask_b32 v18, v4, v18, vcc'); a(f'v_mul_u32_u24 v18, {CSTR}, v18')
    a('v_mov_b32 v4, 68'); a('v_cndmask_b32 v19, v4, 16, vcc')
    a(f's_add_u32 s56, s50, {C_W2}'); a(f's_mul_i32 s56, s56, {CSTR}'); a('v_mov_b32 v22, s56')
    a('v_mov_b32 v23, s45')
    a('s_lshr_b32 s56, s51, 4'); a(f's_mul_i32 s56, s56, {CSTR}'); a('v_writelane_b32 v22, s56, 0'); a('v_writelane_b32 v23, 1, 0')
    a('v_lshlrev_b32 v24, 4, v1'); a('v_cmp_eq_u32 vcc, 0, v2'); a('v_cndmask_b32 v24, v9, v24, vcc')
    a(f'v_add_u32 v25, {LST}, v28')
    a(f'v_lshlrev_b32 v17, 7, {L}'); a(f'v_lshlrev_b32 v16, 2, {L}'); a(f'v_add_u32 v16, {LS2}, v16')
    srd(a, 76, 22, 23, 32768, WS_STAT)
    for n in range(4): a(f'v_mov_b32 v{8+n}, 0')
    srd(a, 24, 22, 23, W2_SZ, WS_W2)
    a('v_mov_b32 v4, 0x3f803f80')
    def tbatch(n):
        for _ in range(n):
            for cls in range(3): touch(a, cls, f'v{12+cls}', 'v15')
    def t2dma():
        for un in range(3):
            a(f's_cmp_le_u32 s45, {un}'); a('s_cbranch_scc1 sv_d3')
            for n in range(5):
                a(f's_mov_b32 m0, {LT2 + un*5120 + n*1024}'); a(f'buffer_load_dwordx4 v{120+5*un+n}, s[{28+4*un}:{31+4*un}], s{64+un} offen {NTT} lds')
        a.label('sv_d3')
    def stload():
        for s in range(2):
            for j in range(5):
                d = 140 + 20 * s + 4 * j
                a(f'buffer_load_dwordx4 v[{d}:{d+3}], v3, s[24:27], {"s54" if s else "0"} offen offset:{j*256}')
        srd(a, 24, 22, 23, W2_SZ, WS_W2)
    def stdot(s):
        for n in range(20):
            d = 140 + 20 * s + n
            a(f'v_dot2c_f32_bf16 v{8+s}, v{d}, v4'); a(f'v_dot2c_f32_bf16 v{10+s}, v{d}, v{d}')
    def stfin():
        a.fence(4)
        for ro in (8, 4, 2, 1):
            for n in range(4): a(f'v_add_f32_dpp v{8+n}, v{8+n}, v{8+n} row_ror:{ro} row_mask:0xf bank_mask:0xf')
        a(f's_mov_b32 s57, {f32(1.0/640)}')
        for s in range(2):
            b = 32 + 4 * s
            a(f'v_mul_f32 v{b}, s57, v{8+s}'); a(f'v_mul_f32 v{b+2}, s57, v{10+s}')
            a(f'v_fma_f32 v{b+2}, -v{b}, v{b}, v{b+2}'); a(f'v_max_f32 v{b+2}, 0, v{b+2}'); a(f'v_add_f32 v{b+2}, {f32(1e-5)}, v{b+2}')
            a(f'v_rsq_f32 v{b+1}, v{b+2}'); a(f'v_sub_f32 v{b}, 0, v{b}'); a(f'v_mov_b32 v{b+3}, 0')
            a(f'buffer_store_dwordx4 v[{b}:{b+3}], v24, s[76:79], 0 offen offset:{s*64} sc1')
    def trst(un):
        a(f's_cmp_le_u32 s45, {un}'); a(f's_cbranch_scc1 sv_s{un}')
        for t in range(5):
            d = 40 + 20 * un + 4 * t; ad = 26 if t < 4 else 27; off = un * 5120 + (64 * (t >> 1) + 8 * (t & 1) if t < 4 else 128)
            a(f'ds_read_b64_tr_b16 v[{d}:{d+1}], v{ad} offset:{off}'); a(f'ds_read_b64_tr_b16 v[{d+2}:{d+3}], v{ad} offset:{off+640}')
        a('s_waitcnt lgkmcnt(0)')
        for t in range(5):
            d = 40 + 20 * un + 4 * t
            if t < 4: a(f'buffer_store_dwordx4 v[{d}:{d+3}], v28, s[24:27], s56 offen offset:{t*1024} sc1')
            else: a(f'buffer_store_dwordx4 v[{d}:{d+3}], v29, s[24:27], s56 offen sc1')
        a('s_add_u32 s56, s56, s47')
        a.label(f'sv_s{un}')
    a(f's_mul_i32 s56, s50, {W2_CB}'); a('s_mul_i32 s57, s42, 5120'); a('s_add_u32 s56, s56, s57'); a('s_mul_i32 s47, s44, 5120')
    if STG0 == -1: t2dma()
    if SPROF == 4: stamp(a, 3)
    bar(a, 2)
    if SPROF == 4: stamp(a, 4)
    a('s_cmp_lg_u32 s2, 0'); a('s_cbranch_scc1 sv_n2')
    a('s_waitcnt vmcnt(0)')
    a('v_mov_b32 v5, 1'); a('s_mov_b64 exec, 1'); a('global_store_dword v30, v5, s[20:21] sc1'); a('s_mov_b64 exec, -1')
    a.label('sv_n2')
    if T2G: a('s_waitcnt vmcnt(0)')
    if STG0 == -2: t2dma()
    if not T2G: a('s_waitcnt vmcnt(10)')
    stdot(0); stdot(1); stfin()
    if SPROF == 4: stamp(a, 5)
    if STG0 < 0: a('s_mov_b32 s68, 1')
    else:
        a(f's_mul_i32 s68, s46, {(65536 + NSTG - 1) // NSTG}'); a('s_lshr_b32 s68, s68, 16'); a(f's_mul_i32 s68, s68, {NSTG}'); a('s_sub_u32 s68, s68, s46')
        a(f's_sub_u32 s68, s68, {STG0}')
    a('s_mov_b32 s69, 0')
    a.label('sv_lp')
    bar(a)
    a('s_add_u32 s68, s68, 1')
    if STG0 >= 0: a('s_cmp_eq_u32 s68, 0'); a('s_cbranch_scc1 sv_e0')
    E1 = E('E1', 4)
    a(f's_cmp_eq_u32 s68, {E1}'); a('s_cbranch_scc1 sv_e1')
    a(f's_cmp_eq_u32 s68, {E1+1}'); a('s_cbranch_scc1 sv_e2')
    a(f's_cmp_eq_u32 s68, {E1+3}'); a('s_cbranch_scc1 sv_e3')
    a.label('sv_er')
    a('s_add_u32 s69, s69, 1'); a(f's_cmp_lt_u32 s69, {E("NLP", 11)}'); a('s_cbranch_scc1 sv_lp')
    a('s_branch sv_go')
    if STG0 >= 0:
        a.label('sv_e0'); t2dma(); a('s_branch sv_er')
    a.label('sv_e1'); a('s_waitcnt vmcnt(0)'); trst(0); a('s_branch sv_er')
    a.label('sv_e2'); trst(1); trst(2)
    if SS_: sread(a, 's72', 0, 's[20:21]', True)
    else: a('global_load_dword v31, v30, s[20:21] sc1')
    a('s_branch sv_er')
    a.label('sv_e3')
    if SS_: spoll(a, [('s72', 0, 1, False)], 's[20:21]', True, True); a('s_waitcnt vmcnt(0)')
    else: poll(a, 'v30', 'v31', 1, base='s[20:21]', preissued=True)
    a('s_mov_b64 exec, 3'); a('global_atomic_add v22, v23, s[10:11]'); a('s_mov_b64 exec, -1')
    a('s_branch sv_er')
    a.label('sv_go')
    assert STG0 + NSTG - 1 + 5 <= 11
    its = [('s72', 's60', 16, False), ('s73', 's61', 16, False), ('s74', 's62', 16, False), ('s75', 's63', 68, False)]
    if SS_:
        for n in range(4): a(f'v_readlane_b32 s{60+n}, v18, {n}')
        a('s_nop 3')
        for d, o, t, m in its: sread(a, d, o)
    else: a('global_load_dword v31, v18, s[10:11] sc1')
    bar(a, 2)
    if SS_: spoll(a, its, preissued=True)
    else: poll(a, 'v18', 'v31', 'v19', preissued=True)
    a('buffer_load_dwordx4 v[32:35], v20, s[76:79], 0 offen sc1')
    for n in range(1, 3): a(f'buffer_load_dwordx4 v[{32+4*n}:{35+4*n}], v21, s[76:79], 0 offen offset:{(n-1)*1024} sc1')
    bar(a, 2)
    a(f's_mov_b32 s56, {f32(C2)}'); a('s_cmp_eq_u32 s43, 1'); a(f's_cselect_b32 s57, 1.0, {f32(C1)}')
    a('s_waitcnt vmcnt(0)')
    if RETOUCH:
        a('s_getpc_b64 s[58:59]')
        a.label('sv_pc')
        a('s_sub_u32 s58, s58, sv_pc-k_gemm2'); a('s_subb_u32 s59, s59, 0')
        for n in range(4):
            a(f'v_min_u32 v{48+n}, k_end-k_gemm2-4, v17'); a(f'v_and_b32 v{48+n}, -4, v{48+n}')
            a(f'global_load_dword v{48+n}, v{48+n}, s[58:59]')
            if n < 3: a('v_add_u32 v17, 8192, v17')
    for n in range(3):
        b = 32 + 4 * n
        a(f'v_mov_b32 v{b+3}, v{b+2}')
        a(f'v_mul_f32 v{b+2}, v{b+1}, v{b+1}'); a(f'v_mul_f32 v{b+2}, v{b+2}, v{b+1}'); a(f'v_mul_f32 v{b+2}, s56, v{b+2}'); a(f'v_mul_f32 v{b+1}, s57, v{b+1}')
        a(f'ds_write_b128 v25, v[{b}:{b+3}] offset:{n*1024}')
        a(f'ds_write2st64_b32 v16, v{b}, v{b+1} offset0:{n} offset1:{3+n}')
    a('s_waitcnt lgkmcnt(0)')
    pre_setup(a)
    bar(a, 12 - E('NLP', 11))
    pre_issue(a, False)
    a('s_branch k_gemm2')

WREG = 35840
def gemm2(a):
    MUTE[0] = SPROF in (4, 5)
    if MAP2 == 0:
        a('s_and_b32 s41, s2, 7'); a('s_lshl_b32 s41, s41, 2'); a('s_lshr_b32 s47, s2, 6'); a('s_add_u32 s41, s41, s47')
        a('s_bfe_u32 s42, s2, 0x30003'); a('s_mov_b32 s48, s42')
    else:
        a('s_and_b32 s41, s2, 6'); a('s_lshl_b32 s41, s41, 2'); a('s_lshr_b32 s48, s2, 5'); a('s_add_u32 s41, s41, s48')
        a('s_and_b32 s42, s2, 1'); a('s_lshl_b32 s42, s42, 2'); a('s_bfe_u32 s47, s2, 0x20003'); a('s_add_u32 s42, s42, s47')
    a(f'v_lshlrev_b32 v248, 4, {L}')
    srd(a, 28, 22, 23, W2_SZ, WS_W2)
    a(f's_mul_i32 s52, s42, {W2_CB}'); a(f's_mul_i32 s46, s40, {17*5120}'); a('s_add_u32 s52, s52, s46')
    a('s_lshl_b32 s56, s47, 1'); a('s_add_u32 s56, s56, s48'); a('s_add_u32 s57, s48, s47')
    a(f's_mul_i32 s62, s40, {WREG}')
    q = Q(a, 'vmcnt', 63)
    def soff(s, dst, base, stride):
        if s == 16: a(f's_add_u32 {dst}, {base}, {16*stride}'); return
        if s < 8:
            a(f's_add_u32 {dst}, s56, {s}'); a(f's_and_b32 {dst}, {dst}, 7')
        else:
            a(f's_add_u32 {dst}, s57, {s}'); a(f's_and_b32 {dst}, {dst}, 3'); a(f's_add_u32 {dst}, {dst}, {s & ~3}')
        a(f's_mul_i32 {dst}, {dst}, {stride}'); a(f's_add_u32 {dst}, {dst}, {base}')
    free = list(range(80, 248, 4))
    WRg, ARg = {}, {}
    HS = [s for s in range(17) if WSRC[s] == 'H']; LS = [s for s in range(17) if WSRC[s] == 'L']; SS = [s for s in range(17) if WSRC[s] == 'S']
    assert len(WSRC) == 17 and len(LS) <= 7 and len(SS) <= 8 and WSRC[0] == 'H'
    def alloc(n):
        r = free[:n]; del free[:n]; assert len(r) == n; return r
    def wload(s, t, s0, s1):
        d = WRg[s][t]
        if t < 4: q.issue(('W', s), f'buffer_load_dwordx4 v[{d}:{d+3}], v248, s[28:31], {s0} offen offset:{t*1024} sc1')
        else: q.issue(('W', s), f'buffer_load_dwordx4 v[{d}:{d+3}], v248, s[28:31], {s1} offen sc1')
    def ldW(s):
        WRg[s] = alloc(5); soff(s, 's55', 's52', 5120); a('s_add_u32 s54, s55, 4096')
        for t in range(5): wload(s, t, 's55', 's54')
    def dmaW(s):
        po = LS.index(s) * 5120
        soff(s, 's55', 's52', 5120); a('s_add_u32 s54, s55, 4096')
        a(f's_add_u32 m0, s62, {po}')
        for t in range(4): q.issue(('W', s), f'buffer_load_dwordx4 v248, s[28:31], s55 offen offset:{t*1024} sc1 {NTP} lds')
        a(f's_add_u32 m0, s62, {po+4096}')
        q.issue(('W', s), f'buffer_load_dwordx4 v248, s[28:31], s54 offen sc1 {NTP} lds')
    for s in HS[:PRE]:
        WRg[s] = alloc(5); q.n[('W', s)] = 5; q.q += [('W', s)] * 5
    for s in HS[PRE:]: ldW(s)
    a('v_add_u32 v249, s62, v248')
    a(f'v_bfe_u32 v2, {L}, 2, 2'); a(f'v_lshrrev_b32 v3, 4, {L}'); a('v_lshlrev_b32 v2, 8, v2'); a('v_lshl_add_u32 v2, v3, 6, v2')
    a(f'v_and_b32 v3, 3, {L}'); a('v_lshl_add_u32 v2, v3, 4, v2')
    for t in range(4):
        a(f's_add_u32 s47, s40, {t}'); a('s_and_b32 s47, s47, 3'); a('s_lshl_b32 s47, s47, 10'); a(f'v_add_u32 v{250+t}, s47, v2')
    srd(a, 24, 22, 23, A2_SZ); srd(a, 32, 4, 5, XSZ); srd(a, 36, 18, 19, XSZ)
    a(f's_mul_i32 s50, s41, {A2_RB}'); a(f's_mul_i32 s46, s40, {17*4096}'); a('s_add_u32 s50, s50, s46')
    a(f'v_and_b32 v2, 15, {L}'); a(f'v_lshrrev_b32 v3, 4, {L}')
    a('s_lshl_b32 s47, s41, 6'); a('s_lshl_b32 s58, s40, 4'); a('s_add_u32 s58, s47, s58'); a('v_add_u32 v2, s58, v2')
    a('s_movk_i32 s58, 1280'); a('s_mul_i32 s59, s42, 160'); a('v_mul_lo_u32 v2, v2, s58'); a('v_add_u32 v2, s59, v2')
    a('v_lshl_add_u32 v254, v3, 4, v2'); a('v_lshl_add_u32 v255, v3, 3, v2')
    a('s_lshl_b32 s61, s40, 1'); a('s_lshl_b32 s61, 3, s61'); a('s_add_u32 s48, s47, 63')
    a('s_mul_i32 s58, s47, 607'); a('s_lshr_b32 s58, s58, 16'); a('s_mul_i32 s59, s48, 607'); a('s_lshr_b32 s59, s59, 16')
    a('s_cmp_lg_u32 s58, s59'); a('s_movk_i32 s64, 0x44'); a('s_cselect_b32 s64, 0x4444, s64')
    a('s_add_u32 s48, s47, 48')
    a('s_mul_i32 s58, s47, 410'); a('s_lshr_b32 s58, s58, 16'); a('s_mul_i32 s59, s48, 410'); a('s_lshr_b32 s59, s59, 16')
    a('s_cmp_lg_u32 s58, s59'); a('s_movk_i32 s66, 0x44'); a('s_cselect_b32 s66, 0x4444, s66'); a('s_lshl_b32 s67, s64, 16')
    a('s_lshl_b32 s65, s41, 2'); a('s_add_u32 s65, s65, s40'); a(f's_add_u32 s65, s65, {C_WG}'); a(f's_mul_i32 s65, s65, {CSTR}')
    a('s_add_u32 s61, s65, 128')
    SA = [3, 4, 5, 6, 7, 8, 9, 12, 13, 14, 15, 16, 17, 18, 19, 20, 21]
    for s in range(17): soff(s, f's{SA[s]}', 's50', 4096)
    SW = [72, 73, 74, 75, 76, 77, 78, 79, 63, 44, 45, 46, 48, 49, 51, 53]
    for n, s in enumerate(SS): soff(s, f's{SW[2*n]}', 's52', 5120); a(f's_add_u32 s{SW[2*n+1]}, s{SW[2*n]}, 4096')
    a(f'v_and_b32 v2, 1, {L}'); a('v_cmp_eq_u32 s[68:69], 1, v2')
    lds_wait(a, LCN + 4, 'v0', 'v1', sleep=1)
    stamp(a, 3)
    for s in LS: dmaW(s)
    if PROF and not NOV0: a('s_waitcnt vmcnt(0)'); stamp(a, 1)
    if OWN:
        if OWN == 1: a('s_cmp_eq_u32 s43, 1'); a('s_cbranch_scc1 g_own')
        lds_wait(a, LCN, 'v0', 'v1', sleep=2)
        a.label('g_own')
    if PPOLL:
        a('s_waitcnt vmcnt(0)'); a('s_mov_b32 s70, 0')
        for n in range(PPOLL - 1):
            a(f'global_load_dword v{8+n}, v4, s[10:11] sc1'); a(f's_sleep {PSL}')
        a.label('pp_top')
        for n in range(PPOLL):
            a(f'global_load_dword v{8+(n+PPOLL-1) % PPOLL}, v4, s[10:11] sc1')
            a(f's_waitcnt vmcnt({PPOLL-1})')
            a(f'v_and_b32 v1, s64, v{8+n}'); a('v_cmp_ne_u32 vcc, s64, v1'); a('s_nop 1'); a('s_cbranch_vccz pp_ok')
            a(f's_sleep {PSL}')
        a('s_add_u32 s70, s70, 1'); a(f's_cmp_lt_u32 s70, {SPIN}'); a('s_cbranch_scc1 pp_top')
        a('s_endpgm')
        a.label('pp_ok')
    elif SPOLL:
        if not NOV0: a('s_waitcnt vmcnt(0)')
        a('s_mov_b32 s70, 0')
        a.label('sp_top')
        if SPOLL == 1: a('s_mov_b32 s71, 0'); a('s_atomic_add s71, s[10:11], s65 glc')
        else: a('s_load_dword s71, s[10:11], s65 glc')
        a('s_waitcnt lgkmcnt(0)')
        a('s_and_b32 s71, s71, s64'); a('s_cmp_eq_u32 s71, s64'); a('s_cbranch_scc1 sp_ok')
        a(f's_sleep {SLEEP}')
        a('s_add_u32 s70, s70, 1'); a(f's_cmp_lt_u32 s70, {SPIN}'); a('s_cbranch_scc1 sp_top')
        a('s_endpgm')
        a.label('sp_ok')
    else: poll(a, 'v4', 'v1', 's64', mask=True)
    if not (NOV0 and SPOLL): q.clear()
    stamp(a, 4)
    pend = []
    for s in range(17):
        if s in SS: pend.append(('W', s))
        pend.append(('A', s))
        if s == 13: pend.append(('X', 14))
    ogate = [8]; XR = []
    dq = []
    def refill(cur, resv):
        while pend:
            k, s = pend[0]
            n = {'W': 5, 'A': 4, 'X': 3}[k]
            if (k, s) == ('A', 16): n = 8
            if len(free) - resv < n or s > cur + (LA_W if k == 'W' else LA_A): break
            if k == 'A' and s >= ogate[0]: break
            pend.pop(0); regs = alloc(n)
            if k == 'W':
                WRg[s] = regs; z = SS.index(s)
                for t in range(5): dq.append((s, lambda s=s, t=t, z=z: wload(s, t, f's{SW[2*z]}', f's{SW[2*z+1]}')))
            elif k == 'X':
                XR.extend(regs)
                dq.append((s, lambda: q.issue('X', f'buffer_load_dwordx4 v[{XR[0]}:{XR[0]+3}], v254, s[32:35], 0 offen')))
                dq.append((s, lambda: q.issue('X', f'buffer_load_dwordx4 v[{XR[1]}:{XR[1]+3}], v254, s[32:35], 0 offen offset:64')))
                dq.append((s, lambda: q.issue('X', f'buffer_load_dwordx2 v[{XR[2]}:{XR[2]+1}], v255, s[32:35], 0 offen offset:128')))
            else:
                ARg[s] = regs
                for t in range(4):
                    d = regs[t]
                    if s < 16: dq.append((s, lambda d=d, t=t, s=s: q.issue(('A', s), f'buffer_load_dwordx4 v[{d}:{d+3}], v{250+t}, s[24:27], s{SA[s]} offen sc1')))
                    else:
                        e = regs[4 + t]
                        dq.append((s, lambda d=d, t=t, s=s: (a(f'v_lshrrev_b32 v{d}, 5, v248'), a(f'v_and_b32 v{250+t}, 0xc00, v{250+t}'), a(f'v_lshl_add_u32 v{250+t}, v{d}, 4, v{250+t}'),
                                   q.issue(('A', s), f'buffer_load_dwordx4 v[{d}:{d+3}], v{250+t}, s[24:27], s{SA[s]} offen sc1'))))
                        dq.append((s, lambda e=e, t=t, s=s: q.issue(('A', s), f'buffer_load_dwordx4 v[{e}:{e+3}], v{250+t}, s[24:27], s{SA[s]} offen offset:512 sc1')))
    refill(0, 0)
    while dq: dq.pop(0)[1]()
    AC = lambda tr, tc: (tr * 5 + tc) * 4
    for s in range(17):
        while dq and dq[0][0] <= s + 1: dq.pop(0)[1]()
        assert q.n.get(('A', s)) == (4 if s < 16 else 8) and q.n.get(('W', s), 0) == 5, s
        q.wait(('W', s)); q.wait(('A', s))
        if SPROF == 1 and s in (0, 4, 8, 12): stamp(a, {0: 0, 4: 2, 8: 3, 12: 5}[s])
        vq = []
        if s == 15:
            q.wait('X'); U = alloc(5)
            xs = [XR[0] + n for n in range(4)] + [XR[1] + n for n in range(4)] + [XR[2], XR[2] + 1]
            for n in range(10):
                u = U[n >> 1] + 2 * (n & 1)
                vq += [f'v_lshlrev_b32 v{u}, 16, v{xs[n]}', f'v_and_b32 v{u+1}, 0xffff0000, v{xs[n]}']
        if s == 16:
            for t in (1, 2, 3, 0):
                d, e = ARg[s][t], ARg[s][4 + t]
                vq += [f'v_cndmask_b32 v{d}, v{d}, v{d+2}, s[68:69]\nv_cndmask_b32 v{d+1}, v{d+1}, v{d+3}, s[68:69]',
                       f'v_cndmask_b32 v{d+2}, v{e}, v{e+2}, s[68:69]\nv_cndmask_b32 v{d+3}, v{e+1}, v{e+3}, s[68:69]']
            a(vq.pop(0)); a(vq.pop(0))
            for tp in range(1, 4):
                a(f's_sub_u32 s{57+tp}, s40, {tp}'); a(f's_and_b32 s{57+tp}, s{57+tp}, 3'); a(f's_mul_i32 s{57+tp}, s{57+tp}, {WREG}')
            vq.append('v_add_u32 v250, s58, v248\nv_add_u32 v251, s59, v248\nv_add_u32 v252, s60, v248')
        if s in LS: a('s_waitcnt lgkmcnt(0)')
        assert OCHK not in LS and GCHK not in LS
        if s == OCHK - 1: sread(a, 's71', 's61')
        if s == GCHK - 1: sread(a, 's71', 's65')
        lq = []
        if s + 1 in LS:
            WRg[s + 1] = alloc(5)
            lq = [f'ds_read_b128 v[{d}:{d+3}], v249 offset:{LS.index(s+1)*5120 + t*1024}' for t, d in enumerate(WRg[s + 1])]
        n = 0
        if s == 16:
            while dq: dq.pop(0)[1]()
            wq = []
        for tr in (range(4) if s < 16 else (1, 2, 3, 0)):
            for tc in range(5):
                c = AC(tr, tc); w = WRg[s][tc]; x = ARg[s][tr]
                if s == 16:
                    if n >= 7: a(wq.pop(0))
                    if tr: wq.append(f'ds_write_b128 v249, v[{c}:{c+3}] offset:{(tr-1)*5120 + tc*1024}')
                src = '0' if s == 0 else f'v[{c}:{c+3}]'
                a(f'v_mfma_f32_16x16x32_bf16 v[{c}:{c+3}], v[{w}:{w+3}], v[{x}:{x+3}], {src}')
                pace = PACE if len(dq) <= 8 else 2
                if dq and n % pace == 0: dq.pop(0)[1]()
                elif lq: a(lq.pop(0))
                if vq: a(vq.pop(0))
                n += 1
            free.append(ARg[s][tr])
            if tr < 3: refill(s, 0)
        assert not lq
        free.extend(WRg[s])
        if s == GCHK:
            spoll(a, [('s71', 's65', 's67', True)], preissued=True); ogate[0] = 12
        if s == OCHK:
            spoll(a, [('s71', 's61', 's66', True)], preissued=True); ogate[0] = 17
            if not SPROF: stamp(a, 2)
        refill(s + 1, 5 if s + 2 in LS else 0)
    while dq: dq.pop(0)[1]()
    assert not pend
    if not SPROF: stamp(a, 5)
    for o in wq: a(o)
    free.extend(ARg[16][4:])
    RD = alloc(15)
    P = lambda r: f'v[{r}:{r+1}]'
    a('s_waitcnt lgkmcnt(0)'); bar(a); stamp(a, 6)
    order = [(tp, tc) for grp in ((0, 1), (2, 3), (4,)) for tp in range(1, 4) for tc in grp]
    for tp, tc in order:
        d = RD[5 * (tp - 1) + tc]
        a(f'ds_read_b128 v[{d}:{d+3}], v{249+tp} offset:{(tp-1)*5120 + tc*1024}')
    for n in range(10): a(f'v_pk_add_f32 {P(2*n)}, {P(2*n)}, {P(U[n >> 1] + 2 * (n & 1))}')
    left = 15
    for gi, grp in enumerate(((0, 1), (2, 3), (4,))):
        for tp in range(1, 4):
            left -= len(grp); a(f's_waitcnt lgkmcnt({left})')
            for tc in grp:
                for h in range(2): a(f'v_pk_add_f32 {P(4*tc+2*h)}, {P(4*tc+2*h)}, {P(RD[5*(tp-1)+tc] + 2*h)}')
        for tc in grp:
            for h in range(2): a(f'v_cvt_pk_bf16_f32 v{40+2*tc+h}, v{4*tc+2*h}, v{4*tc+2*h+1}')
        if gi < 2: a(f'buffer_store_dwordx4 v[{40+4*gi}:{43+4*gi}], v254, s[36:39], 0 offen offset:{64*gi} {OSC}')
        else: a(f'buffer_store_dwordx2 v[48:49], v255, s[36:39], 0 offen offset:128 {OSC}')
    stamp_flush(a, 4); MUTE[0] = False
    a('s_endpgm')

def mainloop(a, P, NT, NJ, ACC, WF, XB, wread, nw, onest, XS, swapj=-1):
    q = Q(a, 'lgkmcnt', 15)
    def xread(step, t):
        b = XB((NT * step + t) % 4)
        q.issue(('X', step % 4, t), f'ds_read_b128 v[{b}:{b+3}], v{238 + (step & 1)} offset:{t*2048}')
    def fix(step, h):
        b = XB((NT * step + onest) % 4) + 2 * h
        a(f'v_cndmask_b32 v{b}, v{b}, v242, s[64:65]'); a(f'v_cndmask_b32 v{b+1}, v{b+1}, v242, s[64:65]')
    a('s_mov_b32 s60, 0'); a('s_mov_b32 s61, 0')
    if E('CPRIO', 0): a(f's_setprio {E("CPRIO", 0)}')
    stamp(a, 1); bar(a); stamp(a, 2)
    for idx in range(nw): wread(q, 0, 0, idx)
    for t in range(3): xread(0, t)
    if onest == 0:
        q.wait(('X', 0, 0)); fix(0, 0); fix(0, 1)
    a.label(f'{P}_loop')
    wper = 3 if NJ == 6 else 1
    for k in range(4):
        cur, nxt = k & 1, (k + 1) & 1
        widx = 0
        for t in range(NT):
            q.wait(('X', k, t))
            fill = []
            tt = t + 3
            fill.append(lambda tt=tt: xread(k if tt < NT else k + 1, tt if tt < NT else tt - NT))
            if t == 0:
                if k < 2: fill.append(lambda: bar(a))
                else: fill.append(lambda: (a('s_cmp_eq_u32 s61, 4'), a(f's_cbranch_scc1 {P}_nb{k}'), bar(a), a.label(f'{P}_nb{k}')))
            for _ in range(wper + (1 if (NJ == 4 and t in (1, 2)) else 0)):
                if widx < nw:
                    fill.append(lambda w=widx: wread(q, (k + 1) % 4, nxt, w)); widx += 1
            if t == NT - 3:
                if k & 1 == 0:
                    fill.append(lambda: (a(f's_add_u32 s60, s60, {XS}'), a(f's_cmp_ge_u32 s60, {3*XS}')))
                    fill.append(lambda: (a('s_cselect_b32 s60, 0, s60'), a('v_add_u32 v238, s60, v240')))
                else:
                    fill.append(lambda: a('v_add_u32 v239, s60, v241'))
            if t == (onest - 1) % NT:
                st = k if onest > 0 else k + 1
                fill.append(lambda st=st: (q.wait(('X', st % 4, onest)), fix(st, 0)))
                fill.append(lambda st=st: fix(st, 1))
            if t == NT - 2 and k == 3:
                fill.append(lambda: (a('s_add_u32 s61, s61, 1'), a('s_cmp_lt_u32 s61, 5')))
            xb = XB((NT * k + t) % 4)
            for j in (range(NJ) if not (E('SNAKE', 0) and t & 1) else range(NJ - 1, -1, -1)):
                cc = ACC(j, t)
                oa, ob = (xb, WF(cur, j)) if j == swapj else (WF(cur, j), xb)
                a(f'v_mfma_f32_16x16x32_bf16 v[{cc}:{cc+3}], v[{oa}:{oa+3}], v[{ob}:{ob+3}], v[{cc}:{cc+3}]')
                if fill: fill.pop(0)()
            assert not fill, (t, len(fill))
        assert widx == nw
    a(f's_cbranch_scc1 {P}_loop')
    a('s_waitcnt lgkmcnt(0)')
    stamp(a, 3)
    if not ((QLATE and swapj >= 0) or (GLATE >= 0 and swapj < 0)): lds_arrive(a, LCN + 4, 'v246', 'v247')

def cons_common(a, T0, nacc, XO, onelane, P):
    if P == 'cq':
        for n in range(24, 36, 2): a(f's_mov_b64 s[{n}:{n+1}], 0')
        a('s_mov_b32 s56, 1')
    dryrun(a, P)
    g, i, r, c, t5 = [f'v{T0+8+n}' for n in range(5)]
    for n in range(4): a(f'v_mov_b32 v{T0+n}, 0')
    a(f'v_lshrrev_b32 {g}, 4, {L}'); a(f'v_and_b32 {i}, 15, {L}'); a(f'v_bfe_u32 {r}, {L}, 2, 2'); a(f'v_and_b32 {c}, 3, {L}')
    for n in range(nacc // 16): a(f'v_mfma_f32_32x32x16_bf16 v[{16*n}:{16*n+15}], v[{T0}:{T0+3}], v[{T0}:{T0+3}], 0')
    for n in range(nacc // 16 * 16, nacc, 4): a(f'v_mfma_f32_16x16x32_bf16 v[{n}:{n+3}], v[{T0}:{T0+3}], v[{T0}:{T0+3}], 0')
    a(f'v_lshrrev_b32 {t5}, 1, {i}'); a(f'v_xor_b32 {t5}, {t5}, {g}'); a(f'v_lshlrev_b32 {t5}, 4, {t5}'); a(f'v_lshl_or_b32 {t5}, {i}, 7, {t5}')
    a(f'v_add_u32 v240, {XO}, {t5}'); a('v_xor_b32 v241, 64, v240')
    a('v_mov_b32 v238, v240'); a('v_mov_b32 v239, v241')
    a('v_mov_b32 v242, 0x3f803f80'); a(f'v_cmp_eq_u32 s[64:65], {onelane}, {i}')
    a(f'v_mov_b32 {t5}, {LCN}'); a(f'ds_write_b128 {t5}, v[{T0}:{T0+3}]')
    a(f'v_lshlrev_b32 v248, 4, {i}'); a(f'v_add_u32 v248, {LST}, v248')

Pk = lambda r: f'v[{r}:{r+1}]'
def consumerG(a):
    ACC = lambda j, t: (j * 7 + t) * 4
    WF = lambda s, j: 168 + s * 24 + j * 4
    XB = lambda b: 216 + 4 * b
    WA = lambda hi, j: 232 + 3 * hi + j
    T0 = 168
    g, i, r, c, t5, t6, t7, t8 = [f'v{T0+8+n}' for n in range(8)]
    cons_common(a, T0, 168, GX, 15, 'cg')
    a(f'v_lshrrev_b32 {t5}, 1, {r}'); a(f'v_lshlrev_b32 {t5}, 2, {t5}'); a(f'v_and_b32 {t6}, 1, {g}'); a(f'v_or_b32 {t5}, {t5}, {t6}')
    a(f'v_lshlrev_b32 {t5}, 4, {t5}'); a(f'v_lshl_or_b32 {t5}, {r}, 7, {t5}'); a(f'v_lshl_or_b32 {t5}, {g}, 10, {t5}')
    a('s_lshr_b32 s51, s40, 1'); a('s_mul_i32 s51, s51, 3'); a('s_add_u32 s52, s51, 1')
    a('s_and_b32 s53, s40, 1'); a('s_lshl_b32 s54, s53, 1'); a('s_add_u32 s51, s51, s54')
    a(f'v_and_b32 {t6}, 1, {c}'); a(f'v_lshlrev_b32 {t7}, 4, {c}'); a(f'v_lshl_or_b32 {t7}, {t6}, 3, {t7}'); a(f'v_xor_b32 {t7}, {t7}, {t5}')
    a('s_and_b32 s54, s51, 1'); a('s_lshl_b32 s54, s54, 6'); a('s_lshr_b32 s55, s51, 1'); a('s_lshl_b32 s55, s55, 12')
    a(f'v_xor_b32 {t7}, s54, {t7}'); a(f'v_add_u32 v{WA(0,0)}, s55, {t7}'); a(f'v_xor_b32 v{WA(0,1)}, 8, v{WA(0,0)}')
    a(f'v_lshrrev_b32 {t7}, 1, {c}'); a(f'v_xor_b32 {t6}, {t6}, {t7}'); a(f'v_lshlrev_b32 {t7}, 4, {t7}'); a(f'v_lshl_or_b32 {t7}, {t6}, 3, {t7}')
    a(f'v_xor_b32 {t7}, {t7}, {t5}')
    a('s_and_b32 s54, s52, 1'); a('s_lshl_b32 s54, s54, 6'); a('s_lshl_b32 s56, s53, 5'); a('s_or_b32 s54, s54, s56')
    a('s_lshr_b32 s55, s52, 1'); a('s_lshl_b32 s55, s55, 12')
    a(f'v_xor_b32 {t7}, s54, {t7}'); a(f'v_add_u32 v{WA(0,2)}, s55, {t7}')
    for j in range(3): a(f'v_add_u32 v{WA(1,j)}, 49152, v{WA(0,j)}')
    a(f'v_lshrrev_b32 {t8}, 1, {g}'); a('s_lshl_b32 s56, s53, 1'); a(f'v_add_u32 {t8}, s56, {t8}')
    a('s_lshr_b32 s54, s44, 1'); a('s_mul_i32 s54, s54, 17'); a('s_and_b32 s57, s44, 1'); a('s_lshl_b32 s57, s57, 2'); a('s_add_u32 s57, s57, s40')
    a('s_add_u32 s55, s54, s57'); a('s_lshl_b32 s55, s55, 12'); a(f'v_lshl_add_u32 v251, {g}, 6, s55')
    a('s_lshr_b32 s57, s57, 1'); a('s_add_u32 s55, s54, s57'); a('s_add_u32 s55, s55, 8'); a('s_lshl_b32 s55, s55, 12'); a(f'v_lshl_add_u32 v252, {t8}, 6, s55')
    a('s_mov_b32 s62, s41'); a('s_add_u32 s63, s41, 107'); a('s_movk_i32 s66, 607'); a('s_mov_b32 s67, 0')
    a('s_waitcnt lgkmcnt(0)')
    sigprep(a)
    a(f'v_lshlrev_b32 v249, 2, {i}'); a(f'v_add_u32 v249, {LRP}, v249')
    a(f'v_and_b32 {t5}, 1, {g}'); a(f'v_lshl_add_u32 v250, {t5}, 6, v249')
    a('s_waitcnt lgkmcnt(0)')
    cntbase(a); srd(a, 36, 22, 23, A2_SZ)
    def wread(q, slot, setn, idx):
        j, hf = idx >> 1, idx & 1
        off = (slot & 1) * 24576 + (j // 3) * 12288 + hf * 512
        d = WF(setn, j) + 2 * hf
        q.issue('W', f'ds_read_b64_tr_b16 v[{d}:{d+1}], v{WA(slot >> 1, j % 3)} offset:{off}')
    mainloop(a, 'cg', 7, 6, ACC, WF, XB, wread, 12, 6, GXS)
    ST = lambda t: 168 + 4 * t
    CS = lambda j: 196 + 4 * j
    RP = lambda t: 232 + t
    RS = lambda p: 244 + p
    seg(a, 'cg', 0)
    for p in range(4): a(f'ds_read2_b32 v[{RP(2*p)}:{RP(2*p)+1}], v249 offset0:{32*p} offset1:{32*p+16}')
    for p in range(2): a(f'ds_read2_b32 v[{RS(2*p)}:{RS(2*p)+1}], v250 offset0:{64*p} offset1:{64*p+32}')
    for t in range(7): a(f'ds_read_b128 v[{ST(t)}:{ST(t)+3}], v248 offset:{t*256}')
    for j in range(6):
        for rr in range(4):
            a(f'v_mov_b32_dpp v{CS(j)+rr}, v{ACC(j,6)+rr} row_newbcast:15 row_mask:0xf bank_mask:0xf')
    P = Pk
    T = lambda n: 220 + 2 * n
    def geglu(items):
        G = lambda t, j, hp: ACC(j, t) + 2 * hp
        U = lambda t, j, hp: ACC(j + 3, t) + 2 * hp
        s01 = lambda t: P(ST(t)); s23 = lambda t: P(ST(t) + 2)
        en = list(enumerate(items))
        for n, (t, j, hp, d) in en: a(f'v_pk_fma_f32 {P(G(t,j,hp))}, {P(CS(j)+2*hp)}, {s01(t)}, {P(G(t,j,hp))} op_sel:[0,0,0] op_sel_hi:[1,0,1]')
        for n, (t, j, hp, d) in en: a(f'v_pk_mul_f32 {P(T(n))}, {P(G(t,j,hp))}, {P(G(t,j,hp))}')
        for n, (t, j, hp, d) in en: a(f'v_pk_fma_f32 {P(T(n))}, {P(T(n))}, {s23(t)}, {s01(t)} op_sel:[0,0,1] op_sel_hi:[1,0,1]')
        for n, (t, j, hp, d) in en: a(f'v_pk_mul_f32 {P(T(n))}, {P(T(n))}, {P(G(t,j,hp))}')
        for n, (t, j, hp, d) in en:
            a(f'v_exp_f32 v{T(n)}, v{T(n)}'); a(f'v_exp_f32 v{T(n)+1}, v{T(n)+1}')
            a(f'v_pk_fma_f32 {P(U(t,j,hp))}, {P(CS(j+3)+2*hp)}, {s01(t)}, {P(U(t,j,hp))} op_sel:[0,0,0] op_sel_hi:[1,0,1]')
        for n, (t, j, hp, d) in en: a(f'v_pk_fma_f32 {P(T(n))}, {P(T(n))}, {s23(t)}, {s23(t)} op_sel:[0,1,1] op_sel_hi:[1,1,1]')
        for n, (t, j, hp, d) in en:
            a(f'v_rcp_f32 v{T(n)}, v{T(n)}'); a(f'v_rcp_f32 v{T(n)+1}, v{T(n)+1}')
            a(f'v_pk_mul_f32 {P(U(t,j,hp))}, {P(U(t,j,hp))}, {P(G(t,j,hp))}')
        for n, (t, j, hp, d) in en: a(f'v_pk_mul_f32 {P(U(t,j,hp))}, {P(U(t,j,hp))}, {P(T(n))}')
        for n, (t, j, hp, d) in en: a(f'v_cvt_pk_bf16_f32 v{d}, v{U(t,j,hp)}, v{U(t,j,hp)+1}')
    for t in range(7):
        if t in (2, 5): seg(a, 'cg', 1 if t == 2 else 2)
        a(f's_waitcnt lgkmcnt({6-t})')
        o4 = ACC(0, t)
        geglu([(t, j, hp, o4 + 2 * j + hp) for j in range(2) for hp in range(2)])
        a(f'v_add_u32 v{ACC(1,t)}, v{RP(t)}, v251')
        guard(a, f'buffer_store_dwordx4 v[{o4}:{o4+3}], v{ACC(1,t)}, s[36:39], 0 offen sc1')
    if SPROF == 0: stamp(a, 6)
    pst = []
    for p in range(4):
        if p == 1: seg(a, 'cg', 3)
        Ep = ACC(3, 2 * p)
        geglu([(t, 2, hp, Ep + 2 * (t & 1) + hp) for t in (2 * p, 2 * p + 1) if t < 7 for hp in range(2)])
        ad = ACC(4, 2 * p)
        a(f'v_add_u32 v{ad}, v{RS(p)}, v252')
        a(f'v_permlane16_swap_b32 v{Ep}, v{Ep+2}'); a(f'v_permlane16_swap_b32 v{Ep+1}, v{Ep+3}')
        pst.append(f'buffer_store_dwordx4 v[{Ep}:{Ep+3}], v{ad}, s[36:39], 0 offen sc1')
        if TWO and p == E('SIG1', 0):
            if DRY: a('s_cbranch_execz cg_s1x')
            a('s_waitcnt vmcnt(0)')
            signal(a, 'cg_s1')
            lds_arrive(a, LCN, 'v240', 'v241')
            a('s_waitcnt lgkmcnt(0)') if False else None
            if DRY: a.label('cg_s1x')
        if not TWO or p >= E('SIG1', 0):
            guard(a, *pst); pst = []
    seg(a, 'cg', 4)
    a('s_waitcnt lgkmcnt(0)')
    for n in range(4):
        if TWO: a(f's_lshl_b32 s{13+2*n}, s{13+2*n}, 16')
        else: a(f's_mul_i32 s{13+2*n}, s{13+2*n}, 0x10001')
    a('s_branch k_pub2')

def sigprep(a):
    a('s_lshr_b32 s62, s62, 6'); a('s_min_u32 s63, s63, 2047'); a('s_lshr_b32 s63, s63, 6')
    a('s_lshr_b32 s20, s44, 1'); a(f's_add_u32 s20, s20, {C_WG}'); a('s_and_b32 s21, s44, 1'); a('s_lshl_b32 s21, s21, 2')
    for n in range(4):
        o, v = f's{12+2*n}', f's{13+2*n}'
        a(f's_add_u32 {o}, s62, {n}')
        a(f's_lshl_b32 {v}, {o}, 6'); a(f's_mul_i32 {v}, {v}, s66'); a(f's_lshr_b32 {v}, {v}, 16'); a(f's_sub_u32 {v}, s45, {v}')
        a(f's_lshl_b32 {v}, {v}, 3'); a(f's_add_u32 {v}, {v}, s21'); a(f's_lshl_b32 {v}, 1, {v}')
        a(f's_lshl_b32 {o}, {o}, 2'); a(f's_add_u32 {o}, {o}, s20'); a(f's_mul_i32 {o}, {o}, {CSTR}'); a(f's_add_u32 {o}, {o}, s67')
    a('s_sub_u32 s63, s63, s62')
def signal(a, lbl):
    for n in range(4):
        if n >= 2: a(f's_cmp_lt_u32 s63, {n}'); a(f's_cbranch_scc1 {lbl}')
        a(f's_atomic_add s{13+2*n}, s[10:11], s{12+2*n}')
    a.label(lbl)

def publish(a):
    a.label('k_pub2')
    stamp(a, 4)
    a('s_waitcnt vmcnt(0)')
    if SPROF != 3: stamp(a, 5)
    signal(a, 'pub_x')
    lds_arrive(a, LCN, 'v252', 'v253')
    a('s_waitcnt lgkmcnt(0)')
    stamp_flush(a, 0)

def consumerQ(a):
    ACC = lambda j, t: (j * 11 + t) * 4
    WF = lambda s, j: 176 + s * 16 + j * 4
    XB = lambda b: 208 + 4 * b
    T0 = 176
    g, i, r, c, t5, t6, t7 = [f'v{T0+8+n}' for n in range(7)]
    cons_common(a, T0, 176, QX, 0, 'cq')
    a('s_mov_b64 s[24:25], -1'); a('s_mov_b32 s26, 0xffff0000'); a('s_mov_b32 s27, -1')
    a('s_mov_b32 s28, 0xffff'); a('s_mov_b32 s30, 0xffff0000'); a('s_mov_b32 s33, 0xffff'); a('s_mov_b32 s35, 0xffff0000')
    a(f'v_lshrrev_b32 {t5}, 1, {g}'); a(f'v_lshlrev_b32 {t5}, 4, {t5}'); a(f'v_and_b32 {t6}, 1, {g}'); a(f'v_lshl_add_u32 {t5}, {t6}, 2, {t5}'); a(f'v_add_u32 {t5}, {t5}, {r}')
    a(f'v_mul_u32_u24 {t5}, 160, {t5}'); a('s_mul_i32 s51, s40, 40'); a(f'v_add_u32 {t5}, s51, {t5}')
    a(f'v_lshl_add_u32 v224, {c}, 3, {t5}')
    a(f'v_min_u32 {t6}, 2, {c}'); a(f'v_mul_u32_u24 {t6}, 5120, {t6}'); a(f'v_add3_u32 v225, {t5}, {t6}, 32')
    if E('ZQ', 0): a(f'v_cmp_eq_u32 vcc, 3, {c}'); a(f'v_mov_b32 {t6}, 0x30000'); a(f'v_cndmask_b32 v225, v225, {t6}, vcc')
    a('s_mul_i32 s51, s40, 1408'); a(f's_add_u32 s51, s51, {4*WREG}')
    a(f'v_lshl_add_u32 v228, {i}, 3, s51'); a(f'v_add_u32 {t5}, 5632, v228'); a(f'v_cmp_eq_u32 vcc, 2, {g}'); a(f'v_cndmask_b32 v228, {t5}, v228, vcc')
    a(f'v_lshrrev_b32 {t5}, 2, {L}'); a(f'v_lshl_add_u32 v229, {t5}, 3, s51')
    a(f'v_lshlrev_b32 v230, 4, {g}'); a(f'v_add_u32 v230, {LS2}, v230')
    a(f'v_and_b32 {t5}, 1, {i}'); a(f'v_cmp_eq_u32 s[74:75], 1, {t5}')
    a(f'v_lshl_add_u32 {t6}, {g}, 2, {t5}'); a(f'v_cmp_le_u32 s[76:77], {t6}, {i}')
    a(f'v_add_u32 {t6}, 2, {t6}'); a(f'v_cmp_le_u32 s[78:79], {t6}, {i}')
    a(f'v_mov_b32 {t7}, 0x0c0c0c0c')
    a(f'v_mov_b32 {t5}, 0x0c0c0100'); a(f'v_mov_b32 {t6}, 0x01000c0c'); a(f'v_cndmask_b32 {t5}, {t5}, {t6}, s[74:75]')
    a(f'v_cndmask_b32 v232, {t5}, {t7}, s[76:77]'); a(f'v_cndmask_b32 v234, {t7}, {t5}, s[76:77]')
    a(f'v_mov_b32 {t5}, 0x0c0c0302'); a(f'v_mov_b32 {t6}, 0x03020c0c'); a(f'v_cndmask_b32 {t5}, {t5}, {t6}, s[74:75]')
    a(f'v_cndmask_b32 v233, {t5}, {t7}, s[78:79]'); a(f'v_cndmask_b32 v235, {t7}, {t5}, s[78:79]')
    a('s_mul_i32 s56, s45, 10')
    a('s_lshr_b32 s57, s44, 1'); a('s_mul_i32 s57, s57, 17'); a('s_add_u32 s57, s57, 12'); a('s_and_b32 s58, s44, 1'); a('s_lshl_b32 s58, s58, 1')
    a('s_lshr_b32 s52, s40, 1'); a('s_add_u32 s58, s58, s52'); a('s_and_b32 s53, s40, 1')
    a('s_add_u32 s59, s57, s58'); a('s_lshl_b32 s59, s59, 12'); a('s_lshl_b32 s52, s53, 7'); a('s_add_u32 s59, s59, s52'); a('s_lshl_b32 s52, s53, 9')
    a(f'v_lshrrev_b32 {t5}, 1, {g}'); a(f'v_lshlrev_b32 {t5}, 6, {t5}'); a(f'v_and_b32 {t6}, 1, {g}'); a(f'v_lshl_add_u32 {t5}, {t6}, 10, {t5}')
    a(f'v_lshl_add_u32 {t5}, {r}, 8, {t5}'); a(f'v_lshl_add_u32 {t5}, {c}, 4, {t5}'); a(f'v_add_u32 v236, s59, {t5}')
    a('s_add_u32 s57, s57, 4'); a('s_lshl_b32 s57, s57, 12'); a('s_add_u32 s57, s57, s52'); a('s_lshl_b32 s58, s58, 7'); a('s_add_u32 s57, s57, s58')
    a(f'v_add_u32 {t5}, s56, {g}'); a(f'v_lshrrev_b32 {t6}, 2, {t5}'); a(f's_mov_b32 s58, {A2_RB}'); a(f'v_mul_lo_u32 {t6}, {t6}, s58')
    a(f'v_and_b32 {t5}, 3, {t5}'); a(f'v_lshl_add_u32 {t6}, {t5}, 10, {t6}'); a(f'v_lshl_add_u32 {t6}, {i}, 3, {t6}'); a(f'v_add_u32 v237, s57, {t6}')
    a(f'v_mov_b32 {t5}, {OOB}'); a(f'v_cmp_gt_u32 vcc, 2, {g}'); a(f'v_cndmask_b32 v244, {t5}, v237, vcc')
    for n in range(5):
        a(f's_add_u32 s57, s56, {2*n}'); a('s_lshr_b32 s59, s57, 2'); a('s_mul_i32 s59, s59, s58'); a('s_and_b32 s57, s57, 3'); a('s_lshl_b32 s57, s57, 10'); a(f's_add_u32 s{48+n}, s59, s57')
    a('s_lshl_b32 s53, s58, 1')
    a('s_waitcnt lgkmcnt(0)')
    a('s_add_u32 s62, s41, 16'); a('s_add_u32 s63, s41, 175'); a('s_movk_i32 s66, 410'); a('s_movk_i32 s67, 128')
    sigprep(a)
    cntbase(a); srd(a, 36, 22, 23, A2_SZ)
    def wread(q, slot, setn, idx):
        j, hf = idx >> 1, idx & 1
        d = WF(setn, j) + 2 * hf
        if j < 3: q.issue('W', f'ds_read_b64_tr_b16 v[{d}:{d+1}], v224 offset:{slot*QWS + j*5120 + hf*1280}')
        else: q.issue('W', f'ds_read_b64_tr_b16 v[{d}:{d+1}], v225 offset:{slot*QWS + hf*1280}')
    mainloop(a, 'cq', 11, 4, ACC, WF, XB, wread, 8, 0, QXS, swapj=2)
    ST = lambda t: 176 + 2 * t
    CS = lambda j: 198 + 4 * (j if j < 2 else 2)
    VS = lambda t: (212, 220, 238)[t % 3]
    VR = lambda t: (216, 224, 250)[t % 3]
    Vp = lambda t: 88 + 2 * t
    Vl = lambda t: 110 + 2 * t
    P = Pk
    q = Q(a, 'lgkmcnt', 15)
    seg(a, 'cq', 0)
    for t in range(11): q.issue('S', f'ds_read_b64 v[{ST(t)}:{ST(t)+1}], v248 offset:{t*256}')
    def rdVS(t):
        q.issue(('VS', t), f'ds_read_b128 v[{VS(t)}:{VS(t)+3}], v230 offset:{t*64}')
        q.issue(('VS', t), f'ds_read_b128 v[{VR(t)}:{VR(t)+3}], v230 offset:{t*64+768}')
    rdVS(0); rdVS(1)
    for j in (0, 1, 3):
        for rr in range(4):
            a(f'v_mov_b32_dpp v{CS(j)+rr}, v{ACC(j,0)+rr} row_newbcast:0 row_mask:0xf bank_mask:0xf')
    a(f'v_mov_b32 v210, v{ACC(2,0)}'); a(f'v_mov_b32 v211, v{ACC(2,0)}'); a('v_permlane16_swap_b32 v210, v211')
    a('v_mov_b32 v211, v210'); a('v_permlane32_swap_b32 v210, v211')
    for t in range(11):
        if t == 5: seg(a, 'cq', 1)
        q.wait(('VS', t))
        if t < 9: rdVS(t + 2)
        s01 = P(ST(t))
        js = (1, 3) if t == 0 else (0, 1, 3)
        prs = [(j, hp) for j in js for hp in range(2)]
        G = lambda j, hp: ACC(j, t) + 2 * hp
        for j, hp in prs: a(f'v_pk_fma_f32 {P(G(j,hp))}, {P(CS(j)+2*hp)}, {s01}, {P(G(j,hp))} op_sel:[0,0,0] op_sel_hi:[1,0,1]')
        for hp in range(2): a(f'v_pk_fma_f32 {P(G(2,hp))}, {P(VS(t)+2*hp)}, v[210:211], {P(G(2,hp))} op_sel:[0,0,0] op_sel_hi:[1,0,1]')
        for j, hp in prs: a(f'v_pk_mul_f32 {P(G(j,hp))}, {P(G(j,hp))}, {s01} op_sel:[0,1] op_sel_hi:[1,1]')
        for hp in range(2): a(f'v_pk_mul_f32 {P(G(2,hp))}, {P(G(2,hp))}, {P(VR(t)+2*hp)}')
        for j in js[:-1]:
            for hp in range(2): a(f'v_cvt_pk_bf16_f32 v{ACC(j,t)+hp}, v{G(j,hp)}, v{G(j,hp)+1}')
        for j in (0, 1):
            for hp in range(2): a(f'v_cvt_pk_bf16_f32 v{ACC(j,t)+2+hp}, v{G(3,hp)}, v{G(3,hp)+1}')
        for hp in range(2): a(f'v_cvt_pk_bf16_f32 v{Vp(t)+hp}, v{G(2,hp)}, v{G(2,hp)+1}')
        q.issue('w', f'ds_write_b64 v228, v[{ACC(1,t)+2}:{ACC(1,t)+3}] offset:{t*128}')
    seg(a, 'cq', 2)
    if SPROF == 3: stamp(a, 1)
    SC = lambda u: 132 + 8 * u; SP = lambda u: 136 + 8 * u
    Qf = lambda u: ACC(0, u + 1); Kf = lambda t: ACC(1, t)
    for t in range(11):
        for hp in range(2): a(f'v_permlane16_swap_b32 v{ACC(0,t)+2+hp}, v{ACC(1,t)+2+hp}')
    q.wait('w')
    for t in range(11): q.issue('V', f'ds_read_b64_tr_b16 v[{Vl(t)}:{Vl(t)+1}], v229 offset:{t*128}')
    a('s_mov_b64 exec, s[26:27]')
    for u in range(10): a(f'v_mov_b64 v[{Qf(u)+2}:{Qf(u)+3}], 0')
    a('s_mov_b64 exec, s[24:25]')
    def sel1(u):
        a(f'v_cndmask_b32 v{SC(u)}, v{SC(u)}, v{SC(u)+1}, s[74:75]'); a(f'v_cndmask_b32 v{SC(u)+2}, v{SC(u)+2}, v{SC(u)+3}, s[74:75]')
        a(f'v_cndmask_b32 v{SP(u)}, v{SP(u)}, v{SP(u)+1}, s[74:75]'); a(f'v_cndmask_b32 v{SP(u)+2}, v{SP(u)+2}, v{SP(u)+3}, s[74:75]')
    for u in range(10):
        a(f'v_mfma_f32_16x16x32_bf16 v[{SC(u)}:{SC(u)+3}], v[{Kf(u+1)}:{Kf(u+1)+3}], v[{Qf(u)}:{Qf(u)+3}], 0')
        a(f'v_mfma_f32_16x16x32_bf16 v[{SP(u)}:{SP(u)+3}], v[{Kf(u)}:{Kf(u)+3}], v[{Qf(u)}:{Qf(u)+3}], 0')
        if u >= 3: sel1(u - 3)
    for u in range(7, 10): sel1(u)
    a('s_cmp_lg_u32 s56, 0'); a('s_cbranch_scc1 cq_nofix')
    a(f'v_mov_b32 v{SP(0)}, {f32(-1e30)}'); a(f'v_mov_b32 v{SP(0)+2}, {f32(-1e30)}')
    a.label('cq_nofix')
    if QLATE: lds_arrive(a, LCN + 4, 'v238', 'v239')
    if SPROF == 3: stamp(a, 2)
    LA = lambda u: 44 + 2 * u; LB = lambda u: 45 + 2 * u; M = lambda u: 64 + u
    for u in range(10):
        a(f'v_cndmask_b32 v{LA(u)}, v{SP(u)}, v{SC(u)}, s[76:77]'); a(f'v_cndmask_b32 v{LB(u)}, v{SP(u)+2}, v{SC(u)+2}, s[78:79]')
    for u in range(10): a(f'v_max_f32 v{M(u)}, v{LA(u)}, v{LB(u)}')
    a('v_mov_b32 v74, 1.0'); a('v_mov_b32 v75, 1.0')
    def reduce12(op, post):
        B4 = [64, 68, 72]
        for A in B4: a(f'v_permlane16_swap_b32 v{A}, v{A+1}'); a(f'v_permlane16_swap_b32 v{A+2}, v{A+3}')
        for A in B4: a(f'{op} v{A}, v{A}, v{A+1}'); a(f'{op} v{A+2}, v{A+2}, v{A+3}')
        for A in B4: a(f'v_permlane32_swap_b32 v{A}, v{A+2}')
        for A in B4: a(f'{op} v{A}, v{A}, v{A+2}')
        for A in B4: post(A)
        for A in B4: a(f'v_mov_b32 v{A+2}, v{A}')
        for A in B4: a(f'v_permlane32_swap_b32 v{A}, v{A+2}')
        for A in B4: a(f'v_mov_b32 v{A+1}, v{A}'); a(f'v_mov_b32 v{A+3}, v{A+2}')
        for A in B4: a(f'v_permlane16_swap_b32 v{A}, v{A+1}'); a(f'v_permlane16_swap_b32 v{A+2}, v{A+3}')
    cs = 20 ** -0.5 * LOG2E
    a(f's_mov_b32 s68, {f32(cs)}'); a(f's_mov_b32 s69, {f32(cs)}')
    reduce12('v_max_f32', lambda r: a(f'v_mul_f32 v{r}, s68, v{r}'))
    for u in range(10):
        h = M(u) & 1
        a(f'v_pk_fma_f32 {P(LA(u))}, {P(LA(u))}, s[68:69], {P(M(u) & ~1)} op_sel:[0,0,{h}] op_sel_hi:[1,1,{h}] neg_lo:[0,0,1] neg_hi:[0,0,1]')
    for u in range(10):
        a(f'v_exp_f32 v{LA(u)}, v{LA(u)}'); a(f'v_exp_f32 v{LB(u)}, v{LB(u)}')
    seg(a, 'cq', 3)
    for u in range(10): a(f'v_add_f32 v{M(u)}, v{LA(u)}, v{LB(u)}')
    reduce12('v_add_f32', lambda r: a(f'v_rcp_f32 v{r}, v{r}'))
    for u in range(10):
        h = M(u) & 1
        a(f'v_pk_mul_f32 {P(LA(u))}, {P(LA(u))}, {P(M(u) & ~1)} op_sel:[0,{h}] op_sel_hi:[1,{h}]')
    for u in range(10): a(f'v_cvt_pk_bf16_f32 v{LA(u)}, v{LA(u)}, v{LB(u)}')
    a('s_waitcnt lgkmcnt(0)')
    if SPROF == 3: stamp(a, 5)
    PF = Qf
    def pv(u):
        a(f'v_mfma_f32_16x16x32_bf16 v[{SC(u)}:{SC(u)+3}], v[{Vp(u)}:{Vp(u)+3}], v[{PF(u)}:{PF(u)+3}], 0')
        a(f'v_mfma_f32_16x16x32_bf16 v[{SP(u)}:{SP(u)+3}], v[{Vl(u)}:{Vl(u)+3}], v[{PF(u)}:{PF(u)+3}], 0')
    for u in range(10):
        for z in range(4): a(f'v_perm_b32 v{PF(u)+z}, v{LA(u)}, v{LA(u)}, v{232+z}')
        if u: pv(u - 1)
    pv(9)
    OM = lambda n: 44 + 4 * n
    for n in range(5):
        for e in range(2):
            u = 2 * n + e
            a(f'v_cvt_pk_bf16_f32 v{OM(n)+2*e}, v{SC(u)}, v{SC(u)+1}'); a(f'v_cvt_pk_bf16_f32 v{OM(n)+2*e+1}, v{SC(u)+2}, v{SC(u)+3}')
        if n:
            m = n - 1
            a(f'v_permlane16_swap_b32 v{OM(m)}, v{OM(m)+2}'); a(f'v_permlane16_swap_b32 v{OM(m)+1}, v{OM(m)+3}')
            guard(a, f'buffer_store_dwordx4 v[{OM(m)}:{OM(m)+3}], v236, s[36:39], s{48+m} offen sc1')
    for z in range(4):
        a(f's_mov_b64 exec, s[{28+2*z}:{29+2*z}]')
        for m in range(3):
            u = 4 * m + z
            if u < 10:
                a(f'v_cvt_pk_bf16_f32 v{64+2*m}, v{SP(u)}, v{SP(u)+1}'); a(f'v_cvt_pk_bf16_f32 v{65+2*m}, v{SP(u)+2}, v{SP(u)+3}')
    a('s_mov_b64 exec, s[24:25]')
    a(f'v_permlane16_swap_b32 v{OM(4)}, v{OM(4)+2}'); a(f'v_permlane16_swap_b32 v{OM(4)+1}, v{OM(4)+3}')
    seg(a, 'cq', 4)
    a(f'buffer_store_dwordx4 v[{OM(4)}:{OM(4)+3}], v236, s[36:39], s52 offen sc1')
    a('buffer_store_dwordx2 v[64:65], v237, s[36:39], 0 offen sc1')
    a('buffer_store_dwordx2 v[66:67], v237, s[36:39], s58 offen sc1')
    a('buffer_store_dwordx2 v[68:69], v244, s[36:39], s53 offen sc1')

def main():
    a = Asm()
    ref = open('cdna_kernels/' + NAME + '.s.ref').read().split('\n')
    for l in ref:
        if l.startswith('; @launch'): break
        a.raw(l)
    if E("LIST", 0): a.raw(f'; @launch kernel={KN} grid=(256,1,1) block=(512,1,1) lds=163840')
    else: a.raw('; @launch grid=(256,1,1) block=(512,1,1) lds=163840')
    a.raw('.amdgcn_target "amdgcn-amd-amdhsa--gfx950"')
    a.raw('.text'); a.raw(f'.globl {KN}'); a.raw(f'.type {KN},@function')
    kernel(a)
    a.raw('.section .rodata,"a"'); a.raw('.p2align 6')
    a.raw(f'''.amdhsa_kernel {KN}
  .amdhsa_next_free_vgpr 256
  .amdhsa_next_free_sgpr 100
  .amdhsa_accum_offset 256
  .amdhsa_group_segment_fixed_size 0
  .amdhsa_kernarg_size 80
  .amdhsa_user_sgpr_count 2
  .amdhsa_user_sgpr_kernarg_segment_ptr 1
  .amdhsa_system_sgpr_workgroup_id_x 1
.end_amdhsa_kernel''')
    open(sys.argv[1], 'w').write(a.text())
    print('nops inserted', a.nops)
main()
```
